```python
import torch

def _softmax(x, axis=-1):
    return torch.softmax(x, dim=axis)

def _gelu(x):
    return torch.nn.functional.gelu(x, approximate='tanh')

def _silu(x):
    return torch.nn.functional.silu(x)

def _sigmoid(x):
    return torch.sigmoid(x)

def _layernorm(x, axis=-1, eps=1e-05):
    m = x.mean(dim=axis, keepdim=True)
    v = x.var(dim=axis, keepdim=True, unbiased=False)
    return (x - m) / torch.sqrt(v + eps)

def _scatter_add(tgt, idx, src, axis=0):
    return tgt.clone().index_add_(axis, idx, src)

def _segment_sum(src, seg, n):
    out = torch.zeros((n,) + src.shape[1:], dtype=src.dtype)
    return out.index_add_(0, seg, src)

def _pad(x, pw):
    flat = tuple((v for pair in reversed(pw) for v in pair))
    return torch.nn.functional.pad(x, flat)
kernel_name = 'adaLN_cond__sliding_block_cached__swiglu_ffn__prompt'

def setup_inputs():

    _w = lambda a: (lambda t: t.to(torch.bfloat16) if t.is_floating_point() else t)(torch.as_tensor(a))

    def _A_setup():
        B, Sq, D = (1, 2048, 1024)
        Hq, Hkv, Sk, Dh = (32, 4, 2048, 128)
        assert Hq % Hkv == 0, (Hq, Hkv)
        return {'x': _w((lambda *s: torch.randn(*s, dtype=torch.bfloat16) * 0.05)(B, Sq, D)), 'k_cache': _w((lambda *s: torch.randn(*s, dtype=torch.bfloat16) * 3.2)(B, Hkv, Sk, Dh)), 'v_cache': _w((lambda *s: torch.randn(*s, dtype=torch.bfloat16) * 0.4)(B, Hkv, Sk, Dh)), 'wq': _w((lambda *s: torch.randn(*s, dtype=torch.bfloat16) * 3.2)(D, Hq * Dh) * D ** (-0.5)), 'wo': _w((lambda *s: torch.randn(*s, dtype=torch.bfloat16) * 0.4)(Hq * Dh, D) * (Hq * Dh) ** (-0.5))}
    _A_in = _A_setup()

    def _B_setup():
        B, S, D, F = (1, 2048, 1024, 3584)
        return {'x': _w((lambda *s: torch.randn(*s, dtype=torch.bfloat16) * 0.05)(B, S, D)), 'w_gate': _w((lambda *s: torch.randn(*s, dtype=torch.bfloat16) * 0.05)(D, F)), 'w_up': _w((lambda *s: torch.randn(*s, dtype=torch.bfloat16) * 0.05)(D, F)), 'w_down': _w((lambda *s: torch.randn(*s, dtype=torch.bfloat16) * 0.05)(F, D))}
    _B_in = _B_setup()
    return {'A_x': _A_in['x'], 'A_k_cache': _A_in['k_cache'], 'A_v_cache': _A_in['v_cache'], 'A_wq': _A_in['wq'], 'A_wo': _A_in['wo'], 'B_x': _B_in['x'], 'B_w_gate': _B_in['w_gate'], 'B_w_up': _B_in['w_up'], 'B_w_down': _B_in['w_down'], 'c': _w((lambda *s: torch.randn(*s, dtype=torch.bfloat16) * 0.1)(1, 1024) * 8.0), 'w_mod': _w((lambda *s: torch.randn(*s, dtype=torch.bfloat16) * 0.1)(1024, 6 * 1024) * 1024 ** (-0.5) * 8.0)}

def reference(A_x, A_k_cache, A_v_cache, A_wq, A_wo, B_x, B_w_gate, B_w_up, B_w_down, c, w_mod):

    def _A_ref(x, k_cache, v_cache, wq, wo):
        B, Sq, D = x.shape
        Hq, Dh = (32, 128)
        Hkv, Sk = (k_cache.shape[1], k_cache.shape[2])
        W = min(4096, max(256, Sk // 4))
        rep = Hq // Hkv
        q = (lambda x, *d: x.permute(*d))((x @ wq).reshape(B, Sq, Hq, Dh), 0, 2, 1, 3)
        k = (lambda x, n, axis: torch.repeat_interleave(x, n, dim=axis))(k_cache[:, :, Sk - W:, :], rep, axis=1)
        v = (lambda x, n, axis: torch.repeat_interleave(x, n, dim=axis))(v_cache[:, :, Sk - W:, :], rep, axis=1)
        scores = torch.einsum('bhqd,bhkd->bhqk', q, k) * Dh ** (-0.5)
        p = _softmax(scores, axis=-1)
        o = torch.einsum('bhqk,bhkd->bhqd', p, v)
        return (lambda x, *d: x.permute(*d))(o, 0, 2, 1, 3).reshape(B, Sq, Hq * Dh) @ wo

    def _B_ref(x, w_gate, w_up, w_down):
        g = _silu(x @ w_gate)
        u = x @ w_up
        return g * u @ w_down
    x = A_x
    mod = (_silu(c) @ w_mod).reshape(c.shape[0], 6, 1, -1)
    sa, ca, ga, sb, cb, gb = (mod[:, 0].clone(), mod[:, 1].clone(), mod[:, 2].clone(), mod[:, 3].clone(), mod[:, 4].clone(), mod[:, 5].clone())
    h = _layernorm(x, axis=-1) * (1 + ca) + sa
    x = x + ga * _A_ref(h, A_k_cache, A_v_cache, A_wq, A_wo)
    h = _layernorm(x, axis=-1) * (1 + cb) + sb
    x = x + gb * _B_ref(h, B_w_gate, B_w_up, B_w_down)
    return x
```

```python
import re

class Kern:
    def __init__(self, name, nvgpr=512, accum=256, nsgpr=96, lds=0, grid=256, block=256):
        self.name = name; self.lines = []; self.nvgpr = nvgpr; self.accum = accum; self.nsgpr = nsgpr
        self.lds = lds; self.grid = grid; self.block = block
        self.vmq = []
        self.uid = 0
    def __call__(self, s):
        for l in s.split('\n'):
            l = l.strip()
            if l: self.lines.append(l)
    def c(self, s): self.lines.append('; ' + s)
    def label(self, l): self.lines.append(l + ':')
    def L(self, base):
        self.uid += 1
        return '%s_%s_%d' % (self.name, base, self.uid)
    def vm(self, s, tag):
        self(s); self.vmq.append(tag)
    def vm_wait_n(self, pred):
        last = -1
        for i, t in enumerate(self.vmq):
            if pred(t): last = i
        return len(self.vmq) - 1 - last
    def text(self):
        out = []
        out.append('.text\n.globl %s\n.p2align 8\n.type %s,@function\n%s:' % (self.name, self.name, self.name))
        for l in self.lines:
            if l.endswith(':') or l.startswith(';') or l.startswith('.'): out.append(l)
            else: out.append('    ' + l)
        return '\n'.join(out)
    def desc(self):
        return ('.amdhsa_kernel %s\n  .amdhsa_next_free_vgpr %d\n  .amdhsa_next_free_sgpr %d\n  .amdhsa_accum_offset %d\n'
                '  .amdhsa_group_segment_fixed_size 0\n  .amdhsa_kernarg_size 112\n  .amdhsa_user_sgpr_count 2\n'
                '  .amdhsa_user_sgpr_kernarg_segment_ptr 1\n  .amdhsa_system_sgpr_workgroup_id_x 1\n'
                '  .amdhsa_float_denorm_mode_32 3\n  .amdhsa_float_denorm_mode_16_64 3\n'
                '.end_amdhsa_kernel' % (self.name, self.nvgpr, self.nsgpr, self.accum))

def vr(b, n=1, p='v'):
    return '%s%d' % (p, b) if n == 1 else '%s[%d:%d]' % (p, b, b+n-1)
def ar(b, n=1): return vr(b, n, 'a')
def sr(b, n=1): return vr(b, n, 's')

REG_RE = re.compile(r'\b([vas])\[(\d+):(\d+)\]|\b([vas])(\d+)\b|\b(vcc|exec|m0|scc|vcc_lo|vcc_hi|exec_lo|exec_hi)\b')
def regs_of(op):
    out = []
    for m in REG_RE.finditer(op):
        if m.group(1): out += [(m.group(1), i) for i in range(int(m.group(2)), int(m.group(3))+1)]
        elif m.group(4): out.append((m.group(4), int(m.group(5))))
        else:
            g = m.group(6)
            if g.startswith('vcc'): out.append(('x', 'vcc'))
            elif g.startswith('exec'): out.append(('x', 'exec'))
            else: out.append(('x', g))
    return out

TRANS = ('v_exp_f32', 'v_log_f32', 'v_rcp_f32', 'v_rsq_f32', 'v_sqrt_f32', 'v_sin_f32', 'v_cos_f32', 'v_rcp_iflag_f32')
def parse(l):
    l = l.split(';')[0].strip()
    if not l or l.endswith(':') or l.startswith('.'): return None
    parts = l.split(None, 1)
    op = parts[0]; rest = parts[1] if len(parts) > 1 else ''
    ops = [x.strip() for x in rest.split(',')] if rest else []
    d = dict(op=op, text=l, ops=ops)
    base = re.sub(r'_(e32|e64|dpp|sdwa)$', '', op)
    d['base'] = base
    if op.startswith('v_mfma'):
        d['cls'] = 'mfma'; d['w'] = regs_of(ops[0]); d['a'] = regs_of(ops[1]); d['b'] = regs_of(ops[2]); d['c'] = regs_of(ops[3])
        d['r'] = d['a'] + d['b'] + d['c']
        d['passes'] = 8 if '32x32' in op else 4
    elif op.startswith('v_'):
        d['cls'] = 'valu'
        if base.startswith('v_cmp'):
            d['w'] = regs_of(ops[0]); d['r'] = sum([regs_of(o) for o in ops[1:]], [])
            if base.startswith('v_cmpx'): d['w'] += [('x', 'exec')]
        elif base in ('v_readfirstlane_b32', 'v_readlane_b32'):
            d['w'] = regs_of(ops[0]); d['r'] = sum([regs_of(o) for o in ops[1:]], [])
        elif base in ('v_permlane32_swap_b32', 'v_permlane16_swap_b32'):
            d['w'] = regs_of(ops[0]) + regs_of(ops[1]); d['r'] = list(d['w'])
        elif base in ('v_add_co_u32', 'v_sub_co_u32', 'v_addc_co_u32', 'v_subb_co_u32', 'v_div_scale_f32', 'v_mad_u64_u32'):
            d['w'] = regs_of(ops[0]) + regs_of(ops[1]); d['r'] = sum([regs_of(o) for o in ops[2:]], [])
        else:
            d['w'] = regs_of(ops[0]); d['r'] = sum([regs_of(o) for o in ops[1:]], [])
            if base in ('v_fmac_f32', 'v_pk_fmac_f16', 'v_dot2c_f32_bf16', 'v_writelane_b32') : d['r'] += d['w']
            if base == 'v_cndmask_b32' and len(ops) == 3: d['r'].append(('x', 'vcc'))
            if 'dpp' in op or 'row_' in l or 'quad_perm' in l:
                d['dpp'] = True; d['r'] += d['w']
        d['trans'] = base in TRANS
    elif op.startswith('ds_'):
        d['cls'] = 'ds'
        o0 = ops[0];
        last = ops[-1].split()[0] if ops else ''
        ops2 = [o.split()[0] for o in ops]
        if op.startswith('ds_read') or op.startswith('ds_bpermute') or op.startswith('ds_swizzle') or op.startswith('ds_permute'):
            d['w'] = regs_of(ops2[0]); d['r'] = sum([regs_of(o) for o in ops2[1:]], [])
        else:
            d['w'] = []; d['r'] = sum([regs_of(o) for o in ops2], [])
    elif op.startswith('buffer_') or op.startswith('global_'):
        d['cls'] = 'vmem'
        ops2 = [o.split()[0] for o in ops]
        lds = ' lds' in (' ' + l) and op.startswith('buffer_load')
        d['lds'] = lds or 'load_lds' in op
        if op in ('buffer_wbl2', 'buffer_inv'):
            d['w'] = []; d['r'] = []
        elif op.startswith('buffer_load') and not lds:
            d['w'] = regs_of(ops2[0]); d['r'] = sum([regs_of(o) for o in ops2[1:]], [])
        elif op.startswith('buffer_load'):
            d['w'] = []; d['r'] = sum([regs_of(o) for o in ops2], []) + [('x', 'm0')]
        elif op.startswith('buffer_store'):
            d['w'] = []; d['r'] = sum([regs_of(o) for o in ops2], []); d['sdata'] = regs_of(ops2[0])
        elif op.startswith('buffer_atomic'):
            d['w'] = regs_of(ops2[0]) if ' sc0' in l else []; d['r'] = sum([regs_of(o) for o in ops2], [])
        elif op.startswith('global_load') and 'lds' not in op:
            d['w'] = regs_of(ops2[0]); d['r'] = sum([regs_of(o) for o in ops2[1:]], [])
        elif op.startswith('global_store'):
            d['w'] = []; d['r'] = sum([regs_of(o) for o in ops2], []); d['sdata'] = regs_of(ops2[1])
        else:
            d['w'] = regs_of(ops2[0]) if ' sc0' in l else []; d['r'] = sum([regs_of(o) for o in ops2], [])
    elif op.startswith('s_load') or op.startswith('s_memtime') or op.startswith('s_memrealtime') or op.startswith('s_buffer_load'):
        d['cls'] = 'smem'; d['w'] = regs_of(ops[0]); d['r'] = sum([regs_of(o) for o in ops[1:]], [])
    elif op == 's_waitcnt':
        d['cls'] = 'wait'; d['w'] = []; d['r'] = []
        m = re.search(r'vmcnt\((\d+)\)', l); d['vm'] = int(m.group(1)) if m else None
        m = re.search(r'lgkmcnt\((\d+)\)', l); d['lgkm'] = int(m.group(1)) if m else None
    elif op == 's_nop':
        d['cls'] = 'nop'; d['n'] = int(ops[0], 0) + 1; d['w'] = []; d['r'] = []
    elif op.startswith('s_cbranch') or op == 's_branch':
        d['cls'] = 'branch'; d['target'] = ops[0]; d['w'] = []; d['r'] = []
    elif op in ('s_barrier', 's_endpgm', 's_sleep', 's_setprio'):
        d['cls'] = 'other'; d['w'] = []; d['r'] = []
    elif op.startswith('s_'):
        d['cls'] = 'salu'
        if op.startswith('s_cmp') or op.startswith('s_bitcmp'):
            d['w'] = []; d['r'] = sum([regs_of(o) for o in ops], [])
        else:
            d['w'] = regs_of(ops[0]); d['r'] = sum([regs_of(o) for o in ops[1:]], [])
            if 'saveexec' in op: d['w'] = d['w'] + [('x', 'exec')]
    else:
        raise ValueError('cannot parse: ' + l)
    return d

def check(kern, loops=2, verbose=True):
    lines = kern.lines
    labels = {l[:-1]: i for i, l in enumerate(lines) if l.endswith(':') and not l.startswith(';')}
    insts = [parse(l) for l in lines]
    errs = []
    vmq = []
    lq = []
    pos = 0
    lastw = {}
    last_mfma_c = {}
    last_store = {}
    taken = {}
    pc = 0
    n = len(lines)
    steps = 0
    def err(msg, d): errs.append('%s: line %d: %s :: %s' % (kern.name, pc, msg, d['text']))
    while pc < n:
        steps += 1
        if steps > 2000000: errs.append('checker runaway'); break
        d = insts[pc]
        if d is None: pc += 1; continue
        cls = d['cls']
        rd = set(d.get('r', [])); wr = set(d.get('w', []))
        if cls not in ('wait',):
            for q, nm in ((vmq, 'vmem'), (lq, 'lgkm')):
                for e in q:
                    if e['w'] & rd: err('reads reg with pending %s load (%s)' % (nm, e['text']), d)
                    if e['w'] & wr and not (cls in ('vmem', 'ds', 'smem')): err('writes reg with pending %s load (%s)' % (nm, e['text']), d)
                    if e['w'] & wr and cls in ('vmem', 'ds', 'smem') and not (e['cls'] == cls): err('load WAW across queues (%s)' % e['text'], d)
        def dist(p): return pos - p - 1
        for r in rd:
            if r not in lastw: continue
            p, kind, info = lastw[r]
            ws = dist(p)
            if kind == 'mfma':
                need = None
                if cls == 'mfma':
                    if r in d['c'] and not (r in d['a'] or r in d['b']):
                        if info['w'] == d['c'] and info['passes'] == d['passes']: need = 0
                        else: need = {4: 6, 8: 10}[info['passes']]
                    else: need = {4: 8, 8: 12}[info['passes']]
                elif cls in ('valu', 'vmem', 'ds'): need = {4: 8, 8: 12}[info['passes']]
                if need is not None and ws < need: err('MFMA D->%s needs %d has %d (%s)' % (cls, need, ws, info['text']), d)
            elif kind == 'valu':
                if cls == 'mfma' and r[0] in 'va' and ws < 2: err('VALU->MFMA needs 2 has %d (%s)' % (ws, info['text']), d)
                if cls == 'valu':
                    if info.get('trans') and not d.get('trans') and ws < 1: err('trans->valu needs 1 (%s)' % info['text'], d)
                    if d['base'] in ('v_readfirstlane_b32', 'v_readlane_b32') and r[0] == 'v' and ws < 1: err('VALU->readlane needs 1', d)
                    if d['base'].startswith('v_permlane') and ws < 2: err('VALU->permlane needs 2 has %d' % ws, d)
                    if d.get('dpp') and r[0] == 'v' and ws < 2: err('VALU->DPP needs 2 has %d (%s)' % (ws, info['text']), d)
                    if (r[0] == 's' or r == ('x', 'vcc')) and ws < 2 and d['base'] not in ('v_addc_co_u32',): err('VALU sgpr/vcc write->VALU read needs 2 has %d (%s)' % (ws, info['text']), d)
                    if r == ('x', 'exec') and False: pass
                if cls == 'vmem' and r[0] == 's' and ws < 5: err('VALU sgpr write->VMEM needs 5 has %d' % ws, d)
                if info.get('trans') and cls in ('ds', 'vmem') and ws < 1: err('trans->mem needs 1', d)
            elif kind == 'salu':
                if r == ('x', 'm0') and cls == 'vmem' and ws < 1: err('M0 write->LDS DMA needs 1', d)
        for r in wr:
            if r in lastw:
                p, kind, info = lastw[r]
                ws = dist(p)
                if kind == 'mfma' and cls in ('valu',) :
                    need = {4: 8, 8: 12}[info['passes']]
                    if ws < need: err('MFMA D->VALU WAW needs %d has %d' % (need, ws), d)
                if kind == 'mfma' and cls in ('vmem', 'ds'):
                    need = {4: 8, 8: 12}[info['passes']]
                    if ws < need: err('MFMA D->load WAW needs %d has %d' % (need, ws), d)
                if kind == 'mfma' and cls == 'mfma' and not (info['w'] == d['w'] and d['c'] == d['w']):
                    need = {4: 6, 8: 10}[info['passes']]
                    if ws < need: err('MFMA D->MFMA WAW (diff C) needs %d has %d' % (need, ws), d)
            if cls == 'valu' and r in last_mfma_c:
                p, ps = last_mfma_c[r]
                need = {4: 3, 8: 7}[ps]
                if dist(p) < need: err('MFMA srcC read->VALU write WAR needs %d has %d' % (need, dist(p)), d)
            if r in last_store and cls == 'valu' and dist(last_store[r]) < 2: err('store data WAR needs 2', d)
            if r in last_store and cls != 'valu' and dist(last_store[r]) < 1: err('store data WAR needs 1', d)
        if cls == 'mfma' and ('x', 'exec') in lastw and lastw[('x', 'exec')][1] == 'valu' and dist(lastw[('x', 'exec')][0]) < 4:
            err('VALU exec write -> MFMA needs 4', d)
        if cls == 'wait':
            if d['vm'] is not None:
                while len(vmq) > d['vm']: vmq.pop(0)
            if d['lgkm'] is not None:
                if any(e['cls'] == 'smem' for e in lq) and d['lgkm'] > 0:
                    pass
                else:
                    while len(lq) > d['lgkm']: lq.pop(0)
        elif cls == 'vmem':
            vmq.append(dict(w=wr, text=d['text'], cls=cls))
            if len(vmq) > 63: err('more than 63 vmem outstanding', d)
            if 'sdata' in d and len(d['sdata']) >= 3:
                for r in d['sdata']: last_store[r] = pos
        elif cls == 'ds':
            lq.append(dict(w=wr, text=d['text'], cls=cls))
            if len(lq) > 16: err('more than 16 lgkm outstanding', d)
        elif cls == 'smem':
            lq.append(dict(w=wr, text=d['text'], cls=cls))
        if cls in ('valu', 'mfma', 'salu'):
            for r in wr: lastw[r] = (pos, cls, d)
        elif cls in ('vmem', 'ds', 'smem'):
            for r in wr: lastw.pop(r, None)
        if cls == 'mfma':
            for r in d['c']: last_mfma_c[r] = (pos, d['passes'])
        pos += d['n'] if cls == 'nop' else 1
        if cls == 'branch':
            t = labels.get(d['target'])
            if t is not None and t <= pc:
                k = taken.get(pc, 0)
                if k < loops - 1:
                    taken[pc] = k + 1; pc = t; continue
            elif d['op'] == 's_branch' and t is not None:
                pc = t; continue
        if d['op'] == 's_endpgm' and False: break
        pc += 1
    seen = set(); out = []
    for e in errs:
        if e not in seen: seen.add(e); out.append(e)
    if verbose:
        for e in out[:40]: print('CHECK', e)
        if len(out) > 40: print('CHECK ... %d more' % (len(out) - 40))
    return out
```

```python
import sys, math
from asmlib import *

NAME = 'adaLN_cond__sliding_block_cached__swiglu_ffn__prompt'
KA = dict(x=0, k=8, v=16, wq=24, wo=32, bx=40, wg=48, wu=56, wd=64, c=72, wmod=80, out=88, dbg=96, ws=104)
WS_MOD = 0x0
WS_H   = 0x100000
WS_O   = 0x500000
WS_P1  = 0x1500000
WS_X1  = 0x3500000
WS_H2  = 0x3900000
WS_ACT = 0x3D00000
WS_P2  = 0x4B00000
MFMA = 'v_mfma_f32_32x32x16_bf16'

def srd(k, s, lo, hi, size, add=None):
    if add:
        k('s_add_u32 s%d, s%d, 0x%x' % (s, lo, add))
        k('s_addc_u32 s%d, s%d, 0' % (s+1, hi))
    else:
        k('s_mov_b32 s%d, s%d' % (s, lo))
        k('s_mov_b32 s%d, s%d' % (s+1, hi))
    k('s_mov_b32 s%d, 0x%x' % (s+2, size))
    k('s_mov_b32 s%d, 0x20000' % (s+3))

INSTR = False
HACK16 = False
WS_STAMP = 0x8000000
def stamp(k, i):
    if INSTR:
        k('s_memtime s[%d:%d]' % (64+2*i, 65+2*i))
        if i == 0: k('s_memrealtime s[80:81]')
def stamp_out(k, n, wsreg=4):
    if not INSTR: return
    k('s_memrealtime s[82:83]')
    k('s_waitcnt vmcnt(0) lgkmcnt(0)')
    k('s_add_u32 s84, s%d, 0x%x' % (wsreg, WS_STAMP))
    k('s_addc_u32 s85, s%d, 0' % (wsreg+1))
    k('s_mov_b32 s86, 0x100000')
    k('s_mov_b32 s87, 0x20000')
    k('s_lshl_b32 s88, s2, 6')
    k('s_sub_u32 s82, s82, s80')
    k('v_cmp_eq_u32 vcc, 0, v0')
    k('s_and_saveexec_b64 s[90:91], vcc')
    lab = k.L('so')
    k('s_cbranch_execz %s' % lab)
    k('v_mov_b32 v2, s88')
    for i in range(n):
        k('v_mov_b32 v3, s%d' % (64+2*i))
        k('buffer_store_dword v3, v2, s[84:87], 0 offen offset:%d' % (4*i))
    k('v_mov_b32 v3, s82')
    k('buffer_store_dword v3, v2, s[84:87], 0 offen offset:60')
    k.label(lab)
    k('s_mov_b64 exec, s[90:91]')

def decode_wg(k):
    k('s_and_b32 s20, s2, 7')
    k('s_lshr_b32 s21, s2, 3')
    k('s_lshr_b32 s22, s20, 1')
    k('s_and_b32 s23, s20, 1')
    k('s_and_b32 s24, s21, 3')
    k('s_lshl_b32 s27, s23, 2')
    k('s_add_u32 s24, s24, s27')
    k('s_lshr_b32 s25, s21, 2')
    k('v_lshrrev_b32 v2, 6, v0')
    k('v_and_b32 v1, 63, v0')
    k('v_readfirstlane_b32 s26, v2')

class Gemm:
    def __init__(self, k, NB, nsteps, acc, xr, wf, vX, vW, vL, sXsrd, sWsrd, sXoff, sWoff, sM0, sCnt,
                 stage_bytes, ldw_step, nW, lds_imm, m0_plan, extra=None):
        self.k = k; self.NB = NB; self.nsteps = nsteps; self.acc = acc; self.xr = xr; self.wf = wf
        self.vX = vX; self.vW = vW; self.vL = vL; self.sX = sXsrd; self.sW = sWsrd; self.sXoff = sXoff; self.sWoff = sWoff
        self.sM0 = sM0; self.sCnt = sCnt; self.stage = stage_bytes; self.ldw_step = ldw_step; self.nW = nW
        self.lds_imm = lds_imm
        self.extra = extra or (lambda t, j: [])
        if nW == 4: self.wplan = [(-4, 3), (-3, 0), (-3, 1), (-3, 2)]
        elif nW == 7: self.wplan = [(-4, 3), (-4, 3), (-3, 0), (-3, 0), (-3, 1), (-3, 1), (-3, 2)]
    def accr(self, nb, mb): return self.acc + (nb*2 + mb)*16
    def xreg(self, s, mb, j): return self.xr + (s % 4)*32 + (mb*4 + j)*4
    def wreg(self, par, nb): return self.wf + par*self.NB*4 + nb*4
    def vmem_ops(self, t, j):
        ops = []
        s = t + 3
        xl = []
        if 0 <= s < self.nsteps:
            for mb in range(2):
                xl.append(([], 'buffer_load_dwordx4 %s, v%d, s[%d:%d], s%d offen offset:%d' % (ar(self.xreg(s, mb, j), 4), self.vX[mb], self.sX, self.sX+3, self.sXoff, j*1024), ('X', s, j)))
        wl = []
        for i, (dt, jj) in enumerate(self.wplan):
            if jj != j: continue
            s2 = t - dt
            if not (0 <= s2 < self.nsteps): continue
            pre = []
            if i == 0:
                pre.append('s_add_u32 s%d, s%d, 0x%x' % (self.sWoff, self.sWoff, self.ldw_step))
                pre.append('s_add_u32 m0, s%d, 0x%x' % (self.sM0, (s2 % 4)*self.stage))
            elif i == 4:
                pre.append('s_add_u32 m0, s%d, 0x%x' % (self.sM0, (s2 % 4)*self.stage + 4096))
            wl.append((pre, 'buffer_load_dwordx4 v%d, s[%d:%d], s%d offen offset:%d lds' % (self.vW[i], self.sW, self.sW+3, self.sWoff, (i % 4)*1024), ('W', s2, i)))
        while xl or wl:
            if xl: ops.append(xl.pop(0))
            if wl: ops.append(wl.pop(0))
        return ops
    def lds_reads(self, t, j):
        out = []
        par = j % 2
        for nb in range(self.NB):
            for sec in range(2):
                v, imm = self.lds_imm(t % 4, j, nb, sec)
                out.append('ds_read_b64_tr_b16 %s, v%d offset:%d' % (ar(self.wreg(par, nb) + 2*sec, 2), v, imm))
        return out
    def prologue(self):
        k = self.k
        for t, j in [(-4, 3)] + [(t, j) for t in range(-3, 0) for j in range(4)]:
            if j == 0: k('s_add_u32 s%d, s%d, 4096' % (self.sXoff, self.sXoff))
            for pre, ins, tag in self.vmem_ops(t, j):
                for p in pre: k(p)
                if pre: k('s_nop 0')
                k.vm(ins, tag)
    def start(self):
        k = self.k
        n = k.vm_wait_n(lambda tg: (tg[0] == 'W' and tg[1] == 0) or (tg[0] == 'X' and tg[1] == 0 and tg[2] <= 2))
        k('s_waitcnt vmcnt(%d)' % n)
        k('s_barrier')
        for r in self.lds_reads(0, 0): k(r)
    def step(self, t, first=False, record=True):
        k = self.k; NB = self.NB
        last = (t == self.nsteps - 1)
        k('s_add_u32 s%d, s%d, 4096' % (self.sXoff, self.sXoff)) if t + 3 < self.nsteps else None
        for j in range(4):
            if j == 3 and not last:
                n = k.vm_wait_n(lambda tg: (tg[0] == 'W' and tg[1] <= t+1) or (tg[0] == 'X' and (tg[1] <= t or (tg[1] == t+1 and tg[2] <= 2))))
                k('s_waitcnt vmcnt(%d) lgkmcnt(0)' % n)
                k('s_barrier')
            else:
                if j == 3:
                    n = k.vm_wait_n(lambda tg: tg[0] == 'X' and tg[1] <= t)
                    k('s_waitcnt vmcnt(%d) lgkmcnt(0)' % n)
                else:
                    k('s_waitcnt lgkmcnt(0)')
            if j < 3: reads = self.lds_reads(t, j+1)
            elif not last: reads = self.lds_reads(t+1, 0)
            else: reads = []
            vms = self.vmem_ops(t, j)
            extra = list(self.extra(t, j))
            vms += [e for e in extra if not isinstance(e, str)]
            plain = [e for e in extra if isinstance(e, str)]
            nm = 2*NB
            gaps = [[] for _ in range(nm)]
            for i, r in enumerate(reads): gaps[i // 2].append(('i', r))
            for i, op in enumerate(vms):
                g = NB + (i * NB) // max(1, len(vms))
                gaps[g].append(('vm', op))
            for i, e in enumerate(plain):
                gaps[(i * nm) // len(plain)].append(('i', e))
            m = 0
            for nb in range(NB):
                for mb in range(2):
                    d = vr(self.accr(nb, mb), 16)
                    c = '0' if (first and j == 0) else d
                    if HACK16:
                        for hh in range(2):
                            dd = vr(self.accr(nb, mb) + (j % 2)*8 + hh*4, 4)
                            k('v_mfma_f32_16x16x32_bf16 %s, %s, %s, %s' % (dd, ar(self.wreg(j % 2, nb), 4), ar(self.xreg(t, mb, j), 4), dd))
                    else:
                        k('%s %s, %s, %s, %s' % (MFMA, d, ar(self.wreg(j % 2, nb), 4), ar(self.xreg(t, mb, j), 4), c))
                    for kind, x in gaps[m]:
                        if kind == 'i': k(x)
                        else:
                            pre, ins, tag = x
                            for p in pre: k(p)
                            if pre: k('s_nop 0')
                            k.vm(ins, tag)
                    m += 1
    def mainloop(self):
        k = self.k; n = self.nsteps
        t = 0
        trips = 0
        while t + 4*trips + 3 + 4 <= n - 1: trips += 1
        if trips >= 2:
            lab = k.L('loop')
            k('s_mov_b32 s%d, %d' % (self.sCnt, trips))
            k.label(lab)
            for tt in range(t, t+4): self.step(tt)
            k('s_sub_u32 s%d, s%d, 1' % (self.sCnt, self.sCnt))
            k('s_cmp_lg_u32 s%d, 0' % self.sCnt)
            k('s_cbranch_scc1 %s' % lab)
            body = k.vmq[-4*(8+self.nW):]
            for r in range(1, trips):
                for tg in body: k.vmq.append((tg[0], tg[1] + 4*r, tg[2]))
            t += 4*trips
        for tt in range(t, n): self.step(tt)

def lds_addr_128(k, vL, lane='v1', tmp=2):
    a, b, c = tmp, tmp+1, tmp+2
    k('v_lshrrev_b32 v%d, 5, %s' % (a, lane))
    k('v_lshlrev_b32 v%d, 11, v%d' % (a, a))
    k('v_bfe_u32 v%d, %s, 2, 2' % (b, lane))
    k('v_lshl_add_u32 v%d, v%d, 8, v%d' % (a, b, a))
    k('v_bfe_u32 v%d, %s, 4, 1' % (c, lane))
    k('v_lshl_add_u32 v%d, v%d, 5, v%d' % (a, c, a))
    k('v_and_b32 v%d, 1, %s' % (c, lane))
    k('v_lshl_add_u32 v%d, v%d, 4, v%d' % (a, c, a))
    k('v_bfe_u32 v%d, %s, 1, 1' % (c, lane))
    k('v_lshl_add_u32 v%d, v%d, 3, v%d' % (a, c, a))
    for nb in range(4):
        k('v_xor_b32 v%d, %d, v%d' % (c, nb, b))
        k('v_lshl_add_u32 v%d, v%d, 6, v%d' % (vL[nb], c, a))

def gemm128_kernel(name, xoff, xsize, KS, ksq, wkey, ldw, nsteps, poff, prefetch=None):
    k = Kern(name, nvgpr=512, accum=256, lds=65536)
    k('s_cmp_ge_u32 s2, 256')
    k('s_cbranch_scc1 %s_end' % name)
    k('s_load_dwordx2 s[4:5], s[0:1], %d' % KA['ws'])
    k('s_load_dwordx2 s[6:7], s[0:1], %d' % KA[wkey])
    stamp(k, 0)
    decode_wg(k)
    vL = [4, 5, 6, 7]; vX = [8, 9]; vW = [10, 11, 12, 13]
    lds_addr_128(k, vL, tmp=14)
    k('v_lshlrev_b32 v8, 4, v1')
    k('v_add_u32 v9, 0x%x, v8' % (KS*1024))
    k('v_lshrrev_b32 v14, 4, v1')
    k('v_bfe_u32 v15, v1, 2, 2')
    k('v_xor_b32 v15, v15, v14')
    k('v_and_b32 v16, 3, v1')
    k('v_lshlrev_b32 v16, 4, v16')
    k('v_lshl_add_u32 v16, v15, 6, v16')
    k('s_lshl_b32 s27, s26, 4')
    k('v_add_u32 v14, s27, v14')
    k('s_lshl_b32 s28, s25, 8')
    k('v_mul_u32_u24 v14, %d, v14' % ldw)
    k('v_add3_u32 v10, v14, v16, s28')
    for i in range(1, 4):
        k('v_add_u32 v%d, 0x%x, v10' % (10+i, i*4*ldw - i*1024))
    k('s_waitcnt lgkmcnt(0)')
    srd(k, 8, 4, 5, xsize, xoff)
    srd(k, 12, 6, 7, ksq*4*16*ldw)
    srd(k, 16, 4, 5, 0x400000, None)
    k('s_lshl_b32 s27, s22, 22')
    k('s_add_u32 s27, s27, 0x%x' % poff)
    k('s_add_u32 s16, s4, s27')
    k('s_addc_u32 s17, s5, 0')
    k('s_lshl_b32 s27, s24, 3')
    k('s_lshl_b32 s28, s26, 1')
    k('s_add_u32 s27, s27, s28')
    k('s_mov_b32 s34, s27')
    k('s_mul_i32 s30, s27, %d' % KS)
    k('s_mul_i32 s28, s22, %d' % ksq)
    k('s_add_u32 s30, s30, s28')
    k('s_lshl_b32 s30, s30, 10')
    k('s_sub_u32 s30, s30, 4096')
    k('s_mul_i32 s31, s22, 0x%x' % (ksq*16*ldw))
    k('s_sub_u32 s31, s31, 0x%x' % (64*ldw))
    k('s_lshl_b32 s32, s26, 12')
    g = Gemm(k, 4, nsteps, acc=128, xr=0, wf=128, vX=vX, vW=vW, vL=vL, sXsrd=8, sWsrd=12, sXoff=30, sWoff=31, sM0=32, sCnt=33,
             stage_bytes=16384, ldw_step=64*ldw, nW=4,
             lds_imm=lambda buf, j, nb, sec: (vL[nb], buf*16384 + j*4096 + sec*1024), m0_plan=None)
    g.prologue()
    for r in range(128): k('v_mov_b32 v%d, 0' % (128 + r))
    stamp(k, 1)
    g.start()
    stamp(k, 2)
    g.mainloop()
    stamp(k, 3)
    k('s_lshl_b32 s27, s34, 6')
    k('s_lshl_b32 s28, s25, 3')
    k('s_add_u32 s27, s27, s28')
    k('s_lshl_b32 s27, s27, 10')
    k('s_add_u32 s28, s27, 0x10000')
    k('v_add_u32 v14, 4096, v8')
    k('s_nop 7')
    tmp = 16
    cnt = 0
    for nb in range(4):
        for mb in range(2):
            a = g.accr(nb, mb)
            for hh in range(2):
                t = tmp + (cnt % 4)*4; cnt += 1
                for r in range(4):
                    k('v_cvt_pk_bf16_f32 v%d, v%d, v%d' % (t+r, a + hh*8 + 2*r, a + hh*8 + 2*r + 1))
                ks = 2*nb + hh
                k('buffer_store_dwordx4 %s, v%d, s[16:19], s%d offen offset:%d' % (vr(t, 4), 8 if ks < 4 else 14, 27+mb, (ks % 4)*1024))
    stamp(k, 4)
    if INSTR: k('s_waitcnt vmcnt(0)')
    stamp(k, 5)
    stamp_out(k, 6)
    k.label(name + '_end')
    k('s_endpgm')
    return k


LOG2E = 1.4426950408889634
import struct as _st
def f2u(x): return _st.unpack('<I', _st.pack('<f', x))[0]

def gateup_kernel():
    name = 'gateup_kernel'
    STG = 28928; UPOFF = 14464
    k = Kern(name, nvgpr=512, accum=256, lds=4*STG)
    k('s_cmp_ge_u32 s2, 256')
    k('s_cbranch_scc1 %s_end' % name)
    k('s_load_dwordx2 s[4:5], s[0:1], %d' % KA['ws'])
    k('s_load_dwordx4 s[36:39], s[0:1], %d' % KA['wg'])
    stamp(k, 0)
    decode_wg(k)
    k('s_lshl_b32 s27, s22, 3')
    k('s_add_u32 s25, s25, s27')
    vL = [4, 5]; vX = [8, 9]; vW = [10, 11, 12, 13, 14, 15, 16]
    k('v_lshrrev_b32 v20, 5, v1')
    k('v_lshlrev_b32 v20, 3, v20')
    k('v_bfe_u32 v21, v1, 2, 2')
    k('v_add_u32 v20, v20, v21')
    k('v_mul_u32_u24 v20, 224, v20')
    k('v_bfe_u32 v21, v1, 4, 1')
    k('v_mul_u32_u24 v21, %d, v21' % UPOFF)
    k('v_add_u32 v20, v20, v21')
    k('v_and_b32 v21, 1, v1')
    k('v_lshl_add_u32 v20, v21, 4, v20')
    k('v_bfe_u32 v21, v1, 1, 1')
    k('v_lshl_add_u32 v4, v21, 3, v20')
    k('v_add_u32 v5, %d, v4' % (2*STG))
    k('v_lshlrev_b32 v8, 4, v1')
    k('v_add_u32 v9, 0x10000, v8')
    k('s_and_b32 s27, s26, 1')
    k('s_mul_i32 s28, s27, 448')
    k('s_mul_i32 s29, s25, 224')
    for i in range(7):
        k('v_add_u32 v20, s28, v1')
        if i: k('v_add_u32 v20, %d, v20' % (64*i))
        k('v_mul_u32_u24 v21, 4682, v20')
        k('v_lshrrev_b32 v21, 16, v21')
        k('v_mul_u32_u24 v22, 14, v21')
        k('v_sub_u32 v22, v20, v22')
        k('v_mul_u32_u24 v21, 7168, v21')
        k('v_lshl_add_u32 v21, v22, 4, v21')
        k('v_add_u32 v21, s29, v21')
        k('v_subrev_u32 v%d, %d, v21' % (vW[i], (i % 4)*1024))
    k('s_waitcnt lgkmcnt(0)')
    srd(k, 8, 4, 5, 0x400000, WS_H2)
    k('s_cmp_ge_u32 s26, 2')
    k('s_cselect_b32 s12, s38, s36')
    k('s_cselect_b32 s13, s39, s37')
    k('s_mov_b32 s14, 0x%x' % (1024*7168))
    k('s_mov_b32 s15, 0x20000')
    srd(k, 16, 4, 5, 2048*3584*2, WS_ACT)
    k('s_lshl_b32 s27, s24, 3')
    k('s_lshl_b32 s28, s26, 1')
    k('s_add_u32 s34, s27, s28')
    k('s_lshl_b32 s30, s34, 16')
    k('s_sub_u32 s30, s30, 4096')
    k('s_mov_b32 s31, 0x%x' % ((-64*7168) & 0xffffffff))
    k('s_lshr_b32 s27, s26, 1')
    k('s_mul_i32 s32, s27, %d' % UPOFF)
    k('s_and_b32 s27, s26, 1')
    k('s_mul_i32 s27, s27, 7168')
    k('s_add_u32 s32, s32, s27')
    g = Gemm(k, 7, 16, acc=32, xr=0, wf=128, vX=vX, vW=vW, vL=vL, sXsrd=8, sWsrd=12, sXoff=30, sWoff=31, sM0=32, sCnt=33,
             stage_bytes=STG, ldw_step=64*7168, nW=7,
             lds_imm=lambda buf, j, nb, sec: (vL[buf // 2], (buf % 2)*STG + j*3584 + sec*896 + nb*32), m0_plan=None)
    g.prologue()
    for r in range(224): k('v_mov_b32 v%d, 0' % (32 + r))
    stamp(k, 1)
    g.start()
    stamp(k, 2)
    g.mainloop()
    stamp(k, 3)
    k('s_mul_i32 s27, s34, 224')
    k('s_mul_i32 s28, s25, 7')
    k('s_add_u32 s27, s27, s28')
    k('s_lshl_b32 s27, s27, 10')
    k('s_add_u32 s28, s27, %d' % (224*1024))
    k('s_mov_b32 s40, 0x%x' % f2u(-LOG2E))
    k('s_mov_b32 s41, 0x%x' % f2u(-LOG2E))
    k('v_add_u32 v9, 4096, v8')
    k('s_nop 7')
    cnt = 0
    for b in range(7):
        for mb in range(2):
            a = g.accr(b, mb)
            t = 10 + (cnt % 2)*8
            o = 26 + 0
            o = 2 if cnt % 2 == 0 else 26
            o = 26 if cnt % 2 else 4
            cnt += 1
            for i in range(4): k('v_pk_mul_f32 %s, %s, s[40:41]' % (vr(t+2*i, 2), vr(a+2*i, 2)))
            for i in range(8): k('v_exp_f32 v%d, v%d' % (t+i, t+i))
            for i in range(4): k('v_pk_mul_f32 %s, %s, %s' % (vr(a+2*i, 2), vr(a+2*i, 2), vr(a+8+2*i, 2)))
            for i in range(4): k('v_pk_add_f32 %s, %s, 1.0 op_sel_hi:[1,0]' % (vr(t+2*i, 2), vr(t+2*i, 2)))
            for i in range(8): k('v_rcp_f32 v%d, v%d' % (t+i, t+i))
            k('s_nop 0')
            for i in range(4): k('v_pk_mul_f32 %s, %s, %s' % (vr(a+2*i, 2), vr(a+2*i, 2), vr(t+2*i, 2)))
            for i in range(4): k('v_cvt_pk_bf16_f32 v%d, v%d, v%d' % (o+i, a+2*i, a+2*i+1))
            k('buffer_store_dwordx4 %s, v%d, s[16:19], s%d offen offset:%d' % (vr(o, 4), 8 if b < 4 else 9, 27+mb, (b % 4)*1024))
    stamp(k, 4)
    if INSTR: k('s_waitcnt vmcnt(0)')
    stamp(k, 5)
    stamp_out(k, 6)
    k.label(name + '_end')
    k('s_endpgm')
    return k

LOG2E = 1.4426950408889634
import struct as _st
def f2u(x): return _st.unpack('<I', _st.pack('<f', x))[0]


def attn_kernel():
    name = 'attn_kernel'
    k = Kern(name, nvgpr=512, accum=256, lds=163840)
    KR, VR = 65536, 65536 + 49152
    k('s_cmp_ge_u32 s2, 256')
    k('s_cbranch_scc1 %s_end' % name)
    k('s_load_dwordx2 s[4:5], s[0:1], %d' % KA['ws'])
    k('s_load_dwordx2 s[6:7], s[0:1], %d' % KA['wq'])
    k('s_load_dwordx4 s[36:39], s[0:1], %d' % KA['k'])
    stamp(k, 0)
    decode_wg(k)
    k('s_lshl_b32 s27, s22, 3')
    k('s_add_u32 s25, s25, s27')
    vL = [4, 5, 6, 7]; vX = [8, 9]; vW = [10, 11, 12, 13]
    lds_addr_128(k, vL, tmp=40)
    ldw = 8192
    k('v_lshlrev_b32 v8, 4, v1')
    k('v_add_u32 v9, 0x10000, v8')
    k('v_lshrrev_b32 v40, 4, v1')
    k('v_bfe_u32 v41, v1, 2, 2')
    k('v_xor_b32 v41, v41, v40')
    k('v_and_b32 v42, 3, v1')
    k('v_lshlrev_b32 v42, 4, v42')
    k('v_lshl_add_u32 v42, v41, 6, v42')
    k('s_lshl_b32 s27, s26, 4')
    k('v_add_u32 v43, s27, v40')
    k('s_lshl_b32 s28, s25, 8')
    k('v_mul_u32_u24 v43, %d, v43' % ldw)
    k('v_add3_u32 v10, v43, v42, s28')
    for i in range(1, 4): k('v_add_u32 v%d, 0x%x, v10' % (10+i, i*4*ldw - i*1024))
    k('s_lshl_b32 s27, s26, 12')
    k('v_lshl_add_u32 v32, v40, 8, v42')
    k('v_add_u32 v32, s27, v32')
    k('v_and_b32 v41, 15, v1')
    for i in range(4):
        k('v_add_u32 v42, %d, v40' % (4*i))
        k('v_xor_b32 v42, v42, v41')
        k('v_lshlrev_b32 v42, 4, v42')
        k('v_lshl_add_u32 v42, v40, 8, v42')
        k('v_add_u32 v%d, s27, v42' % (28+i))
    k('v_and_b32 v40, 31, v1')
    k('v_lshrrev_b32 v41, 5, v1')
    k('v_and_b32 v42, 15, v1')
    k('v_xor_b32 v42, v42, v41')
    k('v_lshlrev_b32 v40, 8, v40')
    k('v_add_u32 v40, %d, v40' % KR)
    for ks in range(8):
        k('v_xor_b32 v43, %d, v42' % (2*ks))
        k('v_lshl_add_u32 v%d, v43, 4, v40' % (16+ks))
    k('v_lshrrev_b32 v41, 5, v1')
    k('v_lshlrev_b32 v41, 10, v41')
    for db in range(4):
        k('v_sub_u32 v%d, v%d, v41' % (24+db, vL[db]))
        k('v_add_u32 v%d, %d, v%d' % (24+db, VR, 24+db))
    k('s_waitcnt lgkmcnt(0)')
    srd(k, 8, 4, 5, 0x400000, WS_H)
    srd(k, 12, 6, 7, 0x800000)
    srd(k, 16, 4, 5, 0x1000000, WS_O)
    k('s_lshl_b32 s27, s22, 19')
    k('s_add_u32 s27, s27, 0x60000')
    k('s_add_u32 s44, s36, s27')
    k('s_addc_u32 s45, s37, 0')
    k('s_mov_b32 s46, 0x20000')
    k('s_mov_b32 s47, 0x20000')
    k('s_add_u32 s48, s38, s27')
    k('s_addc_u32 s49, s39, 0')
    k('s_mov_b32 s50, 0x20000')
    k('s_mov_b32 s51, 0x20000')
    k('s_lshl_b32 s27, s24, 3')
    k('s_lshl_b32 s28, s26, 1')
    k('s_add_u32 s34, s27, s28')
    k('s_lshl_b32 s30, s34, 16')
    k('s_sub_u32 s30, s30, 4096')
    k('s_mov_b32 s31, 0x%x' % ((-64*ldw) & 0xffffffff))
    k('s_lshl_b32 s32, s26, 12')

    QF = lambda mb, ks: 64 + (mb*8 + ks)*4
    SB = lambda par, mb: 128 + (par*2 + mb)*16
    PB = lambda par, mb, kk: 192 + ((par*2 + mb)*2 + kk)*4
    CB = lambda mb: 224 + mb*16
    def OA(db, mb):
        i = db*2 + mb
        return i*16 if i < 6 else 192 + (i-6)*16
    KF = lambda ks: 128 + ks*4
    VF = lambda kk, db: 160 + (kk*4 + db)*4
    LS = lambda mb, p: 33 + mb*2 + p
    MG = lambda mb: 37 + mb
    def kdma(soff, slot_expr_pre, tagid):
        out = []
        for i in range(4):
            pre = slot_expr_pre if i == 0 else []
            out.append((pre, 'buffer_load_dwordx4 v%d, s[44:47], s%d offen offset:%d lds' % (28+i, soff, i*1024), ('K', tagid, i)))
        return out
    def vdma(soff, slot_expr_pre, tagid):
        out = []
        for i in range(4):
            pre = slot_expr_pre if i == 0 else []
            out.append((pre, 'buffer_load_dwordx4 v32, s[48:51], s%d offen offset:%d lds' % (soff, i*1024), ('V', tagid, i)))
        return out
    def initial_dmas():
        ops = []
        for (kind, s_) in [('K', 0), ('V', 0), ('K', 1), ('V', 1), ('K', 2)]:
            if kind == 'K':
                ops += kdma(52, ['s_mov_b32 s52, %d' % (s_*16384), 's_add_u32 m0, s32, %d' % (KR + s_*16384)], s_)
            else:
                ops += vdma(53, ['s_mov_b32 s53, %d' % (s_*16384), 's_add_u32 m0, s32, %d' % (VR + s_*16384)], s_)
        return ops
    ini = initial_dmas()
    zero_list = ['v_accvgpr_write_b32 a%d, 0' % r for r in list(range(192, 224)) + list(range(0, 96))]
    def extra(t, j):
        out = []
        order = [(12, 3)] + [(tt, jj) for tt in (13, 14, 15) for jj in range(4)]
        if (t, j) in order:
            p = order.index((t, j))
            lo, hi = (p*20)//13, ((p+1)*20)//13
            out += ini[lo:hi]
        if t in (12, 13, 14, 15):
            z = zero_list[(t-12)*32:(t-11)*32]
            out += z[j*8:(j+1)*8]
        return out
    g = Gemm(k, 4, 16, acc=128, xr=0, wf=128, vX=vX, vW=vW, vL=vL, sXsrd=8, sWsrd=12, sXoff=30, sWoff=31, sM0=32, sCnt=33,
             stage_bytes=16384, ldw_step=64*ldw, nW=4,
             lds_imm=lambda buf, j, nb, sec: (vL[nb], buf*16384 + j*4096 + sec*1024), m0_plan=None, extra=extra)
    g.prologue()
    for r in range(128): k('v_mov_b32 v%d, 0' % (128 + r))
    k('v_mov_b32 v%d, 0xff800000' % MG(0))
    k('v_mov_b32 v%d, 0xff800000' % MG(1))
    k('s_mov_b32 s59, 0')
    stamp(k, 1)
    g.start()
    g.mainloop()
    stamp(k, 2)
    k('s_nop 7')
    k('s_nop 3')
    for nb in range(4):
        for mb in range(2):
            a = g.accr(nb, mb)
            for hh in range(2):
                for r in range(4):
                    k('v_cvt_pk_bf16_f32 v%d, v%d, v%d' % (QF(mb, 2*nb+hh) + r, a + hh*8 + 2*r, a + hh*8 + 2*r + 1))
    n = k.vm_wait_n(lambda tg: tg[0] in 'KV' and tg[1] == 0)
    k('s_waitcnt vmcnt(%d)' % n)
    k.label(name + '_pro')
    k('s_barrier')
    k('s_mov_b32 s52, %d' % (3*16384))
    k('s_mov_b32 s53, %d' % (2*16384))
    k('s_mov_b32 s54, 0')
    k('s_mov_b32 s55, %d' % (2*16384))
    k('s_mov_b32 s56, 0')
    k('s_mov_b32 s57, 0')
    k('v_mov_b32 v40, 0')
    k('ds_write_b32 v40, v40')
    for ks in range(8): k('ds_read_b128 %s, v%d' % (ar(KF(ks), 4), 16+ks))
    for mb in range(2):
        for p in range(2): k('v_mov_b32 v%d, 0' % LS(mb, p))
    k('s_waitcnt lgkmcnt(0)')
    for mb in range(2):
        for ks in range(8):
            d = vr(SB(0, mb), 16)
            k('%s %s, %s, %s, %s' % (MFMA, d, ar(KF(ks), 4), vr(QF(mb, ks), 4), '0' if ks == 0 else d))
    k('s_nop 7')
    k('s_nop 7')
    for mb in range(2):
        s0 = SB(0, mb); m = 40 + mb
        k('v_max3_f32 v%d, v%d, v%d, v%d' % (m, s0, s0+1, MG(mb)))
        for r in range(2, 16, 2): k('v_max3_f32 v%d, v%d, v%d, v%d' % (m, m, s0+r, s0+r+1))
    for mb in range(2):
        m = 40 + mb
        k('v_mov_b32 v42, v%d' % m)
        k('s_nop 1')
        k('v_permlane32_swap_b32 v%d, v42' % m)
        k('s_nop 1')
        k('v_max_f32 v%d, v%d, v42' % (m, m))
        for r in range(16): k('v_sub_f32 v%d, 0, v%d' % (CB(mb) + r, m))
        for r in range(16): k('v_add_f32 v%d, v%d, v%d' % (SB(0, mb) + r, SB(0, mb) + r, CB(mb) + r))
    stamp(k, 3)

    def softmax_ops(par):
        E = []; A_ = []
        for mb in range(2):
            s0 = SB(par, mb)
            for p in range(8):
                a, b = s0 + 2*p, s0 + 2*p + 1
                E.append(['v_exp_f32 v%d, v%d' % (a, a), 'v_exp_f32 v%d, v%d' % (b, b)])
                A_.append(['v_add_f32 v%d, v%d, v%d' % (LS(mb, 0), LS(mb, 0), a), 'v_add_f32 v%d, v%d, v%d' % (LS(mb, 1), LS(mb, 1), b),
                             'v_cvt_pk_bf16_f32 v%d, v%d, v%d' % (PB(par, mb, p // 4) + p % 4, a, b)])
        gaps = [E[0], E[1]]
        for p in range(14): gaps += [A_[p], E[p+2]]
        gaps += [A_[14], A_[15]]
        assert len(gaps) == 32
        return gaps
    def iteration(i_par, do_pv, do_s, kread_kb, vread_kb, dmas=None, pre_b=None):
        par = i_par
        sm = softmax_ops(par)
        k('s_waitcnt lgkmcnt(0)')
        mf = []
        if do_pv:
            for kk in range(2):
                for db in range(4):
                    for mb in range(2):
                        d = ar(OA(db, mb), 16)
                        mf.append('%s %s, %s, %s, %s' % (MFMA, d, ar(VF(kk, db), 4), vr(PB(1-par, mb, kk), 4), d))
        else: mf = [None]*16
        fill = [list(sm[g_]) for g_ in range(16)]
        if kread_kb is not None:
            for ks in range(8): fill[ks].append('ds_read_b128 %s, v%d offset:%d' % (ar(KF(ks), 4), 16+ks, kread_kb*8192))
        vmf = [[] for _ in range(16)]
        if dmas:
            for i_, op in enumerate(dmas): vmf[1 + 2*i_].append(op)
        for g_ in range(16):
            if mf[g_]: k(mf[g_])
            for x in fill[g_]: k(x)
            for pre, ins, tag in vmf[g_]:
                for p_ in pre: k(p_)
                if pre: k('s_nop 0')
                k.vm(ins, tag)
        if pre_b:
            for x in pre_b: k(x)
        k('s_waitcnt lgkmcnt(0)')
        mf = []
        if do_s:
            for mb in range(2):
                for ks in range(8):
                    d = vr(SB(1-par, mb), 16)
                    mf.append('%s %s, %s, %s, %s' % (MFMA, d, ar(KF(ks), 4), vr(QF(mb, ks), 4), vr(CB(mb), 16) if ks == 0 else d))
        else: mf = [None]*16
        fill = [list(sm[16 + g_]) for g_ in range(16)]
        rd = []
        for kk in range(2):
            for db in range(4):
                for sec in range(2):
                    rd.append('ds_read_b64_tr_b16 %s, v%d offset:%d' % (ar(VF(kk, db) + 2*sec, 2), 24+db, vread_kb*8192 + kk*4096 + sec*2048))
        pos = [0, 1, 1, 2, 3, 3, 4, 5, 5, 6, 7, 7, 8, 9, 9, 10]
        for r_, p_ in zip(rd, pos): fill[p_].append(r_)
        for g_ in range(16):
            if mf[g_]: k(mf[g_])
            for x in fill[g_]: k(x)
    iteration(0, False, True, 1, 0)
    k('s_mov_b32 s60, 7')
    lab = k.L('aloop')
    k.label(lab)
    before = list(k.vmq)
    k('s_waitcnt vmcnt(4)')
    k('s_barrier')
    k('s_add_u32 s58, s56, 16384')
    k('s_cmp_ge_u32 s58, 49152')
    k('s_cselect_b32 s58, 0, s58')
    k('s_sub_u32 s61, s58, s56')
    k('s_mov_b32 s56, s58')
    for ks in range(8): k('v_add_u32 v%d, s61, v%d' % (16+ks, 16+ks))
    dm = vdma(53, ['s_add_u32 m0, s32, s55', 's_add_u32 m0, m0, %d' % VR], 'n') + kdma(52, ['s_add_u32 m0, s32, s54', 's_add_u32 m0, m0, %d' % KR], 'n')
    iteration(1, True, True, 0, 1, dmas=dm)
    k('s_add_u32 s52, s52, 16384')
    k('s_add_u32 s53, s53, 16384')
    for sreg in (54, 55):
        k('s_add_u32 s%d, s%d, 16384' % (sreg, sreg))
        k('s_cmp_ge_u32 s%d, 49152' % sreg)
        k('s_cselect_b32 s%d, 0, s%d' % (sreg, sreg))
    k('s_add_u32 s58, s57, 16384')
    k('s_cmp_ge_u32 s58, 49152')
    k('s_cselect_b32 s58, 0, s58')
    k('s_sub_u32 s61, s58, s57')
    k('s_mov_b32 s57, s58')
    iteration(0, True, True, 1, 0, pre_b=['v_add_u32 v%d, s61, v%d' % (24+db, 24+db) for db in range(4)])
    k('s_sub_u32 s60, s60, 1')
    k('s_cmp_lg_u32 s60, 0')
    k('s_cbranch_scc1 %s' % lab)
    iteration(1, True, False, None, 1)
    k('s_waitcnt lgkmcnt(0)')
    for kk in range(2):
        for db in range(4):
            for mb in range(2):
                d = ar(OA(db, mb), 16)
                k('%s %s, %s, %s, %s' % (MFMA, d, ar(VF(kk, db), 4), vr(PB(1, mb, kk), 4), d))
    stamp(k, 4)
    for mb in range(2):
        k('v_add_f32 v%d, v%d, v%d' % (40+mb, LS(mb, 0), LS(mb, 1)))
        k('v_mov_b32 v42, v%d' % (40+mb))
        k('s_nop 1')
        k('v_permlane32_swap_b32 v%d, v42' % (40+mb))
        k('s_nop 1')
        k('v_add_f32 v%d, v%d, v42' % (40+mb, 40+mb))
    k('v_max_f32 v42, v40, v41')
    k('v_mov_b32 v43, 0x%x' % f2u(2.0**100))
    k('v_cmp_nlt_f32 vcc, v40, v43')
    k('v_cmp_nlt_f32 s[62:63], v41, v43')
    k('s_nop 1')
    k('s_or_b64 vcc, vcc, s[62:63]')
    k('s_cmp_lg_u64 vcc, 0')
    k('s_cselect_b32 s58, 1, 0')
    k('v_mov_b32 v43, s58')
    k('v_mov_b32 v44, 0')
    k('ds_or_b32 v44, v43')
    k('s_waitcnt vmcnt(0) lgkmcnt(0)')
    k('s_barrier')
    k('ds_read_b32 v43, v44')
    k('s_waitcnt lgkmcnt(0)')
    k('v_readfirstlane_b32 s58, v43')
    k('s_nop 3')
    k('s_cmp_lg_u32 s59, 0')
    k('s_cbranch_scc1 %s_fin' % name)
    k('s_cmp_lg_u32 s58, 0')
    k('s_cbranch_scc1 %s_slow' % name)
    k.label(name + '_fin')
    k('v_rcp_f32 v40, v40')
    k('v_rcp_f32 v41, v41')
    k('s_lshl_b32 s27, s34, 8')
    k('s_lshl_b32 s28, s25, 3')
    k('s_add_u32 s27, s27, s28')
    k('s_lshl_b32 s27, s27, 10')
    k('s_add_u32 s28, s27, 0x40000')
    k('v_add_u32 v9, 4096, v8')
    cnt = 0
    for db in range(4):
        for mb in range(2):
            a = OA(db, mb)
            for hh in range(2):
                t = 128 + (cnt % 4)*16; cnt += 1
                for r in range(8): k('v_accvgpr_read_b32 v%d, a%d' % (t+r, a + hh*8 + r))
                for r in range(8): k('v_mul_f32 v%d, v%d, v%d' % (t+r, t+r, 40+mb))
                for r in range(4): k('v_cvt_pk_bf16_f32 v%d, v%d, v%d' % (t+8+r, t+2*r, t+2*r+1))
                ks = 2*db + hh
                k('buffer_store_dwordx4 %s, v%d, s[16:19], s%d offen offset:%d' % (vr(t+8, 4), 8 if ks < 4 else 9, 27+mb, (ks % 4)*1024))
    stamp(k, 5)
    if INSTR: k('s_waitcnt vmcnt(0)')
    stamp(k, 6)
    stamp_out(k, 7)
    k('s_endpgm')
    k.label(name + '_slow')
    k('s_mov_b32 s59, 1')
    k('v_and_b32 v44, 31, v1')
    k('v_lshlrev_b32 v44, 8, v44')
    k('v_lshrrev_b32 v45, 5, v1')
    k('v_lshl_add_u32 v44, v45, 4, v44')
    k('s_mov_b32 s58, 0')
    lab2 = k.L('slow')
    k.label(lab2)
    for ks in range(8): k('buffer_load_dwordx4 %s, v44, s[44:47], s58 offen offset:%d' % (ar(KF(ks), 4), ks*32))
    k('s_waitcnt vmcnt(0)')
    for mb in range(2):
        for ks in range(8):
            d = vr(SB(0, mb), 16)
            k('%s %s, %s, %s, %s' % (MFMA, d, ar(KF(ks), 4), vr(QF(mb, ks), 4), '0' if ks == 0 else d))
    k('s_nop 7')
    k('s_nop 7')
    for mb in range(2):
        s0 = SB(0, mb)
        for r in range(0, 16, 2): k('v_max3_f32 v%d, v%d, v%d, v%d' % (MG(mb), MG(mb), s0+r, s0+r+1))
    k('s_add_u32 s58, s58, 8192')
    k('s_cmp_lt_u32 s58, 0x20000')
    k('s_cbranch_scc1 %s' % lab2)
    k('s_sub_u32 s61, 0, s56')
    for ks in range(8): k('v_add_u32 v%d, s61, v%d' % (16+ks, 16+ks))
    k('s_sub_u32 s61, 0, s57')
    for db in range(4): k('v_add_u32 v%d, s61, v%d' % (24+db, 24+db))
    for db in range(4):
        for mb in range(2):
            for r in range(16): k('v_accvgpr_write_b32 a%d, 0' % (OA(db, mb) + r))
    for pre, ins, tag in initial_dmas():
        for p_ in pre: k(p_)
        if pre: k('s_nop 0')
        k(ins)
    k('s_waitcnt vmcnt(0)')
    k('s_branch %s_pro' % name)
    k.label(name + '_end')
    k('s_endpgm')
    return k

def reduce8(k, v, t):
    k('s_nop 1')
    k('v_add_f32_dpp v%d, v%d, v%d row_ror:8 row_mask:0xf bank_mask:0xf' % (v, v, v))
    k('v_mov_b32 v%d, v%d' % (t, v))
    k('s_nop 1')
    k('v_permlane16_swap_b32 v%d, v%d' % (v, t))
    k('s_nop 1')
    k('v_add_f32 v%d, v%d, v%d' % (v, v, t))
    k('v_mov_b32 v%d, v%d' % (t, v))
    k('s_nop 1')
    k('v_permlane32_swap_b32 v%d, v%d' % (v, t))
    k('s_nop 1')
    k('v_add_f32 v%d, v%d, v%d' % (v, v, t))

def mod_kernel():
    name = 'mod_kernel'
    k = Kern(name, nvgpr=128, accum=128, lds=8192)
    k('s_cmp_ge_u32 s2, 256')
    k('s_cbranch_scc1 %s_end' % name)
    k('s_load_dwordx2 s[4:5], s[0:1], %d' % KA['ws'])
    k('s_load_dwordx2 s[6:7], s[0:1], %d' % KA['wmod'])
    k('s_load_dwordx2 s[28:29], s[0:1], %d' % KA['c'])
    k('s_load_dwordx2 s[30:31], s[0:1], %d' % KA['wq'])
    k('s_load_dwordx4 s[32:35], s[0:1], %d' % KA['k'])
    stamp(k, 0)
    k('s_cmp_ge_u32 s2, 96')
    k('s_cselect_b32 s20, 1, 0')
    k('s_mul_i32 s21, s20, 96')
    k('s_sub_u32 s21, s2, s21')
    k('v_and_b32 v1, 7, v0')
    k('v_lshrrev_b32 v2, 3, v0')
    k('v_mul_u32_u24 v3, 0x30000, v2')
    k('v_lshl_add_u32 v3, v1, 4, v3')
    k('v_lshlrev_b32 v4, 5, v2')
    k('s_waitcnt lgkmcnt(0)')
    srd(k, 8, 6, 7, 1024*6144*2)
    srd(k, 12, 28, 29, 2048)
    srd(k, 16, 4, 5, 0x10000, WS_MOD if WS_MOD else None)
    k('s_cmp_ge_u32 s2, 192')
    k('s_cbranch_scc1 %s_pf' % name)
    k('s_mul_i32 s22, s20, 0x%x' % (512*12288))
    k('s_lshl_b32 s23, s21, 7')
    k('s_add_u32 s22, s22, s23')
    k('s_lshl_b32 s23, s20, 10')
    k('buffer_load_dwordx4 v[8:11], v4, s[12:15], s23 offen')
    k('buffer_load_dwordx4 v[12:15], v4, s[12:15], s23 offen offset:16')
    for j in range(16):
        k('buffer_load_dwordx4 %s, v3, s[8:11], s22 offen' % vr(64+4*j, 4))
        if j < 15: k('s_add_u32 s22, s22, 12288')
    k('s_waitcnt vmcnt(16)')
    for i in range(8):
        k('v_lshlrev_b32 v%d, 16, v%d' % (16+2*i, 8+i))
        k('v_and_b32 v%d, 0xffff0000, v%d' % (17+2*i, 8+i))
    for i in range(16): k('v_mul_f32 v%d, 0x%x, v%d' % (32+i, f2u(-LOG2E), 16+i))
    for i in range(16): k('v_exp_f32 v%d, v%d' % (32+i, 32+i))
    for i in range(16): k('v_add_f32 v%d, 1.0, v%d' % (32+i, 32+i))
    for i in range(16): k('v_rcp_f32 v%d, v%d' % (32+i, 32+i))
    for i in range(16): k('v_mul_f32 v%d, v%d, v%d' % (16+i, 16+i, 32+i))
    for i in range(8): k('v_cvt_pk_bf16_f32 v%d, v%d, v%d' % (32+i, 16+2*i, 17+2*i))
    for i in range(8):
        k('v_lshlrev_b32 v%d, 16, v%d' % (16+2*i, 32+i))
        k('v_and_b32 v%d, 0xffff0000, v%d' % (17+2*i, 32+i))
    for i in range(8): k('v_mov_b32 v%d, 0' % (40+i))
    for j in range(16):
        k('s_waitcnt vmcnt(%d)' % (15-j))
        for i in range(4):
            k('v_lshlrev_b32 v48, 16, v%d' % (64+4*j+i))
            k('v_and_b32 v49, 0xffff0000, v%d' % (64+4*j+i))
            k('v_fmac_f32 v%d, v48, v%d' % (40+2*i, 16+j))
            k('v_fmac_f32 v%d, v49, v%d' % (41+2*i, 16+j))
    k('v_lshlrev_b32 v5, 8, v2')
    k('v_lshl_add_u32 v5, v1, 5, v5')
    k('ds_write_b128 v5, v[40:43]')
    k('ds_write_b128 v5, v[44:47] offset:16')
    k('s_waitcnt lgkmcnt(0)')
    k('s_barrier')
    k('v_and_b32 v6, 63, v0')
    k('v_lshrrev_b32 v7, 6, v0')
    k('v_lshlrev_b32 v5, 11, v7')
    k('v_lshl_add_u32 v5, v6, 2, v5')
    for i in range(8): k('ds_read_b32 v%d, v5 offset:%d' % (48+i, i*256))
    k('s_waitcnt lgkmcnt(0)')
    for i in range(1, 8): k('v_add_f32 v48, v48, v%d' % (48+i))
    k('s_barrier')
    k('v_lshlrev_b32 v5, 2, v0')
    k('ds_write_b32 v5, v48')
    k('s_waitcnt lgkmcnt(0)')
    k('s_barrier')
    k('v_cmp_gt_u32 vcc, 64, v0')
    k('s_and_saveexec_b64 s[24:25], vcc')
    k('s_cbranch_execz %s_skip' % name)
    for i in range(4): k('ds_read_b32 v%d, v5 offset:%d' % (48+i, i*256))
    k('s_waitcnt lgkmcnt(0)')
    k('v_add_f32 v48, v48, v49')
    k('v_add_f32 v50, v50, v51')
    k('v_add_f32 v48, v48, v50')
    k('s_mul_i32 s22, s20, 24576')
    k('s_lshl_b32 s23, s21, 8')
    k('s_add_u32 s22, s22, s23')
    k('buffer_store_dword v48, v5, s[16:19], s22 offen')
    k.label(name + '_skip')
    k('s_mov_b64 exec, s[24:25]')
    k.label(name + '_pf')
    k('s_and_b32 s20, s2, 7')
    k('s_lshr_b32 s20, s20, 1')
    k('s_lshr_b32 s21, s2, 3')
    srd(k, 8, 30, 31, 1024*4096*2)
    k('v_lshrrev_b32 v8, 4, v0')
    k('v_and_b32 v9, 15, v0')
    k('v_lshlrev_b32 v8, 13, v8')
    k('v_lshl_add_u32 v8, v9, 7, v8')
    k('s_lshl_b32 s22, s21, 18')
    k('s_lshl_b32 s23, s20, 11')
    k('s_add_u32 s22, s22, s23')
    k('buffer_load_dword v10, v8, s[8:11], s22 offen')
    k('s_add_u32 s22, s22, 0x20000')
    k('buffer_load_dword v11, v8, s[8:11], s22 offen')
    k('v_cmp_gt_u32 vcc, 32, v0')
    k('s_and_saveexec_b64 s[24:25], vcc')
    k('s_cbranch_execz %s_sk2' % name)
    k('v_lshlrev_b32 v8, 7, v0')
    srd(k, 8, 32, 33, 0x200000)
    srd(k, 12, 34, 35, 0x200000)
    k('s_lshl_b32 s22, s20, 19')
    k('s_lshl_b32 s23, s21, 12')
    k('s_add_u32 s22, s22, s23')
    k('s_add_u32 s22, s22, 0x60000')
    k('buffer_load_dword v12, v8, s[8:11], s22 offen')
    k('buffer_load_dword v13, v8, s[12:15], s22 offen')
    k.label(name + '_sk2')
    k('s_mov_b64 exec, s[24:25]')
    stamp(k, 1)
    stamp_out(k, 2)
    k.label(name + '_end')
    k('s_endpgm')
    return k

def ln_kernel(mode):
    name = mode + '_kernel'
    k = Kern(name, nvgpr=160, accum=160, lds=16384)
    k('s_cmp_ge_u32 s2, 256')
    k('s_cbranch_scc1 %s_end' % name)
    k('s_load_dwordx2 s[4:5], s[0:1], %d' % KA['ws'])
    k('s_load_dwordx2 s[6:7], s[0:1], %d' % KA['x'])
    k('s_load_dwordx2 s[28:29], s[0:1], %d' % KA['out'])
    stamp(k, 0)
    k('v_and_b32 v1, 63, v0')
    k('v_lshrrev_b32 v2, 6, v0')
    k('v_and_b32 v3, 7, v1')
    k('v_lshrrev_b32 v4, 3, v1')
    k('v_lshrrev_b32 v5, 1, v4')
    k('v_lshlrev_b32 v5, 10, v5')
    k('v_and_b32 v6, 1, v4')
    k('v_lshl_add_u32 v5, v6, 9, v5')
    k('v_lshl_add_u32 v5, v3, 4, v5')
    k('v_lshl_add_u32 v5, v2, 14, v5')
    k('v_lshlrev_b32 v6, 11, v3')
    k('v_lshl_add_u32 v6, v4, 4, v6')
    k('v_lshl_add_u32 v6, v2, 9, v6')
    k('v_lshlrev_b32 v7, 4, v0')
    k('s_lshr_b32 s20, s2, 2')
    k('s_lshl_b32 s20, s20, 16')
    k('s_and_b32 s24, s2, 3')
    k('s_lshl_b32 s24, s24, 7')
    k('s_add_u32 s20, s20, s24')
    for j in range(1, 4): k('s_add_u32 s%d, s20, %d' % (20+j, j*4096))
    k('s_lshl_b32 s24, s2, 14')
    k('s_waitcnt lgkmcnt(0)')
    srd(k, 8, 4, 5, 0x10000, WS_MOD if WS_MOD else None)
    srd(k, 12, 6, 7, 0x400000)
    X = 32
    RAW = 64
    vecs = {'ln1': [0, 1], 'ln2': [2, 3, 4], 'final': [5]}[mode]
    MV = 16
    for n, c in enumerate(vecs):
        for p in range(2):
            k('s_mov_b32 s25, %d' % (p*24576 + c*4096))
            k('buffer_load_dwordx4 %s, v7, s[8:11], s25 offen' % vr(MV + n*8 + p*4, 4))
    nmod = 2*len(vecs)
    if mode == 'ln1':
        for j in range(4): k('buffer_load_dwordx4 %s, v6, s[12:15], s24 offen offset:%d' % (vr(RAW + 4*j, 4), j*128))
        nld = 4
    else:
        poff = WS_P1 if mode == 'ln2' else WS_P2
        srd(k, 36, 4, 5, 0x1000000, poff)
        for q in range(4):
            for j in range(4):
                k('s_add_u32 s25, s%d, 0x%x' % (20+j, q*0x400000))
                k('buffer_load_dwordx4 %s, v5, s[36:39], s25 offen' % vr(RAW + 16 + q*16 + 4*j, 4))
        if mode == 'ln2':
            for j in range(4): k('buffer_load_dwordx4 %s, v6, s[12:15], s24 offen offset:%d' % (vr(RAW + 4*j, 4), j*128))
        else:
            srd(k, 40, 4, 5, 0x400000, WS_X1)
            for j in range(4): k('buffer_load_dwordx4 %s, v5, s[40:43], s%d offen' % (vr(RAW + 4*j, 4), 20+j))
        nld = 20
    k('s_waitcnt vmcnt(%d)' % nld)
    for n, c in enumerate(vecs):
        b = MV + n*8
        for i in range(4): k('v_add_f32 v%d, v%d, v%d' % (b+i, b+i, b+4+i))
        k('v_cvt_pk_bf16_f32 v%d, v%d, v%d' % (b+4, b, b+1))
        k('v_cvt_pk_bf16_f32 v%d, v%d, v%d' % (b+5, b+2, b+3))
        k('v_lshlrev_b32 v%d, 16, v%d' % (b, b+4))
        k('v_and_b32 v%d, 0xffff0000, v%d' % (b+1, b+4))
        k('v_lshlrev_b32 v%d, 16, v%d' % (b+2, b+5))
        k('v_and_b32 v%d, 0xffff0000, v%d' % (b+3, b+5))
        if c in (1, 4):
            for i in range(4): k('v_add_f32 v%d, 1.0, v%d' % (b+i, b+i))
            k('v_cvt_pk_bf16_f32 v%d, v%d, v%d' % (b+4, b, b+1))
            k('v_cvt_pk_bf16_f32 v%d, v%d, v%d' % (b+5, b+2, b+3))
            k('v_lshlrev_b32 v%d, 16, v%d' % (b, b+4))
            k('v_and_b32 v%d, 0xffff0000, v%d' % (b+1, b+4))
            k('v_lshlrev_b32 v%d, 16, v%d' % (b+2, b+5))
            k('v_and_b32 v%d, 0xffff0000, v%d' % (b+3, b+5))
        if mode == 'ln1':
            cs = f2u(128**-0.5 * LOG2E)
            for i in range(4): k('v_mul_f32 v%d, 0x%x, v%d' % (b+i, cs, b+i))
        k('ds_write_b128 v7, %s offset:%d' % (vr(b, 4), n*4096))
    k('v_lshlrev_b32 v8, 10, v2')
    k('v_lshl_add_u32 v8, v4, 5, v8')
    k('s_waitcnt vmcnt(0)')
    for j in range(4):
        for i in range(4):
            k('v_lshlrev_b32 v%d, 16, v%d' % (X + 8*j + 2*i, RAW + 4*j + i))
            k('v_and_b32 v%d, 0xffff0000, v%d' % (X + 8*j + 2*i + 1, RAW + 4*j + i))
    k('s_waitcnt lgkmcnt(0)')
    k('s_barrier')
    M = 16
    if mode != 'ln1':
        for j in range(4):
            k('ds_read_b128 v[16:19], v8 offset:%d' % (j*256))
            k('ds_read_b128 v[20:23], v8 offset:%d' % (j*256 + 16))
            for i in range(4):
                k('v_lshlrev_b32 v24, 16, v%d' % (RAW + 16 + 4*j + i))
                k('v_and_b32 v25, 0xffff0000, v%d' % (RAW + 16 + 4*j + i))
                for q in range(1, 4):
                    k('v_lshlrev_b32 v26, 16, v%d' % (RAW + 16 + q*16 + 4*j + i))
                    k('v_and_b32 v27, 0xffff0000, v%d' % (RAW + 16 + q*16 + 4*j + i))
                    k('v_add_f32 v24, v24, v26')
                    k('v_add_f32 v25, v25, v27')
                if i == 0: k('s_waitcnt lgkmcnt(0)')
                k('v_fmac_f32 v%d, v24, v%d' % (X + 8*j + 2*i, 16 + 2*i))
                k('v_fmac_f32 v%d, v25, v%d' % (X + 8*j + 2*i + 1, 17 + 2*i))
        for j in range(4):
            for i in range(4):
                k('v_cvt_pk_bf16_f32 v%d, v%d, v%d' % (RAW + 4*j + i, X + 8*j + 2*i, X + 8*j + 2*i + 1))
        if mode == 'final':
            srd(k, 12, 28, 29, 0x400000)
            for j in range(4): k('buffer_store_dwordx4 %s, v6, s[12:15], s24 offen offset:%d' % (vr(RAW + 4*j, 4), j*128))
        else:
            srd(k, 40, 4, 5, 0x400000, WS_X1)
            for j in range(4): k('buffer_store_dwordx4 %s, v5, s[40:43], s%d offen' % (vr(RAW + 4*j, 4), 20+j))
            for j in range(4):
                for i in range(4):
                    k('v_lshlrev_b32 v%d, 16, v%d' % (X + 8*j + 2*i, RAW + 4*j + i))
                    k('v_and_b32 v%d, 0xffff0000, v%d' % (X + 8*j + 2*i + 1, RAW + 4*j + i))
    if mode != 'final':
        RED = 12288
        k('v_add_f32 v24, v%d, v%d' % (X, X+1))
        for i in range(2, 32): k('v_add_f32 v24, v24, v%d' % (X+i))
        reduce8(k, 24, 25)
        k('v_lshlrev_b32 v9, 4, v3')
        k('v_lshl_add_u32 v10, v2, 2, v9')
        k('ds_write_b32 v10, v24 offset:%d' % RED)
        k('s_waitcnt lgkmcnt(0)')
        k('s_barrier')
        k('ds_read_b128 v[24:27], v9 offset:%d' % RED)
        k('s_waitcnt lgkmcnt(0)')
        k('v_add_f32 v24, v24, v25')
        k('v_add_f32 v26, v26, v27')
        k('v_add_f32 v24, v24, v26')
        k('v_mul_f32 v24, 0x%x, v24' % f2u(1.0/1024))
        for i in range(32): k('v_sub_f32 v%d, v%d, v24' % (X+i, X+i))
        k('v_mul_f32 v24, v%d, v%d' % (X, X))
        for i in range(1, 32): k('v_fmac_f32 v24, v%d, v%d' % (X+i, X+i))
        reduce8(k, 24, 25)
        k('ds_write_b32 v10, v24 offset:%d' % (RED + 128))
        k('s_waitcnt lgkmcnt(0)')
        k('s_barrier')
        k('ds_read_b128 v[24:27], v9 offset:%d' % (RED + 128))
        k('s_waitcnt lgkmcnt(0)')
        k('v_add_f32 v24, v24, v25')
        k('v_add_f32 v26, v26, v27')
        k('v_add_f32 v24, v24, v26')
        k('v_mov_b32 v25, 0x%x' % f2u(1e-5))
        k('v_fmac_f32 v25, 0x%x, v24' % f2u(1.0/1024))
        k('v_rsq_f32 v28, v25')
        k('s_nop 0')
        sh, sc = (0, 1) if mode == 'ln1' else (1, 2)
        hoff = WS_H if mode == 'ln1' else WS_H2
        srd(k, 44, 4, 5, 0x400000, hoff)
        for j in range(4):
            k('ds_read_b128 v[16:19], v8 offset:%d' % (sc*4096 + j*256))
            k('ds_read_b128 v[20:23], v8 offset:%d' % (sc*4096 + j*256 + 16))
            k('ds_read_b128 v[96:99], v8 offset:%d' % (sh*4096 + j*256))
            k('ds_read_b128 v[100:103], v8 offset:%d' % (sh*4096 + j*256 + 16))
            for i in range(8): k('v_mul_f32 v%d, v%d, v28' % (X + 8*j + i, X + 8*j + i))
            k('s_waitcnt lgkmcnt(0)')
            for i in range(8): k('v_fma_f32 v%d, v%d, v%d, v%d' % (X + 8*j + i, X + 8*j + i, 16+i, 96+i))
            for i in range(4): k('v_cvt_pk_bf16_f32 v%d, v%d, v%d' % (104 + 4*j + i, X + 8*j + 2*i, X + 8*j + 2*i + 1))
            k('buffer_store_dwordx4 %s, v5, s[44:47], s%d offen' % (vr(104 + 4*j, 4), 20+j))
    stamp(k, 1)
    stamp_out(k, 2)
    k.label(name + '_end')
    k('s_endpgm')
    return k

HEADER = open('cdna_kernels/%s.s.ref' % NAME).read().split('; Override launch')[0] if __import__('os').path.exists('cdna_kernels/%s.s.ref' % NAME) else ''

def assemble(kerns, launches=None):
    out = [HEADER.rstrip()]
    for kn in (launches or kerns):
        out.append('; @launch kernel=%s grid=(%d,1,1) block=(%d,1,1) lds=%d' % (kn.name, kn.grid, kn.block, kn.lds))
    out.append('.amdgcn_target "amdgcn-amd-amdhsa--gfx950"')
    for kn in kerns: out.append(kn.text())
    out.append('.section .rodata,"a"')
    for kn in kerns:
        out.append('.p2align 6'); out.append(kn.desc())
    return '\n'.join(out) + '\n'

def all_kernels():
    ks = []
    ks.append(mod_kernel())
    ks.append(ln_kernel('ln1'))
    ks.append(attn_kernel())
    ks.append(gemm128_kernel('oproj_kernel', WS_O, 0x1000000, 256, 64, 'wo', 2048, 16, WS_P1))
    ks.append(ln_kernel('ln2'))
    ks.append(gateup_kernel())
    ks.append(gemm128_kernel('down_kernel', WS_ACT, 2048*3584*2, 224, 56, 'wd', 2048, 14, WS_P2))
    ks.append(ln_kernel('final'))
    return ks

if __name__ == '__main__':
    if 'instr' in sys.argv: INSTR = True
    if 'hack16' in sys.argv: HACK16 = True
    ks = all_kernels()
    bad = 0
    for kn in ks: bad += len(check(kn))
    txt = assemble(ks)
    open(sys.argv[1] if len(sys.argv) > 1 else 'out.s', 'w').write(txt)
    print('generated', len(txt), 'bytes; check errors:', bad)
```

```python
import re

class Kern:
    def __init__(self, name, nvgpr=512, accum=256, nsgpr=96, lds=0, grid=256, block=256):
        self.name = name; self.lines = []; self.nvgpr = nvgpr; self.accum = accum; self.nsgpr = nsgpr
        self.lds = lds; self.grid = grid; self.block = block
        self.vmq = []
        self.uid = 0
    def __call__(self, s):
        for l in s.split('\n'):
            l = l.strip()
            if l: self.lines.append(l)
    def c(self, s): self.lines.append('; ' + s)
    def label(self, l): self.lines.append(l + ':')
    def L(self, base):
        self.uid += 1
        return '%s_%s_%d' % (self.name, base, self.uid)
    def vm(self, s, tag):
        self(s); self.vmq.append(tag)
    def vm_wait_n(self, pred):
        last = -1
        for i, t in enumerate(self.vmq):
            if pred(t): last = i
        return len(self.vmq) - 1 - last
    def text(self):
        out = []
        out.append('.text\n.globl %s\n.p2align 8\n.type %s,@function\n%s:' % (self.name, self.name, self.name))
        for l in self.lines:
            if l.endswith(':') or l.startswith(';') or l.startswith('.'): out.append(l)
            else: out.append('    ' + l)
        return '\n'.join(out)
    def desc(self):
        return ('.amdhsa_kernel %s\n  .amdhsa_next_free_vgpr %d\n  .amdhsa_next_free_sgpr %d\n  .amdhsa_accum_offset %d\n'
                '  .amdhsa_group_segment_fixed_size 0\n  .amdhsa_kernarg_size 112\n  .amdhsa_user_sgpr_count 2\n'
                '  .amdhsa_user_sgpr_kernarg_segment_ptr 1\n  .amdhsa_system_sgpr_workgroup_id_x 1\n'
                '  .amdhsa_float_denorm_mode_32 3\n  .amdhsa_float_denorm_mode_16_64 3\n'
                '.end_amdhsa_kernel' % (self.name, self.nvgpr, self.nsgpr, self.accum))

def vr(b, n=1, p='v'):
    return '%s%d' % (p, b) if n == 1 else '%s[%d:%d]' % (p, b, b+n-1)
def ar(b, n=1): return vr(b, n, 'a')
def sr(b, n=1): return vr(b, n, 's')

REG_RE = re.compile(r'\b([vas])\[(\d+):(\d+)\]|\b([vas])(\d+)\b|\b(vcc|exec|m0|scc|vcc_lo|vcc_hi|exec_lo|exec_hi)\b')
def regs_of(op):
    out = []
    for m in REG_RE.finditer(op):
        if m.group(1): out += [(m.group(1), i) for i in range(int(m.group(2)), int(m.group(3))+1)]
        elif m.group(4): out.append((m.group(4), int(m.group(5))))
        else:
            g = m.group(6)
            if g.startswith('vcc'): out.append(('x', 'vcc'))
            elif g.startswith('exec'): out.append(('x', 'exec'))
            else: out.append(('x', g))
    return out

TRANS = ('v_exp_f32', 'v_log_f32', 'v_rcp_f32', 'v_rsq_f32', 'v_sqrt_f32', 'v_sin_f32', 'v_cos_f32', 'v_rcp_iflag_f32')
def parse(l):
    l = l.split(';')[0].strip()
    if not l or l.endswith(':') or l.startswith('.'): return None
    parts = l.split(None, 1)
    op = parts[0]; rest = parts[1] if len(parts) > 1 else ''
    ops = [x.strip() for x in rest.split(',')] if rest else []
    d = dict(op=op, text=l, ops=ops)
    base = re.sub(r'_(e32|e64|dpp|sdwa)$', '', op)
    d['base'] = base
    if op.startswith('v_mfma'):
        d['cls'] = 'mfma'; d['w'] = regs_of(ops[0]); d['a'] = regs_of(ops[1]); d['b'] = regs_of(ops[2]); d['c'] = regs_of(ops[3])
        d['r'] = d['a'] + d['b'] + d['c']
        d['passes'] = 8 if '32x32' in op else 4
    elif op.startswith('v_'):
        d['cls'] = 'valu'
        if base.startswith('v_cmp'):
            d['w'] = regs_of(ops[0]); d['r'] = sum([regs_of(o) for o in ops[1:]], [])
            if base.startswith('v_cmpx'): d['w'] += [('x', 'exec')]
        elif base in ('v_readfirstlane_b32', 'v_readlane_b32'):
            d['w'] = regs_of(ops[0]); d['r'] = sum([regs_of(o) for o in ops[1:]], [])
        elif base in ('v_permlane32_swap_b32', 'v_permlane16_swap_b32'):
            d['w'] = regs_of(ops[0]) + regs_of(ops[1]); d['r'] = list(d['w'])
        elif base in ('v_add_co_u32', 'v_sub_co_u32', 'v_addc_co_u32', 'v_subb_co_u32', 'v_div_scale_f32', 'v_mad_u64_u32'):
            d['w'] = regs_of(ops[0]) + regs_of(ops[1]); d['r'] = sum([regs_of(o) for o in ops[2:]], [])
        else:
            d['w'] = regs_of(ops[0]); d['r'] = sum([regs_of(o) for o in ops[1:]], [])
            if base in ('v_fmac_f32', 'v_pk_fmac_f16', 'v_dot2c_f32_bf16', 'v_writelane_b32') : d['r'] += d['w']
            if base == 'v_cndmask_b32' and len(ops) == 3: d['r'].append(('x', 'vcc'))
            if 'dpp' in op or 'row_' in l or 'quad_perm' in l:
                d['dpp'] = True; d['r'] += d['w']
        d['trans'] = base in TRANS
    elif op.startswith('ds_'):
        d['cls'] = 'ds'
        o0 = ops[0];
        last = ops[-1].split()[0] if ops else ''
        ops2 = [o.split()[0] for o in ops]
        if op.startswith('ds_read') or op.startswith('ds_bpermute') or op.startswith('ds_swizzle') or op.startswith('ds_permute'):
            d['w'] = regs_of(ops2[0]); d['r'] = sum([regs_of(o) for o in ops2[1:]], [])
        else:
            d['w'] = []; d['r'] = sum([regs_of(o) for o in ops2], [])
    elif op.startswith('buffer_') or op.startswith('global_'):
        d['cls'] = 'vmem'
        ops2 = [o.split()[0] for o in ops]
        lds = ' lds' in (' ' + l) and op.startswith('buffer_load')
        d['lds'] = lds or 'load_lds' in op
        if op in ('buffer_wbl2', 'buffer_inv'):
            d['w'] = []; d['r'] = []
        elif op.startswith('buffer_load') and not lds:
            d['w'] = regs_of(ops2[0]); d['r'] = sum([regs_of(o) for o in ops2[1:]], [])
        elif op.startswith('buffer_load'):
            d['w'] = []; d['r'] = sum([regs_of(o) for o in ops2], []) + [('x', 'm0')]
        elif op.startswith('buffer_store'):
            d['w'] = []; d['r'] = sum([regs_of(o) for o in ops2], []); d['sdata'] = regs_of(ops2[0])
        elif op.startswith('buffer_atomic'):
            d['w'] = regs_of(ops2[0]) if ' sc0' in l else []; d['r'] = sum([regs_of(o) for o in ops2], [])
        elif op.startswith('global_load') and 'lds' not in op:
            d['w'] = regs_of(ops2[0]); d['r'] = sum([regs_of(o) for o in ops2[1:]], [])
        elif op.startswith('global_store'):
            d['w'] = []; d['r'] = sum([regs_of(o) for o in ops2], []); d['sdata'] = regs_of(ops2[1])
        else:
            d['w'] = regs_of(ops2[0]) if ' sc0' in l else []; d['r'] = sum([regs_of(o) for o in ops2], [])
    elif op.startswith('s_load') or op.startswith('s_memtime') or op.startswith('s_memrealtime') or op.startswith('s_buffer_load'):
        d['cls'] = 'smem'; d['w'] = regs_of(ops[0]); d['r'] = sum([regs_of(o) for o in ops[1:]], [])
    elif op == 's_waitcnt':
        d['cls'] = 'wait'; d['w'] = []; d['r'] = []
        m = re.search(r'vmcnt\((\d+)\)', l); d['vm'] = int(m.group(1)) if m else None
        m = re.search(r'lgkmcnt\((\d+)\)', l); d['lgkm'] = int(m.group(1)) if m else None
    elif op == 's_nop':
        d['cls'] = 'nop'; d['n'] = int(ops[0], 0) + 1; d['w'] = []; d['r'] = []
    elif op.startswith('s_cbranch') or op == 's_branch':
        d['cls'] = 'branch'; d['target'] = ops[0]; d['w'] = []; d['r'] = []
    elif op in ('s_barrier', 's_endpgm', 's_sleep', 's_setprio'):
        d['cls'] = 'other'; d['w'] = []; d['r'] = []
    elif op.startswith('s_'):
        d['cls'] = 'salu'
        if op.startswith('s_cmp') or op.startswith('s_bitcmp'):
            d['w'] = []; d['r'] = sum([regs_of(o) for o in ops], [])
        else:
            d['w'] = regs_of(ops[0]); d['r'] = sum([regs_of(o) for o in ops[1:]], [])
            if 'saveexec' in op: d['w'] = d['w'] + [('x', 'exec')]
    else:
        raise ValueError('cannot parse: ' + l)
    return d

def check(kern, loops=2, verbose=True):
    lines = kern.lines
    labels = {l[:-1]: i for i, l in enumerate(lines) if l.endswith(':') and not l.startswith(';')}
    insts = [parse(l) for l in lines]
    errs = []
    vmq = []
    lq = []
    pos = 0
    lastw = {}
    last_mfma_c = {}
    last_store = {}
    taken = {}
    pc = 0
    n = len(lines)
    steps = 0
    def err(msg, d): errs.append('%s: line %d: %s :: %s' % (kern.name, pc, msg, d['text']))
    while pc < n:
        steps += 1
        if steps > 2000000: errs.append('checker runaway'); break
        d = insts[pc]
        if d is None: pc += 1; continue
        cls = d['cls']
        rd = set(d.get('r', [])); wr = set(d.get('w', []))
        if cls not in ('wait',):
            for q, nm in ((vmq, 'vmem'), (lq, 'lgkm')):
                for e in q:
                    if e['w'] & rd: err('reads reg with pending %s load (%s)' % (nm, e['text']), d)
                    if e['w'] & wr and not (cls in ('vmem', 'ds', 'smem')): err('writes reg with pending %s load (%s)' % (nm, e['text']), d)
                    if e['w'] & wr and cls in ('vmem', 'ds', 'smem') and not (e['cls'] == cls): err('load WAW across queues (%s)' % e['text'], d)
        def dist(p): return pos - p - 1
        for r in rd:
            if r not in lastw: continue
            p, kind, info = lastw[r]
            ws = dist(p)
            if kind == 'mfma':
                need = None
                if cls == 'mfma':
                    if r in d['c'] and not (r in d['a'] or r in d['b']):
                        if info['w'] == d['c'] and info['passes'] == d['passes']: need = 0
                        else: need = {4: 6, 8: 10}[info['passes']]
                    else: need = {4: 8, 8: 12}[info['passes']]
                elif cls in ('valu', 'vmem', 'ds'): need = {4: 8, 8: 12}[info['passes']]
                if need is not None and ws < need: err('MFMA D->%s needs %d has %d (%s)' % (cls, need, ws, info['text']), d)
            elif kind == 'valu':
                if cls == 'mfma' and r[0] in 'va' and ws < 2: err('VALU->MFMA needs 2 has %d (%s)' % (ws, info['text']), d)
                if cls == 'valu':
                    if info.get('trans') and not d.get('trans') and ws < 1: err('trans->valu needs 1 (%s)' % info['text'], d)
                    if d['base'] in ('v_readfirstlane_b32', 'v_readlane_b32') and r[0] == 'v' and ws < 1: err('VALU->readlane needs 1', d)
                    if d['base'].startswith('v_permlane') and ws < 2: err('VALU->permlane needs 2 has %d' % ws, d)
                    if d.get('dpp') and r[0] == 'v' and ws < 2: err('VALU->DPP needs 2 has %d (%s)' % (ws, info['text']), d)
                    if (r[0] == 's' or r == ('x', 'vcc')) and ws < 2 and d['base'] not in ('v_addc_co_u32',): err('VALU sgpr/vcc write->VALU read needs 2 has %d (%s)' % (ws, info['text']), d)
                    if r == ('x', 'exec') and False: pass
                if cls == 'vmem' and r[0] == 's' and ws < 5: err('VALU sgpr write->VMEM needs 5 has %d' % ws, d)
                if info.get('trans') and cls in ('ds', 'vmem') and ws < 1: err('trans->mem needs 1', d)
            elif kind == 'salu':
                if r == ('x', 'm0') and cls == 'vmem' and ws < 1: err('M0 write->LDS DMA needs 1', d)
        for r in wr:
            if r in lastw:
                p, kind, info = lastw[r]
                ws = dist(p)
                if kind == 'mfma' and cls in ('valu',) :
                    need = {4: 8, 8: 12}[info['passes']]
                    if ws < need: err('MFMA D->VALU WAW needs %d has %d' % (need, ws), d)
                if kind == 'mfma' and cls in ('vmem', 'ds'):
                    need = {4: 8, 8: 12}[info['passes']]
                    if ws < need: err('MFMA D->load WAW needs %d has %d' % (need, ws), d)
                if kind == 'mfma' and cls == 'mfma' and not (info['w'] == d['w'] and d['c'] == d['w']):
                    need = {4: 6, 8: 10}[info['passes']]
                    if ws < need: err('MFMA D->MFMA WAW (diff C) needs %d has %d' % (need, ws), d)
            if cls == 'valu' and r in last_mfma_c:
                p, ps = last_mfma_c[r]
                need = {4: 3, 8: 7}[ps]
                if dist(p) < need: err('MFMA srcC read->VALU write WAR needs %d has %d' % (need, dist(p)), d)
            if r in last_store and cls == 'valu' and dist(last_store[r]) < 2: err('store data WAR needs 2', d)
            if r in last_store and cls != 'valu' and dist(last_store[r]) < 1: err('store data WAR needs 1', d)
        if cls == 'mfma' and ('x', 'exec') in lastw and lastw[('x', 'exec')][1] == 'valu' and dist(lastw[('x', 'exec')][0]) < 4:
            err('VALU exec write -> MFMA needs 4', d)
        if cls == 'wait':
            if d['vm'] is not None:
                while len(vmq) > d['vm']: vmq.pop(0)
            if d['lgkm'] is not None:
                if d['lgkm'] == 0: lq[:] = []
                else:
                    ds = [e for e in lq if e['cls'] != 'smem']
                    drop = ds[:max(0, len(ds) - d['lgkm'])]
                    lq[:] = [e for e in lq if not any(e is x for x in drop)]
        elif cls == 'vmem':
            vmq.append(dict(w=wr, text=d['text'], cls=cls))
            if len(vmq) > 63: err('more than 63 vmem outstanding', d)
            if 'sdata' in d and len(d['sdata']) >= 3:
                for r in d['sdata']: last_store[r] = pos
        elif cls == 'ds':
            lq.append(dict(w=wr, text=d['text'], cls=cls))
            if len([e for e in lq if e['cls'] != 'smem']) > 16: err('more than 16 lgkm outstanding', d)
        elif cls == 'smem':
            lq.append(dict(w=wr, text=d['text'], cls=cls))
        if cls in ('valu', 'mfma', 'salu'):
            for r in wr: lastw[r] = (pos, cls, d)
        elif cls in ('vmem', 'ds', 'smem'):
            for r in wr: lastw.pop(r, None)
        if cls == 'mfma':
            for r in d['c']: last_mfma_c[r] = (pos, d['passes'])
        pos += d['n'] if cls == 'nop' else 1
        if cls == 'branch':
            t = labels.get(d['target'])
            if t is not None and t <= pc:
                k = taken.get(pc, 0)
                if k < loops - 1:
                    taken[pc] = k + 1; pc = t; continue
            elif d['op'] == 's_branch' and t is not None:
                pc = t; continue
        if d['op'] == 's_endpgm' and False: break
        pc += 1
    seen = set(); out = []
    for e in errs:
        if e not in seen: seen.add(e); out.append(e)
    if verbose:
        for e in out[:40]: print('CHECK', e)
        if len(out) > 40: print('CHECK ... %d more' % (len(out) - 40))
    return out
```

```python
import sys, math, os, struct as _st
from asmlib import *

NAME = 'adaLN_cond__sliding_block_cached__swiglu_ffn__prompt'
KA = dict(x=0, k=8, v=16, wq=24, wo=32, bx=40, wg=48, wu=56, wd=64, c=72, wmod=80, out=88, dbg=96, ws=104)
PX, PK, PV, PWQ, PWO, PWG, PWU, PWD, PC_, PWMOD, POUT, PDBG, PWS = 64, 66, 68, 70, 72, 76, 78, 80, 82, 84, 86, 88, 90
WS_MOD  = 0x0
WS_MODB = 0x10000
WS_CNT  = 0x20000
WS_H   = 0x100000
WS_O   = 0x500000
WS_P1  = 0x1500000
WS_X1  = 0x3500000
WS_H2  = 0x3900000
WS_ACT = 0x3D00000
WS_P2  = 0x4B00000
WS_KF  = 0x5B00000
WS_VF  = 0x5B80000
WS_STAMP = 0x8000000
MFMA = 'v_mfma_f32_32x32x16_bf16'
LOG2E = 1.4426950408889634
def f2u(x): return _st.unpack('<I', _st.pack('<f', x))[0]
INSTR = False
MEGA = False
OPT = {}
PHASES = ['p0', 'attn', 'oproj', 'ln2', 'gateup', 'down', 'final']
PIDX = {p: i for i, p in enumerate(PHASES)}
ST = 'sc1'
def LD(): return 'sc1' if MEGA else ''
C_S2, C_S3, C_S4, C_S5, C_S6, C_S7 = 0, 8, 40, 48, 56, 88
LN_LDS = 147456

def srd(k, s, lo, size, add=None):
    if add:
        k('s_add_u32 s%d, s%d, 0x%x' % (s, lo, add))
        k('s_addc_u32 s%d, s%d, 0' % (s+1, lo+1))
    else:
        k('s_mov_b32 s%d, s%d' % (s, lo))
        k('s_mov_b32 s%d, s%d' % (s+1, lo+1))
    k('s_mov_b32 s%d, 0x%x' % (s+2, size))
    k('s_mov_b32 s%d, 0x20000' % (s+3))
def srd_s(k, s, lo, soff, size):
    k('s_add_u32 s%d, s%d, s%d' % (s, lo, soff))
    k('s_addc_u32 s%d, s%d, 0' % (s+1, lo+1))
    k('s_mov_b32 s%d, 0x%x' % (s+2, size))
    k('s_mov_b32 s%d, 0x20000' % (s+3))

def stamp(k, i):
    if INSTR:
        k('s_memtime s[%d:%d]' % (92+2*i, 93+2*i)) if i < 5 else None
def stamp_begin(k):
    if INSTR:
        k('s_memrealtime s[60:61]') if False else None
        k('s_memrealtime s[18:19]') if False else None
def stamp_flush(k, phase, n):
    if not INSTR: return
    k('s_waitcnt lgkmcnt(0)')
    k('s_memrealtime s[28:29]') if False else None
    srd(k, 16, PWS, 0x10000, WS_STAMP + PIDX[phase]*0x10000)
    k('s_lshl_b32 s27, s2, 6')
    k('v_cmp_eq_u32 vcc, 0, v0')
    k('s_and_saveexec_b64 s[28:29], vcc')
    lab = k.L('so')
    k('s_cbranch_execz %s' % lab)
    k('v_mov_b32 v2, s27')
    for i in range(n):
        k('v_mov_b32 v3, s%d' % (92+2*i))
        k('buffer_store_dword v3, v2, s[16:19], 0 offen offset:%d' % (4*i))
    k('s_memrealtime s[92:93]')
    k('s_memtime s[94:95]')
    k('s_waitcnt lgkmcnt(0)')
    k('v_mov_b32 v3, s92')
    k('buffer_store_dword v3, v2, s[16:19], 0 offen offset:56')
    k('v_mov_b32 v3, s94')
    k('buffer_store_dword v3, v2, s[16:19], 0 offen offset:60')
    k.label(lab)
    k('s_mov_b64 exec, s[28:29]')
def stamp_rt0(k, phase):
    if not INSTR: return
    k('s_memrealtime s[92:93]')
    k('s_memtime s[94:95]')
    srd(k, 16, PWS, 0x10000, WS_STAMP + PIDX[phase]*0x10000)
    k('s_lshl_b32 s27, s2, 6')
    k('s_waitcnt lgkmcnt(0)')
    k('v_cmp_eq_u32 vcc, 0, v0')
    k('s_and_saveexec_b64 s[28:29], vcc')
    lab = k.L('s0')
    k('s_cbranch_execz %s' % lab)
    k('v_mov_b32 v2, s27')
    k('v_mov_b32 v3, s92')
    k('buffer_store_dword v3, v2, s[16:19], 0 offen offset:48')
    k('v_mov_b32 v3, s94')
    k('buffer_store_dword v3, v2, s[16:19], 0 offen offset:52')
    k.label(lab)
    k('s_mov_b64 exec, s[28:29]')

def header(k, name):
    k('s_cmp_ge_u32 s2, 256')
    k('s_cbranch_scc1 %s_end' % name)
    k('s_load_dwordx16 s[64:79], s[0:1], 0')
    k('s_load_dwordx8 s[80:87], s[0:1], 64')
    k('s_load_dwordx4 s[88:91], s[0:1], 96')
    k('s_and_b32 s20, s2, 7')
    k('s_lshr_b32 s21, s2, 3')
    k('s_lshr_b32 s22, s20, 1')
    k('s_and_b32 s23, s20, 1')
    k('s_and_b32 s24, s21, 3')
    k('s_lshl_b32 s27, s23, 2')
    k('s_add_u32 s24, s24, s27')
    k('s_lshr_b32 s25, s21, 2')
    k('v_lshrrev_b32 v2, 6, v0')
    k('v_and_b32 v1, 63, v0')
    k('v_readfirstlane_b32 s26, v2')
    k('s_waitcnt lgkmcnt(0)')

def cnt_addr(k, sreg, dst=6):
    k('s_lshl_b32 s%d, s%d, 7' % (dst, sreg))
    k('s_add_u32 s%d, s%d, 0x%x' % (dst, dst, WS_CNT))
    k('s_add_u32 s%d, s%d, s%d' % (dst, dst, PWS))
    k('s_addc_u32 s%d, s%d, 0' % (dst+1, PWS+1))
def arrive(k, setup):
    if not MEGA: return
    k('s_waitcnt vmcnt(0)')
    k('s_barrier')
    lab = k.L('arr')
    k('s_cmp_lg_u32 s26, 0')
    k('s_cbranch_scc1 %s' % lab)
    setup()
    k('v_mov_b32 v2, 0')
    k('v_mov_b32 v3, 1')
    k('s_mov_b64 exec, 1')
    k('global_atomic_add v2, v3, s[6:7] sc1')
    k('s_mov_b64 exec, -1')
    k.label(lab)
def waitfor(k, setup, count, nlines=1, stride=128):
    if not MEGA: return
    lab = k.L('wt'); done = k.L('wd'); skip = k.L('ws')
    k('s_cmp_lg_u32 s26, 0')
    k('s_cbranch_scc1 %s' % skip)
    setup()
    k('v_mov_b32 v2, 0')
    k('s_mov_b32 s27, 0')
    k('s_mov_b64 exec, 1')
    k.label(lab)
    if nlines == 1:
        k('global_load_dword v3, v2, s[6:7] sc1')
        k('s_waitcnt vmcnt(0)')
    else:
        k('global_load_dword v3, v2, s[6:7] sc1')
        k('global_load_dword v4, v2, s[6:7] offset:%d sc1' % stride)
        k('s_waitcnt vmcnt(0)')
        k('v_add_u32 v3, v3, v4')
        k('s_nop 0')
    k('v_readfirstlane_b32 s28, v3')
    k('s_add_u32 s27, s27, 1')
    k('s_cmp_ge_u32 s28, %d' % count)
    k('s_cbranch_scc1 %s' % done)
    k('s_cmp_ge_u32 s27, 0x40000')
    k('s_cbranch_scc1 %s' % done)
    k('s_sleep 1')
    k('s_branch %s' % lab)
    k.label(done)
    k('s_mov_b64 exec, -1')
    k.label(skip)
    k('s_barrier')

def code_touch(k, target, nbytes, vtmp, vdst):
    here = k.L('pc')
    k('s_getpc_b64 s[6:7]')
    k.label(here)
    k('s_add_u32 s6, s6, %s-%s' % (target, here))
    k('s_addc_u32 s7, s7, 0')
    k('s_lshl_b32 s27, s26, 13')
    k('v_lshlrev_b32 v%d, 7, v1' % vtmp)
    k('v_add_u32 v%d, s27, v%d' % (vtmp, vtmp))
    n = (nbytes + 32767) // 32768
    for i in range(n):
        k.vm('global_load_dword v%d, v%d, s[6:7]' % (vdst, vtmp), ('C', 0, i))
        if i + 1 < n: k('v_add_u32 v%d, 32768, v%d' % (vtmp, vtmp))

class Gemm:
    def __init__(self, k, NB, nsteps, acc, xr, wf, vX, vW, sXsrd, sWsrd, sXoff, sWoff, sM0, sCnt,
                 stage_bytes, ldw_step, nW, lds_imm, extra=None, xflag=''):
        self.k = k; self.NB = NB; self.nsteps = nsteps; self.acc = acc; self.xr = xr; self.wf = wf
        self.vX = vX; self.vW = vW; self.sX = sXsrd; self.sW = sWsrd; self.sXoff = sXoff; self.sWoff = sWoff
        self.sM0 = sM0; self.sCnt = sCnt; self.stage = stage_bytes; self.ldw_step = ldw_step; self.nW = nW
        self.lds_imm = lds_imm; self.xflag = xflag
        self.extra = extra or (lambda t, j: [])
        if nW == 4: wsl = {3: [0], 0: [1], 1: [2], 2: [3]}
        else: wsl = {3: [0, 1], 0: [2, 3], 1: [4, 5], 2: [6]}
        Q = []
        for i in wsl[3]: Q.append((('W', 0, i), -13))
        for s_ in range(nsteps):
            for j in range(4):
                slot = 4*(s_-3) + j
                ws = [('W', s_, i) for i in wsl[j]] if j < 3 else ([('W', s_+1, i) for i in wsl[3]] if s_+1 < nsteps else [])
                for o in [('X', s_, j, 0)] + ws + [('X', s_, j, 1)]: Q.append((o, slot))
        self.Q = Q
        self.P = len([1 for o, sl in Q if sl < -4])
        self.sched = {}
        pos = self.P
        for t in range(nsteps):
            for j in range(4):
                slot = 4*t + j
                steady = len([1 for o, sl in Q if sl <= slot])
                per = len([1 for o, sl in Q if sl == 16 + j])
                n = min(steady, pos + per + 1)
                self.sched[(t, j)] = [o for o, sl in Q[pos:n]]
                pos = n
    def accr(self, nb, mb): return self.acc + (nb*2 + mb)*16
    def xreg(self, s, mb, j): return self.xr + (s % 4)*32 + (mb*4 + j)*4
    def wreg(self, par, nb): return self.wf + par*self.NB*4 + nb*4
    def mkop(self, o):
        if o[0] == 'X':
            _, s_, j, mb = o
            pre = ['s_add_u32 s%d, s%d, 4096' % (self.sXoff, self.sXoff)] if (j == 0 and mb == 0) else []
            return (pre, 'buffer_load_dwordx4 %s, v%d, s[%d:%d], s%d offen offset:%d %s' % (ar(self.xreg(s_, mb, j), 4), self.vX[mb], self.sX, self.sX+3, self.sXoff, j*1024, self.xflag), ('X', s_, j))
        _, s_, i = o
        pre = []
        if i == 0:
            pre.append('s_add_u32 s%d, s%d, 0x%x' % (self.sWoff, self.sWoff, self.ldw_step))
            pre.append('s_add_u32 m0, s%d, 0x%x' % (self.sM0, (s_ % 4)*self.stage))
        elif i == 4:
            pre.append('s_add_u32 m0, s%d, 0x%x' % (self.sM0, (s_ % 4)*self.stage + 4096))
        return (pre, 'buffer_load_dwordx4 v%d, s[%d:%d], s%d offen offset:%d lds' % (self.vW[i], self.sW, self.sW+3, self.sWoff, (i % 4)*1024), ('W', s_, i))
    def emit_vm(self, op):
        k = self.k
        pre, ins, tag = op[0], op[1], op[2]
        for p in pre: k(p)
        if pre and 'm0' in pre[-1]: k('s_nop 0')
        k.vm(ins, tag)
    def lds_reads(self, t, j):
        out = []
        for nb in range(self.NB):
            for sec in range(2):
                v, imm = self.lds_imm(t % 4, j, nb, sec)
                out.append('ds_read_b64_tr_b16 %s, v%d offset:%d' % (ar(self.wreg(j % 2, nb) + 2*sec, 2), v, imm))
        return out
    def blk_reads(self, t, nb):
        out = []
        for j in range(4):
            for sec in range(2):
                v, imm = self.lds_imm(t % 4, j, nb, sec)
                out.append('ds_read_b64_tr_b16 %s, v%d offset:%d' % (ar(self.wf + (nb % 2)*16 + j*4 + 2*sec, 2), v, imm))
        return out
    def prologue_w(self):
        for o, sl in self.Q[:self.P]:
            if o[0] == 'W': self.emit_vm(self.mkop(o))
    def prologue_x(self):
        for o, sl in self.Q[:self.P]:
            if o[0] == 'X': self.emit_vm(self.mkop(o))
    def prologue_mixed(self):
        for o, sl in self.Q[:self.P]: self.emit_vm(self.mkop(o))
    def start(self):
        k = self.k
        n = k.vm_wait_n(lambda tg: (tg[0] == 'W' and tg[1] == 0) or (tg[0] == 'X' and tg[1] == 0 and tg[2] <= 2))
        k('s_waitcnt vmcnt(%d)' % n)
        k('s_barrier')
        for r in self.lds_reads(0, 0): k(r)
    def emit_gaps(self, mfmas, gaps):
        k = self.k
        for m, mf in enumerate(mfmas):
            k(mf)
            for kind, x in gaps[m]:
                if kind == 'i': k(x)
                else: self.emit_vm(x)
    def step(self, t, blocklast=False):
        k = self.k; NB = self.NB
        last = (t == self.nsteps - 1)
        for j in range(4):
            if j == 3 and not last:
                if blocklast and t == self.nsteps - 2:
                    n = k.vm_wait_n(lambda tg: (tg[0] == 'W' and tg[1] <= t+1) or (tg[0] == 'X' and tg[1] <= t+1))
                else:
                    n = k.vm_wait_n(lambda tg: (tg[0] == 'W' and tg[1] <= t+1) or (tg[0] == 'X' and (tg[1] <= t or (tg[1] == t+1 and tg[2] <= 2))))
                k('s_waitcnt vmcnt(%d) lgkmcnt(0)' % n)
                k('s_barrier')
            elif j == 3:
                n = k.vm_wait_n(lambda tg: tg[0] == 'X' and tg[1] <= t)
                k('s_waitcnt vmcnt(%d) lgkmcnt(0)' % n)
            else:
                k('s_waitcnt lgkmcnt(0)')
            if j < 3: reads = self.lds_reads(t, j+1)
            elif last: reads = []
            elif blocklast and t == self.nsteps - 2: reads = None
            else: reads = self.lds_reads(t+1, 0)
            vms = [self.mkop(o) for o in self.sched[(t, j)]]
            extra = list(self.extra(t, j))
            vms += [e for e in extra if not isinstance(e, str)]
            plain = [e for e in extra if isinstance(e, str)]
            nm = 2*NB
            gaps = [[] for _ in range(nm)]
            if reads is None:
                reads = self.blk_reads(t+1, 0)
            for i, r in enumerate(reads): gaps[i // 2].append(('i', r))
            for i, op in enumerate(vms): gaps[NB + (i * NB) // max(1, len(vms))].append(('vm', op))
            for i, e in enumerate(plain): gaps[(i * nm) // len(plain)].append(('i', e))
            mf = []
            for nb in range(NB):
                for mb in range(2):
                    d = vr(self.accr(nb, mb), 16)
                    mf.append('%s %s, %s, %s, %s' % (MFMA, d, ar(self.wreg(j % 2, nb), 4), ar(self.xreg(t, mb, j), 4), '0' if (t == 0 and j == 0) else d))
            self.emit_gaps(mf, gaps)
    def last_step(self, epi):
        k = self.k; NB = self.NB; t = self.nsteps - 1
        pending = []
        for nb in range(NB):
            k('s_waitcnt lgkmcnt(0)')
            gaps = [[] for _ in range(8)]
            if nb + 1 < NB:
                for i, r in enumerate(self.blk_reads(t, nb+1)): gaps[i // 2].append(('i', r))
            extra = []
            for j in range(4): extra += list(self.extra(t, j)) if nb == j else []
            items = pending + extra
            for i, e in enumerate(items):
                g = 3 + (i * 5) // max(1, len(items)) if nb + 1 < NB else 2 + (i * 6) // max(1, len(items))
                gaps[g].append(('i', e) if isinstance(e, str) else ('vm', e))
            mf = []
            for j in range(4):
                for mb in range(2):
                    d = vr(self.accr(nb, mb), 16)
                    mf.append('%s %s, %s, %s, %s' % (MFMA, d, ar(self.wf + (nb % 2)*16 + j*4, 4), ar(self.xreg(t, mb, j), 4), d))
            self.emit_gaps(mf, gaps)
            pending = epi(nb)
        k('s_nop 7')
        k('s_nop 3')
        for e in pending:
            if isinstance(e, str): k(e)
            else: self.emit_vm(e)
    def mainloop(self, epi=None):
        k = self.k; n = self.nsteps
        bl = epi is not None
        for t in range(4): self.step(t, bl)
        t = 4
        trips = 0
        while t + 4*trips + 3 + 4 <= n - 1: trips += 1
        if trips >= 2:
            lab = k.L('loop')
            k('s_mov_b32 s%d, %d' % (self.sCnt, trips))
            k.label(lab)
            q0 = len(k.vmq)
            for tt in range(t, t+4): self.step(tt, bl)
            k('s_sub_u32 s%d, s%d, 1' % (self.sCnt, self.sCnt))
            k('s_cmp_lg_u32 s%d, 0' % self.sCnt)
            k('s_cbranch_scc1 %s' % lab)
            body = k.vmq[q0:]
            for r in range(1, trips):
                for tg in body: k.vmq.append((tg[0], tg[1] + 4*r, tg[2]))
            t += 4*trips
        for tt in range(t, n-1 if bl else n): self.step(tt, bl)
        if bl: self.last_step(epi)

def lds_addr_128(k, vL, tmp):
    a, b, c = tmp, tmp+1, tmp+2
    k('v_lshrrev_b32 v%d, 5, v1' % a)
    k('v_lshlrev_b32 v%d, 11, v%d' % (a, a))
    k('v_bfe_u32 v%d, v1, 2, 2' % b)
    k('v_lshl_add_u32 v%d, v%d, 8, v%d' % (a, b, a))
    k('v_bfe_u32 v%d, v1, 4, 1' % c)
    k('v_lshl_add_u32 v%d, v%d, 5, v%d' % (a, c, a))
    k('v_and_b32 v%d, 1, v1' % c)
    k('v_lshl_add_u32 v%d, v%d, 4, v%d' % (a, c, a))
    k('v_bfe_u32 v%d, v1, 1, 1' % c)
    k('v_lshl_add_u32 v%d, v%d, 3, v%d' % (a, c, a))
    for nb in range(4):
        k('v_xor_b32 v%d, %d, v%d' % (c, nb, b))
        k('v_lshl_add_u32 v%d, v%d, 6, v%d' % (vL[nb], c, a))

def w128_voffsets(k, vW, ldw, s_colbytes, tmp):
    a, b, c = tmp, tmp+1, tmp+2
    k('v_lshrrev_b32 v%d, 4, v1' % a)
    k('v_bfe_u32 v%d, v1, 2, 2' % b)
    k('v_xor_b32 v%d, v%d, v%d' % (b, b, a))
    k('v_and_b32 v%d, 3, v1' % c)
    k('v_lshlrev_b32 v%d, 4, v%d' % (c, c))
    k('v_lshl_add_u32 v%d, v%d, 6, v%d' % (c, b, c))
    k('s_lshl_b32 s27, s26, 4')
    k('v_add_u32 v%d, s27, v%d' % (a, a))
    k('v_mul_u32_u24 v%d, %d, v%d' % (a, ldw, a))
    k('v_add3_u32 v%d, v%d, v%d, s%d' % (vW[0], a, c, s_colbytes))
    for i in range(1, 4): k('v_add_u32 v%d, 0x%x, v%d' % (vW[i], i*4*ldw - i*1024, vW[0]))

def gemm128_setup(k, which):
    if which == 'oproj': xoff, xsize, KS, ksq, wptr, ldw, nsteps = WS_O, 0x1000000, 256, 64, PWO, 2048, 16
    else: xoff, xsize, KS, ksq, wptr, ldw, nsteps = WS_ACT, 2048*3584*2, 224, 56, PWD, 2048, 14
    vL = [4, 5, 6, 7]; vX = [8, 9]; vW = [10, 11, 12, 13]
    lds_addr_128(k, vL, tmp=14)
    k('v_lshlrev_b32 v8, 4, v1')
    k('v_add_u32 v9, 0x%x, v8' % (KS*1024))
    k('s_lshl_b32 s28, s25, 8')
    w128_voffsets(k, vW, ldw, 28, 14)
    srd(k, 8, PWS, xsize, xoff)
    srd(k, 12, wptr, ksq*4*16*ldw)
    k('s_lshl_b32 s27, s24, 3')
    k('s_lshl_b32 s28, s26, 1')
    k('s_add_u32 s34, s27, s28')
    k('s_mul_i32 s30, s34, %d' % KS)
    k('s_mul_i32 s28, s22, %d' % ksq)
    k('s_add_u32 s30, s30, s28')
    k('s_lshl_b32 s30, s30, 10')
    k('s_sub_u32 s30, s30, 4096')
    k('s_mul_i32 s31, s22, 0x%x' % (ksq*16*ldw))
    k('s_sub_u32 s31, s31, 0x%x' % (64*ldw))
    k('s_lshl_b32 s32, s26, 12')
    return Gemm(k, 4, nsteps, acc=128, xr=0, wf=128, vX=vX, vW=vW, sXsrd=8, sWsrd=12, sXoff=30, sWoff=31, sM0=32, sCnt=33,
                stage_bytes=16384, ldw_step=64*ldw, nW=4,
                lds_imm=lambda buf, j, nb, sec: (vL[nb], buf*16384 + j*4096 + sec*1024), xflag=LD())

def gemm128_main(k, which, g):
    poff = WS_P1 if which == 'oproj' else WS_P2
    k('s_lshl_b32 s27, s22, 22')
    k('s_add_u32 s27, s27, 0x%x' % poff)
    srd_s(k, 16, PWS, 27, 0x400000)
    k('s_lshl_b32 s27, s34, 6')
    k('s_lshl_b32 s28, s25, 3')
    k('s_add_u32 s27, s27, s28')
    k('s_lshl_b32 s36, s27, 10')
    k('s_add_u32 s37, s36, 0x10000')
    k('v_add_u32 v14, 4096, v8')
    stamp(k, 1)
    g.start()
    stamp(k, 2)
    cnt = [0]
    def epi(nb):
        out = []
        for mb in range(2):
            a = g.accr(nb, mb)
            for hh in range(2):
                t = 16 + (cnt[0] % 8)*4; cnt[0] += 1
                for r in range(4): out.append('v_cvt_pk_bf16_f32 v%d, v%d, v%d' % (t+r, a + hh*8 + 2*r, a + hh*8 + 2*r + 1))
                ks = 2*nb + hh
                out.append(([], 'buffer_store_dwordx4 %s, v%d, s[16:19], s%d offen offset:%d %s' % (vr(t, 4), 8 if ks < 4 else 14, 36+mb, (ks % 4)*1024, ST), ('S', 0, 0)))
        return out
    g.mainloop(epi)
    stamp(k, 3)

def reduce8(k, v, t):
    k('s_nop 1')
    k('v_add_f32_dpp v%d, v%d, v%d row_ror:8 row_mask:0xf bank_mask:0xf' % (v, v, v))
    k('v_mov_b32 v%d, v%d' % (t, v))
    k('s_nop 1')
    k('v_permlane16_swap_b32 v%d, v%d' % (v, t))
    k('s_nop 1')
    k('v_add_f32 v%d, v%d, v%d' % (v, v, t))
    k('v_mov_b32 v%d, v%d' % (t, v))
    k('s_nop 1')
    k('v_permlane32_swap_b32 v%d, v%d' % (v, t))
    k('s_nop 1')
    k('v_add_f32 v%d, v%d, v%d' % (v, v, t))

def gemv_part(k, nj, s_row0, s_col0bytes, s_outoff, out_srd, L0):
    B = 160
    k('v_and_b32 v%d, 7, v0' % B)
    k('v_lshrrev_b32 v%d, 3, v0' % (B+1))
    k('v_mul_u32_u24 v%d, %d, v%d' % (B+2, nj*12288, B+1))
    k('v_lshl_add_u32 v%d, v%d, 4, v%d' % (B+2, B, B+2))
    k('v_mul_u32_u24 v%d, %d, v%d' % (B+3, nj*2, B+1))
    k('s_mul_i32 s36, s%d, 12288' % s_row0)
    k('s_add_u32 s36, s36, s%d' % s_col0bytes)
    k('s_lshl_b32 s37, s%d, 1' % s_row0)
    C = B+8; S = B+16; T = B+32; A = B+48; LDB = 96
    for i in range(nj // 8): k('buffer_load_dwordx4 %s, v%d, s[12:15], s37 offen offset:%d' % (vr(C+4*i, 4), B+3, 16*i))
    for j in range(nj):
        k('buffer_load_dwordx4 %s, v%d, s[8:11], s36 offen' % (vr(LDB+4*j, 4), B+2))
        if j < nj-1: k('s_add_u32 s36, s36, 12288')
    k('s_waitcnt vmcnt(%d)' % nj)
    for i in range(nj//2):
        k('v_lshlrev_b32 v%d, 16, v%d' % (S+2*i, C+i))
        k('v_and_b32 v%d, 0xffff0000, v%d' % (S+1+2*i, C+i))
    for i in range(nj): k('v_mul_f32 v%d, 0x%x, v%d' % (T+i, f2u(-LOG2E), S+i))
    for i in range(nj): k('v_exp_f32 v%d, v%d' % (T+i, T+i))
    k('s_nop 0')
    for i in range(nj): k('v_add_f32 v%d, 1.0, v%d' % (T+i, T+i))
    for i in range(nj): k('v_rcp_f32 v%d, v%d' % (T+i, T+i))
    k('s_nop 0')
    for i in range(nj): k('v_mul_f32 v%d, v%d, v%d' % (S+i, S+i, T+i))
    for i in range(nj//2): k('v_cvt_pk_bf16_f32 v%d, v%d, v%d' % (T+i, S+2*i, S+1+2*i))
    for i in range(nj//2):
        k('v_lshlrev_b32 v%d, 16, v%d' % (S+2*i, T+i))
        k('v_and_b32 v%d, 0xffff0000, v%d' % (S+1+2*i, T+i))
    for i in range(8): k('v_mov_b32 v%d, 0' % (A+i))
    U = B+56
    for j in range(nj):
        k('s_waitcnt vmcnt(%d)' % (nj-1-j))
        for i in range(4):
            k('v_lshlrev_b32 v%d, 16, v%d' % (U, LDB+4*j+i))
            k('v_and_b32 v%d, 0xffff0000, v%d' % (U+1, LDB+4*j+i))
            k('v_fmac_f32 v%d, v%d, v%d' % (A+2*i, U, S+j))
            k('v_fmac_f32 v%d, v%d, v%d' % (A+2*i+1, U+1, S+j))
    k('v_lshlrev_b32 v%d, 8, v%d' % (B+4, B+1))
    k('v_lshl_add_u32 v%d, v%d, 5, v%d' % (B+4, B, B+4))
    k('v_add_u32 v%d, %d, v%d' % (B+4, L0, B+4))
    k('ds_write_b128 v%d, %s' % (B+4, vr(A, 4)))
    k('ds_write_b128 v%d, %s offset:16' % (B+4, vr(A+4, 4)))
    k('s_waitcnt lgkmcnt(0)')
    k('s_barrier')
    k('v_lshrrev_b32 v%d, 6, v0' % (B+5))
    k('v_lshlrev_b32 v%d, 11, v%d' % (B+4, B+5))
    k('v_lshl_add_u32 v%d, v1, 2, v%d' % (B+4, B+4))
    k('v_add_u32 v%d, %d, v%d' % (B+4, L0, B+4))
    for i in range(8): k('ds_read_b32 v%d, v%d offset:%d' % (T+i, B+4, i*256))
    k('s_waitcnt lgkmcnt(0)')
    for i in range(1, 8): k('v_add_f32 v%d, v%d, v%d' % (T, T, T+i))
    k('v_lshlrev_b32 v%d, 2, v0' % (B+6))
    k('v_add_u32 v%d, %d, v%d' % (B+4, L0, B+6))
    k('ds_write_b32 v%d, v%d offset:%d' % (B+4, T, 8192))
    k('s_waitcnt lgkmcnt(0)')
    k('s_barrier')
    lab = k.L('skip')
    k('s_cmp_lg_u32 s26, 0')
    k('s_cbranch_scc1 %s' % lab)
    for i in range(4): k('ds_read_b32 v%d, v%d offset:%d' % (T+i, B+4, 8192 + i*256))
    k('s_waitcnt lgkmcnt(0)')
    k('v_add_f32 v%d, v%d, v%d' % (T, T, T+1))
    k('v_add_f32 v%d, v%d, v%d' % (T+2, T+2, T+3))
    k('v_add_f32 v%d, v%d, v%d' % (T, T, T+2))
    k('buffer_store_dword v%d, v%d, s[%d:%d], s%d offen %s' % (T, B+6, out_srd, out_srd+3, s_outoff, ST))
    k.label(lab)

def kv_part(k):
    k('s_sub_u32 s50, s2, 128')
    k('s_lshl_b32 s50, s50, 2')
    k('s_add_u32 s50, s50, s26')
    srd(k, 8, PK, 0x200000)
    srd(k, 12, PV, 0x200000)
    srd(k, 16, PWS, 0x100000, WS_KF)
    k('s_lshr_b32 s51, s50, 7')
    k('s_bfe_u32 s52, s50, 0x40003')
    k('s_and_b32 s53, s50, 7')
    k('s_lshl_b32 s54, s51, 19')
    k('s_lshl_b32 s55, s52, 13')
    k('s_add_u32 s54, s54, s55')
    k('s_add_u32 s54, s54, 0x60000')
    B = 160
    k('v_and_b32 v%d, 31, v1' % B)
    k('v_lshrrev_b32 v%d, 5, v1' % (B+1))
    k('v_lshlrev_b32 v%d, 8, v%d' % (B+2, B))
    k('v_lshl_add_u32 v%d, v%d, 4, v%d' % (B+2, B+1, B+2))
    k('s_lshl_b32 s55, s53, 5')
    k('s_add_u32 s55, s55, s54')
    k('buffer_load_dwordx4 %s, v%d, s[8:11], s55 offen' % (vr(B+8, 4), B+2))
    k('v_bfe_u32 v%d, v1, 4, 1' % (B+3))
    k('v_lshlrev_b32 v%d, 4, v%d' % (B+3, B+3))
    k('v_bfe_u32 v%d, v1, 2, 1' % (B+4))
    k('v_lshl_add_u32 v%d, v%d, 3, v%d' % (B+3, B+4, B+3))
    k('v_bfe_u32 v%d, v1, 3, 1' % (B+4))
    k('v_lshl_add_u32 v%d, v%d, 2, v%d' % (B+3, B+4, B+3))
    k('v_and_b32 v%d, 3, v1' % (B+4))
    k('v_add_u32 v%d, v%d, v%d' % (B+3, B+3, B+4))
    k('v_lshlrev_b32 v%d, 1, v%d' % (B+3, B+3))
    k('v_lshl_add_u32 v%d, v%d, 10, v%d' % (B+3, B+1, B+3))
    k('s_and_b32 s55, s53, 3')
    k('s_lshl_b32 s55, s55, 6')
    k('s_lshr_b32 s56, s53, 2')
    k('s_lshl_b32 s56, s56, 12')
    k('s_add_u32 s55, s55, s56')
    k('s_add_u32 s55, s55, s54')
    for j in range(8):
        k('buffer_load_ushort v%d, v%d, s[12:15], s55 offen offset:%d' % (B+12+j, B+3, (j if j < 4 else 4 + j)*256))
    k('v_lshlrev_b32 v%d, 4, v1' % (B+5))
    k('s_lshl_b32 s56, s50, 10')
    k('s_waitcnt vmcnt(8)')
    k('buffer_store_dwordx4 %s, v%d, s[16:19], s56 offen %s' % (vr(B+8, 4), B+5, ST))
    k('s_waitcnt vmcnt(1)')
    for r in range(4): k('v_lshl_or_b32 v%d, v%d, 16, v%d' % (B+20+r, B+13+2*r, B+12+2*r))
    k('s_add_u32 s56, s56, 0x%x' % (WS_VF - WS_KF))
    k('buffer_store_dwordx4 %s, v%d, s[16:19], s56 offen %s' % (vr(B+20, 4), B+5, ST))

def ln_addr(k):
    k('v_lshrrev_b32 v2, 6, v0')
    k('v_and_b32 v3, 7, v1')
    k('v_lshrrev_b32 v4, 3, v1')
    k('v_lshrrev_b32 v5, 1, v4')
    k('v_lshlrev_b32 v5, 10, v5')
    k('v_and_b32 v6, 1, v4')
    k('v_lshl_add_u32 v5, v6, 9, v5')
    k('v_lshl_add_u32 v5, v3, 4, v5')
    k('v_lshl_add_u32 v5, v2, 14, v5')
    k('v_lshlrev_b32 v6, 11, v3')
    k('v_lshl_add_u32 v6, v4, 4, v6')
    k('v_lshl_add_u32 v6, v2, 9, v6')
    k('v_lshlrev_b32 v7, 4, v0')
    k('v_lshlrev_b32 v8, 10, v2')
    k('v_lshl_add_u32 v8, v4, 5, v8')
    k('v_add_u32 v8, %d, v8' % LN_LDS)
    k('v_add_u32 v11, %d, v7' % LN_LDS)
    k('v_lshlrev_b32 v9, 4, v3')
    k('v_add_u32 v9, %d, v9' % (LN_LDS + 12288))
    k('v_lshl_add_u32 v10, v2, 2, v9')
    k('s_lshl_b32 s45, s24, 5')
    k('s_lshl_b32 s46, s22, 3')
    k('s_add_u32 s45, s45, s46')
    k('s_add_u32 s45, s45, s25')
    k('s_lshr_b32 s40, s45, 2')
    k('s_lshl_b32 s40, s40, 16')
    k('s_and_b32 s46, s45, 3')
    k('s_lshl_b32 s46, s46, 7')
    k('s_add_u32 s40, s40, s46')
    for j in range(1, 4): k('s_add_u32 s%d, s40, %d' % (40+j, j*4096))
    k('s_lshl_b32 s44, s45, 14')

X_ = 32
RAW = 64
def ln_unpack(k, src):
    for j in range(4):
        for i in range(4):
            k('v_lshlrev_b32 v%d, 16, v%d' % (X_ + 8*j + 2*i, src + 4*j + i))
            k('v_and_b32 v%d, 0xffff0000, v%d' % (X_ + 8*j + 2*i + 1, src + 4*j + i))
def ln_stats(k):
    RED = 0
    k('v_add_f32 v24, v%d, v%d' % (X_, X_+1))
    k('v_add_f32 v25, v%d, v%d' % (X_+2, X_+3))
    for i in range(4, 32, 2):
        k('v_add_f32 v24, v24, v%d' % (X_+i))
        k('v_add_f32 v25, v25, v%d' % (X_+i+1))
    k('v_add_f32 v24, v24, v25')
    reduce8(k, 24, 25)
    k('ds_write_b32 v10, v24 offset:%d' % RED)
    k('s_waitcnt lgkmcnt(0)')
    k('s_barrier')
    k('ds_read_b128 v[24:27], v9 offset:%d' % RED)
    k('s_waitcnt lgkmcnt(0)')
    k('v_add_f32 v24, v24, v25')
    k('v_add_f32 v26, v26, v27')
    k('v_add_f32 v24, v24, v26')
    k('v_mul_f32 v24, 0x%x, v24' % f2u(1.0/1024))
    for i in range(32): k('v_sub_f32 v%d, v%d, v24' % (X_+i, X_+i))
    k('v_mul_f32 v24, v%d, v%d' % (X_, X_))
    k('v_mul_f32 v25, v%d, v%d' % (X_+1, X_+1))
    for i in range(2, 32, 2):
        k('v_fmac_f32 v24, v%d, v%d' % (X_+i, X_+i))
        k('v_fmac_f32 v25, v%d, v%d' % (X_+i+1, X_+i+1))
    k('v_add_f32 v24, v24, v25')
    reduce8(k, 24, 25)
    k('ds_write_b32 v10, v24 offset:%d' % (RED + 128))
    k('s_waitcnt lgkmcnt(0)')
    k('s_barrier')
    k('ds_read_b128 v[24:27], v9 offset:%d' % (RED + 128))
    k('s_waitcnt lgkmcnt(0)')
    k('v_add_f32 v24, v24, v25')
    k('v_add_f32 v26, v26, v27')
    k('v_add_f32 v24, v24, v26')
    k('v_mov_b32 v25, 0x%x' % f2u(1e-5))
    k('v_fmac_f32 v25, 0x%x, v24' % f2u(1.0/1024))
    k('v_rsq_f32 v28, v25')
    k('s_nop 0')
    for i in range(32): k('v_mul_f32 v%d, v%d, v28' % (X_+i, X_+i))
def mod_loads(k, vecs, npart, base_off, MV):
    srd(k, 8, PWS, 0x8000, base_off or None)
    for n, (c, isscale) in enumerate(vecs):
        for p in range(npart):
            k('s_mov_b32 s27, %d' % (p*(8192 if npart == 4 else 16384) + c*4096))
            k('buffer_load_dwordx4 %s, v7, s[8:11], s27 offen %s' % (vr(MV + (n*npart + p)*4, 4), LD()))
def mod_to_lds(k, vecs, npart, MV, mulc=None):
    for n, (c, isscale) in enumerate(vecs):
        b = MV + n*npart*4
        for p in range(1, npart):
            for i in range(4): k('v_add_f32 v%d, v%d, v%d' % (b+i, b+i, b+4*p+i))
        def rnd():
            k('v_cvt_pk_bf16_f32 v%d, v%d, v%d' % (b+4, b, b+1))
            k('v_cvt_pk_bf16_f32 v%d, v%d, v%d' % (b+5, b+2, b+3))
            k('v_lshlrev_b32 v%d, 16, v%d' % (b, b+4))
            k('v_and_b32 v%d, 0xffff0000, v%d' % (b+1, b+4))
            k('v_lshlrev_b32 v%d, 16, v%d' % (b+2, b+5))
            k('v_and_b32 v%d, 0xffff0000, v%d' % (b+3, b+5))
        rnd()
        if isscale:
            for i in range(4): k('v_add_f32 v%d, 1.0, v%d' % (b+i, b+i))
            rnd()
        if mulc:
            for i in range(4): k('v_mul_f32 v%d, 0x%x, v%d' % (b+i, mulc, b+i))
        k('ds_write_b128 v11, %s offset:%d' % (vr(b, 4), n*4096))
def ln_apply_store(k, sh, sc, hoff):
    srd(k, 16, PWS, 0x400000, hoff)
    for j in range(4):
        k('ds_read_b128 v[16:19], v8 offset:%d' % (sc*4096 + j*256))
        k('ds_read_b128 v[20:23], v8 offset:%d' % (sc*4096 + j*256 + 16))
        k('ds_read_b128 v[96:99], v8 offset:%d' % (sh*4096 + j*256))
        k('ds_read_b128 v[100:103], v8 offset:%d' % (sh*4096 + j*256 + 16))
        k('s_waitcnt lgkmcnt(0)')
        for i in range(8): k('v_fma_f32 v%d, v%d, v%d, v%d' % (X_ + 8*j + i, X_ + 8*j + i, 16+i, 96+i))
        for i in range(4): k('v_cvt_pk_bf16_f32 v%d, v%d, v%d' % (104 + 4*j + i, X_ + 8*j + 2*i, X_ + 8*j + 2*i + 1))
        k('buffer_store_dwordx4 %s, v5, s[16:19], s%d offen %s' % (vr(104 + 4*j, 4), 40+j, ST))

def phase_p0(k, name):
    stamp_rt0(k, 'p0')
    stamp(k, 0)
    ln_addr(k)
    srd(k, 8, PX, 0x400000)
    for j in range(4): k('buffer_load_dwordx4 %s, v6, s[8:11], s44 offen offset:%d' % (vr(RAW + 4*j, 4), j*128))
    if MEGA:
        lab = k.L('z')
        k('s_cmp_lg_u32 s2, 0')
        k('s_cbranch_scc1 %s' % lab)
        srd(k, 16, PWS, 96*128, WS_CNT)
        k('v_lshlrev_b32 v13, 7, v0')
        k('v_mov_b32 v12, 0')
        k('buffer_store_dword v12, v13, s[16:19], 0 offen %s' % ST)
        k.label(lab)
    k('s_cmp_ge_u32 s2, 128')
    k('s_cbranch_scc1 %s_kv' % name)
    srd(k, 8, PWMOD, 1024*6144*2)
    srd(k, 12, PC_, 2048)
    srd(k, 16, PWS, 0x8000, WS_MOD or None)
    k('s_and_b32 s38, s2, 31')
    k('s_lshr_b32 s39, s2, 5')
    k('s_lshl_b32 s47, s39, 8')
    k('s_lshl_b32 s48, s38, 7')
    k('s_lshl_b32 s49, s39, 13')
    k('s_lshl_b32 s38, s38, 8')
    k('s_add_u32 s49, s49, s38')
    gemv_part(k, 8, 47, 48, 49, 16, LN_LDS)
    k('s_branch %s_pf' % name)
    k.label(name + '_kv')
    kv_part(k)
    srd(k, 8, PWMOD, 1024*6144*2)
    srd(k, 12, PC_, 2048)
    srd(k, 16, PWS, 0x8000, WS_MODB)
    k('s_sub_u32 s38, s2, 128')
    k('s_lshr_b32 s39, s38, 6')
    k('s_and_b32 s38, s38, 63')
    k('s_lshl_b32 s47, s39, 9')
    k('s_lshl_b32 s48, s38, 7')
    k('s_add_u32 s48, s48, 4096')
    k('s_lshl_b32 s49, s39, 14')
    k('s_lshl_b32 s38, s38, 8')
    k('s_add_u32 s49, s49, s38')
    gemv_part(k, 16, 47, 48, 49, 16, LN_LDS)
    k.label(name + '_pf')
    def s1addr():
        k('s_and_b32 s27, s2, 1')
        k('s_lshl_b32 s27, s27, 7')
        k('s_add_u32 s6, s%d, s27' % PDBG)
        k('s_addc_u32 s7, s%d, 0' % (PDBG+1))
    arrive(k, s1addr)
    srd(k, 8, PWQ, 1024*4096*2)
    k('v_lshrrev_b32 v15, 4, v0')
    k('v_and_b32 v12, 15, v0')
    k('v_lshlrev_b32 v15, 13, v15')
    k('v_lshl_add_u32 v15, v12, 7, v15')
    k('s_lshl_b32 s36, s21, 18')
    k('s_lshl_b32 s37, s22, 11')
    k('s_add_u32 s36, s36, s37')
    k('buffer_load_dword v13, v15, s[8:11], s36 offen')
    k('s_add_u32 s36, s36, 0x20000')
    k('buffer_load_dword v14, v15, s[8:11], s36 offen')
    stamp(k, 1)
    k('s_waitcnt vmcnt(2)')
    ln_unpack(k, RAW)
    ln_stats(k)
    stamp(k, 2)

def phase_ln1b(k):
    def s1addr():
        k('s_mov_b32 s6, s%d' % PDBG)
        k('s_mov_b32 s7, s%d' % (PDBG+1))
    waitfor(k, s1addr, 256, nlines=2)
    stamp(k, 3)
    vecs = [(0, False), (1, True)]
    mod_loads(k, vecs, 4, WS_MOD, 96)
    k('s_waitcnt vmcnt(0)')
    mod_to_lds(k, vecs, 4, 96, f2u(128**-0.5 * LOG2E))
    k('s_waitcnt lgkmcnt(0)')
    k('s_barrier')
    ln_apply_store(k, 0, 1, WS_H)
    def a():
        k('s_add_u32 s27, s24, %d' % C_S2); cnt_addr(k, 27)
    arrive(k, a)
    stamp(k, 4)
    stamp_flush(k, 'p0', 5)

def phase_ln2(k, mode):
    stamp_rt0(k, mode)
    stamp(k, 0)
    ln_addr(k)
    vecs = [(0, False), (1, False), (2, True)] if mode == 'ln2' else [(3, False)]
    MV = 144
    mod_loads(k, vecs, 2, WS_MODB, MV)
    if mode == 'ln2':
        srd(k, 12, PX, 0x400000)
        for j in range(4): k('buffer_load_dwordx4 %s, v6, s[12:15], s44 offen offset:%d' % (vr(RAW + 4*j, 4), j*128))
    k('s_waitcnt vmcnt(%d)' % (4 if mode == 'ln2' else 0))
    mod_to_lds(k, vecs, 2, MV)
    def a():
        k('s_add_u32 s27, s24, %d' % (C_S4 if mode == 'ln2' else C_S7)); cnt_addr(k, 27)
    k('s_waitcnt lgkmcnt(0)')
    if MEGA: waitfor(k, a, 32)
    else: k('s_barrier')
    stamp(k, 1)
    srd(k, 12, PWS, 0x1000000, WS_P1 if mode == 'ln2' else WS_P2)
    for j in range(4):
        for q in range(4):
            k('s_add_u32 s27, s%d, 0x%x' % (40+j, q*0x400000))
            k('buffer_load_dwordx4 %s, v5, s[12:15], s27 offen %s' % (vr(RAW + 16 + q*16 + 4*j, 4), LD()))
    if mode == 'final':
        srd(k, 8, PWS, 0x400000, WS_X1)
        for j in range(4): k('buffer_load_dwordx4 %s, v5, s[8:11], s%d offen %s' % (vr(RAW + 4*j, 4), 40+j, LD()))
        k('s_waitcnt vmcnt(0)')
        ln_unpack(k, RAW)
    else:
        k('s_waitcnt vmcnt(16)')
        ln_unpack(k, RAW)
    for j in range(4):
        k('ds_read_b128 v[16:19], v8 offset:%d' % (j*256))
        k('ds_read_b128 v[20:23], v8 offset:%d' % (j*256 + 16))
        if mode == 'ln2': k('s_waitcnt vmcnt(%d)' % (12 - 4*j))
        for i in range(4):
            k('v_lshlrev_b32 v24, 16, v%d' % (RAW + 16 + 4*j + i))
            k('v_and_b32 v25, 0xffff0000, v%d' % (RAW + 16 + 4*j + i))
            for q in range(1, 4):
                k('v_lshlrev_b32 v26, 16, v%d' % (RAW + 16 + q*16 + 4*j + i))
                k('v_and_b32 v27, 0xffff0000, v%d' % (RAW + 16 + q*16 + 4*j + i))
                k('v_add_f32 v24, v24, v26')
                k('v_add_f32 v25, v25, v27')
            if i == 0: k('s_waitcnt lgkmcnt(0)')
            k('v_fmac_f32 v%d, v24, v%d' % (X_ + 8*j + 2*i, 16 + 2*i))
            k('v_fmac_f32 v%d, v25, v%d' % (X_ + 8*j + 2*i + 1, 17 + 2*i))
    for j in range(4):
        for i in range(4):
            k('v_cvt_pk_bf16_f32 v%d, v%d, v%d' % (RAW + 4*j + i, X_ + 8*j + 2*i, X_ + 8*j + 2*i + 1))
    if mode == 'final':
        srd(k, 12, POUT, 0x400000)
        for j in range(4): k('buffer_store_dwordx4 %s, v6, s[12:15], s44 offen offset:%d' % (vr(RAW + 4*j, 4), j*128))
    else:
        srd(k, 16, PWS, 0x400000, WS_X1)
        for j in range(4): k('buffer_store_dwordx4 %s, v5, s[16:19], s%d offen %s' % (vr(RAW + 4*j, 4), 40+j, ST))
        ln_unpack(k, RAW)
        ln_stats(k)
        ln_apply_store(k, 1, 2, WS_H2)
        def a5():
            k('s_add_u32 s27, s24, %d' % C_S5); cnt_addr(k, 27)
        arrive(k, a5)
    stamp(k, 2)
    stamp_flush(k, mode, 3)

def attn_setup(k):
    vL = [4, 5, 6, 7]; vX = [8, 9]; vW = [10, 11, 12, 13]
    ldw = 8192
    k('s_lshl_b32 s35, s22, 3')
    k('s_add_u32 s35, s35, s25')
    k('s_mov_b32 s62, s35')
    lds_addr_128(k, vL, tmp=40)
    k('v_lshlrev_b32 v8, 4, v1')
    k('v_add_u32 v9, 0x10000, v8')
    k('s_lshl_b32 s28, s62, 8')
    w128_voffsets(k, vW, ldw, 28, 40)
    srd(k, 8, PWS, 0x400000, WS_H)
    srd(k, 12, PWQ, 0x800000)
    k('s_lshl_b32 s27, s24, 3')
    k('s_lshl_b32 s28, s26, 1')
    k('s_add_u32 s34, s27, s28')
    k('s_lshl_b32 s30, s34, 16')
    k('s_sub_u32 s30, s30, 4096')
    k('s_mov_b32 s31, 0x%x' % ((-64*ldw) & 0xffffffff))
    k('s_lshl_b32 s32, s26, 12')
    return vL, vX, vW, ldw

def phase_attn(k, name, next_prefetch=None):
    stamp_rt0(k, 'attn')
    stamp(k, 0)
    vL, vX, vW, ldw = attn_setup(k)
    KSLOT = [65536, 81920, 98304, 0, 16384]
    VSLOT = [114688, 131072, 147456, 32768, 49152]
    FLAG = 33792
    QF = lambda mb, ks: 64 + (mb*8 + ks)*4
    SB = lambda par, mb: 128 + (par*2 + mb)*16
    PB = lambda par, mb, kk: 192 + ((par*2 + mb)*2 + kk)*4
    CB = lambda mb: 224 + mb*16
    def OA(db, mb):
        i = db*2 + mb
        return i*16 if i < 6 else 192 + (i-6)*16
    KF = lambda ks: 128 + ks*4
    VF = lambda q: 160 + q*4
    LS = lambda mb, p: 33 + mb*2 + p
    MG = lambda mb: 37 + mb
    KT = (36, 37, 38, 39, 40); VT = (41, 42, 43, 29, 35)
    TT = (8, 9, 10, 12, 13, 14, 54, 55, 56, 57, 61, 63)
    kvflag = LD()
    def kdma(soff, pre0, tagid):
        return [(pre0 if i == 0 else [], 'buffer_load_dwordx4 v28, s[44:47], s%d offen offset:%d %s lds' % (soff, i*1024, kvflag), ('K', tagid, i)) for i in range(4)]
    def vdma(soff, pre0, tagid):
        return [(pre0 if i == 0 else [], 'buffer_load_dwordx4 v28, s[48:51], s%d offen offset:%d %s lds' % (soff, i*1024, kvflag), ('V', tagid, i)) for i in range(4)]
    def dma_list(lst):
        ops = []
        for (kind, s_) in lst:
            if kind == 'K': ops += kdma(52, ['s_mov_b32 s52, %d' % (s_*16384), 's_add_u32 m0, s32, %d' % KSLOT[s_ % 5]], s_)
            else: ops += vdma(53, ['s_mov_b32 s53, %d' % (s_*16384), 's_add_u32 m0, s32, %d' % VSLOT[s_ % 5]], s_)
        return ops
    def initial_dmas(): return dma_list([('K', 0), ('V', 0), ('K', 1), ('V', 1), ('K', 2), ('V', 2)])
    ini = initial_dmas()
    zero_list = ['v_accvgpr_write_b32 a%d, 0' % r for r in list(range(192, 224)) + list(range(0, 96))]
    def extra(t, j):
        out = []
        order = [(12, 3)] + [(tt, jj) for tt in (13, 14, 15) for jj in range(4)]
        if (t, j) in order:
            p = order.index((t, j))
            out += ini[(p*len(ini))//13:((p+1)*len(ini))//13]
        if t in (12, 13, 14, 15):
            z = zero_list[(t-12)*32:(t-11)*32]
            out += z[j*8:(j+1)*8]
        return out
    g = Gemm(k, 4, 16, acc=128, xr=0, wf=128, vX=vX, vW=vW, sXsrd=8, sWsrd=12, sXoff=30, sWoff=31, sM0=32, sCnt=33,
             stage_bytes=16384, ldw_step=64*ldw, nW=4,
             lds_imm=lambda buf, j, nb, sec: (vL[nb], buf*16384 + j*4096 + sec*1024), extra=extra, xflag=LD())
    if MEGA: g.prologue_w()
    k('s_lshl_b32 s27, s26, 12')
    k('v_add_u32 v28, s27, v8')
    k('v_add_u32 v16, %d, v8' % KSLOT[0])
    k('v_add_u32 v17, %d, v8' % VSLOT[0])
    k('v_lshlrev_b32 v18, 7, v1')
    k('s_lshl_b32 s27, s26, 13')
    k('v_add_u32 v18, s27, v18')
    k('s_lshl_b32 s27, s22, 17')
    k('s_add_u32 s28, s27, 0x%x' % WS_KF)
    srd_s(k, 44, PWS, 28, 0x20000)
    k('s_add_u32 s28, s27, 0x%x' % WS_VF)
    srd_s(k, 48, PWS, 28, 0x20000)
    k('v_mov_b32 v%d, 0xff800000' % MG(0))
    k('v_mov_b32 v%d, 0xff800000' % MG(1))
    k('s_mov_b32 s59, 0')
    if MEGA:
        def a():
            k('s_add_u32 s27, s24, %d' % C_S2); cnt_addr(k, 27)
        waitfor(k, a, 32)
        g.prologue_x()
    else:
        g.prologue_mixed()
    stamp(k, 1)
    g.start()
    def epiQ(nb):
        out = []
        for mb in range(2):
            a = g.accr(nb, mb)
            for hh in range(2):
                for r in range(4):
                    out.append('v_cvt_pk_bf16_f32 v%d, v%d, v%d' % (QF(mb, 2*nb+hh) + r, a + hh*8 + 2*r, a + hh*8 + 2*r + 1))
        return out
    g.mainloop(epiQ)
    stamp(k, 2)
    k('s_mul_i32 s27, s2, 28672')
    for n_, (lo, sz) in enumerate([(PWG, 1024*3584*2), (PWU, 1024*3584*2), (PWD, 3584*1024*2)]):
        k('s_add_u32 s%d, s%d, s27' % (TT[3*n_], lo))
        k('s_addc_u32 s%d, s%d, 0' % (TT[3*n_+1], lo+1))
        k('s_sub_u32 s%d, 0x%x, s27' % (TT[3*n_+2], sz))
    k('s_lshl_b32 s27, s20, 20')
    k('s_lshl_b32 s28, s21, 15')
    k('s_add_u32 s27, s27, s28')
    k('s_add_u32 s%d, s%d, s27' % (TT[9], PWO))
    k('s_addc_u32 s%d, s%d, 0' % (TT[10], PWO+1))
    k('s_mov_b32 s%d, 0x8000' % TT[11])
    n = k.vm_wait_n(lambda tg: tg[0] in 'KV' and tg[1] == 0)
    k('s_waitcnt vmcnt(%d)' % n)
    k.label(name + '_pro')
    k('s_barrier')
    for i_ in range(5):
        k('s_mov_b32 s%d, %d' % (KT[i_], KSLOT[i_]))
        k('s_mov_b32 s%d, %d' % (VT[i_], VSLOT[i_]))
    for ks in range(8): k('ds_read_b128 %s, v16 offset:%d' % (ar(KF(ks), 4), ks*1024))
    for mb in range(2):
        for p in range(2): k('v_mov_b32 v%d, 0' % LS(mb, p))
    k('s_waitcnt lgkmcnt(0)')
    for mb in range(2):
        for ks in range(8):
            d = vr(SB(0, mb), 16)
            k('%s %s, %s, %s, %s' % (MFMA, d, ar(KF(ks), 4), vr(QF(mb, ks), 4), '0' if ks == 0 else d))
    k('s_nop 3')
    k('s_nop 7')
    for mb in range(2):
        s0 = SB(0, mb); m = 40 + mb
        k('v_max3_f32 v%d, v%d, v%d, v%d' % (m, s0, s0+1, MG(mb)))
        for r in range(2, 16, 2): k('v_max3_f32 v%d, v%d, v%d, v%d' % (m, m, s0+r, s0+r+1))
    k('v_mov_b32 v42, v40')
    k('v_mov_b32 v43, v41')
    k('s_nop 1')
    k('v_permlane32_swap_b32 v40, v42')
    k('v_permlane32_swap_b32 v41, v43')
    k('s_nop 1')
    k('v_max_f32 v40, v40, v42')
    k('v_max_f32 v41, v41, v43')
    for mb in range(2):
        for r in range(16): k('v_sub_f32 v%d, 0, v%d' % (CB(mb) + r, 40+mb))
        for r in range(16): k('v_sub_f32 v%d, v%d, v%d' % (SB(0, mb) + r, SB(0, mb) + r, 40+mb))
    stamp(k, 3)

    def pair_ops(par, p):
        mb, pp = p // 8, p % 8
        s0 = SB(par, mb); a, b = s0 + 2*pp, s0 + 2*pp + 1
        E = ['v_exp_f32 v%d, v%d' % (a, a), 'v_exp_f32 v%d, v%d' % (b, b)]
        A_ = ['v_add_f32 v%d, v%d, v%d' % (LS(mb, 0), LS(mb, 0), a), 'v_add_f32 v%d, v%d, v%d' % (LS(mb, 1), LS(mb, 1), b)]
        C_ = ['v_cvt_pk_bf16_f32 v%d, v%d, v%d' % (PB(par, mb, pp // 4) + pp % 4, a, b)]
        return E, A_, C_
    def iteration(par, do_pv, do_s, kread_kb, vread_kb, carry_in, gap_extra=None):
        gap_extra = gap_extra or {}
        mf = []
        if do_pv:
            for kk in range(2):
                for db in range(4):
                    for mb in range(2):
                        d = ar(OA(db, mb), 16)
                        mf.append('%s %s, %s, %s, %s' % (MFMA, d, ar(VF(kk*4+db), 4), vr(PB(1-par, mb, kk), 4), d))
        else: mf += [None]*16
        if do_s:
            for mb in range(2):
                for ks in range(8):
                    d = vr(SB(1-par, mb), 16)
                    mf.append('%s %s, %s, %s, %s' % (MFMA, d, ar(KF(ks), 4), vr(QF(mb, ks), 4), vr(CB(mb), 16) if ks == 0 else d))
        else: mf += [None]*16
        pre = {0: ['s_waitcnt lgkmcnt(2)'] if do_pv else []}
        nk = 8 if kread_kb is not None else 0
        if do_pv: pre[12] = ['s_waitcnt lgkmcnt(%d)' % (6 if nk else 0)]
        if do_s:
            pre[16] = ['s_waitcnt lgkmcnt(2)']
            pre[22] = ['s_waitcnt lgkmcnt(3)']
        for g_ in range(32):
            for x in pre.get(g_, []): k(x)
            if mf[g_]: k(mf[g_])
            p = g_ // 2
            if g_ % 2 == 0:
                for x in pair_ops(par, p)[0]: k(x)
                if p >= 1: k(pair_ops(par, p-1)[2][0])
                elif carry_in: k(pair_ops(1-par, 15)[2][0])
            else:
                if p >= 1:
                    for x in pair_ops(par, p-1)[1]: k(x)
                elif carry_in:
                    for x in pair_ops(1-par, 15)[1]: k(x)
                if g_ < 16:
                    if kread_kb is not None: k('ds_read_b128 %s, v16 offset:%d' % (ar(KF(p), 4), kread_kb*8192 + p*1024))
                else:
                    k('ds_read_b128 %s, v17 offset:%d' % (ar(VF(p-8), 4), vread_kb*8192 + (p-8)*1024))
            for x in gap_extra.get(g_, []):
                if isinstance(x, str): k(x)
                else:
                    pre_, ins, tag = x
                    for p_ in pre_: k(p_)
                    if pre_ and 'm0' in pre_[-1]: k('s_nop 0')
                    k.vm(ins, tag)
    def touch():
        return (['s_mov_b32 s44, s%d' % TT[0], 's_mov_b32 s45, s%d' % TT[1], 's_mov_b32 s46, s%d' % TT[2]],
                'buffer_load_dword v19, v18, s[44:47], 0 offen', ('T', 0, 0))
    sh = ['s_mov_b32 s%d, s%d' % (TT[n_], TT[n_+3]) for n_ in range(9)]
    g0 = {}
    for i_, op in enumerate(dma_list([('K', 3), ('V', 3), ('K', 4)])): g0.setdefault(1 + i_, []).append(op)
    g0.setdefault(20, []).extend(['s_mov_b32 s52, %d' % (5*16384), 's_mov_b32 s53, %d' % (4*16384)])
    iteration(0, False, True, 1, 0, False, g0)
    def rot(T): return ['s_mov_b32 s58, s%d' % T[0]] + ['s_mov_b32 s%d, s%d' % (T[i_], T[i_+1]) for i_ in range(4)] + ['s_mov_b32 s%d, s58' % T[4]]
    def trip(with_dma, with_touch):
        ge = {0: ['v_add_u32 v16, s%d, v8' % KT[1]]}
        if with_dma:
            ge[0] += ['s_waitcnt vmcnt(20)', 's_barrier']
            dm = vdma(53, ['s_add_u32 m0, s32, s%d' % VT[4]], 'n') + kdma(52, ['s_add_u32 m0, s32, s%d' % KT[0]], 'n')
            for i_, op in enumerate(dm): ge.setdefault(2 + 2*i_, []).append(op)
            ge.setdefault(27, []).extend(['s_add_u32 s52, s52, 16384', 's_add_u32 s53, s53, 16384'])
        if with_touch:
            ge.setdefault(2, []).append(touch())
            ge.setdefault(5, []).extend(sh[:5]); ge.setdefault(7, []).extend(sh[5:])
        ge.setdefault(29, []).extend(rot(KT))
        iteration(1, True, True, 0, 1, True, ge)
        ge2 = {2: ['v_add_u32 v17, s%d, v8' % VT[1]], 4: rot(VT), 31: ['s_sub_u32 s60, s60, 1', 's_cmp_lg_u32 s60, 0']}
        iteration(0, True, True, 1, 0, True, ge2)
    k('s_mov_b32 s60, 4')
    lab = k.L('aloop'); k.label(lab)
    trip(True, False)
    k('s_cbranch_scc1 %s' % lab)
    k('s_waitcnt vmcnt(0)')
    k('s_barrier')
    k('s_mov_b32 s60, 3')
    lab = k.L('bloop'); k.label(lab)
    trip(False, not OPT.get('notouch'))
    k('s_cbranch_scc1 %s' % lab)
    iteration(1, True, False, None, 1, True, {} if OPT.get('notouch') else {2: [touch()]})
    for x in pair_ops(1, 15)[1] + pair_ops(1, 15)[2]: k(x)
    k('v_add_f32 v40, v%d, v%d' % (LS(0, 0), LS(0, 1)))
    k('v_add_f32 v41, v%d, v%d' % (LS(1, 0), LS(1, 1)))
    k('v_mov_b32 v42, v40')
    k('v_mov_b32 v43, v41')
    k('s_nop 1')
    k('v_permlane32_swap_b32 v40, v42')
    k('v_permlane32_swap_b32 v41, v43')
    k('s_nop 1')
    k('v_add_f32 v40, v40, v42')
    k('v_add_f32 v41, v41, v43')
    k('v_mov_b32 v43, 0x%x' % f2u(2.0**100))
    k('v_cmp_nlt_f32 vcc, v40, v43')
    k('v_cmp_nlt_f32 s[6:7], v41, v43')
    k('v_rcp_f32 v40, v40')
    k('v_rcp_f32 v41, v41')
    k('s_or_b64 vcc, vcc, s[6:7]')
    k('s_cmp_lg_u64 vcc, 0')
    k('s_cselect_b32 s58, 1, 0')
    k('v_mov_b32 v43, s58')
    k('s_lshl_b32 s58, s26, 2')
    k('s_add_u32 s58, s58, %d' % FLAG)
    k('v_mov_b32 v44, s58')
    k('ds_write_b32 v44, v43')
    srd(k, 16, PWS, 0x1000000, WS_O)
    k('s_lshl_b32 s27, s34, 8')
    k('s_lshl_b32 s28, s62, 3')
    k('s_add_u32 s27, s27, s28')
    k('s_lshl_b32 s60, s27, 10')
    k('s_add_u32 s61, s60, 0x40000')
    k('v_add_u32 v20, 4096, v8')
    if next_prefetch: next_prefetch()
    k('s_waitcnt lgkmcnt(0)')
    stamp(k, 4)
    order = [(db, mb) for db in range(4) for mb in range(2)]
    def epiO(i):
        db, mb = order[i]; a = OA(db, mb); out = []
        for hh in range(2):
            t = 128 + ((2*i + hh) % 4)*16
            out += ['v_accvgpr_read_b32 v%d, a%d' % (t+r, a + hh*8 + r) for r in range(8)]
            out += ['v_mul_f32 v%d, v%d, v%d' % (t+r, t+r, 40+mb) for r in range(8)]
            out += ['v_cvt_pk_bf16_f32 v%d, v%d, v%d' % (t+8+r, t+2*r, t+2*r+1) for r in range(4)]
            ks = 2*db + hh
            out.append('buffer_store_dwordx4 %s, v%d, s[16:19], s%d offen offset:%d %s' % (vr(t+8, 4), 8 if ks < 4 else 20, 60+mb, (ks % 4)*1024, ST))
        return out
    M = []
    for i, (db, mb) in enumerate(order):
        d = ar(OA(db, mb), 16)
        for kk in range(2):
            M.append('%s %s, %s, %s, %s' % (MFMA, d, ar(VF(kk*4+db), 4), vr(PB(1, mb, kk), 4), d))
    for idx in range(6): k(M[idx])
    k('s_nop 7')
    for i in range(8):
        for x in epiO(i): k(x)
        for idx in (2*i+6, 2*i+7):
            if idx < 16: k(M[idx])
    k('s_barrier')
    k('v_mov_b32 v44, %d' % FLAG)
    k('ds_read_b128 v[44:47], v44')
    k('s_waitcnt lgkmcnt(0)')
    k('v_or3_b32 v44, v44, v45, v46')
    k('v_or_b32 v44, v44, v47')
    k('s_nop 0')
    k('v_readfirstlane_b32 s58, v44')
    k('s_nop 3')
    k('s_cmp_lg_u32 s59, 0')
    k('s_cbranch_scc1 %s_fin' % name)
    k('s_cmp_lg_u32 s58, 0')
    k('s_cbranch_scc1 %s_slow' % name)
    k.label(name + '_fin')
    def slow():
        k.label(name + '_slow')
        k('s_mov_b32 s59, 1')
        k('s_lshl_b32 s27, s22, 17')
        k('s_add_u32 s28, s27, 0x%x' % WS_KF)
        srd_s(k, 44, PWS, 28, 0x20000)
        k('s_mov_b32 s58, 0')
        lab2 = k.L('slow'); k.label(lab2)
        k('s_add_u32 s27, s58, 4096')
        for ks in range(8): k('buffer_load_dwordx4 %s, v8, s[44:47], s%d offen offset:%d %s' % (ar(KF(ks), 4), 58 if ks < 4 else 27, (ks % 4)*1024, kvflag))
        k('s_waitcnt vmcnt(0)')
        for mb in range(2):
            for ks in range(8):
                d = vr(SB(0, mb), 16)
                k('%s %s, %s, %s, %s' % (MFMA, d, ar(KF(ks), 4), vr(QF(mb, ks), 4), '0' if ks == 0 else d))
        k('s_nop 7')
        k('s_nop 7')
        for mb in range(2):
            s0 = SB(0, mb)
            for r in range(0, 16, 2): k('v_max3_f32 v%d, v%d, v%d, v%d' % (MG(mb), MG(mb), s0+r, s0+r+1))
        k('s_add_u32 s58, s58, 8192')
        k('s_cmp_lt_u32 s58, 0x20000')
        k('s_cbranch_scc1 %s' % lab2)
        k('v_add_u32 v16, %d, v8' % KSLOT[0])
        k('v_add_u32 v17, %d, v8' % VSLOT[0])
        for db in range(4):
            for mb in range(2):
                for r in range(16): k('v_accvgpr_write_b32 a%d, 0' % (OA(db, mb) + r))
        for n_ in range(4):
            k('s_mov_b32 s%d, s%d' % (TT[3*n_], PWS))
            k('s_mov_b32 s%d, s%d' % (TT[3*n_+1], PWS+1))
            k('s_mov_b32 s%d, 0' % TT[3*n_+2])
        k('s_barrier')
        for pre, ins, tag in initial_dmas():
            for p_ in pre: k(p_)
            if pre: k('s_nop 0')
            k(ins)
        k('s_waitcnt vmcnt(0)')
        k('s_branch %s_pro' % name)
    return slow

GU_STG = 28928; GU_UP = 14464
def gateup_setup(k, init_state=True):
    vL = [4, 5]; vX = [8, 9]; vW = [10, 11, 12, 13, 14, 15, 16]
    k('s_lshl_b32 s35, s22, 3')
    k('s_add_u32 s35, s35, s25')
    k('v_lshrrev_b32 v20, 5, v1')
    k('v_lshlrev_b32 v20, 3, v20')
    k('v_bfe_u32 v21, v1, 2, 2')
    k('v_add_u32 v20, v20, v21')
    k('v_mul_u32_u24 v20, 224, v20')
    k('v_bfe_u32 v21, v1, 4, 1')
    k('v_mul_u32_u24 v21, %d, v21' % GU_UP)
    k('v_add_u32 v20, v20, v21')
    k('v_and_b32 v21, 1, v1')
    k('v_lshl_add_u32 v20, v21, 4, v20')
    k('v_bfe_u32 v21, v1, 1, 1')
    k('v_lshl_add_u32 v4, v21, 3, v20')
    k('v_add_u32 v5, %d, v4' % (2*GU_STG))
    k('v_lshlrev_b32 v8, 4, v1')
    k('v_add_u32 v9, 0x10000, v8')
    k('s_and_b32 s27, s26, 1')
    k('s_mul_i32 s28, s27, 448')
    k('s_mul_i32 s29, s35, 224')
    for i in range(7):
        k('v_add_u32 v20, s28, v1')
        if i: k('v_add_u32 v20, %d, v20' % (64*i))
        k('v_mul_u32_u24 v21, 4682, v20')
        k('v_lshrrev_b32 v21, 16, v21')
        k('v_mul_u32_u24 v22, 14, v21')
        k('v_sub_u32 v22, v20, v22')
        k('v_mul_u32_u24 v21, 7168, v21')
        k('v_lshl_add_u32 v21, v22, 4, v21')
        k('v_add_u32 v21, s29, v21')
        k('v_subrev_u32 v%d, %d, v21' % (vW[i], (i % 4)*1024))
    srd(k, 8, PWS, 0x400000, WS_H2)
    k('s_cmp_ge_u32 s26, 2')
    k('s_cselect_b32 s12, s%d, s%d' % (PWU, PWG))
    k('s_cselect_b32 s13, s%d, s%d' % (PWU+1, PWG+1))
    k('s_mov_b32 s14, 0x%x' % (1024*7168))
    k('s_mov_b32 s15, 0x20000')
    k('s_lshl_b32 s27, s24, 3')
    k('s_lshl_b32 s28, s26, 1')
    k('s_add_u32 s34, s27, s28')
    if init_state:
        k('s_lshl_b32 s30, s34, 16')
        k('s_sub_u32 s30, s30, 4096')
        k('s_mov_b32 s31, 0x%x' % ((-64*7168) & 0xffffffff))
    k('s_lshr_b32 s27, s26, 1')
    k('s_mul_i32 s32, s27, %d' % GU_UP)
    k('s_and_b32 s27, s26, 1')
    k('s_mul_i32 s27, s27, 7168')
    k('s_add_u32 s32, s32, s27')
    return vL, vX, vW

def gateup_gemm(k, regs, extra=None):
    vL, vX, vW = regs
    return Gemm(k, 7, 16, acc=32, xr=0, wf=128, vX=vX, vW=vW, sXsrd=8, sWsrd=12, sXoff=30, sWoff=31, sM0=32, sCnt=33,
             stage_bytes=GU_STG, ldw_step=64*7168, nW=7,
             lds_imm=lambda buf, j, nb, sec: (vL[buf // 2], (buf % 2)*GU_STG + j*3584 + sec*896 + nb*32), extra=extra, xflag=LD())

def gateup_main(k, g, next_prefetch=None):
    srd(k, 16, PWS, 2048*3584*2, WS_ACT)
    k('s_mul_i32 s27, s34, 224')
    k('s_mul_i32 s28, s35, 7')
    k('s_add_u32 s27, s27, s28')
    k('s_lshl_b32 s36, s27, 10')
    k('s_add_u32 s37, s36, %d' % (224*1024))
    k('s_mov_b32 s40, 0x%x' % f2u(-LOG2E))
    k('s_mov_b32 s41, 0x%x' % f2u(-LOG2E))
    stamp(k, 1)
    g.start()
    stamp(k, 2)
    g.mainloop()
    stamp(k, 3)
    k('v_add_u32 v31, 4096, v8')
    k('v_mov_b32 v30, v8')
    if next_prefetch: next_prefetch()
    k('s_nop 7')
    cnt = 0
    for b in range(7):
        for mb in range(2):
            a = g.accr(b, mb)
            t = 14 + (cnt % 2)*8
            o = 2 if cnt % 2 else 28
            cnt += 1
            for i in range(4): k('v_pk_mul_f32 %s, %s, s[40:41]' % (vr(t+2*i, 2), vr(a+2*i, 2)))
            for i in range(8): k('v_exp_f32 v%d, v%d' % (t+i, t+i))
            for i in range(4): k('v_pk_mul_f32 %s, %s, %s' % (vr(a+2*i, 2), vr(a+2*i, 2), vr(a+8+2*i, 2)))
            for i in range(4): k('v_pk_add_f32 %s, %s, 1.0 op_sel_hi:[1,0]' % (vr(t+2*i, 2), vr(t+2*i, 2)))
            for i in range(8): k('v_rcp_f32 v%d, v%d' % (t+i, t+i))
            k('s_nop 0')
            for i in range(4): k('v_pk_mul_f32 %s, %s, %s' % (vr(a+2*i, 2), vr(a+2*i, 2), vr(t+2*i, 2)))
            for i in range(4): k('v_cvt_pk_bf16_f32 v%d, v%d, v%d' % (a+8+i, a+2*i, a+2*i+1))
            k('buffer_store_dwordx4 %s, v%d, s[16:19], s%d offen offset:%d %s' % (vr(a+8, 4), 30 if b < 4 else 31, 36+mb, (b % 4)*1024, ST))

def resume_m0(k, g):
    k('s_add_u32 m0, s%d, 0x%x' % (g.sM0, 2*g.stage))

def build():
    kerns = []
    if MEGA:
        name = NAME + '_kernel'
        k = Kern(name, nvgpr=512, accum=256, nsgpr=102, lds=163840)
        header(k, name)
        phase_p0(k, name)
        phase_ln1b(k)
        box = {}
        def pf_oproj():
            box['g'] = gemm128_setup(k, 'oproj'); box['g'].prologue_w()
        slow = phase_attn(k, name, pf_oproj)
        def a3():
            k('s_lshl_b32 s27, s24, 2'); k('s_add_u32 s27, s27, s22'); k('s_add_u32 s27, s27, %d' % C_S3); cnt_addr(k, 27)
        arrive(k, a3)
        stamp_flush(k, 'attn', 5)
        stamp_rt0(k, 'oproj'); stamp(k, 0)
        g = box['g']
        waitfor(k, a3, 8)
        resume_m0(k, g)
        g.prologue_x()
        gemm128_main(k, 'oproj', g)
        k('s_barrier')
        regs = gateup_setup(k)
        gg = gateup_gemm(k, regs)
        gg.prologue_w()
        def a4():
            k('s_add_u32 s27, s24, %d' % C_S4); cnt_addr(k, 27)
        arrive(k, a4)
        stamp_flush(k, 'oproj', 4)
        phase_ln2(k, 'ln2')
        stamp_rt0(k, 'gateup'); stamp(k, 0)
        gateup_setup(k, init_state=False)
        def a5():
            k('s_add_u32 s27, s24, %d' % C_S5); cnt_addr(k, 27)
        waitfor(k, a5, 32)
        resume_m0(k, gg)
        gg.prologue_x()
        def pf_down():
            box['g'] = gemm128_setup(k, 'down'); box['g'].prologue_w()
        gateup_main(k, gg, pf_down)
        def a6():
            k('s_lshl_b32 s27, s24, 2'); k('s_add_u32 s27, s27, s22'); k('s_add_u32 s27, s27, %d' % C_S6); cnt_addr(k, 27)
        arrive(k, a6)
        stamp_flush(k, 'gateup', 4)
        stamp_rt0(k, 'down'); stamp(k, 0)
        g = box['g']
        waitfor(k, a6, 8)
        resume_m0(k, g)
        g.prologue_x()
        gemm128_main(k, 'down', g)
        def a7():
            k('s_add_u32 s27, s24, %d' % C_S7); cnt_addr(k, 27)
        arrive(k, a7)
        stamp_flush(k, 'down', 4)
        phase_ln2(k, 'final')
        k('s_endpgm')
        slow()
        k.label(name + '_end')
        k('s_endpgm')
        kerns.append(k)
    else:
        def kern(nm, lds):
            k = Kern(nm, nvgpr=512, accum=256, nsgpr=102, lds=lds); header(k, nm); return k
        def fin(k):
            k.label(k.name + '_end'); k('s_endpgm'); kerns.append(k)
        k = kern('p0_kernel', 163840); phase_p0(k, k.name); stamp_flush(k, 'p0', 3); fin(k)
        k = kern('ln1_kernel', 163840)
        ln_addr(k); srd(k, 8, PX, 0x400000)
        for j in range(4): k('buffer_load_dwordx4 %s, v6, s[8:11], s44 offen offset:%d' % (vr(RAW + 4*j, 4), j*128))
        k('s_waitcnt vmcnt(0)'); ln_unpack(k, RAW); ln_stats(k); phase_ln1b(k); fin(k)
        k = kern('attn_kernel', 163840); slow = phase_attn(k, k.name); stamp_flush(k, 'attn', 5); k('s_endpgm'); slow(); fin(k)
        k = kern('oproj_kernel', 65536); stamp_rt0(k, 'oproj'); stamp(k, 0); g = gemm128_setup(k, 'oproj'); g.prologue_mixed(); gemm128_main(k, 'oproj', g); stamp_flush(k, 'oproj', 4); fin(k)
        k = kern('ln2_kernel', 163840); phase_ln2(k, 'ln2'); fin(k)
        k = kern('gateup_kernel', 4*GU_STG); stamp_rt0(k, 'gateup'); stamp(k, 0); regs = gateup_setup(k); gg = gateup_gemm(k, regs); gg.prologue_mixed(); gateup_main(k, gg); stamp_flush(k, 'gateup', 4); fin(k)
        k = kern('down_kernel', 65536); stamp_rt0(k, 'down'); stamp(k, 0); g = gemm128_setup(k, 'down'); g.prologue_mixed(); gemm128_main(k, 'down', g); stamp_flush(k, 'down', 4); fin(k)
        k = kern('final_kernel', 163840); phase_ln2(k, 'final'); fin(k)
    return kerns

HEADER = open('cdna_kernels/%s.s.ref' % NAME).read().split('; Override launch')[0] if os.path.exists('cdna_kernels/%s.s.ref' % NAME) else ''

def assemble(kerns):
    out = [HEADER.rstrip()]
    if MEGA:
        kn = kerns[0]
        out.append('; @launch grid=(%d,1,1) block=(%d,1,1) lds=%d' % (kn.grid, kn.block, kn.lds))
    else:
        for kn in kerns:
            out.append('; @launch kernel=%s grid=(%d,1,1) block=(%d,1,1) lds=%d' % (kn.name, kn.grid, kn.block, kn.lds))
    out.append('.amdgcn_target "amdgcn-amd-amdhsa--gfx950"')
    for kn in kerns: out.append(kn.text())
    out.append('.section .rodata,"a"')
    for kn in kerns:
        out.append('.p2align 6'); out.append(kn.desc())
    return '\n'.join(out) + '\n'

if __name__ == '__main__':
    for a in sys.argv[2:]:
        if a == 'instr': INSTR = True
        elif a == 'mega': MEGA = True
        elif a.startswith('opt:'): OPT[a[4:].split('=')[0]] = (a.split('=')[1].replace('+', ' ') if '=' in a else True)
    ks = build()
    bad = 0
    for kn in ks: bad += len(check(kn))
    txt = assemble(ks)
    txt = '\n'.join(l[4:] if l.startswith('    ') else l for l in txt.split('\n'))
    open(sys.argv[1], 'w').write(txt)
    print('generated', len(txt), 'bytes; check errors:', bad)
```

```python
import sys, math, os, struct as _st
from asmlib import *

NAME = 'adaLN_cond__sliding_block_cached__swiglu_ffn__prompt'
KA = dict(x=0, k=8, v=16, wq=24, wo=32, bx=40, wg=48, wu=56, wd=64, c=72, wmod=80, out=88, dbg=96, ws=104)
PX, PK, PV, PWQ, PWO, PWG, PWU, PWD, PC_, PWMOD, POUT, PDBG, PWS = 64, 66, 68, 70, 72, 76, 78, 80, 82, 84, 86, 88, 90
WS_MOD  = 0x0
WS_MODB = 0x10000
WS_CNT  = 0x20000
WS_H   = 0x100000
WS_O   = 0x500000
WS_P1  = 0x1500000
WS_X1  = 0x3500000
WS_H2  = 0x3900000
WS_ACT = 0x3D00000
WS_P2  = 0x4B00000
WS_KF  = 0x5B00000
WS_VF  = 0x5B80000
WS_STAMP = 0x8000000
MFMA = 'v_mfma_f32_32x32x16_bf16'
LOG2E = 1.4426950408889634
def f2u(x): return _st.unpack('<I', _st.pack('<f', x))[0]
INSTR = False
MEGA = False
OPT = {}
PHASES = ['p0', 'attn', 'oproj', 'ln2', 'gateup', 'down', 'final']
PIDX = {p: i for i, p in enumerate(PHASES)}
ST = 'sc1'
def LD(): return 'sc1' if (MEGA and not OPT.get('plainld')) else ''
C_S2, C_S3, C_S4, C_S5, C_S6, C_S7 = 0, 8, 40, 48, 56, 88
LN_LDS = 147456

def srd(k, s, lo, size, add=None):
    if add:
        k('s_add_u32 s%d, s%d, 0x%x' % (s, lo, add))
        k('s_addc_u32 s%d, s%d, 0' % (s+1, lo+1))
    else:
        k('s_mov_b32 s%d, s%d' % (s, lo))
        k('s_mov_b32 s%d, s%d' % (s+1, lo+1))
    k('s_mov_b32 s%d, 0x%x' % (s+2, size))
    k('s_mov_b32 s%d, 0x20000' % (s+3))
def srd_s(k, s, lo, soff, size):
    k('s_add_u32 s%d, s%d, s%d' % (s, lo, soff))
    k('s_addc_u32 s%d, s%d, 0' % (s+1, lo+1))
    k('s_mov_b32 s%d, 0x%x' % (s+2, size))
    k('s_mov_b32 s%d, 0x20000' % (s+3))

def stamp(k, i):
    if INSTR:
        k('s_memtime s[%d:%d]' % (92+2*i, 93+2*i)) if i < 5 else None
def stamp_begin(k):
    if INSTR:
        k('s_memrealtime s[60:61]') if False else None
        k('s_memrealtime s[18:19]') if False else None
def stamp_flush(k, phase, n):
    if not INSTR: return
    k('s_waitcnt lgkmcnt(0)')
    k('s_memrealtime s[28:29]') if False else None
    srd(k, 16, PWS, 0x10000, WS_STAMP + PIDX[phase]*0x10000)
    k('s_lshl_b32 s27, s2, 6')
    k('v_cmp_eq_u32 vcc, 0, v0')
    k('s_and_saveexec_b64 s[28:29], vcc')
    lab = k.L('so')
    k('s_cbranch_execz %s' % lab)
    k('v_mov_b32 v2, s27')
    for i in range(n):
        k('v_mov_b32 v3, s%d' % (92+2*i))
        k('buffer_store_dword v3, v2, s[16:19], 0 offen offset:%d' % (4*i))
    k('s_memrealtime s[92:93]')
    k('s_memtime s[94:95]')
    k('s_waitcnt lgkmcnt(0)')
    k('v_mov_b32 v3, s92')
    k('buffer_store_dword v3, v2, s[16:19], 0 offen offset:56')
    k('v_mov_b32 v3, s94')
    k('buffer_store_dword v3, v2, s[16:19], 0 offen offset:60')
    k.label(lab)
    k('s_mov_b64 exec, s[28:29]')
def stamp_rt0(k, phase):
    if not INSTR: return
    k('s_memrealtime s[92:93]')
    k('s_memtime s[94:95]')
    srd(k, 16, PWS, 0x10000, WS_STAMP + PIDX[phase]*0x10000)
    k('s_lshl_b32 s27, s2, 6')
    k('s_waitcnt lgkmcnt(0)')
    k('v_cmp_eq_u32 vcc, 0, v0')
    k('s_and_saveexec_b64 s[28:29], vcc')
    lab = k.L('s0')
    k('s_cbranch_execz %s' % lab)
    k('v_mov_b32 v2, s27')
    k('v_mov_b32 v3, s92')
    k('buffer_store_dword v3, v2, s[16:19], 0 offen offset:48')
    k('v_mov_b32 v3, s94')
    k('buffer_store_dword v3, v2, s[16:19], 0 offen offset:52')
    k.label(lab)
    k('s_mov_b64 exec, s[28:29]')

def header(k, name, early=None):
    k('s_cmp_ge_u32 s2, 256')
    k('s_cbranch_scc1 %s_end' % name)
    k('s_load_dwordx8 s[80:87], s[0:1], 64')
    k('s_load_dwordx16 s[64:79], s[0:1], 0')
    k('s_load_dwordx4 s[88:91], s[0:1], 96')
    k('v_lshrrev_b32 v2, 6, v0')
    k('v_and_b32 v1, 63, v0')
    k('s_lshr_b32 s21, s2, 3')
    k('v_readfirstlane_b32 s26, v2')
    if early: early()
    k('s_and_b32 s20, s2, 7')
    k('s_lshr_b32 s22, s20, 1')
    k('s_and_b32 s23, s20, 1')
    k('s_and_b32 s24, s21, 3')
    k('s_lshl_b32 s27, s23, 2')
    k('s_add_u32 s24, s24, s27')
    k('s_lshr_b32 s25, s21, 2')
    k('s_waitcnt lgkmcnt(0)')

def cnt_addr(k, sreg, dst=6):
    k('s_lshl_b32 s%d, s%d, 8' % (dst, sreg))
    k('s_add_u32 s%d, s%d, 0x%x' % (dst, dst, WS_CNT))
    k('s_add_u32 s%d, s%d, s%d' % (dst, dst, PWS))
    k('s_addc_u32 s%d, s%d, 0' % (dst+1, PWS+1))
def arrive(k, setup, count=None, extra_dbg=None, only_w0=False, flag_off=None):
    if not MEGA: return
    if not only_w0:
        k('s_waitcnt vmcnt(0)')
        k('s_barrier')
    lab = k.L('arr')
    k('s_cmp_lg_u32 s26, 0')
    k('s_cbranch_scc1 %s' % lab)
    if only_w0: k('s_waitcnt vmcnt(0)')
    setup()
    k('v_mov_b32 v2, 0')
    k('v_mov_b32 v3, 1')
    k('s_mov_b64 exec, 1')
    if extra_dbg is not None:
        k('v_mov_b32 v29, %d' % extra_dbg)
        k('global_atomic_add v29, v3, s[%d:%d] sc1' % (PDBG, PDBG+1))
    if count is None:
        k('global_atomic_add v2, v3, s[6:7] sc1')
    else:
        k('global_atomic_add v29, v2, v3, s[6:7] sc0 sc1')
        k('s_waitcnt vmcnt(0)')
        k('v_readfirstlane_b32 s27, v29')
        k('s_nop 3')
        k('s_cmp_lg_u32 s27, %d' % (count - 1))
        k('s_cbranch_scc1 %s_n' % lab)
        k('global_store_dword v2, v3, s[6:7] offset:%d sc1' % flag_off)
        k.label(lab + '_n')
    k('s_mov_b64 exec, -1')
    k.label(lab)
def waitfor(k, setup, count, off=0, sleep=2):
    if not MEGA: return
    lab = k.L('wt'); done = k.L('wd'); skip = k.L('ws')
    k('s_cmp_lg_u32 s26, 0')
    k('s_cbranch_scc1 %s' % skip)
    setup()
    k('v_mov_b32 v2, 0')
    k('s_mov_b32 s27, 0')
    k('s_mov_b64 exec, 1')
    k.label(lab)
    k('global_load_dword v3, v2, s[6:7] offset:%d sc1' % off)
    k('s_waitcnt vmcnt(0)')
    k('v_readfirstlane_b32 s28, v3')
    k('s_add_u32 s27, s27, 1')
    k('s_cmp_ge_u32 s28, %d' % count)
    k('s_cbranch_scc1 %s' % done)
    k('s_cmp_ge_u32 s27, 0x40000')
    k('s_cbranch_scc1 %s' % done)
    k('s_sleep %d' % sleep)
    k('s_branch %s' % lab)
    k.label(done)
    k('s_mov_b64 exec, -1')
    k.label(skip)
    k('s_barrier')

def code_touch(k, lab0, lab1, vtmp):
    if OPT.get('nocode'): return
    here = k.L('pc'); skip = k.L('ct')
    k('s_cmp_lg_u32 s26, 0')
    k('s_cbranch_scc1 %s' % skip)
    k('s_getpc_b64 s[6:7]')
    k.label(here)
    k('s_add_u32 s6, s6, %s-%s' % (lab0, here))
    k('s_addc_u32 s7, s7, %s' % ('0' if True else ''))
    k('v_lshlrev_b32 v%d, 5, v1' % vtmp)
    k('v_add_u32 v%d, s21, v%d' % (vtmp, vtmp))
    k('v_lshlrev_b32 v%d, 7, v%d' % (vtmp, vtmp))
    k('v_cmp_gt_u32 vcc, %s-%s, v%d' % (lab1, lab0, vtmp))
    k('s_and_saveexec_b64 s[4:5], vcc')
    k('s_cbranch_execz %s_r' % skip)
    k('global_load_dword v%d, v%d, s[6:7]' % (vtmp+1, vtmp))
    k.label(skip + '_r')
    k('s_mov_b64 exec, s[4:5]')
    k.label(skip)

class Gemm:
    def __init__(self, k, NB, nsteps, acc, xr, wf, vX, vW, sXsrd, sWsrd, sXoff, sWoff, sM0, sCnt,
                 stage_bytes, ldw_step, nW, lds_imm, extra=None, xflag=''):
        self.k = k; self.NB = NB; self.nsteps = nsteps; self.acc = acc; self.xr = xr; self.wf = wf
        self.vX = vX; self.vW = vW; self.sX = sXsrd; self.sW = sWsrd; self.sXoff = sXoff; self.sWoff = sWoff
        self.sM0 = sM0; self.sCnt = sCnt; self.stage = stage_bytes; self.ldw_step = ldw_step; self.nW = nW
        self.lds_imm = lds_imm; self.xflag = xflag
        self.extra = extra or (lambda t, j: [])
        if nW == 4: wsl = {3: [0], 0: [1], 1: [2], 2: [3]}
        else: wsl = {3: [0, 1], 0: [2, 3], 1: [4, 5], 2: [6]}
        Q = []
        for i in wsl[3]: Q.append((('W', 0, i), -13))
        for s_ in range(nsteps):
            for j in range(4):
                slot = 4*(s_-3) + j
                ws = [('W', s_, i) for i in wsl[j]] if j < 3 else ([('W', s_+1, i) for i in wsl[3]] if s_+1 < nsteps else [])
                for o in [('X', s_, j, 0)] + ws + [('X', s_, j, 1)]: Q.append((o, slot))
        self.Q = Q
        self.P = len([1 for o, sl in Q if sl < -4])
        self.sched = {}
        pos = self.P
        for t in range(nsteps):
            for j in range(4):
                slot = 4*t + j
                steady = len([1 for o, sl in Q if sl <= slot])
                per = len([1 for o, sl in Q if sl == 16 + j])
                n = min(steady, pos + per + 1)
                self.sched[(t, j)] = [o for o, sl in Q[pos:n]]
                pos = n
    def accr(self, nb, mb): return self.acc + (nb*2 + mb)*16
    def xreg(self, s, mb, j): return self.xr + (s % 4)*32 + (mb*4 + j)*4
    def wreg(self, par, nb): return self.wf + par*self.NB*4 + nb*4
    def mkop(self, o):
        if o[0] == 'X':
            _, s_, j, mb = o
            pre = ['s_add_u32 s%d, s%d, 4096' % (self.sXoff, self.sXoff)] if (j == 0 and mb == 0) else []
            return (pre, 'buffer_load_dwordx4 %s, v%d, s[%d:%d], s%d offen offset:%d %s' % (ar(self.xreg(s_, mb, j), 4), self.vX[mb], self.sX, self.sX+3, self.sXoff, j*1024, self.xflag), ('X', s_, j))
        _, s_, i = o
        pre = []
        if i == 0:
            pre.append('s_add_u32 s%d, s%d, 0x%x' % (self.sWoff, self.sWoff, self.ldw_step))
            pre.append('s_add_u32 m0, s%d, 0x%x' % (self.sM0, (s_ % 4)*self.stage))
        elif i == 4:
            pre.append('s_add_u32 m0, s%d, 0x%x' % (self.sM0, (s_ % 4)*self.stage + 4096))
        return (pre, 'buffer_load_dwordx4 v%d, s[%d:%d], s%d offen offset:%d lds' % (self.vW[i], self.sW, self.sW+3, self.sWoff, (i % 4)*1024), ('W', s_, i))
    def emit_vm(self, op):
        k = self.k
        pre, ins, tag = op[0], op[1], op[2]
        for p in pre: k(p)
        if pre and 'm0' in pre[-1]: k('s_nop 0')
        k.vm(ins, tag)
    def lds_reads(self, t, j):
        out = []
        for nb in range(self.NB):
            for sec in range(2):
                v, imm = self.lds_imm(t % 4, j, nb, sec)
                out.append('ds_read_b64_tr_b16 %s, v%d offset:%d' % (ar(self.wreg(j % 2, nb) + 2*sec, 2), v, imm))
        return out
    def blk_reads(self, t, nb):
        out = []
        for j in range(4):
            for sec in range(2):
                v, imm = self.lds_imm(t % 4, j, nb, sec)
                out.append('ds_read_b64_tr_b16 %s, v%d offset:%d' % (ar(self.wf + (nb % 2)*16 + j*4 + 2*sec, 2), v, imm))
        return out
    def prologue_w(self):
        for o, sl in self.Q[:self.P]:
            if o[0] == 'W': self.emit_vm(self.mkop(o))
    def prologue_x(self):
        for o, sl in self.Q[:self.P]:
            if o[0] == 'X': self.emit_vm(self.mkop(o))
    def prologue_mixed(self):
        for o, sl in self.Q[:self.P]: self.emit_vm(self.mkop(o))
    def start(self):
        k = self.k
        n = k.vm_wait_n(lambda tg: (tg[0] == 'W' and tg[1] == 0) or (tg[0] == 'X' and tg[1] == 0 and tg[2] <= 2))
        k('s_waitcnt vmcnt(%d)' % n)
        k('s_barrier')
        for r in self.lds_reads(0, 0): k(r)
    def emit_gaps(self, mfmas, gaps):
        k = self.k
        for m, mf in enumerate(mfmas):
            k(mf)
            for kind, x in gaps[m]:
                if kind == 'i': k(x)
                else: self.emit_vm(x)
    def frag_reads(self, t, j, nb, slot):
        out = []
        for sec in range(2):
            v, imm = self.lds_imm(t % 4, j, nb, sec)
            out.append('ds_read_b64_tr_b16 %s, v%d offset:%d' % (ar(self.wf + slot*4 + 2*sec, 2), v, imm))
        return out
    def step(self, t, tail=0):
        k = self.k; NB = self.NB; n = self.nsteps
        last = (t == n - 1)
        pre_tail = tail and t == n - tail - 1
        for j in range(4):
            if j == 3 and not last:
                if pre_tail:
                    nn = k.vm_wait_n(lambda tg: tg[0] in 'WX' and tg[1] <= (n-2 if tail >= 3 else n-1))
                else:
                    nn = k.vm_wait_n(lambda tg: (tg[0] == 'W' and tg[1] <= t+1) or (tg[0] == 'X' and (tg[1] <= t or (tg[1] == t+1 and tg[2] <= 2))))
                k('s_waitcnt vmcnt(%d) lgkmcnt(0)' % nn)
                k('s_barrier')
            elif j == 3:
                nn = k.vm_wait_n(lambda tg: tg[0] == 'X' and tg[1] <= t)
                k('s_waitcnt vmcnt(%d) lgkmcnt(0)' % nn)
            else:
                k('s_waitcnt lgkmcnt(0)')
            if j < 3: reads = self.lds_reads(t, j+1)
            elif last: reads = []
            elif pre_tail:
                reads = []
                for f in range(4): reads += self.frag_reads(n - tail, f, 0, f)
            else: reads = self.lds_reads(t+1, 0)
            vms = [self.mkop(o) for o in self.sched[(t, j)]]
            extra = list(self.extra(t, j))
            vms += [e for e in extra if not isinstance(e, str)]
            plain = [e for e in extra if isinstance(e, str)]
            nm = 2*NB
            gaps = [[] for _ in range(nm)]
            for i, r in enumerate(reads): gaps[i // 2].append(('i', r))
            for i, op in enumerate(vms): gaps[NB + (i * NB) // max(1, len(vms))].append(('vm', op))
            for i, e in enumerate(plain): gaps[(i * nm) // len(plain)].append(('i', e))
            mf = []
            for nb in range(NB):
                for mb in range(2):
                    d = vr(self.accr(nb, mb), 16)
                    mf.append('%s %s, %s, %s, %s' % (MFMA, d, ar(self.wreg(j % 2, nb), 4), ar(self.xreg(t, mb, j), 4), '0' if (t == 0 and j == 0) else d))
            self.emit_gaps(mf, gaps)
    def tail_blocks(self, tail, epi):
        k = self.k; NB = self.NB; n = self.nsteps
        frs = [(nb, t, j) for nb in range(NB) for t in range(n - tail, n) for j in range(4)]
        per = tail*4
        NS = 8
        pending = []
        for f, (nb, t, j) in enumerate(frs):
            fo = f % per
            if fo == 0:
                items = list(pending)
                if nb < tail:
                    for jj in range(4): items += list(self.extra(n - tail + nb, jj))
                ng = 2*per
                blockgaps = [[] for _ in range(ng)]
                for i, e in enumerate(items): blockgaps[4 + (i * (ng - 4)) // max(1, len(items))].append(e)
            if f == 4 and tail >= 3:
                nn = k.vm_wait_n(lambda tg: tg[0] in 'WX' and tg[1] <= n-1)
                k('s_waitcnt vmcnt(%d)' % nn)
                k('s_barrier')
            ahead = min(len(frs) - 1 - f, 3)
            k('s_waitcnt lgkmcnt(%d)' % (2*ahead))
            nxt = self.frag_reads(frs[f+4][1], frs[f+4][2], frs[f+4][0], (f+4) % NS) if f + 4 < len(frs) else []
            for mb in range(2):
                d = vr(self.accr(nb, mb), 16)
                k('%s %s, %s, %s, %s' % (MFMA, d, ar(self.wf + (f % NS)*4, 4), ar(self.xreg(t, mb, j), 4), d))
                if nxt: k(nxt[mb])
                for e in blockgaps[2*fo + mb]:
                    if isinstance(e, str): k(e)
                    else: self.emit_vm(e)
            if fo == per - 1: pending = epi(nb)
        k('s_nop 7')
        k('s_nop 3')
        for e in pending:
            if isinstance(e, str): k(e)
            else: self.emit_vm(e)
    def mainloop(self, epi=None, tail=3):
        k = self.k; n = self.nsteps
        tl = tail if epi is not None else 0
        for t in range(4): self.step(t, tl)
        t = 4
        trips = 0
        while t + 4*trips + 3 + 4 <= n - 1: trips += 1
        if trips >= 2:
            lab = k.L('loop')
            k('s_mov_b32 s%d, %d' % (self.sCnt, trips))
            k.label(lab)
            q0 = len(k.vmq)
            for tt in range(t, t+4): self.step(tt, tl)
            k('s_sub_u32 s%d, s%d, 1' % (self.sCnt, self.sCnt))
            k('s_cmp_lg_u32 s%d, 0' % self.sCnt)
            k('s_cbranch_scc1 %s' % lab)
            body = k.vmq[q0:]
            for r in range(1, trips):
                for tg in body: k.vmq.append((tg[0], tg[1] + 4*r, tg[2]))
            t += 4*trips
        for tt in range(t, n - tl): self.step(tt, tl)
        if tl: self.tail_blocks(tl, epi)

def lds_addr_128(k, vL, tmp):
    a, b, c = tmp, tmp+1, tmp+2
    k('v_lshrrev_b32 v%d, 5, v1' % a)
    k('v_lshlrev_b32 v%d, 11, v%d' % (a, a))
    k('v_bfe_u32 v%d, v1, 2, 2' % b)
    k('v_lshl_add_u32 v%d, v%d, 8, v%d' % (a, b, a))
    k('v_bfe_u32 v%d, v1, 4, 1' % c)
    k('v_lshl_add_u32 v%d, v%d, 5, v%d' % (a, c, a))
    k('v_and_b32 v%d, 1, v1' % c)
    k('v_lshl_add_u32 v%d, v%d, 4, v%d' % (a, c, a))
    k('v_bfe_u32 v%d, v1, 1, 1' % c)
    k('v_lshl_add_u32 v%d, v%d, 3, v%d' % (a, c, a))
    for nb in range(4):
        k('v_xor_b32 v%d, %d, v%d' % (c, nb, b))
        k('v_lshl_add_u32 v%d, v%d, 6, v%d' % (vL[nb], c, a))

def w128_voffsets(k, vW, ldw, s_colbytes, tmp):
    a, b, c = tmp, tmp+1, tmp+2
    k('v_lshrrev_b32 v%d, 4, v1' % a)
    k('v_bfe_u32 v%d, v1, 2, 2' % b)
    k('v_xor_b32 v%d, v%d, v%d' % (b, b, a))
    k('v_and_b32 v%d, 3, v1' % c)
    k('v_lshlrev_b32 v%d, 4, v%d' % (c, c))
    k('v_lshl_add_u32 v%d, v%d, 6, v%d' % (c, b, c))
    k('s_lshl_b32 s27, s26, 4')
    k('v_add_u32 v%d, s27, v%d' % (a, a))
    k('v_mul_u32_u24 v%d, %d, v%d' % (a, ldw, a))
    k('v_add3_u32 v%d, v%d, v%d, s%d' % (vW[0], a, c, s_colbytes))
    for i in range(1, 4): k('v_add_u32 v%d, 0x%x, v%d' % (vW[i], i*4*ldw - i*1024, vW[0]))

def gemm128_setup(k, which):
    if which == 'oproj': xoff, xsize, KS, ksq, wptr, ldw, nsteps = WS_O, 0x1000000, 256, 64, PWO, 2048, 16
    else: xoff, xsize, KS, ksq, wptr, ldw, nsteps = WS_ACT, 2048*3584*2, 224, 56, PWD, 2048, 14
    vL = [4, 5, 6, 7]; vX = [8, 9]; vW = [10, 11, 12, 13]
    lds_addr_128(k, vL, tmp=14)
    k('v_lshlrev_b32 v8, 4, v1')
    k('v_add_u32 v9, 0x%x, v8' % (KS*1024))
    k('s_lshl_b32 s28, s25, 8')
    w128_voffsets(k, vW, ldw, 28, 14)
    srd(k, 8, PWS, xsize, xoff)
    srd(k, 12, wptr, ksq*4*16*ldw)
    k('s_lshl_b32 s27, s24, 3')
    k('s_lshl_b32 s28, s26, 1')
    k('s_add_u32 s34, s27, s28')
    k('s_mul_i32 s30, s34, %d' % KS)
    k('s_mul_i32 s28, s22, %d' % ksq)
    k('s_add_u32 s30, s30, s28')
    k('s_lshl_b32 s30, s30, 10')
    k('s_sub_u32 s30, s30, 4096')
    k('s_mul_i32 s31, s22, 0x%x' % (ksq*16*ldw))
    k('s_sub_u32 s31, s31, 0x%x' % (64*ldw))
    k('s_lshl_b32 s32, s26, 12')
    return Gemm(k, 4, nsteps, acc=128, xr=0, wf=128, vX=vX, vW=vW, sXsrd=8, sWsrd=12, sXoff=30, sWoff=31, sM0=32, sCnt=33,
                stage_bytes=16384, ldw_step=64*ldw, nW=4,
                lds_imm=lambda buf, j, nb, sec: (vL[nb], buf*16384 + j*4096 + sec*1024), xflag=LD())

def gemm128_main(k, which, g):
    poff = WS_P1 if which == 'oproj' else WS_P2
    k('s_lshl_b32 s27, s22, 22')
    k('s_add_u32 s27, s27, 0x%x' % poff)
    srd_s(k, 16, PWS, 27, 0x400000)
    k('s_lshl_b32 s27, s34, 6')
    k('s_lshl_b32 s28, s25, 3')
    k('s_add_u32 s27, s27, s28')
    k('s_lshl_b32 s36, s27, 10')
    k('s_add_u32 s37, s36, 0x10000')
    k('v_add_u32 v14, 4096, v8')
    stamp(k, 1)
    g.start()
    stamp(k, 2)
    cnt = [0]
    def epi(nb):
        out = []
        for mb in range(2):
            a = g.accr(nb, mb)
            for hh in range(2):
                t = 16 + (cnt[0] % 8)*4; cnt[0] += 1
                for r in range(4): out.append('v_cvt_pk_bf16_f32 v%d, v%d, v%d' % (t+r, a + hh*8 + 2*r, a + hh*8 + 2*r + 1))
                ks = 2*nb + hh
                out.append(([], 'buffer_store_dwordx4 %s, v%d, s[16:19], s%d offen offset:%d %s' % (vr(t, 4), 8 if ks < 4 else 14, 36+mb, (ks % 4)*1024, ST), ('S', 0, 0)))
        return out
    g.mainloop(epi)
    stamp(k, 3)

def reduce8(k, v, t):
    k('s_nop 1')
    k('v_add_f32_dpp v%d, v%d, v%d row_ror:8 row_mask:0xf bank_mask:0xf' % (v, v, v))
    k('v_mov_b32 v%d, v%d' % (t, v))
    k('s_nop 1')
    k('v_permlane16_swap_b32 v%d, v%d' % (v, t))
    k('s_nop 1')
    k('v_add_f32 v%d, v%d, v%d' % (v, v, t))
    k('v_mov_b32 v%d, v%d' % (t, v))
    k('s_nop 1')
    k('v_permlane32_swap_b32 v%d, v%d' % (v, t))
    k('s_nop 1')
    k('v_add_f32 v%d, v%d, v%d' % (v, v, t))

def gemv_load(k, nj, s_row0, s_col0bytes, AD=160, C=168, LDB=96, emit=True):
    o = []
    o.append('v_and_b32 v%d, 7, v0' % AD)
    o.append('v_lshrrev_b32 v%d, 3, v0' % (AD+1))
    o.append('v_mul_u32_u24 v%d, %d, v%d' % (AD+2, nj*12288, AD+1))
    o.append('v_lshl_add_u32 v%d, v%d, 4, v%d' % (AD+2, AD, AD+2))
    o.append('v_mul_u32_u24 v%d, %d, v%d' % (AD+3, nj*2, AD+1))
    o.append('s_mul_i32 s36, s%d, 12288' % s_row0)
    o.append('s_add_u32 s36, s36, s%d' % s_col0bytes)
    o.append('s_lshl_b32 s37, s%d, 1' % s_row0)
    for i in range(nj // 8): o.append('buffer_load_dwordx4 %s, v%d, s[12:15], s37 offen offset:%d' % (vr(C+4*i, 4), AD+3, 16*i))
    for j in range(nj):
        o.append('buffer_load_dwordx4 %s, v%d, s[8:11], s36 offen' % (vr(LDB+4*j, 4), AD+2))
        if j < nj-1: o.append('s_add_u32 s36, s36, 12288')
    if emit:
        for x in o: k(x)
    return o
def gemv_compute(k, nj, s_outoff, out_srd, L0, after, B=160, C=168, LDB=96):
    S = B+16; T = B+32; A = B+48
    k('v_and_b32 v%d, 7, v0' % B)
    k('v_lshrrev_b32 v%d, 3, v0' % (B+1))
    k('s_waitcnt vmcnt(%d)' % (nj + after))
    if OPT.get('p0st') and L0 == LN_LDS: stamp(k, 2)
    for i in range(nj//2):
        k('v_lshlrev_b32 v%d, 16, v%d' % (S+2*i, C+i))
        k('v_and_b32 v%d, 0xffff0000, v%d' % (S+1+2*i, C+i))
    for i in range(nj): k('v_mul_f32 v%d, 0x%x, v%d' % (T+i, f2u(-LOG2E), S+i))
    for i in range(nj): k('v_exp_f32 v%d, v%d' % (T+i, T+i))
    k('s_nop 0')
    for i in range(nj): k('v_add_f32 v%d, 1.0, v%d' % (T+i, T+i))
    for i in range(nj): k('v_rcp_f32 v%d, v%d' % (T+i, T+i))
    k('s_nop 0')
    for i in range(nj): k('v_mul_f32 v%d, v%d, v%d' % (S+i, S+i, T+i))
    for i in range(nj//2): k('v_cvt_pk_bf16_f32 v%d, v%d, v%d' % (T+i, S+2*i, S+1+2*i))
    for i in range(nj//2):
        k('v_lshlrev_b32 v%d, 16, v%d' % (S+2*i, T+i))
        k('v_and_b32 v%d, 0xffff0000, v%d' % (S+1+2*i, T+i))
    for i in range(8): k('v_mov_b32 v%d, 0' % (A+i))
    U = B+56
    for j in range(nj):
        k('s_waitcnt vmcnt(%d)' % (nj-1-j + after))
        for i in range(4):
            k('v_lshlrev_b32 v%d, 16, v%d' % (U+2*(i%2), LDB+4*j+i))
            k('v_and_b32 v%d, 0xffff0000, v%d' % (U+1+2*(i%2), LDB+4*j+i))
            k('v_fmac_f32 v%d, v%d, v%d' % (A+2*i, U+2*(i%2), S+j))
            k('v_fmac_f32 v%d, v%d, v%d' % (A+2*i+1, U+1+2*(i%2), S+j))
    if OPT.get('p0st') and L0 == LN_LDS: stamp(k, 3)
    k('v_lshlrev_b32 v%d, 8, v%d' % (B+4, B+1))
    k('v_lshl_add_u32 v%d, v%d, 5, v%d' % (B+4, B, B+4))
    k('v_add_u32 v%d, %d, v%d' % (B+4, L0, B+4))
    k('ds_write_b128 v%d, %s' % (B+4, vr(A, 4)))
    k('ds_write_b128 v%d, %s offset:16' % (B+4, vr(A+4, 4)))
    k('s_waitcnt lgkmcnt(0)')
    k('s_barrier')
    lab = k.L('skip')
    k('s_cmp_lg_u32 s26, 0')
    k('s_cbranch_scc1 %s' % lab)
    k('v_lshlrev_b32 v%d, 2, v1' % (B+6))
    k('v_add_u32 v%d, %d, v%d' % (B+4, L0, B+6))
    for h in range(4):
        for i in range(8): k('ds_read_b32 v%d, v%d offset:%d' % (LDB+8*h+i, B+4, (8*h+i)*256))
        if h in (1, 2): k('s_waitcnt lgkmcnt(7)')
    k('s_waitcnt lgkmcnt(0)')
    for i in range(16): k('v_add_f32 v%d, v%d, v%d' % (LDB+i, LDB+i, LDB+16+i))
    for st in (8, 4, 2, 1):
        for i in range(st): k('v_add_f32 v%d, v%d, v%d' % (LDB+i, LDB+i, LDB+st+i))
    k('buffer_store_dword v%d, v%d, s[%d:%d], s%d offen %s' % (LDB, B+6, out_srd, out_srd+3, s_outoff, ST))
    k.label(lab)

def kv_part(k, mid=None, nmid=1):
    B = 160
    k('s_sub_u32 s50, s2, 128')
    k('s_lshl_b32 s50, s50, 2')
    k('s_add_u32 s50, s50, s26')
    srd(k, 8, PK, 0x200000)
    srd(k, 12, PV, 0x200000)
    srd(k, 16, PWS, 0x100000, WS_KF)
    k('s_lshr_b32 s51, s50, 7')
    k('s_bfe_u32 s52, s50, 0x40003')
    k('s_lshl_b32 s54, s51, 19')
    k('s_lshl_b32 s55, s52, 13')
    k('s_add_u32 s54, s54, s55')
    k('s_add_u32 s54, s54, 0x60000')
    k('v_lshrrev_b32 v%d, 3, v1' % B)
    k('v_and_b32 v%d, 7, v1' % (B+1))
    k('v_lshlrev_b32 v%d, 8, v%d' % (B+2, B))
    k('v_lshl_add_u32 v%d, v%d, 4, v%d' % (B+2, B+1, B+2))
    k('s_bfe_u32 s53, s50, 0x20001')
    k('s_and_b32 s56, s50, 1')
    k('s_lshl_b32 s55, s53, 11')
    k('s_add_u32 s55, s55, s54')
    k('s_lshl_b32 s57, s56, 7')
    k('s_add_u32 s55, s55, s57')
    k('buffer_load_dwordx4 %s, v%d, s[8:11], s55 offen' % (vr(B+8, 4), B+2))
    k('v_lshrrev_b32 v%d, 2, v1' % (B+3))
    k('v_lshlrev_b32 v%d, 8, v%d' % (B+3, B+3))
    k('v_and_b32 v%d, 3, v1' % (B+4))
    k('v_lshl_add_u32 v%d, v%d, 4, v%d' % (B+3, B+4, B+3))
    k('s_bfe_u32 s55, s50, 0x10002')
    k('s_lshl_b32 s55, s55, 12')
    k('s_and_b32 s57, s50, 3')
    k('s_lshl_b32 s57, s57, 6')
    k('s_add_u32 s55, s55, s57')
    k('s_add_u32 s55, s55, s54')
    k('s_mul_i32 s57, s26, 4608')
    k('s_add_u32 s57, s57, %d' % (TR_LDS + 2304))
    k('s_mov_b32 m0, s57')
    k('s_nop 0')
    k('buffer_load_dwordx4 v%d, s[12:15], s55 offen lds' % (B+3))
    if mid:
        k('s_mov_b32 s58, s16'); k('s_mov_b32 s59, s17'); k('s_mov_b32 s60, s18')
        mid()
        k('s_mov_b32 s16, s58'); k('s_mov_b32 s17, s59'); k('s_mov_b32 s18, s60')
    k('v_lshrrev_b32 v%d, 5, v1' % (B+4))
    k('v_lshlrev_b32 v%d, 2, v%d' % (B+4, B+4))
    k('v_bfe_u32 v%d, v1, 2, 2' % (B+5))
    k('v_add_u32 v%d, v%d, v%d' % (B+4, B+4, B+5))
    k('v_lshlrev_b32 v%d, 6, v%d' % (B+4, B+4))
    k('v_bfe_u32 v%d, v1, 4, 1' % (B+5))
    k('v_lshl_add_u32 v%d, v%d, 5, v%d' % (B+4, B+5, B+4))
    k('v_and_b32 v%d, 1, v1' % (B+5))
    k('v_lshl_add_u32 v%d, v%d, 4, v%d' % (B+4, B+5, B+4))
    k('v_bfe_u32 v%d, v1, 1, 1' % (B+5))
    k('v_lshl_add_u32 v%d, v%d, 3, v%d' % (B+4, B+5, B+4))
    k('v_add_u32 v%d, s57, v%d' % (B+4, B+4))
    k('v_lshrrev_b32 v%d, 4, v1' % (B+6))
    k('v_lshlrev_b32 v%d, 10, v%d' % (B+6, B+6))
    k('v_bfe_u32 v%d, v1, 3, 1' % (B+5))
    k('v_lshl_add_u32 v%d, v%d, 9, v%d' % (B+6, B+5, B+6))
    k('v_lshl_add_u32 v%d, v%d, 4, v%d' % (B+6, B+1, B+6))
    k('s_lshr_b32 s55, s50, 3')
    k('s_lshl_b32 s55, s55, 13')
    k('s_lshl_b32 s57, s56, 12')
    k('s_add_u32 s55, s55, s57')
    k('s_lshl_b32 s57, s53, 7')
    k('s_add_u32 s55, s55, s57')
    k('s_waitcnt vmcnt(%d)' % (1 + nmid if mid else 1))
    tr8x8(k, B+8, 1, 240, 241)
    k('buffer_store_dwordx4 %s, v%d, s[16:19], s55 offen %s' % (vr(B+8, 4), B+6, ST))
    k('s_waitcnt vmcnt(%d)' % (1 + nmid if mid else 1))
    k('ds_read_b64_tr_b16 %s, v%d' % (vr(B+12, 2), B+4))
    k('ds_read_b64_tr_b16 %s, v%d offset:512' % (vr(B+14, 2), B+4))
    k('v_lshlrev_b32 v%d, 4, v1' % (B+5))
    k('s_lshl_b32 s55, s50, 10')
    k('s_add_u32 s55, s55, 0x%x' % (WS_VF - WS_KF))
    k('s_waitcnt lgkmcnt(0)')
    k('buffer_store_dwordx4 %s, v%d, s[16:19], s55 offen %s' % (vr(B+12, 4), B+5, ST))

def ln_addr(k):
    k('v_lshrrev_b32 v2, 6, v0')
    k('v_and_b32 v3, 7, v1')
    k('v_lshrrev_b32 v4, 3, v1')
    k('v_lshrrev_b32 v5, 1, v4')
    k('v_lshlrev_b32 v5, 10, v5')
    k('v_and_b32 v6, 1, v4')
    k('v_lshl_add_u32 v5, v6, 9, v5')
    k('v_lshl_add_u32 v5, v3, 4, v5')
    k('v_lshl_add_u32 v5, v2, 14, v5')
    k('v_lshlrev_b32 v6, 11, v4')
    k('v_lshl_add_u32 v6, v3, 4, v6')
    k('v_lshl_add_u32 v6, v2, 9, v6')
    tr_addr(k, 240, 241)
    k('v_lshlrev_b32 v7, 4, v0')
    k('v_lshlrev_b32 v8, 10, v2')
    k('v_lshl_add_u32 v8, v4, 5, v8')
    k('v_add_u32 v8, %d, v8' % LN_LDS)
    k('v_add_u32 v11, %d, v7' % LN_LDS)
    k('v_lshlrev_b32 v9, 4, v3')
    k('v_add_u32 v9, %d, v9' % (LN_LDS + 12288))
    k('v_lshl_add_u32 v10, v2, 2, v9')
    k('s_lshl_b32 s45, s24, 5')
    k('s_lshl_b32 s46, s22, 3')
    k('s_add_u32 s45, s45, s46')
    k('s_add_u32 s45, s45, s25')
    k('s_lshr_b32 s40, s45, 2')
    k('s_lshl_b32 s40, s40, 16')
    k('s_and_b32 s46, s45, 3')
    k('s_lshl_b32 s46, s46, 7')
    k('s_add_u32 s40, s40, s46')
    for j in range(1, 4): k('s_add_u32 s%d, s40, %d' % (40+j, j*4096))
    k('s_lshl_b32 s44, s45, 14')

TR_LDS = 126976
def tr_addr(k, vw, vrd):
    k('v_lshrrev_b32 v%d, 3, v1' % vw)
    k('v_mul_u32_u24 v%d, 144, v%d' % (vw, vw))
    k('v_and_b32 v%d, 7, v1' % vrd)
    k('v_lshl_add_u32 v%d, v%d, 4, v%d' % (vw, vrd, vw))
    k('v_mul_u32_u24 v%d, 144, v%d' % (vrd, vrd))
    k('v_lshrrev_b32 v29, 3, v1')
    k('v_lshl_add_u32 v%d, v29, 4, v%d' % (vrd, vrd))
    k('s_mul_i32 s27, s26, 4608')
    k('s_add_u32 s27, s27, %d' % TR_LDS)
    k('v_add_u32 v%d, s27, v%d' % (vw, vw))
    k('v_add_u32 v%d, s27, v%d' % (vrd, vrd))
def tr8x8(k, base, n, vw, vrd):
    for j in range(n): k('ds_write_b128 v%d, %s offset:%d' % (vw, vr(base + 4*j, 4), j*1152))
    k('s_waitcnt lgkmcnt(0)')
    for j in range(n): k('ds_read_b128 %s, v%d offset:%d' % (vr(base + 4*j, 4), vrd, j*1152))
    k('s_waitcnt lgkmcnt(0)')

X_ = 32
RAW = 64
def ln_unpack(k, src):
    for j in range(4):
        for i in range(4):
            k('v_lshlrev_b32 v%d, 16, v%d' % (X_ + 8*j + 2*i, src + 4*j + i))
            k('v_and_b32 v%d, 0xffff0000, v%d' % (X_ + 8*j + 2*i + 1, src + 4*j + i))
def ln_stats(k):
    RED = 0
    k('v_add_f32 v24, v%d, v%d' % (X_, X_+1))
    k('v_add_f32 v25, v%d, v%d' % (X_+2, X_+3))
    for i in range(4, 32, 2):
        k('v_add_f32 v24, v24, v%d' % (X_+i))
        k('v_add_f32 v25, v25, v%d' % (X_+i+1))
    k('v_add_f32 v24, v24, v25')
    reduce8(k, 24, 25)
    k('ds_write_b32 v10, v24 offset:%d' % RED)
    k('s_waitcnt lgkmcnt(0)')
    k('s_barrier')
    k('ds_read_b128 v[24:27], v9 offset:%d' % RED)
    k('s_waitcnt lgkmcnt(0)')
    k('v_add_f32 v24, v24, v25')
    k('v_add_f32 v26, v26, v27')
    k('v_add_f32 v24, v24, v26')
    k('v_mul_f32 v24, 0x%x, v24' % f2u(1.0/1024))
    for i in range(32): k('v_sub_f32 v%d, v%d, v24' % (X_+i, X_+i))
    k('v_mul_f32 v24, v%d, v%d' % (X_, X_))
    k('v_mul_f32 v25, v%d, v%d' % (X_+1, X_+1))
    for i in range(2, 32, 2):
        k('v_fmac_f32 v24, v%d, v%d' % (X_+i, X_+i))
        k('v_fmac_f32 v25, v%d, v%d' % (X_+i+1, X_+i+1))
    k('v_add_f32 v24, v24, v25')
    reduce8(k, 24, 25)
    k('ds_write_b32 v10, v24 offset:%d' % (RED + 128))
    k('s_waitcnt lgkmcnt(0)')
    k('s_barrier')
    k('ds_read_b128 v[24:27], v9 offset:%d' % (RED + 128))
    k('s_waitcnt lgkmcnt(0)')
    k('v_add_f32 v24, v24, v25')
    k('v_add_f32 v26, v26, v27')
    k('v_add_f32 v24, v24, v26')
    k('v_mov_b32 v25, 0x%x' % f2u(1e-5))
    k('v_fmac_f32 v25, 0x%x, v24' % f2u(1.0/1024))
    k('v_rsq_f32 v28, v25')
    k('s_nop 0')
    for i in range(32): k('v_mul_f32 v%d, v%d, v28' % (X_+i, X_+i))
def mod_loads(k, vecs, npart, base_off, MV, pstride):
    srd(k, 8, PWS, 0x10000, base_off or None)
    for n, (c, isscale) in enumerate(vecs):
        for p in range(npart):
            k('s_mov_b32 s27, %d' % (p*pstride + c*4096))
            k('buffer_load_dwordx4 %s, v7, s[8:11], s27 offen %s' % (vr(MV + (n*npart + p)*4, 4), LD()))
def mod_to_lds(k, vecs, npart, MV, mulc=None):
    for n, (c, isscale) in enumerate(vecs):
        b = MV + n*npart*4
        for p in range(1, npart):
            for i in range(4): k('v_add_f32 v%d, v%d, v%d' % (b+i, b+i, b+4*p+i))
        def rnd():
            k('v_cvt_pk_bf16_f32 v%d, v%d, v%d' % (b+4, b, b+1))
            k('v_cvt_pk_bf16_f32 v%d, v%d, v%d' % (b+5, b+2, b+3))
            k('v_lshlrev_b32 v%d, 16, v%d' % (b, b+4))
            k('v_and_b32 v%d, 0xffff0000, v%d' % (b+1, b+4))
            k('v_lshlrev_b32 v%d, 16, v%d' % (b+2, b+5))
            k('v_and_b32 v%d, 0xffff0000, v%d' % (b+3, b+5))
        rnd()
        if isscale:
            for i in range(4): k('v_add_f32 v%d, 1.0, v%d' % (b+i, b+i))
            rnd()
        if mulc:
            for i in range(4): k('v_mul_f32 v%d, 0x%x, v%d' % (b+i, mulc, b+i))
        k('ds_write_b128 v11, %s offset:%d' % (vr(b, 4), n*4096))
def ln_apply_store(k, sh, sc, hoff):
    srd(k, 16, PWS, 0x400000, hoff)
    for j in range(4):
        k('ds_read_b128 v[16:19], v8 offset:%d' % (sc*4096 + j*256))
        k('ds_read_b128 v[20:23], v8 offset:%d' % (sc*4096 + j*256 + 16))
        k('ds_read_b128 v[96:99], v8 offset:%d' % (sh*4096 + j*256))
        k('ds_read_b128 v[100:103], v8 offset:%d' % (sh*4096 + j*256 + 16))
        k('s_waitcnt lgkmcnt(0)')
        for i in range(8): k('v_fma_f32 v%d, v%d, v%d, v%d' % (X_ + 8*j + i, X_ + 8*j + i, 16+i, 96+i))
        for i in range(4): k('v_cvt_pk_bf16_f32 v%d, v%d, v%d' % (104 + 4*j + i, X_ + 8*j + 2*i, X_ + 8*j + 2*i + 1))
        k('buffer_store_dwordx4 %s, v5, s[16:19], s%d offen %s' % (vr(104 + 4*j, 4), 40+j, ST))

def phase_p0(k, name):
    stamp_rt0(k, 'p0')
    stamp(k, 0)
    def xloads():
        ln_addr(k)
        srd(k, 16, PX, 0x400000)
        for j in range(4): k('buffer_load_dwordx4 %s, v6, s[16:19], s44 offen offset:%d' % (vr(RAW + 4*j, 4), j*128))
    def s1addr():
        k('s_mov_b32 s6, s%d' % PDBG)
        k('s_mov_b32 s7, s%d' % (PDBG+1))
    def kvaddr():
        k('s_add_u32 s6, s%d, 4' % PDBG)
        k('s_addc_u32 s7, s%d, 0' % (PDBG+1))
    def wq_touch():
        lab = k.L('wq')
        k('s_cmp_eq_u32 s26, 0')
        k('s_cbranch_scc1 %s' % lab)
        srd(k, 16, PWQ, 1024*4096*2)
        k('v_lshrrev_b32 v15, 4, v0')
        k('v_and_b32 v12, 15, v0')
        k('v_lshlrev_b32 v15, 13, v15')
        k('v_lshl_add_u32 v15, v12, 7, v15')
        k('s_lshl_b32 s36, s21, 17')
        k('s_lshl_b32 s37, s22, 11')
        k('s_add_u32 s36, s36, s37')
        k('s_lshl_b32 s37, s23, 22')
        k('s_add_u32 s36, s36, s37')
        k('buffer_load_dword v13, v15, s[16:19], s36 offen')
        k('s_cmp_lg_u32 s26, 1')
        k('s_cbranch_scc1 %s' % lab)
        k('v_subrev_u32 v15, 0x8000, v15')
        k('buffer_load_dword v14, v15, s[16:19], s36 offen')
        k.label(lab)
    k('s_cmp_ge_u32 s2, 128')
    k('s_cbranch_scc1 %s_kv' % name)
    srd(k, 8, PWMOD, 1024*6144*2)
    srd(k, 12, PC_, 2048)
    k('s_and_b32 s38, s2, 31')
    k('s_lshr_b32 s39, s2, 5')
    k('s_lshl_b32 s47, s39, 8')
    k('s_lshl_b32 s48, s38, 7')
    k('s_lshl_b32 s49, s39, 13')
    k('s_lshl_b32 s38, s38, 8')
    k('s_add_u32 s49, s49, s38')
    gemv_load(k, 8, 47, 48)
    xloads()
    if OPT.get('p0st'): stamp(k, 1)
    if MEGA:
        lab = k.L('z')
        k('s_or_b32 s27, s2, s26')
        k('s_cmp_lg_u32 s27, 0')
        k('s_cbranch_scc1 %s' % lab)
        srd(k, 16, PWS, 192*128, WS_CNT)
        k('v_lshlrev_b32 v16, 7, v1')
        k('v_mov_b32 v17, 0')
        for z in range(3): k('buffer_store_dword v17, v16, s[16:19], 0 offen offset:0 %s' % ST) if z == 0 else (k('v_add_u32 v%d, %d, v16' % (18+z, 8192*z)), k('buffer_store_dword v17, v%d, s[16:19], 0 offen %s' % (18+z, ST)))
        k('s_waitcnt vmcnt(0)')
        k.label(lab)
    srd(k, 16, PWS, 0x8000, WS_MOD or None)
    gemv_compute(k, 8, 49, 16, LN_LDS, 4)
    if not OPT.get('p0st'): stamp(k, 1)
    arrive(k, s1addr, count=128, only_w0=True, flag_off=128)
    lab = k.L('w0'); k('s_cmp_eq_u32 s26, 0'); k('s_cbranch_scc1 %s' % lab); k('s_waitcnt vmcnt(0)'); k.label(lab)
    wq_touch()
    if OPT.get('p0st'): stamp(k, 4)
    k('s_branch %s_pf' % name)
    k.label(name + '_kv')
    kv_part(k, xloads, 4)
    if not MEGA:
        modb_addr(k, 128)
        gemv_load(k, 16, 47, 48)
        srd(k, 16, PWS, 0x8000, WS_MODB)
        gemv_compute(k, 16, 49, 16, LN_LDS, 0)
    stamp(k, 1)
    arrive(k, kvaddr)
    wq_touch()
    k.label(name + '_pf')
    tr8x8(k, RAW, 4, 240, 241)
    ln_unpack(k, RAW)
    ln_stats(k)
    if not OPT.get('p0st'): stamp(k, 2)

def modb_addr(k, first):
    srd(k, 8, PWMOD, 1024*6144*2)
    srd(k, 12, PC_, 2048)
    k('s_sub_u32 s38, s2, %d' % first)
    k('s_lshr_b32 s39, s38, 6')
    k('s_and_b32 s38, s38, 63')
    k('s_lshl_b32 s47, s39, 9')
    k('s_lshl_b32 s48, s38, 7')
    k('s_add_u32 s48, s48, 4096')
    k('s_lshl_b32 s49, s39, 14')
    k('s_lshl_b32 s38, s38, 8')
    k('s_add_u32 s49, s49, s38')

def phase_ln1b(k):
    def s1addr():
        k('s_mov_b32 s6, s%d' % PDBG)
        k('s_mov_b32 s7, s%d' % (PDBG+1))
    waitfor(k, s1addr, 1, off=128)
    if not OPT.get('p0st'): stamp(k, 3)
    vecs = [(0, False), (1, True)]
    mod_loads(k, vecs, 4, WS_MOD, 96, 8192)
    k('s_waitcnt vmcnt(0)')
    mod_to_lds(k, vecs, 4, 96, f2u(128**-0.5 * LOG2E))
    k('s_waitcnt lgkmcnt(0)')
    k('s_barrier')
    ln_apply_store(k, 0, 1, WS_H)
    def a():
        k('s_add_u32 s27, s24, %d' % C_S2); cnt_addr(k, 27)
    arrive(k, a, count=32, flag_off=128)
    if not OPT.get('p0st'): stamp(k, 4)
    stamp_flush(k, 'p0', 5)

def phase_ln2(k, mode):
    stamp_rt0(k, mode)
    stamp(k, 0)
    ln_addr(k)
    vecs = [(0, False), (1, False), (2, True)] if mode == 'ln2' else [(3, False)]
    MV = 144
    if MEGA and mode == 'ln2':
        def s1b():
            k('s_mov_b32 s6, s%d' % PDBG); k('s_mov_b32 s7, s%d' % (PDBG+1))
        waitfor(k, s1b, 256, off=8)
    NPB = 4 if MEGA else 2
    if NPB == 4: MV = 168
    mod_loads(k, vecs, NPB, WS_MODB, MV, 16384)
    if mode == 'ln2':
        srd(k, 12, PX, 0x400000)
        for j in range(4): k('buffer_load_dwordx4 %s, v6, s[12:15], s44 offen offset:%d' % (vr(RAW + 4*j, 4), j*128))
    k('s_waitcnt vmcnt(%d)' % (4 if mode == 'ln2' else 0))
    mod_to_lds(k, vecs, NPB, MV)
    def a():
        k('s_add_u32 s27, s24, %d' % (C_S4 if mode == 'ln2' else C_S7)); cnt_addr(k, 27)
    k('s_waitcnt lgkmcnt(0)')
    if MEGA: waitfor(k, a, 1, off=128)
    else: k('s_barrier')
    stamp(k, 1)
    srd(k, 12, PWS, 0x1000000, WS_P1 if mode == 'ln2' else WS_P2)
    for j in range(4):
        for q in range(4):
            k('s_add_u32 s27, s%d, 0x%x' % (40+j, q*0x400000))
            k('buffer_load_dwordx4 %s, v5, s[12:15], s27 offen %s' % (vr(RAW + 16 + q*16 + 4*j, 4), LD()))
    if mode == 'final':
        srd(k, 8, PWS, 0x400000, WS_X1)
        for j in range(4): k('buffer_load_dwordx4 %s, v5, s[8:11], s%d offen %s' % (vr(RAW + 4*j, 4), 40+j, LD()))
        k('s_waitcnt vmcnt(0)')
        ln_unpack(k, RAW)
    else:
        k('s_waitcnt vmcnt(16)')
        tr8x8(k, RAW, 4, 240, 241)
        ln_unpack(k, RAW)
    for j in range(4):
        k('ds_read_b128 v[16:19], v8 offset:%d' % (j*256))
        k('ds_read_b128 v[20:23], v8 offset:%d' % (j*256 + 16))
        if mode == 'ln2': k('s_waitcnt vmcnt(%d)' % (12 - 4*j))
        for i in range(4):
            k('v_lshlrev_b32 v24, 16, v%d' % (RAW + 16 + 4*j + i))
            k('v_and_b32 v25, 0xffff0000, v%d' % (RAW + 16 + 4*j + i))
            for q in range(1, 4):
                k('v_lshlrev_b32 v26, 16, v%d' % (RAW + 16 + q*16 + 4*j + i))
                k('v_and_b32 v27, 0xffff0000, v%d' % (RAW + 16 + q*16 + 4*j + i))
                k('v_add_f32 v24, v24, v26')
                k('v_add_f32 v25, v25, v27')
            if i == 0: k('s_waitcnt lgkmcnt(0)')
            k('v_fmac_f32 v%d, v24, v%d' % (X_ + 8*j + 2*i, 16 + 2*i))
            k('v_fmac_f32 v%d, v25, v%d' % (X_ + 8*j + 2*i + 1, 17 + 2*i))
    for j in range(4):
        for i in range(4):
            k('v_cvt_pk_bf16_f32 v%d, v%d, v%d' % (RAW + 4*j + i, X_ + 8*j + 2*i, X_ + 8*j + 2*i + 1))
    if mode == 'final':
        srd(k, 12, POUT, 0x400000)
        tr8x8(k, RAW, 4, 240, 241)
        for j in range(4): k('buffer_store_dwordx4 %s, v6, s[12:15], s44 offen offset:%d' % (vr(RAW + 4*j, 4), j*128))
    else:
        srd(k, 16, PWS, 0x400000, WS_X1)
        for j in range(4): k('buffer_store_dwordx4 %s, v5, s[16:19], s%d offen %s' % (vr(RAW + 4*j, 4), 40+j, ST))
        ln_unpack(k, RAW)
        ln_stats(k)
        ln_apply_store(k, 1, 2, WS_H2)
        def a5():
            k('s_add_u32 s27, s24, %d' % C_S5); cnt_addr(k, 27)
        arrive(k, a5, count=32, flag_off=128)
    stamp(k, 2)
    stamp_flush(k, mode, 3)

def attn_setup(k):
    vL = [4, 5, 6, 7]; vX = [8, 9]; vW = [10, 11, 12, 13]
    ldw = 8192
    k('s_lshl_b32 s35, s22, 3')
    k('s_add_u32 s35, s35, s25')
    k('s_mov_b32 s62, s35')
    lds_addr_128(k, vL, tmp=40)
    k('v_lshlrev_b32 v8, 4, v1')
    k('v_add_u32 v9, 0x10000, v8')
    k('s_lshl_b32 s28, s62, 8')
    w128_voffsets(k, vW, ldw, 28, 40)
    srd(k, 8, PWS, 0x400000, WS_H)
    srd(k, 12, PWQ, 0x800000)
    k('s_lshl_b32 s27, s24, 3')
    k('s_lshl_b32 s28, s26, 1')
    k('s_add_u32 s34, s27, s28')
    k('s_lshl_b32 s30, s34, 16')
    k('s_sub_u32 s30, s30, 4096')
    k('s_mov_b32 s31, 0x%x' % ((-64*ldw) & 0xffffffff))
    k('s_lshl_b32 s32, s26, 12')
    return vL, vX, vW, ldw

def phase_attn(k, name, next_prefetch=None):
    stamp_rt0(k, 'attn')
    if not OPT.get('tailst'): stamp(k, 0)
    vL, vX, vW, ldw = attn_setup(k)
    KSLOT = [65536, 81920, 98304, 0, 16384]
    VSLOT = [114688, 131072, 147456, 32768, 49152]
    FLAG = 33792
    QF = lambda mb, ks: 64 + (mb*8 + ks)*4
    SB = lambda par, mb: 128 + (par*2 + mb)*16
    PB = lambda par, mb, kk: 192 + ((par*2 + mb)*2 + kk)*4
    CB = lambda mb: 224 + mb*16
    def OA(db, mb):
        i = db*2 + mb
        return i*16 if i < 6 else 192 + (i-6)*16
    KF = lambda ks: 128 + ks*4
    VF = lambda q: 160 + q*4
    LS = lambda mb, p: 33 + mb*2 + p
    MG = lambda mb: 37 + mb
    KT = (36, 37, 38, 39, 40); VT = (41, 42, 43, 29, 35)
    TT = (8, 9, 10, 12, 13, 14, 54, 55, 56, 57, 61, 63)
    kvflag = LD()
    def kdma(soff, pre0, tagid):
        return [(pre0 if i == 0 else [], 'buffer_load_dwordx4 v28, s[44:47], s%d offen offset:%d %s lds' % (soff, i*1024, kvflag), ('K', tagid, i)) for i in range(4)]
    def vdma(soff, pre0, tagid):
        return [(pre0 if i == 0 else [], 'buffer_load_dwordx4 v28, s[48:51], s%d offen offset:%d %s lds' % (soff, i*1024, kvflag), ('V', tagid, i)) for i in range(4)]
    def dma_list(lst):
        ops = []
        for (kind, s_) in lst:
            if kind == 'K': ops += kdma(52, ['s_mov_b32 s52, %d' % (s_*16384), 's_add_u32 m0, s32, %d' % KSLOT[s_ % 5]], s_)
            else: ops += vdma(53, ['s_mov_b32 s53, %d' % (s_*16384), 's_add_u32 m0, s32, %d' % VSLOT[s_ % 5]], s_)
        return ops
    def initial_dmas(): return dma_list([('K', 0), ('V', 0), ('K', 1), ('V', 1), ('K', 2), ('V', 2)])
    ini = initial_dmas()
    zero_list = ['v_accvgpr_write_b32 a%d, 0' % r for r in list(range(192, 224)) + list(range(0, 96))]
    def extra(t, j):
        out = []
        order = [(12, 3)] + [(tt, jj) for tt in (13, 14, 15) for jj in range(4)]
        if (t, j) in order:
            p = order.index((t, j))
            out += ini[(p*len(ini))//13:((p+1)*len(ini))//13]
        if t in (12, 13, 14, 15):
            z = zero_list[(t-12)*32:(t-11)*32]
            out += z[j*8:(j+1)*8]
        return out
    g = Gemm(k, 4, 16, acc=128, xr=0, wf=128, vX=vX, vW=vW, sXsrd=8, sWsrd=12, sXoff=30, sWoff=31, sM0=32, sCnt=33,
             stage_bytes=16384, ldw_step=64*ldw, nW=4,
             lds_imm=lambda buf, j, nb, sec: (vL[nb], buf*16384 + j*4096 + sec*1024), extra=extra, xflag=LD())
    if MEGA: g.prologue_w()
    k('s_lshl_b32 s27, s26, 12')
    k('v_add_u32 v28, s27, v8')
    k('v_add_u32 v16, %d, v8' % KSLOT[0])
    k('v_add_u32 v17, %d, v8' % VSLOT[0])
    k('v_lshlrev_b32 v18, 7, v1')
    k('s_lshl_b32 s27, s26, 13')
    k('v_add_u32 v18, s27, v18')
    k('s_lshl_b32 s27, s22, 17')
    k('s_add_u32 s28, s27, 0x%x' % WS_KF)
    srd_s(k, 44, PWS, 28, 0x20000)
    k('s_add_u32 s28, s27, 0x%x' % WS_VF)
    srd_s(k, 48, PWS, 28, 0x20000)
    k('v_mov_b32 v%d, 0xff800000' % MG(0))
    k('v_mov_b32 v%d, 0xff800000' % MG(1))
    k('s_mov_b32 s59, 0')
    if MEGA:
        def a():
            k('s_add_u32 s27, s24, %d' % C_S2); cnt_addr(k, 27)
        def kvw():
            k('s_mov_b32 s6, s%d' % PDBG); k('s_mov_b32 s7, s%d' % (PDBG+1))
        waitfor(k, kvw, 128, off=4)
        waitfor(k, a, 1, off=128)
        g.prologue_x()
    else:
        g.prologue_mixed()
    if not OPT.get('tailst'): stamp(k, 1)
    g.start()
    def epiQ(nb):
        out = []
        for mb in range(2):
            a = g.accr(nb, mb)
            for hh in range(2):
                for r in range(4):
                    out.append('v_cvt_pk_bf16_f32 v%d, v%d, v%d' % (QF(mb, 2*nb+hh) + r, a + hh*8 + 2*r, a + hh*8 + 2*r + 1))
        return out
    g.mainloop(epiQ, tail=1)
    if not OPT.get('tailst'): stamp(k, 2)
    k('s_mul_i32 s27, s2, 28672')
    for n_, (lo, sz, add) in enumerate([(PWG, 1024*3584*2, 0), (PWG, 1024*3584*2, 4096), (PWU, 1024*3584*2, 0), (PWU, 1024*3584*2, 4096)]):
        k('s_add_u32 s28, s27, %d' % add)
        k('s_add_u32 s%d, s%d, s28' % (TT[3*n_], lo))
        k('s_addc_u32 s%d, s%d, 0' % (TT[3*n_+1], lo+1))
        k('s_sub_u32 s%d, 0x%x, s28' % (TT[3*n_+2], sz))
    n = k.vm_wait_n(lambda tg: tg[0] in 'KV' and tg[1] == 0)
    k('s_waitcnt vmcnt(%d)' % n)
    k.label(name + '_pro')
    k('s_barrier')
    for i_ in range(5):
        k('s_mov_b32 s%d, %d' % (KT[i_], KSLOT[i_]))
        k('s_mov_b32 s%d, %d' % (VT[i_], VSLOT[i_]))
    for ks in range(8): k('ds_read_b128 %s, v16 offset:%d' % (ar(KF(ks), 4), ks*1024))
    for mb in range(2):
        for p in range(2): k('v_mov_b32 v%d, 0' % LS(mb, p))
    k('s_waitcnt lgkmcnt(0)')
    for mb in range(2):
        for ks in range(8):
            d = vr(SB(0, mb), 16)
            k('%s %s, %s, %s, %s' % (MFMA, d, ar(KF(ks), 4), vr(QF(mb, ks), 4), '0' if ks == 0 else d))
    k('s_nop 3')
    k('s_nop 7')
    for mb in range(2):
        s0 = SB(0, mb); m = 40 + mb
        k('v_max3_f32 v%d, v%d, v%d, v%d' % (m, s0, s0+1, MG(mb)))
        for r in range(2, 16, 2): k('v_max3_f32 v%d, v%d, v%d, v%d' % (m, m, s0+r, s0+r+1))
    k('v_mov_b32 v42, v40')
    k('v_mov_b32 v43, v41')
    k('s_nop 1')
    k('v_permlane32_swap_b32 v40, v42')
    k('v_permlane32_swap_b32 v41, v43')
    k('s_nop 1')
    k('v_max_f32 v40, v40, v42')
    k('v_max_f32 v41, v41, v43')
    for mb in range(2):
        for r in range(16): k('v_sub_f32 v%d, 0, v%d' % (CB(mb) + r, 40+mb))
        for r in range(16): k('v_sub_f32 v%d, v%d, v%d' % (SB(0, mb) + r, SB(0, mb) + r, 40+mb))
    if not OPT.get('tailst'): stamp(k, 3)

    def pair_ops(par, p):
        mb, pp = p // 8, p % 8
        s0 = SB(par, mb); a, b = s0 + 2*pp, s0 + 2*pp + 1
        E = ['v_exp_f32 v%d, v%d' % (a, a), 'v_exp_f32 v%d, v%d' % (b, b)]
        A_ = ['v_add_f32 v%d, v%d, v%d' % (LS(mb, 0), LS(mb, 0), a), 'v_add_f32 v%d, v%d, v%d' % (LS(mb, 1), LS(mb, 1), b)]
        C_ = ['v_cvt_pk_bf16_f32 v%d, v%d, v%d' % (PB(par, mb, pp // 4) + pp % 4, a, b)]
        return E, A_, C_
    def iteration(par, do_pv, do_s, kread_kb, vread_kb, carry_in, gap_extra=None):
        gap_extra = gap_extra or {}
        mf = []
        if do_pv:
            for kk in range(2):
                for db in range(4):
                    for mb in range(2):
                        d = ar(OA(db, mb), 16)
                        mf.append('%s %s, %s, %s, %s' % (MFMA, d, ar(VF(kk*4+db), 4), vr(PB(1-par, mb, kk), 4), d))
        else: mf += [None]*16
        if do_s:
            for mb in range(2):
                for ks in range(8):
                    d = vr(SB(1-par, mb), 16)
                    mf.append('%s %s, %s, %s, %s' % (MFMA, d, ar(KF(ks), 4), vr(QF(mb, ks), 4), vr(CB(mb), 16) if ks == 0 else d))
        else: mf += [None]*16
        pre = {0: ['s_waitcnt lgkmcnt(2)'] if do_pv else []}
        nk = 8 if kread_kb is not None else 0
        if do_pv: pre[12] = ['s_waitcnt lgkmcnt(%d)' % (6 if nk else 0)]
        if do_s:
            pre[16] = ['s_waitcnt lgkmcnt(2)']
            pre[22] = ['s_waitcnt lgkmcnt(3)']
        for g_ in range(32):
            for x in pre.get(g_, []): k(x)
            if mf[g_]: k(mf[g_])
            p = g_ // 2
            if g_ % 2 == 0:
                for x in pair_ops(par, p)[0]: k(x)
                if p >= 1: k(pair_ops(par, p-1)[2][0])
                elif carry_in: k(pair_ops(1-par, 15)[2][0])
            else:
                if p >= 1:
                    for x in pair_ops(par, p-1)[1]: k(x)
                elif carry_in:
                    for x in pair_ops(1-par, 15)[1]: k(x)
                if g_ < 16:
                    if kread_kb is not None: k('ds_read_b128 %s, v16 offset:%d' % (ar(KF(p), 4), kread_kb*8192 + p*1024))
                else:
                    k('ds_read_b128 %s, v17 offset:%d' % (ar(VF(p-8), 4), vread_kb*8192 + (p-8)*1024))
            for x in gap_extra.get(g_, []):
                if isinstance(x, str): k(x)
                else:
                    pre_, ins, tag = x[0], x[1], x[2]
                    for p_ in pre_: k(p_)
                    if pre_ and 'm0' in pre_[-1]: k('s_nop 0')
                    k.vm(ins, tag)
                    if len(x) > 3:
                        for p_ in x[3]: k(p_)
    def touch(half):
        pre = ['s_mov_b32 s16, s%d' % TT[0], 's_mov_b32 s17, s%d' % TT[1], 's_mov_b32 s18, s%d' % TT[2], 's_mov_b32 s19, 0x20000']
        if half: pre += ['s_mov_b32 exec_hi, 0']
        return (pre, 'buffer_load_dword v19, v18, s[16:19], 0 offen', ('T', 0, 0), ['s_mov_b32 exec_hi, -1'] if half else [])
    sh = ['s_mov_b32 s%d, s%d' % (TT[n_], TT[n_+3]) for n_ in range(9)]
    g0 = {}
    for i_, op in enumerate(dma_list([('K', 3), ('V', 3), ('K', 4)])): g0.setdefault(1 + i_, []).append(op)
    g0.setdefault(20, []).extend(['s_mov_b32 s52, %d' % (5*16384), 's_mov_b32 s53, %d' % (4*16384)])
    iteration(0, False, True, 1, 0, False, g0)
    def rot(T): return ['s_mov_b32 s58, s%d' % T[0]] + ['s_mov_b32 s%d, s%d' % (T[i_], T[i_+1]) for i_ in range(4)] + ['s_mov_b32 s%d, s58' % T[4]]
    def trip(with_dma):
        ge = {0: ['v_add_u32 v16, s%d, v8' % KT[1]]}
        if with_dma:
            ge[0] += ['s_waitcnt vmcnt(20)', 's_barrier']
            dm = vdma(53, ['s_add_u32 m0, s32, s%d' % VT[4]], 'n') + kdma(52, ['s_add_u32 m0, s32, s%d' % KT[0]], 'n')
            for i_, op in enumerate(dm): ge.setdefault(2 + 2*i_, []).append(op)
            ge.setdefault(27, []).extend(['s_add_u32 s52, s52, 16384', 's_add_u32 s53, s53, 16384'])
            if not OPT.get('notouch'):
                ge.setdefault(19, []).append(touch(True))
                ge.setdefault(21, []).extend(sh[:5]); ge.setdefault(23, []).extend(sh[5:])
        elif not OPT.get('notouch'):
            ge.setdefault(2, []).append(touch(False))
            ge.setdefault(5, []).extend(sh[:5]); ge.setdefault(7, []).extend(sh[5:])
        ge.setdefault(29, []).extend(rot(KT))
        iteration(1, True, True, 0, 1, True, ge)
        ge2 = {2: ['v_add_u32 v17, s%d, v8' % VT[1]], 4: rot(VT), 31: ['s_sub_u32 s60, s60, 1', 's_cmp_lg_u32 s60, 0']}
        iteration(0, True, True, 1, 0, True, ge2)
    k('s_mov_b32 s60, 4')
    lab = k.L('aloop'); k.label(lab)
    trip(True)
    k('s_cbranch_scc1 %s' % lab)
    k('s_mul_i32 s27, s2, 28672')
    k('s_add_u32 s%d, s%d, s27' % (TT[0], PWD))
    k('s_addc_u32 s%d, s%d, 0' % (TT[1], PWD+1))
    k('s_sub_u32 s%d, 0x%x, s27' % (TT[2], 3584*1024*2))
    k('s_lshl_b32 s27, s20, 20')
    k('s_lshl_b32 s28, s21, 15')
    k('s_add_u32 s27, s27, s28')
    k('s_add_u32 s%d, s%d, s27' % (TT[3], PWO))
    k('s_addc_u32 s%d, s%d, 0' % (TT[4], PWO+1))
    k('s_mov_b32 s%d, 0x8000' % TT[5])
    for n_ in (2, 3):
        k('s_mov_b32 s%d, s%d' % (TT[3*n_], PWS))
        k('s_mov_b32 s%d, s%d' % (TT[3*n_+1], PWS+1))
        k('s_mov_b32 s%d, 0' % TT[3*n_+2])
    k('s_waitcnt vmcnt(%d)' % (0 if OPT.get('notouch') else 1))
    k('s_barrier')
    if MEGA: code_touch(k, name + '_L_oproj', name + '_L_gateup', 30)
    k('s_mov_b32 s60, 3')
    lab = k.L('bloop'); k.label(lab)
    trip(False)
    k('s_cbranch_scc1 %s' % lab)
    g15 = {}
    if MEGA:
        pre15 = ['s_mov_b32 s8, s%d' % PWMOD, 's_mov_b32 s9, s%d' % (PWMOD+1), 's_mov_b32 s10, 0x%x' % (1024*6144*2), 's_mov_b32 s11, 0x20000',
                 's_mov_b32 s12, s%d' % PC_, 's_mov_b32 s13, s%d' % (PC_+1), 's_mov_b32 s14, 2048', 's_mov_b32 s15, 0x20000',
                 's_lshr_b32 s52, s2, 6', 's_and_b32 s53, s2, 63', 's_lshl_b32 s54, s52, 14', 's_lshl_b32 s55, s53, 8', 's_add_u32 s54, s54, s55',
                 's_lshl_b32 s52, s52, 8', 's_lshl_b32 s53, s53, 7', 's_add_u32 s53, s53, 4096']
        gl = gemv_load(k, 8, 52, 53, AD=48, C=52, LDB=128, emit=False)
        items = pre15 + gl
        for i_, x in enumerate(items): g15.setdefault(2 + (i_ * 24) // len(items), []).append(x)
    iteration(1, True, False, None, 1, True, g15)
    for x in pair_ops(1, 15)[1] + pair_ops(1, 15)[2]: k(x)
    k('v_add_f32 v40, v%d, v%d' % (LS(0, 0), LS(0, 1)))
    k('v_add_f32 v41, v%d, v%d' % (LS(1, 0), LS(1, 1)))
    k('v_mov_b32 v42, v40')
    k('v_mov_b32 v43, v41')
    k('s_nop 1')
    k('v_permlane32_swap_b32 v40, v42')
    k('v_permlane32_swap_b32 v41, v43')
    k('s_nop 1')
    k('v_add_f32 v40, v40, v42')
    k('v_add_f32 v41, v41, v43')
    k('v_mov_b32 v43, 0x%x' % f2u(2.0**100))
    k('v_cmp_nlt_f32 vcc, v40, v43')
    k('v_cmp_nlt_f32 s[6:7], v41, v43')
    k('v_rcp_f32 v40, v40')
    k('v_rcp_f32 v41, v41')
    k('s_or_b64 vcc, vcc, s[6:7]')
    k('s_cmp_lg_u64 vcc, 0')
    k('s_cselect_b32 s58, 1, 0')
    k('v_mov_b32 v43, s58')
    k('s_lshl_b32 s58, s26, 2')
    k('s_add_u32 s58, s58, %d' % FLAG)
    k('v_mov_b32 v44, s58')
    k('ds_write_b32 v44, v43')
    srd(k, 16, PWS, 0x1000000, WS_O)
    k('s_lshl_b32 s27, s34, 8')
    k('s_lshl_b32 s28, s62, 3')
    k('s_add_u32 s27, s27, s28')
    k('s_lshl_b32 s60, s27, 10')
    k('s_add_u32 s61, s60, 0x40000')
    k('v_add_u32 v20, 4096, v8')
    k('s_waitcnt lgkmcnt(0)')
    stamp(k, 4 if not OPT.get('tailst') else 0)
    order = [(db, mb) for db in range(4) for mb in range(2)]
    def epiO(i):
        db, mb = order[i]; a = OA(db, mb); out = []
        for hh in range(2):
            t = (224, 240, 192)[(2*i + hh) % 3]
            out += ['v_accvgpr_read_b32 v%d, a%d' % (t+r, a + hh*8 + r) for r in range(8)]
            out += ['v_mul_f32 v%d, v%d, v%d' % (t+r, t+r, 40+mb) for r in range(8)]
            out += ['v_cvt_pk_bf16_f32 v%d, v%d, v%d' % (t+8+r, t+2*r, t+2*r+1) for r in range(4)]
            ks = 2*db + hh
            out.append('buffer_store_dwordx4 %s, v%d, s[16:19], s%d offen offset:%d %s' % (vr(t+8, 4), 8 if ks < 4 else 20, 60+mb, (ks % 4)*1024, '' if OPT.get('plainO') else ST))
        return out
    M = []
    for i, (db, mb) in enumerate(order):
        d = ar(OA(db, mb), 16)
        for kk in range(2):
            M.append('%s %s, %s, %s, %s' % (MFMA, d, ar(VF(kk*4+db), 4), vr(PB(1, mb, kk), 4), d))
    for idx in range(6): k(M[idx])
    k('s_nop 7')
    for i in range(8):
        for x in epiO(i): k(x)
        for idx in (2*i+6, 2*i+7):
            if idx < 16: k(M[idx])
    if OPT.get('tailst'): stamp(k, 1)
    k('s_barrier')
    k('v_mov_b32 v44, %d' % FLAG)
    k('ds_read_b128 v[44:47], v44')
    k('s_waitcnt lgkmcnt(0)')
    k('v_or3_b32 v44, v44, v45, v46')
    k('v_or_b32 v44, v44, v47')
    k('s_nop 0')
    k('v_readfirstlane_b32 s58, v44')
    k('s_nop 3')
    k('s_cmp_lg_u32 s59, 0')
    k('s_cbranch_scc1 %s_fin' % name)
    k('s_cmp_lg_u32 s58, 0')
    k('s_cbranch_scc1 %s_slow' % name)
    k.label(name + '_fin')
    def post():
        srd(k, 16, PWS, 0x10000, WS_MODB)
        gemv_compute(k, 8, 54, 16, 65536, 24, B=192, C=52, LDB=128)
        lab = k.L('mb')
        k('s_cmp_lg_u32 s26, 0')
        k('s_cbranch_scc1 %s' % lab)
        k('s_waitcnt vmcnt(0)')
        k('v_mov_b32 v2, 8')
        k('v_mov_b32 v3, 1')
        k('s_mov_b64 exec, 1')
        k('global_atomic_add v2, v3, s[%d:%d] sc1' % (PDBG, PDBG+1))
        k('s_mov_b64 exec, -1')
        k.label(lab)
    def slow():
        k.label(name + '_slow')
        k('s_mov_b32 s59, 1')
        k('s_lshl_b32 s27, s22, 17')
        k('s_add_u32 s28, s27, 0x%x' % WS_KF)
        srd_s(k, 44, PWS, 28, 0x20000)
        k('s_mov_b32 s58, 0')
        lab2 = k.L('slow'); k.label(lab2)
        k('s_add_u32 s27, s58, 4096')
        for ks in range(8): k('buffer_load_dwordx4 %s, v8, s[44:47], s%d offen offset:%d %s' % (ar(KF(ks), 4), 58 if ks < 4 else 27, (ks % 4)*1024, kvflag))
        k('s_waitcnt vmcnt(0)')
        for mb in range(2):
            for ks in range(8):
                d = vr(SB(0, mb), 16)
                k('%s %s, %s, %s, %s' % (MFMA, d, ar(KF(ks), 4), vr(QF(mb, ks), 4), '0' if ks == 0 else d))
        k('s_nop 7')
        k('s_nop 7')
        for mb in range(2):
            s0 = SB(0, mb)
            for r in range(0, 16, 2): k('v_max3_f32 v%d, v%d, v%d, v%d' % (MG(mb), MG(mb), s0+r, s0+r+1))
        k('s_add_u32 s58, s58, 8192')
        k('s_cmp_lt_u32 s58, 0x20000')
        k('s_cbranch_scc1 %s' % lab2)
        k('v_add_u32 v16, %d, v8' % KSLOT[0])
        k('v_add_u32 v17, %d, v8' % VSLOT[0])
        for db in range(4):
            for mb in range(2):
                for r in range(16): k('v_accvgpr_write_b32 a%d, 0' % (OA(db, mb) + r))
        for n_ in range(4):
            k('s_mov_b32 s%d, s%d' % (TT[3*n_], PWS))
            k('s_mov_b32 s%d, s%d' % (TT[3*n_+1], PWS+1))
            k('s_mov_b32 s%d, 0' % TT[3*n_+2])
        k('s_barrier')
        for pre, ins, tag in initial_dmas():
            for p_ in pre: k(p_)
            if pre: k('s_nop 0')
            k(ins)
        k('s_waitcnt vmcnt(0)')
        k('s_branch %s_pro' % name)
    return slow, post

GU_STG = 28928; GU_UP = 14464
def gateup_setup(k, init_state=True):
    vL = [4, 5]; vX = [8, 9]; vW = [10, 11, 12, 13, 14, 15, 16]
    k('s_lshl_b32 s35, s22, 3')
    k('s_add_u32 s35, s35, s25')
    k('v_lshrrev_b32 v20, 5, v1')
    k('v_lshlrev_b32 v20, 3, v20')
    k('v_bfe_u32 v21, v1, 2, 2')
    k('v_add_u32 v20, v20, v21')
    k('v_mul_u32_u24 v20, 224, v20')
    k('v_bfe_u32 v21, v1, 4, 1')
    k('v_mul_u32_u24 v21, %d, v21' % GU_UP)
    k('v_add_u32 v20, v20, v21')
    k('v_and_b32 v21, 1, v1')
    k('v_lshl_add_u32 v20, v21, 4, v20')
    k('v_bfe_u32 v21, v1, 1, 1')
    k('v_lshl_add_u32 v4, v21, 3, v20')
    k('v_add_u32 v5, %d, v4' % (2*GU_STG))
    k('v_lshlrev_b32 v8, 4, v1')
    k('v_add_u32 v9, 0x10000, v8')
    k('s_and_b32 s27, s26, 1')
    k('s_mul_i32 s28, s27, 448')
    k('s_mul_i32 s29, s35, 224')
    for i in range(7):
        k('v_add_u32 v20, s28, v1')
        if i: k('v_add_u32 v20, %d, v20' % (64*i))
        k('v_mul_u32_u24 v21, 4682, v20')
        k('v_lshrrev_b32 v21, 16, v21')
        k('v_mul_u32_u24 v22, 14, v21')
        k('v_sub_u32 v22, v20, v22')
        k('v_mul_u32_u24 v21, 7168, v21')
        k('v_lshl_add_u32 v21, v22, 4, v21')
        k('v_add_u32 v21, s29, v21')
        k('v_subrev_u32 v%d, %d, v21' % (vW[i], (i % 4)*1024))
    srd(k, 8, PWS, 0x400000, WS_H2)
    k('s_cmp_ge_u32 s26, 2')
    k('s_cselect_b32 s12, s%d, s%d' % (PWU, PWG))
    k('s_cselect_b32 s13, s%d, s%d' % (PWU+1, PWG+1))
    k('s_mov_b32 s14, 0x%x' % (1024*7168))
    k('s_mov_b32 s15, 0x20000')
    k('s_lshl_b32 s27, s24, 3')
    k('s_lshl_b32 s28, s26, 1')
    k('s_add_u32 s34, s27, s28')
    if init_state:
        k('s_lshl_b32 s30, s34, 16')
        k('s_sub_u32 s30, s30, 4096')
        k('s_mov_b32 s31, 0x%x' % ((-64*7168) & 0xffffffff))
    k('s_lshr_b32 s27, s26, 1')
    k('s_mul_i32 s32, s27, %d' % GU_UP)
    k('s_and_b32 s27, s26, 1')
    k('s_mul_i32 s27, s27, 7168')
    k('s_add_u32 s32, s32, s27')
    return vL, vX, vW

def gateup_gemm(k, regs, extra=None):
    vL, vX, vW = regs
    return Gemm(k, 7, 16, acc=32, xr=0, wf=128, vX=vX, vW=vW, sXsrd=8, sWsrd=12, sXoff=30, sWoff=31, sM0=32, sCnt=33,
             stage_bytes=GU_STG, ldw_step=64*7168, nW=7,
             lds_imm=lambda buf, j, nb, sec: (vL[buf // 2], (buf % 2)*GU_STG + j*3584 + sec*896 + nb*32), extra=extra, xflag=LD())

def gateup_main(k, g, next_prefetch=None):
    srd(k, 16, PWS, 2048*3584*2, WS_ACT)
    k('s_mul_i32 s27, s34, 224')
    k('s_mul_i32 s28, s35, 7')
    k('s_add_u32 s27, s27, s28')
    k('s_lshl_b32 s36, s27, 10')
    k('s_add_u32 s37, s36, %d' % (224*1024))
    k('s_mov_b32 s40, 0x%x' % f2u(-LOG2E))
    k('s_mov_b32 s41, 0x%x' % f2u(-LOG2E))
    k('v_add_u32 v31, 4096, v8')
    k('v_mov_b32 v30, v8')
    k('v_mov_b32 v29, 0x%x' % f2u(-LOG2E))
    stamp(k, 1)
    g.start()
    stamp(k, 2)
    def epi(b):
        out = []
        for mb in range(2):
            a = g.accr(b, mb)
            t = 17 + mb*4
            for h in range(2):
                e = a + 4*h
                out += ['v_mul_f32 v%d, v29, v%d' % (t+i, e+i) for i in range(4)]
                out += ['v_exp_f32 v%d, v%d' % (t+i, t+i) for i in range(4)]
                out += ['v_mul_f32 v%d, v%d, v%d' % (e+i, e+i, e+8+i) for i in range(4)]
                out += ['v_add_f32 v%d, 1.0, v%d' % (t+i, t+i) for i in range(4)]
                out += ['v_rcp_f32 v%d, v%d' % (t+i, t+i) for i in range(4)]
                out += ['s_nop 0']
                out += ['v_mul_f32 v%d, v%d, v%d' % (e+i, e+i, t+i) for i in range(4)]
            out += ['v_cvt_pk_bf16_f32 v%d, v%d, v%d' % (a+8+i, a+2*i, a+2*i+1) for i in range(4)]
            out.append(([], 'buffer_store_dwordx4 %s, v%d, s[16:19], s%d offen offset:%d %s' % (vr(a+8, 4), 30 if b < 4 else 31, 36+mb, (b % 4)*1024, '' if OPT.get('plainO') else ST), ('S', 0, 0)))
        return out
    g.mainloop(epi)
    stamp(k, 3)
    if next_prefetch: next_prefetch()

def resume_m0(k, g):
    k('s_add_u32 m0, s%d, 0x%x' % (g.sM0, 2*g.stage))

def build():
    kerns = []
    if MEGA:
        name = NAME + '_kernel'
        k = Kern(name, nvgpr=512, accum=256, nsgpr=102, lds=163840)
        def early():
            code_touch(k, name + '_c1', name + '_cend', 30)
            k.label(name + '_c1')
        header(k, name, early)
        phase_p0(k, name)
        phase_ln1b(k)
        slow, post = phase_attn(k, name)
        def a3():
            k('s_lshl_b32 s27, s24, 2'); k('s_add_u32 s27, s27, s22'); k('s_add_u32 s27, s27, %d' % C_S3); cnt_addr(k, 27)
        arrive(k, a3, count=8, flag_off=128)
        g = gemm128_setup(k, 'oproj'); g.prologue_w()
        post()
        stamp_flush(k, 'attn', 5)
        k.label(name + '_L_oproj')
        stamp_rt0(k, 'oproj'); stamp(k, 0)
        waitfor(k, a3, 1, off=128)
        resume_m0(k, g)
        g.prologue_x()
        gemm128_main(k, 'oproj', g)
        def a4():
            k('s_add_u32 s27, s24, %d' % C_S4); cnt_addr(k, 27)
        arrive(k, a4, count=32, flag_off=128)
        regs = gateup_setup(k)
        gg = gateup_gemm(k, regs)
        gg.prologue_w()
        code_touch(k, name + '_L_gateup', name + '_L_down', 30)
        stamp_flush(k, 'oproj', 4)
        phase_ln2(k, 'ln2')
        k.label(name + '_L_gateup')
        stamp_rt0(k, 'gateup'); stamp(k, 0)
        gateup_setup(k, init_state=False)
        def a5():
            k('s_add_u32 s27, s24, %d' % C_S5); cnt_addr(k, 27)
        waitfor(k, a5, 1, off=128)
        resume_m0(k, gg)
        gg.prologue_x()
        gateup_main(k, gg)
        def a6():
            k('s_lshl_b32 s27, s24, 2'); k('s_add_u32 s27, s27, s22'); k('s_add_u32 s27, s27, %d' % C_S6); cnt_addr(k, 27)
        arrive(k, a6, count=8, flag_off=128)
        g = gemm128_setup(k, 'down'); g.prologue_w()
        code_touch(k, name + '_L_down', name + '_cend', 60)
        stamp_flush(k, 'gateup', 4)
        k.label(name + '_L_down')
        stamp_rt0(k, 'down'); stamp(k, 0)
        waitfor(k, a6, 1, off=128)
        resume_m0(k, g)
        g.prologue_x()
        gemm128_main(k, 'down', g)
        def a7():
            k('s_add_u32 s27, s24, %d' % C_S7); cnt_addr(k, 27)
        arrive(k, a7, count=32, flag_off=128)
        stamp_flush(k, 'down', 4)
        phase_ln2(k, 'final')
        k('s_endpgm')
        slow()
        k.label(name + '_cend')
        k.label(name + '_end')
        k('s_endpgm')
        kerns.append(k)
    else:
        def kern(nm, lds):
            k = Kern(nm, nvgpr=512, accum=256, nsgpr=102, lds=lds); header(k, nm); return k
        def fin(k):
            k.label(k.name + '_end'); k('s_endpgm'); kerns.append(k)
        k = kern('p0_kernel', 163840); phase_p0(k, k.name); stamp_flush(k, 'p0', 3); fin(k)
        k = kern('ln1_kernel', 163840)
        ln_addr(k); srd(k, 8, PX, 0x400000)
        for j in range(4): k('buffer_load_dwordx4 %s, v6, s[8:11], s44 offen offset:%d' % (vr(RAW + 4*j, 4), j*128))
        k('s_waitcnt vmcnt(0)'); tr8x8(k, RAW, 4, 240, 241); ln_unpack(k, RAW); ln_stats(k); phase_ln1b(k); fin(k)
        k = kern('attn_kernel', 163840); slow, post = phase_attn(k, k.name); stamp_flush(k, 'attn', 5); k('s_endpgm'); slow(); fin(k)
        k = kern('oproj_kernel', 65536); stamp_rt0(k, 'oproj'); stamp(k, 0); g = gemm128_setup(k, 'oproj'); g.prologue_mixed(); gemm128_main(k, 'oproj', g); stamp_flush(k, 'oproj', 4); fin(k)
        k = kern('ln2_kernel', 163840); phase_ln2(k, 'ln2'); fin(k)
        k = kern('gateup_kernel', 4*GU_STG); stamp_rt0(k, 'gateup'); stamp(k, 0); regs = gateup_setup(k); gg = gateup_gemm(k, regs); gg.prologue_mixed(); gateup_main(k, gg); stamp_flush(k, 'gateup', 4); fin(k)
        k = kern('down_kernel', 65536); stamp_rt0(k, 'down'); stamp(k, 0); g = gemm128_setup(k, 'down'); g.prologue_mixed(); gemm128_main(k, 'down', g); stamp_flush(k, 'down', 4); fin(k)
        k = kern('final_kernel', 163840); phase_ln2(k, 'final'); fin(k)
    return kerns

HEADER = open('cdna_kernels/%s.s.ref' % NAME).read().split('; Override launch')[0] if os.path.exists('cdna_kernels/%s.s.ref' % NAME) else ''

def assemble(kerns):
    out = [HEADER.rstrip()]
    if MEGA:
        kn = kerns[0]
        out.append('; @launch grid=(%d,1,1) block=(%d,1,1) lds=%d' % (kn.grid, kn.block, kn.lds))
    else:
        for kn in kerns:
            out.append('; @launch kernel=%s grid=(%d,1,1) block=(%d,1,1) lds=%d' % (kn.name, kn.grid, kn.block, kn.lds))
    out.append('.amdgcn_target "amdgcn-amd-amdhsa--gfx950"')
    for kn in kerns: out.append(kn.text())
    out.append('.section .rodata,"a"')
    for kn in kerns:
        out.append('.p2align 6'); out.append(kn.desc())
    return '\n'.join(out) + '\n'

if __name__ == '__main__':
    for a in sys.argv[2:]:
        if a == 'instr': INSTR = True
        elif a == 'mega': MEGA = True
        elif a.startswith('opt:'): OPT[a[4:].split('=')[0]] = (a.split('=')[1].replace('+', ' ') if '=' in a else True)
    ks = build()
    bad = 0
    for kn in ks: bad += len(check(kn))
    txt = assemble(ks)
    txt = '\n'.join(l[4:] if l.startswith('    ') else l for l in txt.split('\n'))
    open(sys.argv[1], 'w').write(txt)
    print('generated', len(txt), 'bytes; check errors:', bad)
```

```python
import sys, math, os, struct as _st
from asmlib import *

NAME = 'adaLN_cond__sliding_block_cached__swiglu_ffn__prompt'
KA = dict(x=0, k=8, v=16, wq=24, wo=32, bx=40, wg=48, wu=56, wd=64, c=72, wmod=80, out=88, dbg=96, ws=104)
PX, PK, PV, PWQ, PWO, PWG, PWU, PWD, PC_, PWMOD, POUT, PDBG, PWS = 64, 66, 68, 70, 72, 76, 78, 80, 82, 84, 86, 88, 90
WS_MOD  = 0x0
WS_MODB = 0x10000
WS_CNT  = 0x20000
WS_H   = 0x100000
WS_O   = 0x500000
WS_P1  = 0x1500000
WS_X1  = 0x3500000
WS_H2  = 0x3900000
WS_ACT = 0x3D00000
WS_P2  = 0x4B00000
WS_KF  = 0x5B00000
WS_VF  = 0x5B80000
WS_STAMP = 0x8000000
MFMA = 'v_mfma_f32_32x32x16_bf16'
LOG2E = 1.4426950408889634
def f2u(x): return _st.unpack('<I', _st.pack('<f', x))[0]
INSTR = False
MEGA = False
OPT = {}
PHASES = ['p0', 'attn', 'oproj', 'ln2', 'gateup', 'down', 'final']
PIDX = {p: i for i, p in enumerate(PHASES)}
ST = 'sc1'
def LD(): return 'sc1' if (MEGA and not OPT.get('plainld')) else ''
C_S2, C_S3, C_S4, C_S5, C_S6, C_S7 = 0, 8, 40, 48, 56, 88
LN_LDS = 147456

def srd(k, s, lo, size, add=None):
    if add:
        k('s_add_u32 s%d, s%d, 0x%x' % (s, lo, add))
        k('s_addc_u32 s%d, s%d, 0' % (s+1, lo+1))
    else:
        k('s_mov_b32 s%d, s%d' % (s, lo))
        k('s_mov_b32 s%d, s%d' % (s+1, lo+1))
    k('s_mov_b32 s%d, 0x%x' % (s+2, size))
    k('s_mov_b32 s%d, 0x20000' % (s+3))
def srd_s(k, s, lo, soff, size):
    k('s_add_u32 s%d, s%d, s%d' % (s, lo, soff))
    k('s_addc_u32 s%d, s%d, 0' % (s+1, lo+1))
    k('s_mov_b32 s%d, 0x%x' % (s+2, size))
    k('s_mov_b32 s%d, 0x20000' % (s+3))

def stamp(k, i):
    if INSTR:
        k('s_memtime s[%d:%d]' % (92+2*i, 93+2*i)) if i < 5 else None
def stamp_begin(k):
    if INSTR:
        k('s_memrealtime s[60:61]') if False else None
        k('s_memrealtime s[18:19]') if False else None
def stamp_flush(k, phase, n):
    if not INSTR: return
    k('s_waitcnt lgkmcnt(0)')
    k('s_memrealtime s[28:29]') if False else None
    srd(k, 16, PWS, 0x10000, WS_STAMP + PIDX[phase]*0x10000)
    k('s_lshl_b32 s27, s2, 6')
    k('v_cmp_eq_u32 vcc, 0, v0')
    k('s_and_saveexec_b64 s[28:29], vcc')
    lab = k.L('so')
    k('s_cbranch_execz %s' % lab)
    k('v_mov_b32 v2, s27')
    for i in range(n):
        k('v_mov_b32 v3, s%d' % (92+2*i))
        k('buffer_store_dword v3, v2, s[16:19], 0 offen offset:%d' % (4*i))
    k('s_memrealtime s[92:93]')
    k('s_memtime s[94:95]')
    k('s_waitcnt lgkmcnt(0)')
    k('v_mov_b32 v3, s92')
    k('buffer_store_dword v3, v2, s[16:19], 0 offen offset:56')
    k('v_mov_b32 v3, s94')
    k('buffer_store_dword v3, v2, s[16:19], 0 offen offset:60')
    k.label(lab)
    k('s_mov_b64 exec, s[28:29]')
def stamp_rt0(k, phase):
    if not INSTR: return
    k('s_memrealtime s[92:93]')
    k('s_memtime s[94:95]')
    srd(k, 16, PWS, 0x10000, WS_STAMP + PIDX[phase]*0x10000)
    k('s_lshl_b32 s27, s2, 6')
    k('s_waitcnt lgkmcnt(0)')
    k('v_cmp_eq_u32 vcc, 0, v0')
    k('s_and_saveexec_b64 s[28:29], vcc')
    lab = k.L('s0')
    k('s_cbranch_execz %s' % lab)
    k('v_mov_b32 v2, s27')
    k('v_mov_b32 v3, s92')
    k('buffer_store_dword v3, v2, s[16:19], 0 offen offset:48')
    k('v_mov_b32 v3, s94')
    k('buffer_store_dword v3, v2, s[16:19], 0 offen offset:52')
    k.label(lab)
    k('s_mov_b64 exec, s[28:29]')

def header(k, name, early=None):
    k('s_cmp_ge_u32 s2, 256')
    k('s_cbranch_scc1 %s_end' % name)
    if OPT.get('scramble'):
        k('s_and_b32 s3, s2, 31')
        k('s_lshl_b32 s3, s3, 3')
        k('s_lshr_b32 s2, s2, 5')
        k('s_or_b32 s2, s2, s3')
    k('s_load_dwordx8 s[80:87], s[0:1], 64')
    k('s_load_dwordx16 s[64:79], s[0:1], 0')
    k('s_load_dwordx4 s[88:91], s[0:1], 96')
    k('v_lshrrev_b32 v2, 6, v0')
    k('v_and_b32 v1, 63, v0')
    k('s_lshr_b32 s21, s2, 3')
    k('v_readfirstlane_b32 s26, v2')
    if early: early()
    k('s_and_b32 s20, s2, 7')
    k('s_lshr_b32 s22, s20, 1')
    k('s_and_b32 s23, s20, 1')
    k('s_and_b32 s24, s21, 3')
    k('s_lshl_b32 s27, s23, 2')
    k('s_add_u32 s24, s24, s27')
    k('s_lshr_b32 s25, s21, 2')
    k('s_waitcnt lgkmcnt(0)')

def cnt_addr(k, sreg, dst=6):
    k('s_lshl_b32 s%d, s%d, 8' % (dst, sreg))
    k('s_add_u32 s%d, s%d, 0x%x' % (dst, dst, WS_CNT))
    k('s_add_u32 s%d, s%d, s%d' % (dst, dst, PWS))
    k('s_addc_u32 s%d, s%d, 0' % (dst+1, PWS+1))
def arrive(k, setup, count=None, extra_dbg=None, only_w0=False, flag_off=None):
    if not MEGA: return
    if not only_w0:
        k('s_waitcnt vmcnt(0)')
        k('s_barrier')
    lab = k.L('arr')
    k('s_cmp_lg_u32 s26, 0')
    k('s_cbranch_scc1 %s' % lab)
    if only_w0: k('s_waitcnt vmcnt(0)')
    setup()
    k('v_mov_b32 v2, 0')
    k('v_mov_b32 v3, 1')
    k('s_mov_b64 exec, 1')
    if extra_dbg is not None:
        k('v_mov_b32 v29, %d' % extra_dbg)
        k('global_atomic_add v29, v3, s[%d:%d] sc1' % (PDBG, PDBG+1))
    if count is None:
        k('global_atomic_add v2, v3, s[6:7] sc1')
    else:
        k('global_atomic_add v29, v2, v3, s[6:7] sc0 sc1')
        k('s_waitcnt vmcnt(0)')
        k('v_readfirstlane_b32 s27, v29')
        k('s_nop 3')
        k('s_cmp_lg_u32 s27, %d' % (count - 1))
        k('s_cbranch_scc1 %s_n' % lab)
        k('global_store_dword v2, v3, s[6:7] offset:%d sc1' % flag_off)
        k.label(lab + '_n')
    k('s_mov_b64 exec, -1')
    k.label(lab)
def waitfor(k, setup, count, off=0, sleep=2):
    if not MEGA: return
    lab = k.L('wt'); done = k.L('wd'); skip = k.L('ws')
    k('s_cmp_lg_u32 s26, 0')
    k('s_cbranch_scc1 %s' % skip)
    setup()
    k('v_mov_b32 v2, 0')
    k('s_mov_b32 s27, 0')
    k('s_mov_b64 exec, 1')
    k.label(lab)
    k('global_load_dword v3, v2, s[6:7] offset:%d sc1' % off)
    k('s_waitcnt vmcnt(0)')
    k('v_readfirstlane_b32 s28, v3')
    k('s_add_u32 s27, s27, 1')
    k('s_cmp_ge_u32 s28, %d' % count)
    k('s_cbranch_scc1 %s' % done)
    k('s_cmp_ge_u32 s27, 0x40000')
    k('s_cbranch_scc1 %s' % done)
    k('s_sleep %d' % sleep)
    k('s_branch %s' % lab)
    k.label(done)
    k('s_mov_b64 exec, -1')
    k.label(skip)
    k('s_barrier')

def code_touch(k, lab0, lab1, vtmp):
    if OPT.get('nocode'): return
    here = k.L('pc'); skip = k.L('ct')
    k('s_cmp_lg_u32 s26, 0')
    k('s_cbranch_scc1 %s' % skip)
    k('s_getpc_b64 s[6:7]')
    k.label(here)
    k('s_add_u32 s6, s6, %s-%s' % (lab0, here))
    k('s_addc_u32 s7, s7, %s' % ('0' if True else ''))
    k('v_lshlrev_b32 v%d, 5, v1' % vtmp)
    k('v_add_u32 v%d, s21, v%d' % (vtmp, vtmp))
    k('v_lshlrev_b32 v%d, 7, v%d' % (vtmp, vtmp))
    k('v_cmp_gt_u32 vcc, %s-%s, v%d' % (lab1, lab0, vtmp))
    k('s_and_saveexec_b64 s[4:5], vcc')
    k('s_cbranch_execz %s_r' % skip)
    k('global_load_dword v%d, v%d, s[6:7]' % (vtmp+1, vtmp))
    k.label(skip + '_r')
    k('s_mov_b64 exec, s[4:5]')
    k.label(skip)

class Gemm:
    def __init__(self, k, NB, nsteps, acc, xr, wf, vX, vW, sXsrd, sWsrd, sXoff, sWoff, sM0, sCnt,
                 stage_bytes, ldw_step, nW, lds_imm, extra=None, xflag=''):
        self.k = k; self.NB = NB; self.nsteps = nsteps; self.acc = acc; self.xr = xr; self.wf = wf
        self.vX = vX; self.vW = vW; self.sX = sXsrd; self.sW = sWsrd; self.sXoff = sXoff; self.sWoff = sWoff
        self.sM0 = sM0; self.sCnt = sCnt; self.stage = stage_bytes; self.ldw_step = ldw_step; self.nW = nW
        self.lds_imm = lds_imm; self.xflag = xflag
        self.extra = extra or (lambda t, j: [])
        if nW == 4: wsl = {3: [0], 0: [1], 1: [2], 2: [3]}
        else: wsl = {3: [0, 1], 0: [2, 3], 1: [4, 5], 2: [6]}
        Q = []
        for i in wsl[3]: Q.append((('W', 0, i), -13))
        for s_ in range(nsteps):
            for j in range(4):
                slot = 4*(s_-3) + j
                ws = [('W', s_, i) for i in wsl[j]] if j < 3 else ([('W', s_+1, i) for i in wsl[3]] if s_+1 < nsteps else [])
                for o in [('X', s_, j, 0)] + ws + [('X', s_, j, 1)]: Q.append((o, slot))
        self.Q = Q
        self.P = len([1 for o, sl in Q if sl < -4])
        self.sched = {}
        pos = self.P
        for t in range(nsteps):
            for j in range(4):
                slot = 4*t + j
                steady = len([1 for o, sl in Q if sl <= slot])
                per = len([1 for o, sl in Q if sl == 16 + j])
                n = min(steady, pos + per + 1)
                self.sched[(t, j)] = [o for o, sl in Q[pos:n]]
                pos = n
    def accr(self, nb, mb): return self.acc + (nb*2 + mb)*16
    def xreg(self, s, mb, j): return self.xr + (s % 4)*32 + (mb*4 + j)*4
    def wreg(self, par, nb): return self.wf + par*self.NB*4 + nb*4
    def mkop(self, o):
        if o[0] == 'X':
            _, s_, j, mb = o
            pre = ['s_add_u32 s%d, s%d, 4096' % (self.sXoff, self.sXoff)] if (j == 0 and mb == 0) else []
            return (pre, 'buffer_load_dwordx4 %s, v%d, s[%d:%d], s%d offen offset:%d %s' % (ar(self.xreg(s_, mb, j), 4), self.vX[mb], self.sX, self.sX+3, self.sXoff, j*1024, self.xflag), ('X', s_, j))
        _, s_, i = o
        pre = []
        if i == 0:
            pre.append('s_add_u32 s%d, s%d, 0x%x' % (self.sWoff, self.sWoff, self.ldw_step))
            pre.append('s_add_u32 m0, s%d, 0x%x' % (self.sM0, (s_ % 4)*self.stage))
        elif i == 4:
            pre.append('s_add_u32 m0, s%d, 0x%x' % (self.sM0, (s_ % 4)*self.stage + 4096))
        return (pre, 'buffer_load_dwordx4 v%d, s[%d:%d], s%d offen offset:%d lds' % (self.vW[i], self.sW, self.sW+3, self.sWoff, (i % 4)*1024), ('W', s_, i))
    def emit_vm(self, op):
        k = self.k
        pre, ins, tag = op[0], op[1], op[2]
        for p in pre: k(p)
        if pre and 'm0' in pre[-1]: k('s_nop 0')
        k.vm(ins, tag)
    def lds_reads(self, t, j):
        out = []
        for nb in range(self.NB):
            for sec in range(2):
                v, imm = self.lds_imm(t % 4, j, nb, sec)
                out.append('ds_read_b64_tr_b16 %s, v%d offset:%d' % (ar(self.wreg(j % 2, nb) + 2*sec, 2), v, imm))
        return out
    def blk_reads(self, t, nb):
        out = []
        for j in range(4):
            for sec in range(2):
                v, imm = self.lds_imm(t % 4, j, nb, sec)
                out.append('ds_read_b64_tr_b16 %s, v%d offset:%d' % (ar(self.wf + (nb % 2)*16 + j*4 + 2*sec, 2), v, imm))
        return out
    def prologue_w(self):
        for o, sl in self.Q[:self.P]:
            if o[0] == 'W': self.emit_vm(self.mkop(o))
    def prologue_x(self):
        for o, sl in self.Q[:self.P]:
            if o[0] == 'X': self.emit_vm(self.mkop(o))
    def prologue_mixed(self):
        for o, sl in self.Q[:self.P]: self.emit_vm(self.mkop(o))
    def start(self):
        k = self.k
        n = k.vm_wait_n(lambda tg: (tg[0] == 'W' and tg[1] == 0) or (tg[0] == 'X' and tg[1] == 0 and tg[2] <= 2))
        k('s_waitcnt vmcnt(%d)' % n)
        k('s_barrier')
        for r in self.lds_reads(0, 0): k(r)
    def emit_gaps(self, mfmas, gaps):
        k = self.k
        for m, mf in enumerate(mfmas):
            k(mf)
            for kind, x in gaps[m]:
                if kind == 'i': k(x)
                else: self.emit_vm(x)
    def frag_reads(self, t, j, nb, slot):
        out = []
        for sec in range(2):
            v, imm = self.lds_imm(t % 4, j, nb, sec)
            out.append('ds_read_b64_tr_b16 %s, v%d offset:%d' % (ar(self.wf + slot*4 + 2*sec, 2), v, imm))
        return out
    def step(self, t, tail=0):
        k = self.k; NB = self.NB; n = self.nsteps
        last = (t == n - 1)
        pre_tail = tail and t == n - tail - 1
        for j in range(4):
            if j == 3 and not last:
                if pre_tail:
                    nn = k.vm_wait_n(lambda tg: tg[0] in 'WX' and tg[1] <= (n-2 if tail >= 3 else n-1))
                else:
                    nn = k.vm_wait_n(lambda tg: (tg[0] == 'W' and tg[1] <= t+1) or (tg[0] == 'X' and (tg[1] <= t or (tg[1] == t+1 and tg[2] <= 2))))
                k('s_waitcnt vmcnt(%d) lgkmcnt(0)' % nn)
                k('s_barrier')
            elif j == 3:
                nn = k.vm_wait_n(lambda tg: tg[0] == 'X' and tg[1] <= t)
                k('s_waitcnt vmcnt(%d) lgkmcnt(0)' % nn)
            else:
                k('s_waitcnt lgkmcnt(0)')
            if j < 3: reads = self.lds_reads(t, j+1)
            elif last: reads = []
            elif pre_tail:
                reads = []
                for f in range(4): reads += self.frag_reads(n - tail, f, 0, f)
            else: reads = self.lds_reads(t+1, 0)
            vms = [self.mkop(o) for o in self.sched[(t, j)]]
            extra = list(self.extra(t, j))
            vms += [e for e in extra if not isinstance(e, str)]
            plain = [e for e in extra if isinstance(e, str)]
            nm = 2*NB
            gaps = [[] for _ in range(nm)]
            for i, r in enumerate(reads): gaps[i // 2].append(('i', r))
            for i, op in enumerate(vms): gaps[NB + (i * NB) // max(1, len(vms))].append(('vm', op))
            for i, e in enumerate(plain): gaps[(i * nm) // len(plain)].append(('i', e))
            mf = []
            for nb in range(NB):
                for mb in range(2):
                    d = vr(self.accr(nb, mb), 16)
                    mf.append('%s %s, %s, %s, %s' % (MFMA, d, ar(self.wreg(j % 2, nb), 4), ar(self.xreg(t, mb, j), 4), '0' if (t == 0 and j == 0) else d))
            self.emit_gaps(mf, gaps)
    def tail_blocks(self, tail, epi):
        k = self.k; NB = self.NB; n = self.nsteps
        frs = [(nb, t, j) for nb in range(NB) for t in range(n - tail, n) for j in range(4)]
        per = tail*4
        NS = 8
        pending = []
        for f, (nb, t, j) in enumerate(frs):
            fo = f % per
            if fo == 0:
                items = list(pending)
                if nb < tail:
                    for jj in range(4): items += list(self.extra(n - tail + nb, jj))
                ng = 2*per
                blockgaps = [[] for _ in range(ng)]
                for i, e in enumerate(items): blockgaps[4 + (i * (ng - 4)) // max(1, len(items))].append(e)
            if f == 4 and tail >= 3:
                nn = k.vm_wait_n(lambda tg: tg[0] in 'WX' and tg[1] <= n-1)
                k('s_waitcnt vmcnt(%d)' % nn)
                k('s_barrier')
            ahead = min(len(frs) - 1 - f, 3)
            k('s_waitcnt lgkmcnt(%d)' % (2*ahead))
            nxt = self.frag_reads(frs[f+4][1], frs[f+4][2], frs[f+4][0], (f+4) % NS) if f + 4 < len(frs) else []
            for mb in range(2):
                d = vr(self.accr(nb, mb), 16)
                k('%s %s, %s, %s, %s' % (MFMA, d, ar(self.wf + (f % NS)*4, 4), ar(self.xreg(t, mb, j), 4), d))
                if nxt: k(nxt[mb])
                for e in blockgaps[2*fo + mb]:
                    if isinstance(e, str): k(e)
                    else: self.emit_vm(e)
            if fo == per - 1: pending = epi(nb)
        k('s_nop 7')
        k('s_nop 3')
        for e in pending:
            if isinstance(e, str): k(e)
            else: self.emit_vm(e)
    def mainloop(self, epi=None, tail=3):
        k = self.k; n = self.nsteps
        tl = tail if epi is not None else 0
        for t in range(4): self.step(t, tl)
        t = 4
        trips = 0
        while t + 4*trips + 3 + 4 <= n - 1: trips += 1
        if trips >= 2:
            lab = k.L('loop')
            k('s_mov_b32 s%d, %d' % (self.sCnt, trips))
            k.label(lab)
            q0 = len(k.vmq)
            for tt in range(t, t+4): self.step(tt, tl)
            k('s_sub_u32 s%d, s%d, 1' % (self.sCnt, self.sCnt))
            k('s_cmp_lg_u32 s%d, 0' % self.sCnt)
            k('s_cbranch_scc1 %s' % lab)
            body = k.vmq[q0:]
            for r in range(1, trips):
                for tg in body: k.vmq.append((tg[0], tg[1] + 4*r, tg[2]))
            t += 4*trips
        for tt in range(t, n - tl): self.step(tt, tl)
        if tl: self.tail_blocks(tl, epi)

def lds_addr_128(k, vL, tmp):
    a, b, c = tmp, tmp+1, tmp+2
    k('v_lshrrev_b32 v%d, 5, v1' % a)
    k('v_lshlrev_b32 v%d, 11, v%d' % (a, a))
    k('v_bfe_u32 v%d, v1, 2, 2' % b)
    k('v_lshl_add_u32 v%d, v%d, 8, v%d' % (a, b, a))
    k('v_bfe_u32 v%d, v1, 4, 1' % c)
    k('v_lshl_add_u32 v%d, v%d, 5, v%d' % (a, c, a))
    k('v_and_b32 v%d, 1, v1' % c)
    k('v_lshl_add_u32 v%d, v%d, 4, v%d' % (a, c, a))
    k('v_bfe_u32 v%d, v1, 1, 1' % c)
    k('v_lshl_add_u32 v%d, v%d, 3, v%d' % (a, c, a))
    for nb in range(4):
        k('v_xor_b32 v%d, %d, v%d' % (c, nb, b))
        k('v_lshl_add_u32 v%d, v%d, 6, v%d' % (vL[nb], c, a))

def w128_voffsets(k, vW, ldw, s_colbytes, tmp):
    a, b, c = tmp, tmp+1, tmp+2
    k('v_lshrrev_b32 v%d, 4, v1' % a)
    k('v_bfe_u32 v%d, v1, 2, 2' % b)
    k('v_xor_b32 v%d, v%d, v%d' % (b, b, a))
    k('v_and_b32 v%d, 3, v1' % c)
    k('v_lshlrev_b32 v%d, 4, v%d' % (c, c))
    k('v_lshl_add_u32 v%d, v%d, 6, v%d' % (c, b, c))
    k('s_lshl_b32 s27, s26, 4')
    k('v_add_u32 v%d, s27, v%d' % (a, a))
    k('v_mul_u32_u24 v%d, %d, v%d' % (a, ldw, a))
    k('v_add3_u32 v%d, v%d, v%d, s%d' % (vW[0], a, c, s_colbytes))
    for i in range(1, 4): k('v_add_u32 v%d, 0x%x, v%d' % (vW[i], i*4*ldw - i*1024, vW[0]))

def gemm128_setup(k, which):
    if which == 'oproj': xoff, xsize, KS, ksq, wptr, ldw, nsteps = WS_O, 0x1000000, 256, 64, PWO, 2048, 16
    else: xoff, xsize, KS, ksq, wptr, ldw, nsteps = WS_ACT, 2048*3584*2, 224, 56, PWD, 2048, 14
    vL = [4, 5, 6, 7]; vX = [8, 9]; vW = [10, 11, 12, 13]
    lds_addr_128(k, vL, tmp=14)
    k('v_lshlrev_b32 v8, 4, v1')
    k('v_add_u32 v9, 0x%x, v8' % (KS*1024))
    k('s_lshl_b32 s28, s25, 8')
    w128_voffsets(k, vW, ldw, 28, 14)
    srd(k, 8, PWS, xsize, xoff)
    srd(k, 12, wptr, ksq*4*16*ldw)
    k('s_lshl_b32 s27, s24, 3')
    k('s_lshl_b32 s28, s26, 1')
    k('s_add_u32 s34, s27, s28')
    k('s_mul_i32 s30, s34, %d' % KS)
    k('s_mul_i32 s28, s22, %d' % ksq)
    k('s_add_u32 s30, s30, s28')
    k('s_lshl_b32 s30, s30, 10')
    k('s_sub_u32 s30, s30, 4096')
    k('s_mul_i32 s31, s22, 0x%x' % (ksq*16*ldw))
    k('s_sub_u32 s31, s31, 0x%x' % (64*ldw))
    k('s_lshl_b32 s32, s26, 12')
    return Gemm(k, 4, nsteps, acc=128, xr=0, wf=128, vX=vX, vW=vW, sXsrd=8, sWsrd=12, sXoff=30, sWoff=31, sM0=32, sCnt=33,
                stage_bytes=16384, ldw_step=64*ldw, nW=4,
                lds_imm=lambda buf, j, nb, sec: (vL[nb], buf*16384 + j*4096 + sec*1024), xflag=LD())

def gemm128_main(k, which, g):
    poff = WS_P1 if which == 'oproj' else WS_P2
    k('s_lshl_b32 s27, s22, 22')
    k('s_add_u32 s27, s27, 0x%x' % poff)
    srd_s(k, 16, PWS, 27, 0x400000)
    k('s_lshl_b32 s27, s34, 6')
    k('s_lshl_b32 s28, s25, 3')
    k('s_add_u32 s27, s27, s28')
    k('s_lshl_b32 s36, s27, 10')
    k('s_add_u32 s37, s36, 0x10000')
    k('v_add_u32 v14, 4096, v8')
    stamp(k, 1)
    g.start()
    stamp(k, 2)
    cnt = [0]
    def epi(nb):
        out = []
        for mb in range(2):
            a = g.accr(nb, mb)
            for hh in range(2):
                t = 16 + (cnt[0] % 8)*4; cnt[0] += 1
                for r in range(4): out.append('v_cvt_pk_bf16_f32 v%d, v%d, v%d' % (t+r, a + hh*8 + 2*r, a + hh*8 + 2*r + 1))
                ks = 2*nb + hh
                out.append(([], 'buffer_store_dwordx4 %s, v%d, s[16:19], s%d offen offset:%d %s' % (vr(t, 4), 8 if ks < 4 else 14, 36+mb, (ks % 4)*1024, ST), ('S', 0, 0)))
        return out
    g.mainloop(epi)
    stamp(k, 3)

def reduce8(k, v, t):
    k('s_nop 1')
    k('v_add_f32_dpp v%d, v%d, v%d row_ror:8 row_mask:0xf bank_mask:0xf' % (v, v, v))
    k('v_mov_b32 v%d, v%d' % (t, v))
    k('s_nop 1')
    k('v_permlane16_swap_b32 v%d, v%d' % (v, t))
    k('s_nop 1')
    k('v_add_f32 v%d, v%d, v%d' % (v, v, t))
    k('v_mov_b32 v%d, v%d' % (t, v))
    k('s_nop 1')
    k('v_permlane32_swap_b32 v%d, v%d' % (v, t))
    k('s_nop 1')
    k('v_add_f32 v%d, v%d, v%d' % (v, v, t))

def gemv_load(k, nj, s_row0, s_col0bytes, AD=160, C=168, LDB=96, emit=True):
    o = []
    o.append('v_and_b32 v%d, 7, v0' % AD)
    o.append('v_lshrrev_b32 v%d, 3, v0' % (AD+1))
    o.append('v_mul_u32_u24 v%d, %d, v%d' % (AD+2, nj*12288, AD+1))
    o.append('v_lshl_add_u32 v%d, v%d, 4, v%d' % (AD+2, AD, AD+2))
    o.append('v_mul_u32_u24 v%d, %d, v%d' % (AD+3, nj*2, AD+1))
    o.append('s_mul_i32 s36, s%d, 12288' % s_row0)
    o.append('s_add_u32 s36, s36, s%d' % s_col0bytes)
    o.append('s_lshl_b32 s37, s%d, 1' % s_row0)
    for i in range(nj // 8): o.append('buffer_load_dwordx4 %s, v%d, s[12:15], s37 offen offset:%d' % (vr(C+4*i, 4), AD+3, 16*i))
    for j in range(nj):
        o.append('buffer_load_dwordx4 %s, v%d, s[8:11], s36 offen' % (vr(LDB+4*j, 4), AD+2))
        if j < nj-1: o.append('s_add_u32 s36, s36, 12288')
    if emit:
        for x in o: k(x)
    return o
def gemv_compute(k, nj, s_outoff, out_srd, L0, after, B=160, C=168, LDB=96):
    S = B+16; T = B+32; A = B+48
    k('v_and_b32 v%d, 7, v0' % B)
    k('v_lshrrev_b32 v%d, 3, v0' % (B+1))
    k('s_waitcnt vmcnt(%d)' % (nj + after))
    if OPT.get('p0st') and L0 == LN_LDS: stamp(k, 2)
    for i in range(nj//2):
        k('v_lshlrev_b32 v%d, 16, v%d' % (S+2*i, C+i))
        k('v_and_b32 v%d, 0xffff0000, v%d' % (S+1+2*i, C+i))
    for i in range(nj): k('v_mul_f32 v%d, 0x%x, v%d' % (T+i, f2u(-LOG2E), S+i))
    for i in range(nj): k('v_exp_f32 v%d, v%d' % (T+i, T+i))
    k('s_nop 0')
    for i in range(nj): k('v_add_f32 v%d, 1.0, v%d' % (T+i, T+i))
    for i in range(nj): k('v_rcp_f32 v%d, v%d' % (T+i, T+i))
    k('s_nop 0')
    for i in range(nj): k('v_mul_f32 v%d, v%d, v%d' % (S+i, S+i, T+i))
    for i in range(nj//2): k('v_cvt_pk_bf16_f32 v%d, v%d, v%d' % (T+i, S+2*i, S+1+2*i))
    for i in range(nj//2):
        k('v_lshlrev_b32 v%d, 16, v%d' % (S+2*i, T+i))
        k('v_and_b32 v%d, 0xffff0000, v%d' % (S+1+2*i, T+i))
    for i in range(8): k('v_mov_b32 v%d, 0' % (A+i))
    U = B+56
    for j in range(nj):
        k('s_waitcnt vmcnt(%d)' % (nj-1-j + after))
        for i in range(4):
            k('v_lshlrev_b32 v%d, 16, v%d' % (U+2*(i%2), LDB+4*j+i))
            k('v_and_b32 v%d, 0xffff0000, v%d' % (U+1+2*(i%2), LDB+4*j+i))
            k('v_fmac_f32 v%d, v%d, v%d' % (A+2*i, U+2*(i%2), S+j))
            k('v_fmac_f32 v%d, v%d, v%d' % (A+2*i+1, U+1+2*(i%2), S+j))
    if OPT.get('p0st') and L0 == LN_LDS: stamp(k, 3)
    k('v_lshlrev_b32 v%d, 8, v%d' % (B+4, B+1))
    k('v_lshl_add_u32 v%d, v%d, 5, v%d' % (B+4, B, B+4))
    k('v_add_u32 v%d, %d, v%d' % (B+4, L0, B+4))
    k('ds_write_b128 v%d, %s' % (B+4, vr(A, 4)))
    k('ds_write_b128 v%d, %s offset:16' % (B+4, vr(A+4, 4)))
    k('s_waitcnt lgkmcnt(0)')
    k('s_barrier')
    lab = k.L('skip')
    k('s_cmp_lg_u32 s26, 0')
    k('s_cbranch_scc1 %s' % lab)
    k('v_lshlrev_b32 v%d, 2, v1' % (B+6))
    k('v_add_u32 v%d, %d, v%d' % (B+4, L0, B+6))
    for h in range(4):
        for i in range(8): k('ds_read_b32 v%d, v%d offset:%d' % (LDB+8*h+i, B+4, (8*h+i)*256))
        if h in (1, 2): k('s_waitcnt lgkmcnt(7)')
    k('s_waitcnt lgkmcnt(0)')
    for i in range(16): k('v_add_f32 v%d, v%d, v%d' % (LDB+i, LDB+i, LDB+16+i))
    for st in (8, 4, 2, 1):
        for i in range(st): k('v_add_f32 v%d, v%d, v%d' % (LDB+i, LDB+i, LDB+st+i))
    k('buffer_store_dword v%d, v%d, s[%d:%d], s%d offen %s' % (LDB, B+6, out_srd, out_srd+3, s_outoff, ST))
    k.label(lab)

def kv_part(k, mid=None, nmid=1):
    B = 160
    k('s_sub_u32 s50, s2, 128')
    k('s_lshl_b32 s50, s50, 2')
    k('s_add_u32 s50, s50, s26')
    srd(k, 8, PK, 0x200000)
    srd(k, 12, PV, 0x200000)
    srd(k, 16, PWS, 0x100000, WS_KF)
    k('s_lshr_b32 s51, s50, 7')
    k('s_bfe_u32 s52, s50, 0x40003')
    k('s_lshl_b32 s54, s51, 19')
    k('s_lshl_b32 s55, s52, 13')
    k('s_add_u32 s54, s54, s55')
    k('s_add_u32 s54, s54, 0x60000')
    k('v_lshrrev_b32 v%d, 3, v1' % B)
    k('v_and_b32 v%d, 7, v1' % (B+1))
    k('v_lshlrev_b32 v%d, 8, v%d' % (B+2, B))
    k('v_lshl_add_u32 v%d, v%d, 4, v%d' % (B+2, B+1, B+2))
    k('s_bfe_u32 s53, s50, 0x20001')
    k('s_and_b32 s56, s50, 1')
    k('s_lshl_b32 s55, s53, 11')
    k('s_add_u32 s55, s55, s54')
    k('s_lshl_b32 s57, s56, 7')
    k('s_add_u32 s55, s55, s57')
    k('buffer_load_dwordx4 %s, v%d, s[8:11], s55 offen' % (vr(B+8, 4), B+2))
    k('v_lshrrev_b32 v%d, 2, v1' % (B+3))
    k('v_lshlrev_b32 v%d, 8, v%d' % (B+3, B+3))
    k('v_and_b32 v%d, 3, v1' % (B+4))
    k('v_lshl_add_u32 v%d, v%d, 4, v%d' % (B+3, B+4, B+3))
    k('s_bfe_u32 s55, s50, 0x10002')
    k('s_lshl_b32 s55, s55, 12')
    k('s_and_b32 s57, s50, 3')
    k('s_lshl_b32 s57, s57, 6')
    k('s_add_u32 s55, s55, s57')
    k('s_add_u32 s55, s55, s54')
    k('s_mul_i32 s57, s26, 4608')
    k('s_add_u32 s57, s57, %d' % (TR_LDS + 2304))
    k('s_mov_b32 m0, s57')
    k('s_nop 0')
    k('buffer_load_dwordx4 v%d, s[12:15], s55 offen lds' % (B+3))
    if mid:
        k('s_mov_b32 s58, s16'); k('s_mov_b32 s59, s17'); k('s_mov_b32 s60, s18')
        mid()
        k('s_mov_b32 s16, s58'); k('s_mov_b32 s17, s59'); k('s_mov_b32 s18, s60')
    k('v_lshrrev_b32 v%d, 5, v1' % (B+4))
    k('v_lshlrev_b32 v%d, 2, v%d' % (B+4, B+4))
    k('v_bfe_u32 v%d, v1, 2, 2' % (B+5))
    k('v_add_u32 v%d, v%d, v%d' % (B+4, B+4, B+5))
    k('v_lshlrev_b32 v%d, 6, v%d' % (B+4, B+4))
    k('v_bfe_u32 v%d, v1, 4, 1' % (B+5))
    k('v_lshl_add_u32 v%d, v%d, 5, v%d' % (B+4, B+5, B+4))
    k('v_and_b32 v%d, 1, v1' % (B+5))
    k('v_lshl_add_u32 v%d, v%d, 4, v%d' % (B+4, B+5, B+4))
    k('v_bfe_u32 v%d, v1, 1, 1' % (B+5))
    k('v_lshl_add_u32 v%d, v%d, 3, v%d' % (B+4, B+5, B+4))
    k('v_add_u32 v%d, s57, v%d' % (B+4, B+4))
    k('v_lshrrev_b32 v%d, 4, v1' % (B+6))
    k('v_lshlrev_b32 v%d, 10, v%d' % (B+6, B+6))
    k('v_bfe_u32 v%d, v1, 3, 1' % (B+5))
    k('v_lshl_add_u32 v%d, v%d, 9, v%d' % (B+6, B+5, B+6))
    k('v_lshl_add_u32 v%d, v%d, 4, v%d' % (B+6, B+1, B+6))
    k('s_lshr_b32 s55, s50, 3')
    k('s_lshl_b32 s55, s55, 13')
    k('s_lshl_b32 s57, s56, 12')
    k('s_add_u32 s55, s55, s57')
    k('s_lshl_b32 s57, s53, 7')
    k('s_add_u32 s55, s55, s57')
    k('s_waitcnt vmcnt(%d)' % (1 + nmid if mid else 1))
    tr8x8(k, B+8, 1, 240, 241)
    k('buffer_store_dwordx4 %s, v%d, s[16:19], s55 offen %s' % (vr(B+8, 4), B+6, ST))
    k('s_waitcnt vmcnt(%d)' % (1 + nmid if mid else 1))
    k('ds_read_b64_tr_b16 %s, v%d' % (vr(B+12, 2), B+4))
    k('ds_read_b64_tr_b16 %s, v%d offset:512' % (vr(B+14, 2), B+4))
    k('v_lshlrev_b32 v%d, 4, v1' % (B+5))
    k('s_lshl_b32 s55, s50, 10')
    k('s_add_u32 s55, s55, 0x%x' % (WS_VF - WS_KF))
    k('s_waitcnt lgkmcnt(0)')
    k('buffer_store_dwordx4 %s, v%d, s[16:19], s55 offen %s' % (vr(B+12, 4), B+5, ST))

def ln_addr(k):
    k('v_lshrrev_b32 v2, 6, v0')
    k('v_and_b32 v3, 7, v1')
    k('v_lshrrev_b32 v4, 3, v1')
    k('v_lshrrev_b32 v5, 1, v4')
    k('v_lshlrev_b32 v5, 10, v5')
    k('v_and_b32 v6, 1, v4')
    k('v_lshl_add_u32 v5, v6, 9, v5')
    k('v_lshl_add_u32 v5, v3, 4, v5')
    k('v_lshl_add_u32 v5, v2, 14, v5')
    k('v_lshlrev_b32 v6, 11, v4')
    k('v_lshl_add_u32 v6, v3, 4, v6')
    k('v_lshl_add_u32 v6, v2, 9, v6')
    tr_addr(k, 240, 241)
    k('v_lshlrev_b32 v7, 4, v0')
    k('v_lshlrev_b32 v8, 10, v2')
    k('v_lshl_add_u32 v8, v4, 5, v8')
    k('v_add_u32 v8, %d, v8' % LN_LDS)
    k('v_add_u32 v11, %d, v7' % LN_LDS)
    k('v_lshlrev_b32 v9, 4, v3')
    k('v_add_u32 v9, %d, v9' % (LN_LDS + 12288))
    k('v_lshl_add_u32 v10, v2, 2, v9')
    k('s_lshl_b32 s45, s24, 5')
    k('s_lshl_b32 s46, s22, 3')
    k('s_add_u32 s45, s45, s46')
    k('s_add_u32 s45, s45, s25')
    k('s_lshr_b32 s40, s45, 2')
    k('s_lshl_b32 s40, s40, 16')
    k('s_and_b32 s46, s45, 3')
    k('s_lshl_b32 s46, s46, 7')
    k('s_add_u32 s40, s40, s46')
    for j in range(1, 4): k('s_add_u32 s%d, s40, %d' % (40+j, j*4096))
    k('s_lshl_b32 s44, s45, 14')

TR_LDS = 126976
def tr_addr(k, vw, vrd):
    k('v_lshrrev_b32 v%d, 3, v1' % vw)
    k('v_mul_u32_u24 v%d, 144, v%d' % (vw, vw))
    k('v_and_b32 v%d, 7, v1' % vrd)
    k('v_lshl_add_u32 v%d, v%d, 4, v%d' % (vw, vrd, vw))
    k('v_mul_u32_u24 v%d, 144, v%d' % (vrd, vrd))
    k('v_lshrrev_b32 v29, 3, v1')
    k('v_lshl_add_u32 v%d, v29, 4, v%d' % (vrd, vrd))
    k('s_mul_i32 s27, s26, 4608')
    k('s_add_u32 s27, s27, %d' % TR_LDS)
    k('v_add_u32 v%d, s27, v%d' % (vw, vw))
    k('v_add_u32 v%d, s27, v%d' % (vrd, vrd))
def tr8x8(k, base, n, vw, vrd):
    for j in range(n): k('ds_write_b128 v%d, %s offset:%d' % (vw, vr(base + 4*j, 4), j*1152))
    k('s_waitcnt lgkmcnt(0)')
    for j in range(n): k('ds_read_b128 %s, v%d offset:%d' % (vr(base + 4*j, 4), vrd, j*1152))
    k('s_waitcnt lgkmcnt(0)')

X_ = 32
RAW = 64
def ln_unpack(k, src):
    for j in range(4):
        for i in range(4):
            k('v_lshlrev_b32 v%d, 16, v%d' % (X_ + 8*j + 2*i, src + 4*j + i))
            k('v_and_b32 v%d, 0xffff0000, v%d' % (X_ + 8*j + 2*i + 1, src + 4*j + i))
def ln_stats(k):
    RED = 0
    k('v_add_f32 v24, v%d, v%d' % (X_, X_+1))
    k('v_add_f32 v25, v%d, v%d' % (X_+2, X_+3))
    for i in range(4, 32, 2):
        k('v_add_f32 v24, v24, v%d' % (X_+i))
        k('v_add_f32 v25, v25, v%d' % (X_+i+1))
    k('v_add_f32 v24, v24, v25')
    reduce8(k, 24, 25)
    k('ds_write_b32 v10, v24 offset:%d' % RED)
    k('s_waitcnt lgkmcnt(0)')
    k('s_barrier')
    k('ds_read_b128 v[24:27], v9 offset:%d' % RED)
    k('s_waitcnt lgkmcnt(0)')
    k('v_add_f32 v24, v24, v25')
    k('v_add_f32 v26, v26, v27')
    k('v_add_f32 v24, v24, v26')
    k('v_mul_f32 v24, 0x%x, v24' % f2u(1.0/1024))
    for i in range(32): k('v_sub_f32 v%d, v%d, v24' % (X_+i, X_+i))
    k('v_mul_f32 v24, v%d, v%d' % (X_, X_))
    k('v_mul_f32 v25, v%d, v%d' % (X_+1, X_+1))
    for i in range(2, 32, 2):
        k('v_fmac_f32 v24, v%d, v%d' % (X_+i, X_+i))
        k('v_fmac_f32 v25, v%d, v%d' % (X_+i+1, X_+i+1))
    k('v_add_f32 v24, v24, v25')
    reduce8(k, 24, 25)
    k('ds_write_b32 v10, v24 offset:%d' % (RED + 128))
    k('s_waitcnt lgkmcnt(0)')
    k('s_barrier')
    k('ds_read_b128 v[24:27], v9 offset:%d' % (RED + 128))
    k('s_waitcnt lgkmcnt(0)')
    k('v_add_f32 v24, v24, v25')
    k('v_add_f32 v26, v26, v27')
    k('v_add_f32 v24, v24, v26')
    k('v_mov_b32 v25, 0x%x' % f2u(1e-5))
    k('v_fmac_f32 v25, 0x%x, v24' % f2u(1.0/1024))
    k('v_rsq_f32 v28, v25')
    k('s_nop 0')
    for i in range(32): k('v_mul_f32 v%d, v%d, v28' % (X_+i, X_+i))
def mod_loads(k, vecs, npart, base_off, MV, pstride):
    srd(k, 8, PWS, 0x10000, base_off or None)
    for n, (c, isscale) in enumerate(vecs):
        for p in range(npart):
            k('s_mov_b32 s27, %d' % (p*pstride + c*4096))
            k('buffer_load_dwordx4 %s, v7, s[8:11], s27 offen %s' % (vr(MV + (n*npart + p)*4, 4), LD()))
def mod_to_lds(k, vecs, npart, MV, mulc=None):
    for n, (c, isscale) in enumerate(vecs):
        b = MV + n*npart*4
        for p in range(1, npart):
            for i in range(4): k('v_add_f32 v%d, v%d, v%d' % (b+i, b+i, b+4*p+i))
        def rnd():
            k('v_cvt_pk_bf16_f32 v%d, v%d, v%d' % (b+4, b, b+1))
            k('v_cvt_pk_bf16_f32 v%d, v%d, v%d' % (b+5, b+2, b+3))
            k('v_lshlrev_b32 v%d, 16, v%d' % (b, b+4))
            k('v_and_b32 v%d, 0xffff0000, v%d' % (b+1, b+4))
            k('v_lshlrev_b32 v%d, 16, v%d' % (b+2, b+5))
            k('v_and_b32 v%d, 0xffff0000, v%d' % (b+3, b+5))
        rnd()
        if isscale:
            for i in range(4): k('v_add_f32 v%d, 1.0, v%d' % (b+i, b+i))
            rnd()
        if mulc:
            for i in range(4): k('v_mul_f32 v%d, 0x%x, v%d' % (b+i, mulc, b+i))
        k('ds_write_b128 v11, %s offset:%d' % (vr(b, 4), n*4096))
def ln_apply_store(k, sh, sc, hoff):
    srd(k, 16, PWS, 0x400000, hoff)
    for j in range(4):
        k('ds_read_b128 v[16:19], v8 offset:%d' % (sc*4096 + j*256))
        k('ds_read_b128 v[20:23], v8 offset:%d' % (sc*4096 + j*256 + 16))
        k('ds_read_b128 v[96:99], v8 offset:%d' % (sh*4096 + j*256))
        k('ds_read_b128 v[100:103], v8 offset:%d' % (sh*4096 + j*256 + 16))
        k('s_waitcnt lgkmcnt(0)')
        for i in range(8): k('v_fma_f32 v%d, v%d, v%d, v%d' % (X_ + 8*j + i, X_ + 8*j + i, 16+i, 96+i))
        for i in range(4): k('v_cvt_pk_bf16_f32 v%d, v%d, v%d' % (104 + 4*j + i, X_ + 8*j + 2*i, X_ + 8*j + 2*i + 1))
        k('buffer_store_dwordx4 %s, v5, s[16:19], s%d offen %s' % (vr(104 + 4*j, 4), 40+j, ST))

def phase_p0(k, name):
    stamp_rt0(k, 'p0')
    stamp(k, 0)
    def xloads():
        ln_addr(k)
        srd(k, 16, PX, 0x400000)
        for j in range(4): k('buffer_load_dwordx4 %s, v6, s[16:19], s44 offen offset:%d' % (vr(RAW + 4*j, 4), j*128))
    def s1addr():
        k('s_mov_b32 s6, s%d' % PDBG)
        k('s_mov_b32 s7, s%d' % (PDBG+1))
    def kvaddr():
        k('s_add_u32 s6, s%d, 4' % PDBG)
        k('s_addc_u32 s7, s%d, 0' % (PDBG+1))
    def wq_touch():
        lab = k.L('wq')
        k('s_cmp_eq_u32 s26, 0')
        k('s_cbranch_scc1 %s' % lab)
        srd(k, 16, PWQ, 1024*4096*2)
        k('v_lshrrev_b32 v15, 4, v0')
        k('v_and_b32 v12, 15, v0')
        k('v_lshlrev_b32 v15, 13, v15')
        k('v_lshl_add_u32 v15, v12, 7, v15')
        k('s_lshl_b32 s36, s21, 17')
        k('s_lshl_b32 s37, s22, 11')
        k('s_add_u32 s36, s36, s37')
        k('s_lshl_b32 s37, s23, 22')
        k('s_add_u32 s36, s36, s37')
        k('buffer_load_dword v13, v15, s[16:19], s36 offen')
        k('s_cmp_lg_u32 s26, 1')
        k('s_cbranch_scc1 %s' % lab)
        k('v_subrev_u32 v15, 0x8000, v15')
        k('buffer_load_dword v14, v15, s[16:19], s36 offen')
        k.label(lab)
    k('s_cmp_ge_u32 s2, 128')
    k('s_cbranch_scc1 %s_kv' % name)
    srd(k, 8, PWMOD, 1024*6144*2)
    srd(k, 12, PC_, 2048)
    k('s_and_b32 s38, s2, 31')
    k('s_lshr_b32 s39, s2, 5')
    k('s_lshl_b32 s47, s39, 8')
    k('s_lshl_b32 s48, s38, 7')
    k('s_lshl_b32 s49, s39, 13')
    k('s_lshl_b32 s38, s38, 8')
    k('s_add_u32 s49, s49, s38')
    gemv_load(k, 8, 47, 48)
    xloads()
    if OPT.get('p0st'): stamp(k, 1)
    if MEGA:
        lab = k.L('z')
        k('s_or_b32 s27, s2, s26')
        k('s_cmp_lg_u32 s27, 0')
        k('s_cbranch_scc1 %s' % lab)
        srd(k, 16, PWS, 192*128, WS_CNT)
        k('v_lshlrev_b32 v16, 7, v1')
        k('v_mov_b32 v17, 0')
        for z in range(3): k('buffer_store_dword v17, v16, s[16:19], 0 offen offset:0 %s' % ST) if z == 0 else (k('v_add_u32 v%d, %d, v16' % (18+z, 8192*z)), k('buffer_store_dword v17, v%d, s[16:19], 0 offen %s' % (18+z, ST)))
        k('s_waitcnt vmcnt(0)')
        k.label(lab)
    srd(k, 16, PWS, 0x8000, WS_MOD or None)
    gemv_compute(k, 8, 49, 16, LN_LDS, 4)
    if not OPT.get('p0st'): stamp(k, 1)
    arrive(k, s1addr, count=128, only_w0=True, flag_off=128)
    lab = k.L('w0'); k('s_cmp_eq_u32 s26, 0'); k('s_cbranch_scc1 %s' % lab); k('s_waitcnt vmcnt(0)'); k.label(lab)
    wq_touch()
    if OPT.get('p0st'): stamp(k, 4)
    k('s_branch %s_pf' % name)
    k.label(name + '_kv')
    kv_part(k, xloads, 4)
    if not MEGA:
        modb_addr(k, 128)
        gemv_load(k, 16, 47, 48)
        srd(k, 16, PWS, 0x8000, WS_MODB)
        gemv_compute(k, 16, 49, 16, LN_LDS, 0)
    stamp(k, 1)
    arrive(k, kvaddr)
    wq_touch()
    k.label(name + '_pf')
    tr8x8(k, RAW, 4, 240, 241)
    ln_unpack(k, RAW)
    ln_stats(k)
    if not OPT.get('p0st'): stamp(k, 2)

def modb_addr(k, first):
    srd(k, 8, PWMOD, 1024*6144*2)
    srd(k, 12, PC_, 2048)
    k('s_sub_u32 s38, s2, %d' % first)
    k('s_lshr_b32 s39, s38, 6')
    k('s_and_b32 s38, s38, 63')
    k('s_lshl_b32 s47, s39, 9')
    k('s_lshl_b32 s48, s38, 7')
    k('s_add_u32 s48, s48, 4096')
    k('s_lshl_b32 s49, s39, 14')
    k('s_lshl_b32 s38, s38, 8')
    k('s_add_u32 s49, s49, s38')

def phase_ln1b(k):
    def s1addr():
        k('s_mov_b32 s6, s%d' % PDBG)
        k('s_mov_b32 s7, s%d' % (PDBG+1))
    waitfor(k, s1addr, 1, off=128)
    if not OPT.get('p0st'): stamp(k, 3)
    vecs = [(0, False), (1, True)]
    mod_loads(k, vecs, 4, WS_MOD, 96, 8192)
    k('s_waitcnt vmcnt(0)')
    mod_to_lds(k, vecs, 4, 96, f2u(128**-0.5 * LOG2E))
    k('s_waitcnt lgkmcnt(0)')
    k('s_barrier')
    ln_apply_store(k, 0, 1, WS_H)
    def a():
        k('s_add_u32 s27, s24, %d' % C_S2); cnt_addr(k, 27)
    arrive(k, a, count=32, flag_off=128)
    if not OPT.get('p0st'): stamp(k, 4)
    stamp_flush(k, 'p0', 5)

def phase_ln2(k, mode):
    stamp_rt0(k, mode)
    stamp(k, 0)
    ln_addr(k)
    vecs = [(0, False), (1, False), (2, True)] if mode == 'ln2' else [(3, False)]
    MV = 144
    if MEGA and mode == 'ln2':
        def s1b():
            k('s_mov_b32 s6, s%d' % PDBG); k('s_mov_b32 s7, s%d' % (PDBG+1))
        waitfor(k, s1b, 256, off=8)
    NPB = 4 if MEGA else 2
    if NPB == 4: MV = 168
    mod_loads(k, vecs, NPB, WS_MODB, MV, 16384)
    if mode == 'ln2':
        srd(k, 12, PX, 0x400000)
        for j in range(4): k('buffer_load_dwordx4 %s, v6, s[12:15], s44 offen offset:%d' % (vr(RAW + 4*j, 4), j*128))
    k('s_waitcnt vmcnt(%d)' % (4 if mode == 'ln2' else 0))
    mod_to_lds(k, vecs, NPB, MV)
    def a():
        k('s_add_u32 s27, s24, %d' % (C_S4 if mode == 'ln2' else C_S7)); cnt_addr(k, 27)
    k('s_waitcnt lgkmcnt(0)')
    if MEGA: waitfor(k, a, 1, off=128)
    else: k('s_barrier')
    stamp(k, 1)
    srd(k, 12, PWS, 0x1000000, WS_P1 if mode == 'ln2' else WS_P2)
    for j in range(4):
        for q in range(4):
            k('s_add_u32 s27, s%d, 0x%x' % (40+j, q*0x400000))
            k('buffer_load_dwordx4 %s, v5, s[12:15], s27 offen %s' % (vr(RAW + 16 + q*16 + 4*j, 4), LD()))
    if mode == 'final':
        srd(k, 8, PWS, 0x400000, WS_X1)
        for j in range(4): k('buffer_load_dwordx4 %s, v5, s[8:11], s%d offen %s' % (vr(RAW + 4*j, 4), 40+j, LD()))
        k('s_waitcnt vmcnt(0)')
        ln_unpack(k, RAW)
    else:
        k('s_waitcnt vmcnt(16)')
        tr8x8(k, RAW, 4, 240, 241)
        ln_unpack(k, RAW)
    for j in range(4):
        k('ds_read_b128 v[16:19], v8 offset:%d' % (j*256))
        k('ds_read_b128 v[20:23], v8 offset:%d' % (j*256 + 16))
        if mode == 'ln2': k('s_waitcnt vmcnt(%d)' % (12 - 4*j))
        for i in range(4):
            k('v_lshlrev_b32 v24, 16, v%d' % (RAW + 16 + 4*j + i))
            k('v_and_b32 v25, 0xffff0000, v%d' % (RAW + 16 + 4*j + i))
            for q in range(1, 4):
                k('v_lshlrev_b32 v26, 16, v%d' % (RAW + 16 + q*16 + 4*j + i))
                k('v_and_b32 v27, 0xffff0000, v%d' % (RAW + 16 + q*16 + 4*j + i))
                k('v_add_f32 v24, v24, v26')
                k('v_add_f32 v25, v25, v27')
            if i == 0: k('s_waitcnt lgkmcnt(0)')
            k('v_fmac_f32 v%d, v24, v%d' % (X_ + 8*j + 2*i, 16 + 2*i))
            k('v_fmac_f32 v%d, v25, v%d' % (X_ + 8*j + 2*i + 1, 17 + 2*i))
    for j in range(4):
        for i in range(4):
            k('v_cvt_pk_bf16_f32 v%d, v%d, v%d' % (RAW + 4*j + i, X_ + 8*j + 2*i, X_ + 8*j + 2*i + 1))
    if mode == 'final':
        srd(k, 12, POUT, 0x400000)
        tr8x8(k, RAW, 4, 240, 241)
        for j in range(4): k('buffer_store_dwordx4 %s, v6, s[12:15], s44 offen offset:%d' % (vr(RAW + 4*j, 4), j*128))
    else:
        srd(k, 16, PWS, 0x400000, WS_X1)
        for j in range(4): k('buffer_store_dwordx4 %s, v5, s[16:19], s%d offen %s' % (vr(RAW + 4*j, 4), 40+j, ST))
        ln_unpack(k, RAW)
        ln_stats(k)
        ln_apply_store(k, 1, 2, WS_H2)
        def a5():
            k('s_add_u32 s27, s24, %d' % C_S5); cnt_addr(k, 27)
        arrive(k, a5, count=32, flag_off=128)
    stamp(k, 2)
    stamp_flush(k, mode, 3)

def attn_setup(k):
    vL = [4, 5, 6, 7]; vX = [8, 9]; vW = [10, 11, 12, 13]
    ldw = 8192
    k('s_lshl_b32 s35, s22, 3')
    k('s_add_u32 s35, s35, s25')
    k('s_mov_b32 s62, s35')
    lds_addr_128(k, vL, tmp=40)
    k('v_lshlrev_b32 v8, 4, v1')
    k('v_add_u32 v9, 0x10000, v8')
    k('s_lshl_b32 s28, s62, 8')
    w128_voffsets(k, vW, ldw, 28, 40)
    srd(k, 8, PWS, 0x400000, WS_H)
    srd(k, 12, PWQ, 0x800000)
    k('s_lshl_b32 s27, s24, 3')
    k('s_lshl_b32 s28, s26, 1')
    k('s_add_u32 s34, s27, s28')
    k('s_lshl_b32 s30, s34, 16')
    k('s_sub_u32 s30, s30, 4096')
    k('s_mov_b32 s31, 0x%x' % ((-64*ldw) & 0xffffffff))
    k('s_lshl_b32 s32, s26, 12')
    return vL, vX, vW, ldw

def phase_attn(k, name, next_prefetch=None):
    stamp_rt0(k, 'attn')
    if not OPT.get('tailst'): stamp(k, 0)
    vL, vX, vW, ldw = attn_setup(k)
    KSLOT = [65536, 81920, 98304, 0, 16384]
    VSLOT = [114688, 131072, 147456, 32768, 49152]
    FLAG = 33792
    QF = lambda mb, ks: 64 + (mb*8 + ks)*4
    SB = lambda par, mb: 128 + (par*2 + mb)*16
    PB = lambda par, mb, kk: 192 + ((par*2 + mb)*2 + kk)*4
    CB = lambda mb: 224 + mb*16
    def OA(db, mb):
        i = db*2 + mb
        return i*16 if i < 6 else 192 + (i-6)*16
    KF = lambda ks: 128 + ks*4
    VF = lambda q: 160 + q*4
    LS = lambda mb, p: 33 + mb*2 + p
    MG = lambda mb: 37 + mb
    KT = (36, 37, 38, 39, 40); VT = (41, 42, 43, 29, 35)
    TT = (8, 9, 10, 12, 13, 14, 54, 55, 56, 57, 61, 63)
    kvflag = LD()
    def kdma(soff, pre0, tagid):
        return [(pre0 if i == 0 else [], 'buffer_load_dwordx4 v28, s[44:47], s%d offen offset:%d %s lds' % (soff, i*1024, kvflag), ('K', tagid, i)) for i in range(4)]
    def vdma(soff, pre0, tagid):
        return [(pre0 if i == 0 else [], 'buffer_load_dwordx4 v28, s[48:51], s%d offen offset:%d %s lds' % (soff, i*1024, kvflag), ('V', tagid, i)) for i in range(4)]
    def dma_list(lst):
        ops = []
        for (kind, s_) in lst:
            if kind == 'K': ops += kdma(52, ['s_mov_b32 s52, %d' % (s_*16384), 's_add_u32 m0, s32, %d' % KSLOT[s_ % 5]], s_)
            else: ops += vdma(53, ['s_mov_b32 s53, %d' % (s_*16384), 's_add_u32 m0, s32, %d' % VSLOT[s_ % 5]], s_)
        return ops
    def initial_dmas(): return dma_list([('K', 0), ('V', 0), ('K', 1), ('V', 1), ('K', 2), ('V', 2)])
    ini = initial_dmas()
    zero_list = ['v_accvgpr_write_b32 a%d, 0' % r for r in list(range(192, 224)) + list(range(0, 96))]
    def extra(t, j):
        out = []
        order = [(12, 3)] + [(tt, jj) for tt in (13, 14, 15) for jj in range(4)]
        if (t, j) in order:
            p = order.index((t, j))
            out += ini[(p*len(ini))//13:((p+1)*len(ini))//13]
        if t in (12, 13, 14, 15):
            z = zero_list[(t-12)*32:(t-11)*32]
            out += z[j*8:(j+1)*8]
        return out
    g = Gemm(k, 4, 16, acc=128, xr=0, wf=128, vX=vX, vW=vW, sXsrd=8, sWsrd=12, sXoff=30, sWoff=31, sM0=32, sCnt=33,
             stage_bytes=16384, ldw_step=64*ldw, nW=4,
             lds_imm=lambda buf, j, nb, sec: (vL[nb], buf*16384 + j*4096 + sec*1024), extra=extra, xflag=LD())
    if MEGA: g.prologue_w()
    k('s_lshl_b32 s27, s26, 12')
    k('v_add_u32 v28, s27, v8')
    k('v_add_u32 v16, %d, v8' % KSLOT[0])
    k('v_add_u32 v17, %d, v8' % VSLOT[0])
    k('v_lshlrev_b32 v18, 7, v1')
    k('s_lshl_b32 s27, s26, 13')
    k('v_add_u32 v18, s27, v18')
    k('s_lshl_b32 s27, s22, 17')
    k('s_add_u32 s28, s27, 0x%x' % WS_KF)
    srd_s(k, 44, PWS, 28, 0x20000)
    k('s_add_u32 s28, s27, 0x%x' % WS_VF)
    srd_s(k, 48, PWS, 28, 0x20000)
    k('v_mov_b32 v%d, 0xff800000' % MG(0))
    k('v_mov_b32 v%d, 0xff800000' % MG(1))
    k('s_mov_b32 s59, 0')
    if MEGA:
        def a():
            k('s_add_u32 s27, s24, %d' % C_S2); cnt_addr(k, 27)
        def kvw():
            k('s_mov_b32 s6, s%d' % PDBG); k('s_mov_b32 s7, s%d' % (PDBG+1))
        waitfor(k, kvw, 128, off=4)
        waitfor(k, a, 1, off=128)
        g.prologue_x()
    else:
        g.prologue_mixed()
    if not OPT.get('tailst'): stamp(k, 1)
    g.start()
    def epiQ(nb):
        out = []
        for mb in range(2):
            a = g.accr(nb, mb)
            for hh in range(2):
                for r in range(4):
                    out.append('v_cvt_pk_bf16_f32 v%d, v%d, v%d' % (QF(mb, 2*nb+hh) + r, a + hh*8 + 2*r, a + hh*8 + 2*r + 1))
        return out
    g.mainloop(epiQ, tail=1)
    if not OPT.get('tailst'): stamp(k, 2)
    k('s_mul_i32 s27, s2, 28672')
    for n_, (lo, sz, add) in enumerate([(PWG, 1024*3584*2, 0), (PWG, 1024*3584*2, 4096), (PWU, 1024*3584*2, 0), (PWU, 1024*3584*2, 4096)]):
        k('s_add_u32 s28, s27, %d' % add)
        k('s_add_u32 s%d, s%d, s28' % (TT[3*n_], lo))
        k('s_addc_u32 s%d, s%d, 0' % (TT[3*n_+1], lo+1))
        k('s_sub_u32 s%d, 0x%x, s28' % (TT[3*n_+2], sz))
    n = k.vm_wait_n(lambda tg: tg[0] in 'KV' and tg[1] == 0)
    k('s_waitcnt vmcnt(%d)' % n)
    k.label(name + '_pro')
    k('s_barrier')
    for i_ in range(5):
        k('s_mov_b32 s%d, %d' % (KT[i_], KSLOT[i_]))
        k('s_mov_b32 s%d, %d' % (VT[i_], VSLOT[i_]))
    for ks in range(8): k('ds_read_b128 %s, v16 offset:%d' % (ar(KF(ks), 4), ks*1024))
    for mb in range(2):
        for p in range(2): k('v_mov_b32 v%d, 0' % LS(mb, p))
    k('s_waitcnt lgkmcnt(0)')
    for mb in range(2):
        for ks in range(8):
            d = vr(SB(0, mb), 16)
            k('%s %s, %s, %s, %s' % (MFMA, d, ar(KF(ks), 4), vr(QF(mb, ks), 4), '0' if ks == 0 else d))
    k('s_nop 3')
    k('s_nop 7')
    for mb in range(2):
        s0 = SB(0, mb); m = 40 + mb
        k('v_max3_f32 v%d, v%d, v%d, v%d' % (m, s0, s0+1, MG(mb)))
        for r in range(2, 16, 2): k('v_max3_f32 v%d, v%d, v%d, v%d' % (m, m, s0+r, s0+r+1))
    k('v_mov_b32 v42, v40')
    k('v_mov_b32 v43, v41')
    k('s_nop 1')
    k('v_permlane32_swap_b32 v40, v42')
    k('v_permlane32_swap_b32 v41, v43')
    k('s_nop 1')
    k('v_max_f32 v40, v40, v42')
    k('v_max_f32 v41, v41, v43')
    for mb in range(2):
        for r in range(16): k('v_sub_f32 v%d, 0, v%d' % (CB(mb) + r, 40+mb))
        for r in range(16): k('v_sub_f32 v%d, v%d, v%d' % (SB(0, mb) + r, SB(0, mb) + r, 40+mb))
    if not OPT.get('tailst'): stamp(k, 3)

    def pair_ops(par, p):
        mb, pp = p // 8, p % 8
        s0 = SB(par, mb); a, b = s0 + 2*pp, s0 + 2*pp + 1
        E = ['v_exp_f32 v%d, v%d' % (a, a), 'v_exp_f32 v%d, v%d' % (b, b)]
        A_ = ['v_add_f32 v%d, v%d, v%d' % (LS(mb, 0), LS(mb, 0), a), 'v_add_f32 v%d, v%d, v%d' % (LS(mb, 1), LS(mb, 1), b)]
        C_ = ['v_cvt_pk_bf16_f32 v%d, v%d, v%d' % (PB(par, mb, pp // 4) + pp % 4, a, b)]
        return E, A_, C_
    def iteration(par, do_pv, do_s, kread_kb, vread_kb, carry_in, gap_extra=None):
        gap_extra = gap_extra or {}
        mf = []
        if do_pv:
            for kk in range(2):
                for db in range(4):
                    for mb in range(2):
                        d = ar(OA(db, mb), 16)
                        mf.append('%s %s, %s, %s, %s' % (MFMA, d, ar(VF(kk*4+db), 4), vr(PB(1-par, mb, kk), 4), d))
        else: mf += [None]*16
        if do_s:
            for mb in range(2):
                for ks in range(8):
                    d = vr(SB(1-par, mb), 16)
                    mf.append('%s %s, %s, %s, %s' % (MFMA, d, ar(KF(ks), 4), vr(QF(mb, ks), 4), vr(CB(mb), 16) if ks == 0 else d))
        else: mf += [None]*16
        pre = {0: ['s_waitcnt lgkmcnt(2)'] if do_pv else []}
        nk = 8 if kread_kb is not None else 0
        if do_pv: pre[12] = ['s_waitcnt lgkmcnt(%d)' % (6 if nk else 0)]
        if do_s:
            pre[16] = ['s_waitcnt lgkmcnt(2)']
            pre[22] = ['s_waitcnt lgkmcnt(3)']
        for g_ in range(32):
            for x in pre.get(g_, []): k(x)
            if mf[g_]: k(mf[g_])
            p = g_ // 2
            if g_ % 2 == 0:
                for x in pair_ops(par, p)[0]: k(x)
                if p >= 1: k(pair_ops(par, p-1)[2][0])
                elif carry_in: k(pair_ops(1-par, 15)[2][0])
            else:
                if p >= 1:
                    for x in pair_ops(par, p-1)[1]: k(x)
                elif carry_in:
                    for x in pair_ops(1-par, 15)[1]: k(x)
                if g_ < 16:
                    if kread_kb is not None: k('ds_read_b128 %s, v16 offset:%d' % (ar(KF(p), 4), kread_kb*8192 + p*1024))
                else:
                    k('ds_read_b128 %s, v17 offset:%d' % (ar(VF(p-8), 4), vread_kb*8192 + (p-8)*1024))
            for x in gap_extra.get(g_, []):
                if isinstance(x, str): k(x)
                else:
                    pre_, ins, tag = x[0], x[1], x[2]
                    for p_ in pre_: k(p_)
                    if pre_ and 'm0' in pre_[-1]: k('s_nop 0')
                    k.vm(ins, tag)
                    if len(x) > 3:
                        for p_ in x[3]: k(p_)
    def touch(half):
        pre = ['s_mov_b32 s16, s%d' % TT[0], 's_mov_b32 s17, s%d' % TT[1], 's_mov_b32 s18, s%d' % TT[2], 's_mov_b32 s19, 0x20000']
        if half: pre += ['s_mov_b32 exec_hi, 0']
        return (pre, 'buffer_load_dword v19, v18, s[16:19], 0 offen', ('T', 0, 0), ['s_mov_b32 exec_hi, -1'] if half else [])
    sh = ['s_mov_b32 s%d, s%d' % (TT[n_], TT[n_+3]) for n_ in range(9)]
    g0 = {}
    for i_, op in enumerate(dma_list([('K', 3), ('V', 3), ('K', 4)])): g0.setdefault(1 + i_, []).append(op)
    g0.setdefault(20, []).extend(['s_mov_b32 s52, %d' % (5*16384), 's_mov_b32 s53, %d' % (4*16384)])
    iteration(0, False, True, 1, 0, False, g0)
    def rot(T): return ['s_mov_b32 s58, s%d' % T[0]] + ['s_mov_b32 s%d, s%d' % (T[i_], T[i_+1]) for i_ in range(4)] + ['s_mov_b32 s%d, s58' % T[4]]
    def trip(with_dma):
        ge = {0: ['v_add_u32 v16, s%d, v8' % KT[1]]}
        if with_dma:
            ge[0] += ['s_waitcnt vmcnt(20)', 's_barrier']
            dm = vdma(53, ['s_add_u32 m0, s32, s%d' % VT[4]], 'n') + kdma(52, ['s_add_u32 m0, s32, s%d' % KT[0]], 'n')
            for i_, op in enumerate(dm): ge.setdefault(2 + 2*i_, []).append(op)
            ge.setdefault(27, []).extend(['s_add_u32 s52, s52, 16384', 's_add_u32 s53, s53, 16384'])
            if not OPT.get('notouch'):
                ge.setdefault(19, []).append(touch(True))
                ge.setdefault(21, []).extend(sh[:5]); ge.setdefault(23, []).extend(sh[5:])
        elif not OPT.get('notouch'):
            ge.setdefault(2, []).append(touch(False))
            ge.setdefault(5, []).extend(sh[:5]); ge.setdefault(7, []).extend(sh[5:])
        ge.setdefault(29, []).extend(rot(KT))
        iteration(1, True, True, 0, 1, True, ge)
        ge2 = {2: ['v_add_u32 v17, s%d, v8' % VT[1]], 4: rot(VT), 31: ['s_sub_u32 s60, s60, 1', 's_cmp_lg_u32 s60, 0']}
        iteration(0, True, True, 1, 0, True, ge2)
    k('s_mov_b32 s60, 4')
    lab = k.L('aloop'); k.label(lab)
    trip(True)
    k('s_cbranch_scc1 %s' % lab)
    k('s_mul_i32 s27, s2, 28672')
    k('s_add_u32 s%d, s%d, s27' % (TT[0], PWD))
    k('s_addc_u32 s%d, s%d, 0' % (TT[1], PWD+1))
    k('s_sub_u32 s%d, 0x%x, s27' % (TT[2], 3584*1024*2))
    k('s_lshl_b32 s27, s20, 20')
    k('s_lshl_b32 s28, s21, 15')
    k('s_add_u32 s27, s27, s28')
    k('s_add_u32 s%d, s%d, s27' % (TT[3], PWO))
    k('s_addc_u32 s%d, s%d, 0' % (TT[4], PWO+1))
    k('s_mov_b32 s%d, 0x8000' % TT[5])
    for n_ in (2, 3):
        k('s_mov_b32 s%d, s%d' % (TT[3*n_], PWS))
        k('s_mov_b32 s%d, s%d' % (TT[3*n_+1], PWS+1))
        k('s_mov_b32 s%d, 0' % TT[3*n_+2])
    k('s_waitcnt vmcnt(%d)' % (0 if OPT.get('notouch') else 1))
    k('s_barrier')
    if MEGA: code_touch(k, name + '_L_oproj', name + '_L_gateup', 30)
    k('s_mov_b32 s60, 3')
    lab = k.L('bloop'); k.label(lab)
    trip(False)
    k('s_cbranch_scc1 %s' % lab)
    g15 = {}
    if MEGA:
        pre15 = ['s_mov_b32 s8, s%d' % PWMOD, 's_mov_b32 s9, s%d' % (PWMOD+1), 's_mov_b32 s10, 0x%x' % (1024*6144*2), 's_mov_b32 s11, 0x20000',
                 's_mov_b32 s12, s%d' % PC_, 's_mov_b32 s13, s%d' % (PC_+1), 's_mov_b32 s14, 2048', 's_mov_b32 s15, 0x20000',
                 's_lshr_b32 s52, s2, 6', 's_and_b32 s53, s2, 63', 's_lshl_b32 s54, s52, 14', 's_lshl_b32 s55, s53, 8', 's_add_u32 s54, s54, s55',
                 's_lshl_b32 s52, s52, 8', 's_lshl_b32 s53, s53, 7', 's_add_u32 s53, s53, 4096']
        gl = gemv_load(k, 8, 52, 53, AD=48, C=52, LDB=128, emit=False)
        items = pre15 + gl
        for i_, x in enumerate(items): g15.setdefault(2 + (i_ * 24) // len(items), []).append(x)
    iteration(1, True, False, None, 1, True, g15)
    for x in pair_ops(1, 15)[1] + pair_ops(1, 15)[2]: k(x)
    k('v_add_f32 v40, v%d, v%d' % (LS(0, 0), LS(0, 1)))
    k('v_add_f32 v41, v%d, v%d' % (LS(1, 0), LS(1, 1)))
    k('v_mov_b32 v42, v40')
    k('v_mov_b32 v43, v41')
    k('s_nop 1')
    k('v_permlane32_swap_b32 v40, v42')
    k('v_permlane32_swap_b32 v41, v43')
    k('s_nop 1')
    k('v_add_f32 v40, v40, v42')
    k('v_add_f32 v41, v41, v43')
    k('v_mov_b32 v43, 0x%x' % f2u(2.0**100))
    k('v_cmp_nlt_f32 vcc, v40, v43')
    k('v_cmp_nlt_f32 s[6:7], v41, v43')
    k('v_rcp_f32 v40, v40')
    k('v_rcp_f32 v41, v41')
    k('s_or_b64 vcc, vcc, s[6:7]')
    k('s_cmp_lg_u64 vcc, 0')
    k('s_cselect_b32 s58, 1, 0')
    k('v_mov_b32 v43, s58')
    k('s_lshl_b32 s58, s26, 2')
    k('s_add_u32 s58, s58, %d' % FLAG)
    k('v_mov_b32 v44, s58')
    k('ds_write_b32 v44, v43')
    srd(k, 16, PWS, 0x1000000, WS_O)
    k('s_lshl_b32 s27, s34, 8')
    k('s_lshl_b32 s28, s62, 3')
    k('s_add_u32 s27, s27, s28')
    k('s_lshl_b32 s60, s27, 10')
    k('s_add_u32 s61, s60, 0x40000')
    k('v_add_u32 v20, 4096, v8')
    k('s_waitcnt lgkmcnt(0)')
    stamp(k, 4 if not OPT.get('tailst') else 0)
    order = [(db, mb) for db in range(4) for mb in range(2)]
    def epiO(i):
        db, mb = order[i]; a = OA(db, mb); out = []
        for hh in range(2):
            t = (224, 240, 192)[(2*i + hh) % 3]
            out += ['v_accvgpr_read_b32 v%d, a%d' % (t+r, a + hh*8 + r) for r in range(8)]
            out += ['v_mul_f32 v%d, v%d, v%d' % (t+r, t+r, 40+mb) for r in range(8)]
            out += ['v_cvt_pk_bf16_f32 v%d, v%d, v%d' % (t+8+r, t+2*r, t+2*r+1) for r in range(4)]
            ks = 2*db + hh
            out.append('buffer_store_dwordx4 %s, v%d, s[16:19], s%d offen offset:%d %s' % (vr(t+8, 4), 8 if ks < 4 else 20, 60+mb, (ks % 4)*1024, '' if OPT.get('plainO') else ST))
        return out
    M = []
    for i, (db, mb) in enumerate(order):
        d = ar(OA(db, mb), 16)
        for kk in range(2):
            M.append('%s %s, %s, %s, %s' % (MFMA, d, ar(VF(kk*4+db), 4), vr(PB(1, mb, kk), 4), d))
    for idx in range(6): k(M[idx])
    k('s_nop 7')
    for i in range(8):
        for x in epiO(i): k(x)
        for idx in (2*i+6, 2*i+7):
            if idx < 16: k(M[idx])
    if OPT.get('tailst'): stamp(k, 1)
    k('s_barrier')
    k('v_mov_b32 v44, %d' % FLAG)
    k('ds_read_b128 v[44:47], v44')
    k('s_waitcnt lgkmcnt(0)')
    k('v_or3_b32 v44, v44, v45, v46')
    k('v_or_b32 v44, v44, v47')
    k('s_nop 0')
    k('v_readfirstlane_b32 s58, v44')
    k('s_nop 3')
    k('s_cmp_lg_u32 s59, 0')
    k('s_cbranch_scc1 %s_fin' % name)
    k('s_cmp_lg_u32 s58, 0')
    k('s_cbranch_scc1 %s_slow' % name)
    k.label(name + '_fin')
    def post():
        srd(k, 16, PWS, 0x10000, WS_MODB)
        gemv_compute(k, 8, 54, 16, 65536, 24, B=192, C=52, LDB=128)
        lab = k.L('mb')
        k('s_cmp_lg_u32 s26, 0')
        k('s_cbranch_scc1 %s' % lab)
        k('s_waitcnt vmcnt(0)')
        k('v_mov_b32 v2, 8')
        k('v_mov_b32 v3, 1')
        k('s_mov_b64 exec, 1')
        k('global_atomic_add v2, v3, s[%d:%d] sc1' % (PDBG, PDBG+1))
        k('s_mov_b64 exec, -1')
        k.label(lab)
    def slow():
        k.label(name + '_slow')
        k('s_mov_b32 s59, 1')
        k('s_lshl_b32 s27, s22, 17')
        k('s_add_u32 s28, s27, 0x%x' % WS_KF)
        srd_s(k, 44, PWS, 28, 0x20000)
        k('s_mov_b32 s58, 0')
        lab2 = k.L('slow'); k.label(lab2)
        k('s_add_u32 s27, s58, 4096')
        for ks in range(8): k('buffer_load_dwordx4 %s, v8, s[44:47], s%d offen offset:%d %s' % (ar(KF(ks), 4), 58 if ks < 4 else 27, (ks % 4)*1024, kvflag))
        k('s_waitcnt vmcnt(0)')
        for mb in range(2):
            for ks in range(8):
                d = vr(SB(0, mb), 16)
                k('%s %s, %s, %s, %s' % (MFMA, d, ar(KF(ks), 4), vr(QF(mb, ks), 4), '0' if ks == 0 else d))
        k('s_nop 7')
        k('s_nop 7')
        for mb in range(2):
            s0 = SB(0, mb)
            for r in range(0, 16, 2): k('v_max3_f32 v%d, v%d, v%d, v%d' % (MG(mb), MG(mb), s0+r, s0+r+1))
        k('s_add_u32 s58, s58, 8192')
        k('s_cmp_lt_u32 s58, 0x20000')
        k('s_cbranch_scc1 %s' % lab2)
        k('v_add_u32 v16, %d, v8' % KSLOT[0])
        k('v_add_u32 v17, %d, v8' % VSLOT[0])
        for db in range(4):
            for mb in range(2):
                for r in range(16): k('v_accvgpr_write_b32 a%d, 0' % (OA(db, mb) + r))
        for n_ in range(4):
            k('s_mov_b32 s%d, s%d' % (TT[3*n_], PWS))
            k('s_mov_b32 s%d, s%d' % (TT[3*n_+1], PWS+1))
            k('s_mov_b32 s%d, 0' % TT[3*n_+2])
        k('s_barrier')
        for pre, ins, tag in initial_dmas():
            for p_ in pre: k(p_)
            if pre: k('s_nop 0')
            k(ins)
        k('s_waitcnt vmcnt(0)')
        k('s_branch %s_pro' % name)
    return slow, post

GU_STG = 28928; GU_UP = 14464
def gateup_setup(k, init_state=True):
    vL = [4, 5]; vX = [8, 9]; vW = [10, 11, 12, 13, 14, 15, 16]
    k('s_lshl_b32 s35, s22, 3')
    k('s_add_u32 s35, s35, s25')
    k('v_lshrrev_b32 v20, 5, v1')
    k('v_lshlrev_b32 v20, 3, v20')
    k('v_bfe_u32 v21, v1, 2, 2')
    k('v_add_u32 v20, v20, v21')
    k('v_mul_u32_u24 v20, 224, v20')
    k('v_bfe_u32 v21, v1, 4, 1')
    k('v_mul_u32_u24 v21, %d, v21' % GU_UP)
    k('v_add_u32 v20, v20, v21')
    k('v_and_b32 v21, 1, v1')
    k('v_lshl_add_u32 v20, v21, 4, v20')
    k('v_bfe_u32 v21, v1, 1, 1')
    k('v_lshl_add_u32 v4, v21, 3, v20')
    k('v_add_u32 v5, %d, v4' % (2*GU_STG))
    k('v_lshlrev_b32 v8, 4, v1')
    k('v_add_u32 v9, 0x10000, v8')
    k('s_and_b32 s27, s26, 1')
    k('s_mul_i32 s28, s27, 448')
    k('s_mul_i32 s29, s35, 224')
    for i in range(7):
        k('v_add_u32 v20, s28, v1')
        if i: k('v_add_u32 v20, %d, v20' % (64*i))
        k('v_mul_u32_u24 v21, 4682, v20')
        k('v_lshrrev_b32 v21, 16, v21')
        k('v_mul_u32_u24 v22, 14, v21')
        k('v_sub_u32 v22, v20, v22')
        k('v_mul_u32_u24 v21, 7168, v21')
        k('v_lshl_add_u32 v21, v22, 4, v21')
        k('v_add_u32 v21, s29, v21')
        k('v_subrev_u32 v%d, %d, v21' % (vW[i], (i % 4)*1024))
    srd(k, 8, PWS, 0x400000, WS_H2)
    k('s_cmp_ge_u32 s26, 2')
    k('s_cselect_b32 s12, s%d, s%d' % (PWU, PWG))
    k('s_cselect_b32 s13, s%d, s%d' % (PWU+1, PWG+1))
    k('s_mov_b32 s14, 0x%x' % (1024*7168))
    k('s_mov_b32 s15, 0x20000')
    k('s_lshl_b32 s27, s24, 3')
    k('s_lshl_b32 s28, s26, 1')
    k('s_add_u32 s34, s27, s28')
    if init_state:
        k('s_lshl_b32 s30, s34, 16')
        k('s_sub_u32 s30, s30, 4096')
        k('s_mov_b32 s31, 0x%x' % ((-64*7168) & 0xffffffff))
    k('s_lshr_b32 s27, s26, 1')
    k('s_mul_i32 s32, s27, %d' % GU_UP)
    k('s_and_b32 s27, s26, 1')
    k('s_mul_i32 s27, s27, 7168')
    k('s_add_u32 s32, s32, s27')
    return vL, vX, vW

def gateup_gemm(k, regs, extra=None):
    vL, vX, vW = regs
    return Gemm(k, 7, 16, acc=32, xr=0, wf=128, vX=vX, vW=vW, sXsrd=8, sWsrd=12, sXoff=30, sWoff=31, sM0=32, sCnt=33,
             stage_bytes=GU_STG, ldw_step=64*7168, nW=7,
             lds_imm=lambda buf, j, nb, sec: (vL[buf // 2], (buf % 2)*GU_STG + j*3584 + sec*896 + nb*32), extra=extra, xflag=LD())

def gateup_main(k, g, next_prefetch=None):
    srd(k, 16, PWS, 2048*3584*2, WS_ACT)
    k('s_mul_i32 s27, s34, 224')
    k('s_mul_i32 s28, s35, 7')
    k('s_add_u32 s27, s27, s28')
    k('s_lshl_b32 s36, s27, 10')
    k('s_add_u32 s37, s36, %d' % (224*1024))
    k('s_mov_b32 s40, 0x%x' % f2u(-LOG2E))
    k('s_mov_b32 s41, 0x%x' % f2u(-LOG2E))
    k('v_add_u32 v31, 4096, v8')
    k('v_mov_b32 v30, v8')
    k('v_mov_b32 v29, 0x%x' % f2u(-LOG2E))
    stamp(k, 1)
    g.start()
    stamp(k, 2)
    def epi(b):
        out = []
        for mb in range(2):
            a = g.accr(b, mb)
            t = 17 + mb*4
            for h in range(2):
                e = a + 4*h
                out += ['v_mul_f32 v%d, v29, v%d' % (t+i, e+i) for i in range(4)]
                out += ['v_exp_f32 v%d, v%d' % (t+i, t+i) for i in range(4)]
                out += ['v_mul_f32 v%d, v%d, v%d' % (e+i, e+i, e+8+i) for i in range(4)]
                out += ['v_add_f32 v%d, 1.0, v%d' % (t+i, t+i) for i in range(4)]
                out += ['v_rcp_f32 v%d, v%d' % (t+i, t+i) for i in range(4)]
                out += ['s_nop 0']
                out += ['v_mul_f32 v%d, v%d, v%d' % (e+i, e+i, t+i) for i in range(4)]
            out += ['v_cvt_pk_bf16_f32 v%d, v%d, v%d' % (a+8+i, a+2*i, a+2*i+1) for i in range(4)]
            out.append(([], 'buffer_store_dwordx4 %s, v%d, s[16:19], s%d offen offset:%d %s' % (vr(a+8, 4), 30 if b < 4 else 31, 36+mb, (b % 4)*1024, '' if OPT.get('plainO') else ST), ('S', 0, 0)))
        return out
    g.mainloop(epi)
    stamp(k, 3)
    if next_prefetch: next_prefetch()

def resume_m0(k, g):
    k('s_add_u32 m0, s%d, 0x%x' % (g.sM0, 2*g.stage))

def build():
    kerns = []
    if MEGA:
        name = NAME + '_kernel'
        k = Kern(name, nvgpr=512, accum=256, nsgpr=102, lds=163840)
        def early():
            code_touch(k, name + '_c1', name + '_cend', 30)
            k.label(name + '_c1')
        header(k, name, early)
        phase_p0(k, name)
        phase_ln1b(k)
        slow, post = phase_attn(k, name)
        def a3():
            k('s_lshl_b32 s27, s24, 2'); k('s_add_u32 s27, s27, s22'); k('s_add_u32 s27, s27, %d' % C_S3); cnt_addr(k, 27)
        arrive(k, a3, count=8, flag_off=128)
        g = gemm128_setup(k, 'oproj'); g.prologue_w()
        post()
        stamp_flush(k, 'attn', 5)
        k.label(name + '_L_oproj')
        stamp_rt0(k, 'oproj'); stamp(k, 0)
        waitfor(k, a3, 1, off=128)
        resume_m0(k, g)
        g.prologue_x()
        gemm128_main(k, 'oproj', g)
        def a4():
            k('s_add_u32 s27, s24, %d' % C_S4); cnt_addr(k, 27)
        arrive(k, a4, count=32, flag_off=128)
        regs = gateup_setup(k)
        gg = gateup_gemm(k, regs)
        gg.prologue_w()
        code_touch(k, name + '_L_gateup', name + '_L_down', 30)
        stamp_flush(k, 'oproj', 4)
        phase_ln2(k, 'ln2')
        k.label(name + '_L_gateup')
        stamp_rt0(k, 'gateup'); stamp(k, 0)
        gateup_setup(k, init_state=False)
        def a5():
            k('s_add_u32 s27, s24, %d' % C_S5); cnt_addr(k, 27)
        waitfor(k, a5, 1, off=128)
        resume_m0(k, gg)
        gg.prologue_x()
        gateup_main(k, gg)
        def a6():
            k('s_lshl_b32 s27, s24, 2'); k('s_add_u32 s27, s27, s22'); k('s_add_u32 s27, s27, %d' % C_S6); cnt_addr(k, 27)
        arrive(k, a6, count=8, flag_off=128)
        g = gemm128_setup(k, 'down'); g.prologue_w()
        code_touch(k, name + '_L_down', name + '_cend', 60)
        stamp_flush(k, 'gateup', 4)
        k.label(name + '_L_down')
        stamp_rt0(k, 'down'); stamp(k, 0)
        waitfor(k, a6, 1, off=128)
        resume_m0(k, g)
        g.prologue_x()
        gemm128_main(k, 'down', g)
        def a7():
            k('s_add_u32 s27, s24, %d' % C_S7); cnt_addr(k, 27)
        arrive(k, a7, count=32, flag_off=128)
        stamp_flush(k, 'down', 4)
        phase_ln2(k, 'final')
        k('s_endpgm')
        slow()
        k.label(name + '_cend')
        k.label(name + '_end')
        k('s_endpgm')
        kerns.append(k)
    else:
        def kern(nm, lds):
            k = Kern(nm, nvgpr=512, accum=256, nsgpr=102, lds=lds); header(k, nm); return k
        def fin(k):
            k.label(k.name + '_end'); k('s_endpgm'); kerns.append(k)
        k = kern('p0_kernel', 163840); phase_p0(k, k.name); stamp_flush(k, 'p0', 3); fin(k)
        k = kern('ln1_kernel', 163840)
        ln_addr(k); srd(k, 8, PX, 0x400000)
        for j in range(4): k('buffer_load_dwordx4 %s, v6, s[8:11], s44 offen offset:%d' % (vr(RAW + 4*j, 4), j*128))
        k('s_waitcnt vmcnt(0)'); tr8x8(k, RAW, 4, 240, 241); ln_unpack(k, RAW); ln_stats(k); phase_ln1b(k); fin(k)
        k = kern('attn_kernel', 163840); slow, post = phase_attn(k, k.name); stamp_flush(k, 'attn', 5); k('s_endpgm'); slow(); fin(k)
        k = kern('oproj_kernel', 65536); stamp_rt0(k, 'oproj'); stamp(k, 0); g = gemm128_setup(k, 'oproj'); g.prologue_mixed(); gemm128_main(k, 'oproj', g); stamp_flush(k, 'oproj', 4); fin(k)
        k = kern('ln2_kernel', 163840); phase_ln2(k, 'ln2'); fin(k)
        k = kern('gateup_kernel', 4*GU_STG); stamp_rt0(k, 'gateup'); stamp(k, 0); regs = gateup_setup(k); gg = gateup_gemm(k, regs); gg.prologue_mixed(); gateup_main(k, gg); stamp_flush(k, 'gateup', 4); fin(k)
        k = kern('down_kernel', 65536); stamp_rt0(k, 'down'); stamp(k, 0); g = gemm128_setup(k, 'down'); g.prologue_mixed(); gemm128_main(k, 'down', g); stamp_flush(k, 'down', 4); fin(k)
        k = kern('final_kernel', 163840); phase_ln2(k, 'final'); fin(k)
    return kerns

HEADER = open('cdna_kernels/%s.s.ref' % NAME).read().split('; Override launch')[0] if os.path.exists('cdna_kernels/%s.s.ref' % NAME) else ''

def assemble(kerns):
    out = [HEADER.rstrip()]
    if MEGA:
        kn = kerns[0]
        out.append('; @launch grid=(%d,1,1) block=(%d,1,1) lds=%d' % (kn.grid, kn.block, kn.lds))
    else:
        for kn in kerns:
            out.append('; @launch kernel=%s grid=(%d,1,1) block=(%d,1,1) lds=%d' % (kn.name, kn.grid, kn.block, kn.lds))
    out.append('.amdgcn_target "amdgcn-amd-amdhsa--gfx950"')
    for kn in kerns: out.append(kn.text())
    out.append('.section .rodata,"a"')
    for kn in kerns:
        out.append('.p2align 6'); out.append(kn.desc())
    return '\n'.join(out) + '\n'

if __name__ == '__main__':
    for a in sys.argv[2:]:
        if a == 'instr': INSTR = True
        elif a == 'mega': MEGA = True
        elif a.startswith('opt:'): OPT[a[4:].split('=')[0]] = (a.split('=')[1].replace('+', ' ') if '=' in a else True)
    ks = build()
    bad = 0
    for kn in ks: bad += len(check(kn))
    txt = assemble(ks)
    txt = '\n'.join(l[4:] if l.startswith('    ') else l for l in txt.split('\n'))
    open(sys.argv[1], 'w').write(txt)
    print('generated', len(txt), 'bytes; check errors:', bad)
```

```python
import sys, math, os, struct as _st
from asmlib import *

NAME = 'adaLN_cond__sliding_block_cached__swiglu_ffn__prompt'
KA = dict(x=0, k=8, v=16, wq=24, wo=32, bx=40, wg=48, wu=56, wd=64, c=72, wmod=80, out=88, dbg=96, ws=104)
PX, PK, PV, PWQ, PWO, PWG, PWU, PWD, PC_, PWMOD, POUT, PDBG, PWS = 64, 66, 68, 70, 72, 76, 78, 80, 82, 84, 86, 88, 90
WS_MOD  = 0x0
WS_MODB = 0x10000
WS_CNT  = 0x20000
WS_H   = 0x100000
WS_O   = 0x500000
WS_P1  = 0x1500000
WS_X1  = 0x3500000
WS_H2  = 0x3900000
WS_ACT = 0x3D00000
WS_P2  = 0x4B00000
WS_KF  = 0x5B00000
WS_VF  = 0x5B80000
WS_STAMP = 0x8000000
MFMA = 'v_mfma_f32_32x32x16_bf16'
LOG2E = 1.4426950408889634
def f2u(x): return _st.unpack('<I', _st.pack('<f', x))[0]
INSTR = False
MEGA = False
OPT = {}
PHASES = ['p0', 'attn', 'oproj', 'ln2', 'gateup', 'down', 'final']
PIDX = {p: i for i, p in enumerate(PHASES)}
ST = 'sc1'
def LD(): return 'sc1' if (MEGA and not OPT.get('plainld')) else ''
C_S2, C_S3, C_S4, C_S5, C_S6, C_S7 = 0, 8, 40, 48, 56, 88
LN_LDS = 147456

def srd(k, s, lo, size, add=None):
    if add:
        k('s_add_u32 s%d, s%d, 0x%x' % (s, lo, add))
        k('s_addc_u32 s%d, s%d, 0' % (s+1, lo+1))
    else:
        k('s_mov_b32 s%d, s%d' % (s, lo))
        k('s_mov_b32 s%d, s%d' % (s+1, lo+1))
    k('s_mov_b32 s%d, 0x%x' % (s+2, size))
    k('s_mov_b32 s%d, 0x20000' % (s+3))
def srd_s(k, s, lo, soff, size):
    k('s_add_u32 s%d, s%d, s%d' % (s, lo, soff))
    k('s_addc_u32 s%d, s%d, 0' % (s+1, lo+1))
    k('s_mov_b32 s%d, 0x%x' % (s+2, size))
    k('s_mov_b32 s%d, 0x20000' % (s+3))

def stamp(k, i):
    if INSTR:
        k('s_memtime s[%d:%d]' % (92+2*i, 93+2*i)) if i < 5 else None
def stamp_begin(k):
    if INSTR:
        k('s_memrealtime s[60:61]') if False else None
        k('s_memrealtime s[18:19]') if False else None
def stamp_flush(k, phase, n):
    if not INSTR: return
    k('s_waitcnt lgkmcnt(0)')
    k('s_memrealtime s[28:29]') if False else None
    srd(k, 16, PWS, 0x10000, WS_STAMP + PIDX[phase]*0x10000)
    k('s_lshl_b32 s27, s2, 6')
    k('v_cmp_eq_u32 vcc, 0, v0')
    k('s_and_saveexec_b64 s[28:29], vcc')
    lab = k.L('so')
    k('s_cbranch_execz %s' % lab)
    k('v_mov_b32 v2, s27')
    for i in range(n):
        k('v_mov_b32 v3, s%d' % (92+2*i))
        k('buffer_store_dword v3, v2, s[16:19], 0 offen offset:%d' % (4*i))
    k('s_memrealtime s[92:93]')
    k('s_memtime s[94:95]')
    k('s_waitcnt lgkmcnt(0)')
    k('v_mov_b32 v3, s92')
    k('buffer_store_dword v3, v2, s[16:19], 0 offen offset:56')
    k('v_mov_b32 v3, s94')
    k('buffer_store_dword v3, v2, s[16:19], 0 offen offset:60')
    k.label(lab)
    k('s_mov_b64 exec, s[28:29]')
def stamp_rt0(k, phase):
    if not INSTR: return
    k('s_memrealtime s[92:93]')
    k('s_memtime s[94:95]')
    srd(k, 16, PWS, 0x10000, WS_STAMP + PIDX[phase]*0x10000)
    k('s_lshl_b32 s27, s2, 6')
    k('s_waitcnt lgkmcnt(0)')
    k('v_cmp_eq_u32 vcc, 0, v0')
    k('s_and_saveexec_b64 s[28:29], vcc')
    lab = k.L('s0')
    k('s_cbranch_execz %s' % lab)
    k('v_mov_b32 v2, s27')
    k('v_mov_b32 v3, s92')
    k('buffer_store_dword v3, v2, s[16:19], 0 offen offset:48')
    k('v_mov_b32 v3, s94')
    k('buffer_store_dword v3, v2, s[16:19], 0 offen offset:52')
    k.label(lab)
    k('s_mov_b64 exec, s[28:29]')

def header(k, name, early=None):
    k('s_cmp_ge_u32 s2, 256')
    k('s_cbranch_scc1 %s_end' % name)
    if OPT.get('scramble'):
        k('s_and_b32 s3, s2, 31')
        k('s_lshl_b32 s3, s3, 3')
        k('s_lshr_b32 s2, s2, 5')
        k('s_or_b32 s2, s2, s3')
    k('s_load_dwordx8 s[80:87], s[0:1], 64')
    k('s_load_dwordx16 s[64:79], s[0:1], 0')
    k('s_load_dwordx4 s[88:91], s[0:1], 96')
    k('v_lshrrev_b32 v2, 6, v0')
    k('v_and_b32 v1, 63, v0')
    k('s_lshr_b32 s21, s2, 3')
    k('v_readfirstlane_b32 s26, v2')
    if early: early()
    k('s_and_b32 s20, s2, 7')
    k('s_lshr_b32 s22, s20, 1')
    k('s_and_b32 s23, s20, 1')
    k('s_and_b32 s24, s21, 3')
    k('s_lshl_b32 s27, s23, 2')
    k('s_add_u32 s24, s24, s27')
    k('s_lshr_b32 s25, s21, 2')
    k('s_waitcnt lgkmcnt(0)')

def cnt_addr(k, sreg, dst=6):
    k('s_lshl_b32 s%d, s%d, 8' % (dst, sreg))
    k('s_add_u32 s%d, s%d, 0x%x' % (dst, dst, WS_CNT))
    k('s_add_u32 s%d, s%d, s%d' % (dst, dst, PWS))
    k('s_addc_u32 s%d, s%d, 0' % (dst+1, PWS+1))
def arrive(k, setup, count=None, extra_dbg=None, only_w0=False, flag_off=None):
    if not MEGA: return
    if not only_w0:
        k('s_waitcnt vmcnt(0)')
        k('s_barrier')
    lab = k.L('arr')
    k('s_cmp_lg_u32 s26, 0')
    k('s_cbranch_scc1 %s' % lab)
    if only_w0: k('s_waitcnt vmcnt(0)')
    setup()
    k('v_mov_b32 v2, 0')
    k('v_mov_b32 v3, 1')
    k('s_mov_b64 exec, 1')
    if extra_dbg is not None:
        k('v_mov_b32 v29, %d' % extra_dbg)
        k('global_atomic_add v29, v3, s[%d:%d] sc1' % (PDBG, PDBG+1))
    if count is None:
        k('global_atomic_add v2, v3, s[6:7] sc1')
    else:
        k('global_atomic_add v29, v2, v3, s[6:7] sc0 sc1')
        k('s_waitcnt vmcnt(0)')
        k('v_readfirstlane_b32 s27, v29')
        k('s_nop 3')
        k('s_cmp_lg_u32 s27, %d' % (count - 1))
        k('s_cbranch_scc1 %s_n' % lab)
        k('global_store_dword v2, v3, s[6:7] offset:%d sc1' % flag_off)
        k.label(lab + '_n')
    k('s_mov_b64 exec, -1')
    k.label(lab)
def waitfor(k, setup, count, off=0, sleep=2):
    if not MEGA: return
    lab = k.L('wt'); done = k.L('wd'); skip = k.L('ws')
    k('s_cmp_lg_u32 s26, 0')
    k('s_cbranch_scc1 %s' % skip)
    setup()
    k('v_mov_b32 v2, 0')
    k('s_mov_b32 s27, 0')
    k('s_mov_b64 exec, 1')
    k.label(lab)
    k('global_load_dword v3, v2, s[6:7] offset:%d sc1' % off)
    k('s_waitcnt vmcnt(0)')
    k('v_readfirstlane_b32 s28, v3')
    k('s_add_u32 s27, s27, 1')
    k('s_cmp_ge_u32 s28, %d' % count)
    k('s_cbranch_scc1 %s' % done)
    k('s_cmp_ge_u32 s27, 0x40000')
    k('s_cbranch_scc1 %s' % done)
    k('s_sleep %d' % sleep)
    k('s_branch %s' % lab)
    k.label(done)
    k('s_mov_b64 exec, -1')
    k.label(skip)
    k('s_barrier')

def code_touch(k, lab0, lab1, vtmp):
    if OPT.get('nocode'): return
    here = k.L('pc'); skip = k.L('ct')
    k('s_cmp_lg_u32 s26, 0')
    k('s_cbranch_scc1 %s' % skip)
    k('s_getpc_b64 s[6:7]')
    k.label(here)
    k('s_add_u32 s6, s6, %s-%s' % (lab0, here))
    k('s_addc_u32 s7, s7, %s' % ('0' if True else ''))
    k('v_lshlrev_b32 v%d, 5, v1' % vtmp)
    k('v_add_u32 v%d, s21, v%d' % (vtmp, vtmp))
    k('v_lshlrev_b32 v%d, 7, v%d' % (vtmp, vtmp))
    k('v_cmp_gt_u32 vcc, %s-%s, v%d' % (lab1, lab0, vtmp))
    k('s_and_saveexec_b64 s[4:5], vcc')
    k('s_cbranch_execz %s_r' % skip)
    k('global_load_dword v%d, v%d, s[6:7]' % (vtmp+1, vtmp))
    k.label(skip + '_r')
    k('s_mov_b64 exec, s[4:5]')
    k.label(skip)

class Gemm:
    def __init__(self, k, NB, nsteps, acc, xr, wf, vX, vW, sXsrd, sWsrd, sXoff, sWoff, sM0, sCnt,
                 stage_bytes, ldw_step, nW, lds_imm, extra=None, xflag=''):
        self.k = k; self.NB = NB; self.nsteps = nsteps; self.acc = acc; self.xr = xr; self.wf = wf
        self.vX = vX; self.vW = vW; self.sX = sXsrd; self.sW = sWsrd; self.sXoff = sXoff; self.sWoff = sWoff
        self.sM0 = sM0; self.sCnt = sCnt; self.stage = stage_bytes; self.ldw_step = ldw_step; self.nW = nW
        self.lds_imm = lds_imm; self.xflag = xflag
        self.extra = extra or (lambda t, j: [])
        if nW == 4: wsl = {3: [0], 0: [1], 1: [2], 2: [3]}
        else: wsl = {3: [0, 1], 0: [2, 3], 1: [4, 5], 2: [6]}
        Q = []
        for i in wsl[3]: Q.append((('W', 0, i), -13))
        for s_ in range(nsteps):
            for j in range(4):
                slot = 4*(s_-3) + j
                ws = [('W', s_, i) for i in wsl[j]] if j < 3 else ([('W', s_+1, i) for i in wsl[3]] if s_+1 < nsteps else [])
                for o in [('X', s_, j, 0)] + ws + [('X', s_, j, 1)]: Q.append((o, slot))
        self.Q = Q
        self.P = len([1 for o, sl in Q if sl < -4])
        self.sched = {}
        pos = self.P
        for t in range(nsteps):
            for j in range(4):
                slot = 4*t + j
                steady = len([1 for o, sl in Q if sl <= slot])
                per = len([1 for o, sl in Q if sl == 16 + j])
                n = min(steady, pos + per + 1)
                self.sched[(t, j)] = [o for o, sl in Q[pos:n]]
                pos = n
    def accr(self, nb, mb): return self.acc + (nb*2 + mb)*16
    def xreg(self, s, mb, j): return self.xr + (s % 4)*32 + (mb*4 + j)*4
    def wreg(self, par, nb): return self.wf + par*self.NB*4 + nb*4
    def mkop(self, o):
        if o[0] == 'X':
            _, s_, j, mb = o
            pre = ['s_add_u32 s%d, s%d, 4096' % (self.sXoff, self.sXoff)] if (j == 0 and mb == 0) else []
            return (pre, 'buffer_load_dwordx4 %s, v%d, s[%d:%d], s%d offen offset:%d %s' % (ar(self.xreg(s_, mb, j), 4), self.vX[mb], self.sX, self.sX+3, self.sXoff, j*1024, self.xflag), ('X', s_, j))
        _, s_, i = o
        pre = []
        if i == 0:
            pre.append('s_add_u32 s%d, s%d, 0x%x' % (self.sWoff, self.sWoff, self.ldw_step))
            pre.append('s_add_u32 m0, s%d, 0x%x' % (self.sM0, (s_ % 4)*self.stage))
        elif i == 4:
            pre.append('s_add_u32 m0, s%d, 0x%x' % (self.sM0, (s_ % 4)*self.stage + 4096))
        return (pre, 'buffer_load_dwordx4 v%d, s[%d:%d], s%d offen offset:%d lds' % (self.vW[i], self.sW, self.sW+3, self.sWoff, (i % 4)*1024), ('W', s_, i))
    def emit_vm(self, op):
        k = self.k
        pre, ins, tag = op[0], op[1], op[2]
        for p in pre: k(p)
        if pre and 'm0' in pre[-1]: k('s_nop 0')
        k.vm(ins, tag)
    def lds_reads(self, t, j):
        out = []
        for nb in range(self.NB):
            for sec in range(2):
                v, imm = self.lds_imm(t % 4, j, nb, sec)
                out.append('ds_read_b64_tr_b16 %s, v%d offset:%d' % (ar(self.wreg(j % 2, nb) + 2*sec, 2), v, imm))
        return out
    def blk_reads(self, t, nb):
        out = []
        for j in range(4):
            for sec in range(2):
                v, imm = self.lds_imm(t % 4, j, nb, sec)
                out.append('ds_read_b64_tr_b16 %s, v%d offset:%d' % (ar(self.wf + (nb % 2)*16 + j*4 + 2*sec, 2), v, imm))
        return out
    def prologue_w(self):
        for o, sl in self.Q[:self.P]:
            if o[0] == 'W': self.emit_vm(self.mkop(o))
    def prologue_x(self):
        for o, sl in self.Q[:self.P]:
            if o[0] == 'X': self.emit_vm(self.mkop(o))
    def prologue_mixed(self):
        for o, sl in self.Q[:self.P]: self.emit_vm(self.mkop(o))
    def start(self):
        k = self.k
        n = k.vm_wait_n(lambda tg: (tg[0] == 'W' and tg[1] == 0) or (tg[0] == 'X' and tg[1] == 0 and tg[2] <= 2))
        k('s_waitcnt vmcnt(%d)' % n)
        k('s_barrier')
        for r in self.lds_reads(0, 0): k(r)
    def emit_gaps(self, mfmas, gaps):
        k = self.k
        for m, mf in enumerate(mfmas):
            k(mf)
            for kind, x in gaps[m]:
                if kind == 'i': k(x)
                else: self.emit_vm(x)
    def frag_reads(self, t, j, nb, slot):
        out = []
        for sec in range(2):
            v, imm = self.lds_imm(t % 4, j, nb, sec)
            out.append('ds_read_b64_tr_b16 %s, v%d offset:%d' % (ar(self.wf + slot*4 + 2*sec, 2), v, imm))
        return out
    def step(self, t, tail=0):
        k = self.k; NB = self.NB; n = self.nsteps
        last = (t == n - 1)
        pre_tail = tail and t == n - tail - 1
        for j in range(4):
            if j == 3 and not last:
                if pre_tail:
                    nn = k.vm_wait_n(lambda tg: tg[0] in 'WX' and tg[1] <= (n-2 if tail >= 3 else n-1))
                else:
                    nn = k.vm_wait_n(lambda tg: (tg[0] == 'W' and tg[1] <= t+1) or (tg[0] == 'X' and (tg[1] <= t or (tg[1] == t+1 and tg[2] <= 2))))
                k('s_waitcnt vmcnt(%d) lgkmcnt(0)' % nn)
                k('s_barrier')
            elif j == 3:
                nn = k.vm_wait_n(lambda tg: tg[0] == 'X' and tg[1] <= t)
                k('s_waitcnt vmcnt(%d) lgkmcnt(0)' % nn)
            else:
                k('s_waitcnt lgkmcnt(0)')
            if j < 3: reads = self.lds_reads(t, j+1)
            elif last: reads = []
            elif pre_tail:
                reads = []
                for f in range(4): reads += self.frag_reads(n - tail, f, 0, f)
            else: reads = self.lds_reads(t+1, 0)
            vms = [self.mkop(o) for o in self.sched[(t, j)]]
            extra = list(self.extra(t, j))
            vms += [e for e in extra if not isinstance(e, str)]
            plain = [e for e in extra if isinstance(e, str)]
            nm = 2*NB
            gaps = [[] for _ in range(nm)]
            for i, r in enumerate(reads): gaps[i // 2].append(('i', r))
            for i, op in enumerate(vms): gaps[NB + (i * NB) // max(1, len(vms))].append(('vm', op))
            for i, e in enumerate(plain): gaps[(i * nm) // len(plain)].append(('i', e))
            mf = []
            for nb in range(NB):
                for mb in range(2):
                    d = vr(self.accr(nb, mb), 16)
                    mf.append('%s %s, %s, %s, %s' % (MFMA, d, ar(self.wreg(j % 2, nb), 4), ar(self.xreg(t, mb, j), 4), '0' if (t == 0 and j == 0) else d))
            self.emit_gaps(mf, gaps)
    def tail_blocks(self, tail, epi):
        k = self.k; NB = self.NB; n = self.nsteps
        frs = [(nb, t, j) for nb in range(NB) for t in range(n - tail, n) for j in range(4)]
        per = tail*4
        NS = 8
        pending = []
        for f, (nb, t, j) in enumerate(frs):
            fo = f % per
            if fo == 0:
                items = list(pending)
                if nb < tail:
                    for jj in range(4): items += list(self.extra(n - tail + nb, jj))
                ng = 2*per
                blockgaps = [[] for _ in range(ng)]
                for i, e in enumerate(items): blockgaps[4 + (i * (ng - 4)) // max(1, len(items))].append(e)
            if f == 4 and tail >= 3:
                nn = k.vm_wait_n(lambda tg: tg[0] in 'WX' and tg[1] <= n-1)
                k('s_waitcnt vmcnt(%d)' % nn)
                k('s_barrier')
            ahead = min(len(frs) - 1 - f, 3)
            k('s_waitcnt lgkmcnt(%d)' % (2*ahead))
            nxt = self.frag_reads(frs[f+4][1], frs[f+4][2], frs[f+4][0], (f+4) % NS) if f + 4 < len(frs) else []
            for mb in range(2):
                d = vr(self.accr(nb, mb), 16)
                k('%s %s, %s, %s, %s' % (MFMA, d, ar(self.wf + (f % NS)*4, 4), ar(self.xreg(t, mb, j), 4), d))
                if nxt: k(nxt[mb])
                for e in blockgaps[2*fo + mb]:
                    if isinstance(e, str): k(e)
                    else: self.emit_vm(e)
            if fo == per - 1: pending = epi(nb)
        k('s_nop 7')
        k('s_nop 3')
        for e in pending:
            if isinstance(e, str): k(e)
            else: self.emit_vm(e)
    def mainloop(self, epi=None, tail=3):
        k = self.k; n = self.nsteps
        tl = tail if epi is not None else 0
        for t in range(4): self.step(t, tl)
        t = 4
        trips = 0
        while t + 4*trips + 3 + 4 <= n - 1: trips += 1
        if trips >= 2:
            lab = k.L('loop')
            k('s_mov_b32 s%d, %d' % (self.sCnt, trips))
            k.label(lab)
            q0 = len(k.vmq)
            for tt in range(t, t+4): self.step(tt, tl)
            k('s_sub_u32 s%d, s%d, 1' % (self.sCnt, self.sCnt))
            k('s_cmp_lg_u32 s%d, 0' % self.sCnt)
            k('s_cbranch_scc1 %s' % lab)
            body = k.vmq[q0:]
            for r in range(1, trips):
                for tg in body: k.vmq.append((tg[0], tg[1] + 4*r, tg[2]))
            t += 4*trips
        for tt in range(t, n - tl): self.step(tt, tl)
        if tl: self.tail_blocks(tl, epi)

def lds_addr_128(k, vL, tmp):
    a, b, c = tmp, tmp+1, tmp+2
    k('v_lshrrev_b32 v%d, 5, v1' % a)
    k('v_lshlrev_b32 v%d, 11, v%d' % (a, a))
    k('v_bfe_u32 v%d, v1, 2, 2' % b)
    k('v_lshl_add_u32 v%d, v%d, 8, v%d' % (a, b, a))
    k('v_bfe_u32 v%d, v1, 4, 1' % c)
    k('v_lshl_add_u32 v%d, v%d, 5, v%d' % (a, c, a))
    k('v_and_b32 v%d, 1, v1' % c)
    k('v_lshl_add_u32 v%d, v%d, 4, v%d' % (a, c, a))
    k('v_bfe_u32 v%d, v1, 1, 1' % c)
    k('v_lshl_add_u32 v%d, v%d, 3, v%d' % (a, c, a))
    for nb in range(4):
        k('v_xor_b32 v%d, %d, v%d' % (c, nb, b))
        k('v_lshl_add_u32 v%d, v%d, 6, v%d' % (vL[nb], c, a))

def w128_voffsets(k, vW, ldw, s_colbytes, tmp):
    a, b, c = tmp, tmp+1, tmp+2
    k('v_lshrrev_b32 v%d, 4, v1' % a)
    k('v_bfe_u32 v%d, v1, 2, 2' % b)
    k('v_xor_b32 v%d, v%d, v%d' % (b, b, a))
    k('v_and_b32 v%d, 3, v1' % c)
    k('v_lshlrev_b32 v%d, 4, v%d' % (c, c))
    k('v_lshl_add_u32 v%d, v%d, 6, v%d' % (c, b, c))
    k('s_lshl_b32 s27, s26, 4')
    k('v_add_u32 v%d, s27, v%d' % (a, a))
    k('v_mul_u32_u24 v%d, %d, v%d' % (a, ldw, a))
    k('v_add3_u32 v%d, v%d, v%d, s%d' % (vW[0], a, c, s_colbytes))
    for i in range(1, 4): k('v_add_u32 v%d, 0x%x, v%d' % (vW[i], i*4*ldw - i*1024, vW[0]))

def gemm128_setup(k, which):
    if which == 'oproj': xoff, xsize, KS, ksq, wptr, ldw, nsteps = WS_O, 0x1000000, 256, 64, PWO, 2048, 16
    else: xoff, xsize, KS, ksq, wptr, ldw, nsteps = WS_ACT, 2048*3584*2, 224, 56, PWD, 2048, 14
    vL = [4, 5, 6, 7]; vX = [8, 9]; vW = [10, 11, 12, 13]
    lds_addr_128(k, vL, tmp=14)
    k('v_lshlrev_b32 v8, 4, v1')
    k('v_add_u32 v9, 0x%x, v8' % (KS*1024))
    k('s_lshl_b32 s28, s25, 8')
    w128_voffsets(k, vW, ldw, 28, 14)
    srd(k, 8, PWS, xsize, xoff)
    srd(k, 12, wptr, ksq*4*16*ldw)
    k('s_lshl_b32 s27, s24, 3')
    k('s_lshl_b32 s28, s26, 1')
    k('s_add_u32 s34, s27, s28')
    k('s_mul_i32 s30, s34, %d' % KS)
    k('s_mul_i32 s28, s22, %d' % ksq)
    k('s_add_u32 s30, s30, s28')
    k('s_lshl_b32 s30, s30, 10')
    k('s_sub_u32 s30, s30, 4096')
    k('s_mul_i32 s31, s22, 0x%x' % (ksq*16*ldw))
    k('s_sub_u32 s31, s31, 0x%x' % (64*ldw))
    k('s_lshl_b32 s32, s26, 12')
    return Gemm(k, 4, nsteps, acc=128, xr=0, wf=128, vX=vX, vW=vW, sXsrd=8, sWsrd=12, sXoff=30, sWoff=31, sM0=32, sCnt=33,
                stage_bytes=16384, ldw_step=64*ldw, nW=4,
                lds_imm=lambda buf, j, nb, sec: (vL[nb], buf*16384 + j*4096 + sec*1024), xflag=LD())

def gemm128_main(k, which, g):
    poff = WS_P1 if which == 'oproj' else WS_P2
    k('s_lshl_b32 s27, s22, 22')
    k('s_add_u32 s27, s27, 0x%x' % poff)
    srd_s(k, 16, PWS, 27, 0x400000)
    k('s_lshl_b32 s27, s34, 6')
    k('s_lshl_b32 s28, s25, 3')
    k('s_add_u32 s27, s27, s28')
    k('s_lshl_b32 s36, s27, 10')
    k('s_add_u32 s37, s36, 0x10000')
    k('v_add_u32 v14, 4096, v8')
    stamp(k, 1)
    g.start()
    stamp(k, 2)
    cnt = [0]
    def epi(nb):
        out = []
        for mb in range(2):
            a = g.accr(nb, mb)
            for hh in range(2):
                t = 16 + (cnt[0] % 8)*4; cnt[0] += 1
                for r in range(4): out.append('v_cvt_pk_bf16_f32 v%d, v%d, v%d' % (t+r, a + hh*8 + 2*r, a + hh*8 + 2*r + 1))
                ks = 2*nb + hh
                out.append(([], 'buffer_store_dwordx4 %s, v%d, s[16:19], s%d offen offset:%d %s' % (vr(t, 4), 8 if ks < 4 else 14, 36+mb, (ks % 4)*1024, ST), ('S', 0, 0)))
        return out
    g.mainloop(epi)
    stamp(k, 3)

def reduce8(k, v, t):
    k('s_nop 1')
    k('v_add_f32_dpp v%d, v%d, v%d row_ror:8 row_mask:0xf bank_mask:0xf' % (v, v, v))
    k('v_mov_b32 v%d, v%d' % (t, v))
    k('s_nop 1')
    k('v_permlane16_swap_b32 v%d, v%d' % (v, t))
    k('s_nop 1')
    k('v_add_f32 v%d, v%d, v%d' % (v, v, t))
    k('v_mov_b32 v%d, v%d' % (t, v))
    k('s_nop 1')
    k('v_permlane32_swap_b32 v%d, v%d' % (v, t))
    k('s_nop 1')
    k('v_add_f32 v%d, v%d, v%d' % (v, v, t))

def gemv_load(k, nj, s_row0, s_col0bytes, AD=160, C=168, LDB=96, emit=True):
    o = []
    o.append('v_and_b32 v%d, 7, v0' % AD)
    o.append('v_lshrrev_b32 v%d, 3, v0' % (AD+1))
    o.append('v_mul_u32_u24 v%d, %d, v%d' % (AD+2, nj*12288, AD+1))
    o.append('v_lshl_add_u32 v%d, v%d, 4, v%d' % (AD+2, AD, AD+2))
    o.append('v_mul_u32_u24 v%d, %d, v%d' % (AD+3, nj*2, AD+1))
    o.append('s_mul_i32 s36, s%d, 12288' % s_row0)
    o.append('s_add_u32 s36, s36, s%d' % s_col0bytes)
    o.append('s_lshl_b32 s37, s%d, 1' % s_row0)
    for i in range(nj // 8): o.append('buffer_load_dwordx4 %s, v%d, s[12:15], s37 offen offset:%d' % (vr(C+4*i, 4), AD+3, 16*i))
    for j in range(nj):
        o.append('buffer_load_dwordx4 %s, v%d, s[8:11], s36 offen' % (vr(LDB+4*j, 4), AD+2))
        if j < nj-1: o.append('s_add_u32 s36, s36, 12288')
    if emit:
        for x in o: k(x)
    return o
def gemv_compute(k, nj, s_outoff, out_srd, L0, after, B=160, C=168, LDB=96):
    S = B+16; T = B+32; A = B+48
    k('v_and_b32 v%d, 7, v0' % B)
    k('v_lshrrev_b32 v%d, 3, v0' % (B+1))
    k('s_waitcnt vmcnt(%d)' % (nj + after))
    if OPT.get('p0st') and L0 == LN_LDS: stamp(k, 2)
    for i in range(nj//2):
        k('v_lshlrev_b32 v%d, 16, v%d' % (S+2*i, C+i))
        k('v_and_b32 v%d, 0xffff0000, v%d' % (S+1+2*i, C+i))
    for i in range(nj): k('v_mul_f32 v%d, 0x%x, v%d' % (T+i, f2u(-LOG2E), S+i))
    for i in range(nj): k('v_exp_f32 v%d, v%d' % (T+i, T+i))
    k('s_nop 0')
    for i in range(nj): k('v_add_f32 v%d, 1.0, v%d' % (T+i, T+i))
    for i in range(nj): k('v_rcp_f32 v%d, v%d' % (T+i, T+i))
    k('s_nop 0')
    for i in range(nj): k('v_mul_f32 v%d, v%d, v%d' % (S+i, S+i, T+i))
    for i in range(nj//2): k('v_cvt_pk_bf16_f32 v%d, v%d, v%d' % (T+i, S+2*i, S+1+2*i))
    for i in range(nj//2):
        k('v_lshlrev_b32 v%d, 16, v%d' % (S+2*i, T+i))
        k('v_and_b32 v%d, 0xffff0000, v%d' % (S+1+2*i, T+i))
    for i in range(8): k('v_mov_b32 v%d, 0' % (A+i))
    U = B+56
    for j in range(nj):
        k('s_waitcnt vmcnt(%d)' % (nj-1-j + after))
        for i in range(4):
            k('v_lshlrev_b32 v%d, 16, v%d' % (U+2*(i%2), LDB+4*j+i))
            k('v_and_b32 v%d, 0xffff0000, v%d' % (U+1+2*(i%2), LDB+4*j+i))
            k('v_fmac_f32 v%d, v%d, v%d' % (A+2*i, U+2*(i%2), S+j))
            k('v_fmac_f32 v%d, v%d, v%d' % (A+2*i+1, U+1+2*(i%2), S+j))
    if OPT.get('p0st') and L0 == LN_LDS: stamp(k, 3)
    k('v_lshlrev_b32 v%d, 8, v%d' % (B+4, B+1))
    k('v_lshl_add_u32 v%d, v%d, 5, v%d' % (B+4, B, B+4))
    k('v_add_u32 v%d, %d, v%d' % (B+4, L0, B+4))
    k('ds_write_b128 v%d, %s' % (B+4, vr(A, 4)))
    k('ds_write_b128 v%d, %s offset:16' % (B+4, vr(A+4, 4)))
    k('s_waitcnt lgkmcnt(0)')
    k('s_barrier')
    lab = k.L('skip')
    k('s_cmp_lg_u32 s26, 0')
    k('s_cbranch_scc1 %s' % lab)
    k('v_lshlrev_b32 v%d, 2, v1' % (B+6))
    k('v_add_u32 v%d, %d, v%d' % (B+4, L0, B+6))
    for h in range(4):
        for i in range(8): k('ds_read_b32 v%d, v%d offset:%d' % (LDB+8*h+i, B+4, (8*h+i)*256))
        if h in (1, 2): k('s_waitcnt lgkmcnt(7)')
    k('s_waitcnt lgkmcnt(0)')
    for i in range(16): k('v_add_f32 v%d, v%d, v%d' % (LDB+i, LDB+i, LDB+16+i))
    for st in (8, 4, 2, 1):
        for i in range(st): k('v_add_f32 v%d, v%d, v%d' % (LDB+i, LDB+i, LDB+st+i))
    k('buffer_store_dword v%d, v%d, s[%d:%d], s%d offen %s' % (LDB, B+6, out_srd, out_srd+3, s_outoff, ST))
    k.label(lab)

def kv_part(k, mid=None, nmid=1):
    B = 160
    k('s_sub_u32 s50, s2, 128')
    k('s_lshl_b32 s50, s50, 2')
    k('s_add_u32 s50, s50, s26')
    srd(k, 8, PK, 0x200000)
    srd(k, 12, PV, 0x200000)
    srd(k, 16, PWS, 0x100000, WS_KF)
    k('s_lshr_b32 s51, s50, 7')
    k('s_bfe_u32 s52, s50, 0x40003')
    k('s_lshl_b32 s54, s51, 19')
    k('s_lshl_b32 s55, s52, 13')
    k('s_add_u32 s54, s54, s55')
    k('s_add_u32 s54, s54, 0x60000')
    k('v_lshrrev_b32 v%d, 3, v1' % B)
    k('v_and_b32 v%d, 7, v1' % (B+1))
    k('v_lshlrev_b32 v%d, 8, v%d' % (B+2, B))
    k('v_lshl_add_u32 v%d, v%d, 4, v%d' % (B+2, B+1, B+2))
    k('s_bfe_u32 s53, s50, 0x20001')
    k('s_and_b32 s56, s50, 1')
    k('s_lshl_b32 s55, s53, 11')
    k('s_add_u32 s55, s55, s54')
    k('s_lshl_b32 s57, s56, 7')
    k('s_add_u32 s55, s55, s57')
    k('buffer_load_dwordx4 %s, v%d, s[8:11], s55 offen' % (vr(B+8, 4), B+2))
    k('v_lshrrev_b32 v%d, 2, v1' % (B+3))
    k('v_lshlrev_b32 v%d, 8, v%d' % (B+3, B+3))
    k('v_and_b32 v%d, 3, v1' % (B+4))
    k('v_lshl_add_u32 v%d, v%d, 4, v%d' % (B+3, B+4, B+3))
    k('s_bfe_u32 s55, s50, 0x10002')
    k('s_lshl_b32 s55, s55, 12')
    k('s_and_b32 s57, s50, 3')
    k('s_lshl_b32 s57, s57, 6')
    k('s_add_u32 s55, s55, s57')
    k('s_add_u32 s55, s55, s54')
    k('s_mul_i32 s57, s26, 4608')
    k('s_add_u32 s57, s57, %d' % (TR_LDS + 2304))
    k('s_mov_b32 m0, s57')
    k('s_nop 0')
    k('buffer_load_dwordx4 v%d, s[12:15], s55 offen lds' % (B+3))
    if mid:
        k('s_mov_b32 s58, s16'); k('s_mov_b32 s59, s17'); k('s_mov_b32 s60, s18')
        mid()
        k('s_mov_b32 s16, s58'); k('s_mov_b32 s17, s59'); k('s_mov_b32 s18, s60')
    k('v_lshrrev_b32 v%d, 5, v1' % (B+4))
    k('v_lshlrev_b32 v%d, 2, v%d' % (B+4, B+4))
    k('v_bfe_u32 v%d, v1, 2, 2' % (B+5))
    k('v_add_u32 v%d, v%d, v%d' % (B+4, B+4, B+5))
    k('v_lshlrev_b32 v%d, 6, v%d' % (B+4, B+4))
    k('v_bfe_u32 v%d, v1, 4, 1' % (B+5))
    k('v_lshl_add_u32 v%d, v%d, 5, v%d' % (B+4, B+5, B+4))
    k('v_and_b32 v%d, 1, v1' % (B+5))
    k('v_lshl_add_u32 v%d, v%d, 4, v%d' % (B+4, B+5, B+4))
    k('v_bfe_u32 v%d, v1, 1, 1' % (B+5))
    k('v_lshl_add_u32 v%d, v%d, 3, v%d' % (B+4, B+5, B+4))
    k('v_add_u32 v%d, s57, v%d' % (B+4, B+4))
    k('v_lshrrev_b32 v%d, 4, v1' % (B+6))
    k('v_lshlrev_b32 v%d, 10, v%d' % (B+6, B+6))
    k('v_bfe_u32 v%d, v1, 3, 1' % (B+5))
    k('v_lshl_add_u32 v%d, v%d, 9, v%d' % (B+6, B+5, B+6))
    k('v_lshl_add_u32 v%d, v%d, 4, v%d' % (B+6, B+1, B+6))
    k('s_lshr_b32 s55, s50, 3')
    k('s_lshl_b32 s55, s55, 13')
    k('s_lshl_b32 s57, s56, 12')
    k('s_add_u32 s55, s55, s57')
    k('s_lshl_b32 s57, s53, 7')
    k('s_add_u32 s55, s55, s57')
    k('s_waitcnt vmcnt(%d)' % (1 + nmid if mid else 1))
    tr8x8(k, B+8, 1, 240, 241)
    k('buffer_store_dwordx4 %s, v%d, s[16:19], s55 offen %s' % (vr(B+8, 4), B+6, ST))
    k('s_waitcnt vmcnt(%d)' % (1 + nmid if mid else 1))
    k('ds_read_b64_tr_b16 %s, v%d' % (vr(B+12, 2), B+4))
    k('ds_read_b64_tr_b16 %s, v%d offset:512' % (vr(B+14, 2), B+4))
    k('v_lshlrev_b32 v%d, 4, v1' % (B+5))
    k('s_lshl_b32 s55, s50, 10')
    k('s_add_u32 s55, s55, 0x%x' % (WS_VF - WS_KF))
    k('s_waitcnt lgkmcnt(0)')
    k('buffer_store_dwordx4 %s, v%d, s[16:19], s55 offen %s' % (vr(B+12, 4), B+5, ST))

def ln_addr(k):
    k('v_lshrrev_b32 v2, 6, v0')
    k('v_and_b32 v3, 7, v1')
    k('v_lshrrev_b32 v4, 3, v1')
    k('v_lshrrev_b32 v5, 1, v4')
    k('v_lshlrev_b32 v5, 10, v5')
    k('v_and_b32 v6, 1, v4')
    k('v_lshl_add_u32 v5, v6, 9, v5')
    k('v_lshl_add_u32 v5, v3, 4, v5')
    k('v_lshl_add_u32 v5, v2, 14, v5')
    k('v_lshlrev_b32 v6, 11, v4')
    k('v_lshl_add_u32 v6, v3, 4, v6')
    k('v_lshl_add_u32 v6, v2, 9, v6')
    tr_addr(k, 240, 241)
    k('v_lshlrev_b32 v7, 4, v0')
    k('v_lshlrev_b32 v8, 10, v2')
    k('v_lshl_add_u32 v8, v4, 5, v8')
    k('v_add_u32 v8, %d, v8' % LN_LDS)
    k('v_add_u32 v11, %d, v7' % LN_LDS)
    k('v_lshlrev_b32 v9, 4, v3')
    k('v_add_u32 v9, %d, v9' % (LN_LDS + 12288))
    k('v_lshl_add_u32 v10, v2, 2, v9')
    k('s_lshl_b32 s45, s24, 5')
    k('s_lshl_b32 s46, s22, 3')
    k('s_add_u32 s45, s45, s46')
    k('s_add_u32 s45, s45, s25')
    k('s_lshr_b32 s40, s45, 2')
    k('s_lshl_b32 s40, s40, 16')
    k('s_and_b32 s46, s45, 3')
    k('s_lshl_b32 s46, s46, 7')
    k('s_add_u32 s40, s40, s46')
    for j in range(1, 4): k('s_add_u32 s%d, s40, %d' % (40+j, j*4096))
    k('s_lshl_b32 s44, s45, 14')

TR_LDS = 126976
def tr_addr(k, vw, vrd):
    k('v_lshrrev_b32 v%d, 3, v1' % vw)
    k('v_mul_u32_u24 v%d, 144, v%d' % (vw, vw))
    k('v_and_b32 v%d, 7, v1' % vrd)
    k('v_lshl_add_u32 v%d, v%d, 4, v%d' % (vw, vrd, vw))
    k('v_mul_u32_u24 v%d, 144, v%d' % (vrd, vrd))
    k('v_lshrrev_b32 v29, 3, v1')
    k('v_lshl_add_u32 v%d, v29, 4, v%d' % (vrd, vrd))
    k('s_mul_i32 s27, s26, 4608')
    k('s_add_u32 s27, s27, %d' % TR_LDS)
    k('v_add_u32 v%d, s27, v%d' % (vw, vw))
    k('v_add_u32 v%d, s27, v%d' % (vrd, vrd))
def tr8x8(k, base, n, vw, vrd):
    for j in range(n): k('ds_write_b128 v%d, %s offset:%d' % (vw, vr(base + 4*j, 4), j*1152))
    k('s_waitcnt lgkmcnt(0)')
    for j in range(n): k('ds_read_b128 %s, v%d offset:%d' % (vr(base + 4*j, 4), vrd, j*1152))
    k('s_waitcnt lgkmcnt(0)')

X_ = 32
RAW = 64
def ln_unpack(k, src):
    for j in range(4):
        for i in range(4):
            k('v_lshlrev_b32 v%d, 16, v%d' % (X_ + 8*j + 2*i, src + 4*j + i))
            k('v_and_b32 v%d, 0xffff0000, v%d' % (X_ + 8*j + 2*i + 1, src + 4*j + i))
def ln_stats(k):
    RED = 0
    k('v_add_f32 v24, v%d, v%d' % (X_, X_+1))
    k('v_add_f32 v25, v%d, v%d' % (X_+2, X_+3))
    for i in range(4, 32, 2):
        k('v_add_f32 v24, v24, v%d' % (X_+i))
        k('v_add_f32 v25, v25, v%d' % (X_+i+1))
    k('v_add_f32 v24, v24, v25')
    reduce8(k, 24, 25)
    k('ds_write_b32 v10, v24 offset:%d' % RED)
    k('s_waitcnt lgkmcnt(0)')
    k('s_barrier')
    k('ds_read_b128 v[24:27], v9 offset:%d' % RED)
    k('s_waitcnt lgkmcnt(0)')
    k('v_add_f32 v24, v24, v25')
    k('v_add_f32 v26, v26, v27')
    k('v_add_f32 v24, v24, v26')
    k('v_mul_f32 v24, 0x%x, v24' % f2u(1.0/1024))
    for i in range(32): k('v_sub_f32 v%d, v%d, v24' % (X_+i, X_+i))
    k('v_mul_f32 v24, v%d, v%d' % (X_, X_))
    k('v_mul_f32 v25, v%d, v%d' % (X_+1, X_+1))
    for i in range(2, 32, 2):
        k('v_fmac_f32 v24, v%d, v%d' % (X_+i, X_+i))
        k('v_fmac_f32 v25, v%d, v%d' % (X_+i+1, X_+i+1))
    k('v_add_f32 v24, v24, v25')
    reduce8(k, 24, 25)
    k('ds_write_b32 v10, v24 offset:%d' % (RED + 128))
    k('s_waitcnt lgkmcnt(0)')
    k('s_barrier')
    k('ds_read_b128 v[24:27], v9 offset:%d' % (RED + 128))
    k('s_waitcnt lgkmcnt(0)')
    k('v_add_f32 v24, v24, v25')
    k('v_add_f32 v26, v26, v27')
    k('v_add_f32 v24, v24, v26')
    k('v_mov_b32 v25, 0x%x' % f2u(1e-5))
    k('v_fmac_f32 v25, 0x%x, v24' % f2u(1.0/1024))
    k('v_rsq_f32 v28, v25')
    k('s_nop 0')
    for i in range(32): k('v_mul_f32 v%d, v%d, v28' % (X_+i, X_+i))
def mod_loads(k, vecs, npart, base_off, MV, pstride):
    srd(k, 8, PWS, 0x10000, base_off or None)
    for n, (c, isscale) in enumerate(vecs):
        for p in range(npart):
            k('s_mov_b32 s27, %d' % (p*pstride + c*4096))
            k('buffer_load_dwordx4 %s, v7, s[8:11], s27 offen %s' % (vr(MV + (n*npart + p)*4, 4), LD()))
def mod_to_lds(k, vecs, npart, MV, mulc=None):
    for n, (c, isscale) in enumerate(vecs):
        b = MV + n*npart*4
        for p in range(1, npart):
            for i in range(4): k('v_add_f32 v%d, v%d, v%d' % (b+i, b+i, b+4*p+i))
        def rnd():
            k('v_cvt_pk_bf16_f32 v%d, v%d, v%d' % (b+4, b, b+1))
            k('v_cvt_pk_bf16_f32 v%d, v%d, v%d' % (b+5, b+2, b+3))
            k('v_lshlrev_b32 v%d, 16, v%d' % (b, b+4))
            k('v_and_b32 v%d, 0xffff0000, v%d' % (b+1, b+4))
            k('v_lshlrev_b32 v%d, 16, v%d' % (b+2, b+5))
            k('v_and_b32 v%d, 0xffff0000, v%d' % (b+3, b+5))
        rnd()
        if isscale:
            for i in range(4): k('v_add_f32 v%d, 1.0, v%d' % (b+i, b+i))
            rnd()
        if mulc:
            for i in range(4): k('v_mul_f32 v%d, 0x%x, v%d' % (b+i, mulc, b+i))
        k('ds_write_b128 v11, %s offset:%d' % (vr(b, 4), n*4096))
def ln_apply_store(k, sh, sc, hoff):
    srd(k, 16, PWS, 0x400000, hoff)
    for j in range(4):
        k('ds_read_b128 v[16:19], v8 offset:%d' % (sc*4096 + j*256))
        k('ds_read_b128 v[20:23], v8 offset:%d' % (sc*4096 + j*256 + 16))
        k('ds_read_b128 v[96:99], v8 offset:%d' % (sh*4096 + j*256))
        k('ds_read_b128 v[100:103], v8 offset:%d' % (sh*4096 + j*256 + 16))
        k('s_waitcnt lgkmcnt(0)')
        for i in range(8): k('v_fma_f32 v%d, v%d, v%d, v%d' % (X_ + 8*j + i, X_ + 8*j + i, 16+i, 96+i))
        for i in range(4): k('v_cvt_pk_bf16_f32 v%d, v%d, v%d' % (104 + 4*j + i, X_ + 8*j + 2*i, X_ + 8*j + 2*i + 1))
        k('buffer_store_dwordx4 %s, v5, s[16:19], s%d offen %s' % (vr(104 + 4*j, 4), 40+j, ST))

TICKET_LDS = LN_LDS + 12288 + 512
def ticket_issue(k):
    lab = k.L('tk')
    k('s_getreg_b32 s3, hwreg(HW_REG_XCC_ID, 0, 4)')
    k('s_and_b32 s3, s3, 7')
    k('s_cmp_lg_u32 s26, 0')
    k('s_cbranch_scc1 %s' % lab)
    k('s_lshl_b32 s27, s3, 2')
    k('s_add_u32 s27, s27, 132')
    k('v_mov_b32 v2, s27')
    k('v_mov_b32 v3, 1')
    k('s_mov_b64 exec, 1')
    k('global_atomic_add v250, v2, v3, s[%d:%d] sc0 sc1' % (PDBG, PDBG+1))
    k('s_mov_b64 exec, -1')
    k.label(lab)
def ticket_publish(k, name):
    lab = k.L('tp'); ok = k.L('tok'); sp = k.L('tsp'); spd = k.L('tsd')
    k('s_cmp_lg_u32 s26, 0')
    k('s_cbranch_scc1 %s' % lab)
    k('s_waitcnt vmcnt(0)')
    k('v_readfirstlane_b32 s27, v250')
    k('s_mov_b32 s28, s3')
    k('s_cmp_lt_u32 s27, 32')
    k('s_cbranch_scc1 %s' % ok)
    k('s_mov_b64 exec, 1')
    k('v_mov_b32 v2, 0')
    k('s_mov_b32 s29, 0')
    k.label(sp)
    k('global_load_dwordx4 v[16:19], v2, s[%d:%d] offset:132 sc1' % (PDBG, PDBG+1))
    k('global_load_dwordx4 v[20:23], v2, s[%d:%d] offset:148 sc1' % (PDBG, PDBG+1))
    k('s_waitcnt vmcnt(0)')
    for i in range(8): k('v_readfirstlane_b32 s%d, v%d' % (50+i, 16+i))
    k('s_nop 3')
    k('s_mov_b32 s58, 0')
    for i in range(8): k('s_add_u32 s58, s58, s%d' % (50+i))
    k('s_add_u32 s29, s29, 1')
    k('s_cmp_ge_u32 s58, 256')
    k('s_cbranch_scc1 %s' % spd)
    k('s_cmp_ge_u32 s29, 0x40000')
    k('s_cbranch_scc1 %s' % spd)
    k('s_sleep 4')
    k('s_branch %s' % sp)
    k.label(spd)
    k('v_mov_b32 v2, 164')
    k('v_mov_b32 v3, 1')
    k('global_atomic_add v16, v2, v3, s[%d:%d] sc0 sc1' % (PDBG, PDBG+1))
    k('s_waitcnt vmcnt(0)')
    k('v_readfirstlane_b32 s29, v16')
    k('s_mov_b64 exec, -1')
    k('s_mov_b32 s28, 0')
    k('s_mov_b32 s27, 31')
    for i in range(8):
        nx = k.L('tn')
        k('s_min_u32 s58, s%d, 32' % (50+i))
        k('s_sub_u32 s59, 32, s58')
        k('s_cmp_lt_u32 s29, s59')
        k('s_cbranch_scc0 %s' % nx)
        k('s_mov_b32 s28, %d' % i)
        k('s_add_u32 s27, s58, s29')
        k('s_branch %s' % ok)
        k.label(nx)
        k('s_sub_u32 s29, s29, s59')
    k.label(ok)
    k('s_lshl_b32 s27, s27, 3')
    k('s_or_b32 s27, s27, s28')
    k('v_mov_b32 v2, %d' % TICKET_LDS)
    k('v_mov_b32 v3, s27')
    k('ds_write_b32 v2, v3')
    k('s_waitcnt lgkmcnt(0)')
    k.label(lab)
def ticket_fetch(k):
    k('v_mov_b32 v2, %d' % TICKET_LDS)
    k('ds_read_b32 v3, v2')
    k('s_mov_b32 s63, s24')
    k('s_waitcnt lgkmcnt(0)')
    k('v_readfirstlane_b32 s3, v3')
    k('s_nop 3')
    k('s_and_b32 s20, s3, 7')
    k('s_lshr_b32 s21, s3, 3')
    k('s_lshr_b32 s22, s20, 1')
    k('s_and_b32 s23, s20, 1')
    k('s_and_b32 s24, s21, 3')
    k('s_lshl_b32 s27, s23, 2')
    k('s_add_u32 s24, s24, s27')
    k('s_lshr_b32 s25, s21, 2')

def phase_p0(k, name):
    stamp_rt0(k, 'p0')
    stamp(k, 0)
    if MEGA: ticket_issue(k)
    def xloads():
        ln_addr(k)
        srd(k, 16, PX, 0x400000)
        for j in range(4): k('buffer_load_dwordx4 %s, v6, s[16:19], s44 offen offset:%d' % (vr(RAW + 4*j, 4), j*128))
    def s1addr():
        k('s_mov_b32 s6, s%d' % PDBG)
        k('s_mov_b32 s7, s%d' % (PDBG+1))
    def kvaddr():
        k('s_add_u32 s6, s%d, 4' % PDBG)
        k('s_addc_u32 s7, s%d, 0' % (PDBG+1))
    def wq_touch():
        lab = k.L('wq')
        k('s_cmp_eq_u32 s26, 0')
        k('s_cbranch_scc1 %s' % lab)
        srd(k, 16, PWQ, 1024*4096*2)
        k('v_lshrrev_b32 v15, 4, v0')
        k('v_and_b32 v12, 15, v0')
        k('v_lshlrev_b32 v15, 13, v15')
        k('v_lshl_add_u32 v15, v12, 7, v15')
        k('s_lshl_b32 s36, s21, 17')
        k('s_lshl_b32 s37, s22, 11')
        k('s_add_u32 s36, s36, s37')
        k('s_lshl_b32 s37, s23, 22')
        k('s_add_u32 s36, s36, s37')
        k('buffer_load_dword v13, v15, s[16:19], s36 offen')
        k('s_cmp_lg_u32 s26, 1')
        k('s_cbranch_scc1 %s' % lab)
        k('v_subrev_u32 v15, 0x8000, v15')
        k('buffer_load_dword v14, v15, s[16:19], s36 offen')
        k.label(lab)
    k('s_cmp_ge_u32 s2, 128')
    k('s_cbranch_scc1 %s_kv' % name)
    srd(k, 8, PWMOD, 1024*6144*2)
    srd(k, 12, PC_, 2048)
    k('s_and_b32 s38, s2, 31')
    k('s_lshr_b32 s39, s2, 5')
    k('s_lshl_b32 s47, s39, 8')
    k('s_lshl_b32 s48, s38, 7')
    k('s_lshl_b32 s49, s39, 13')
    k('s_lshl_b32 s38, s38, 8')
    k('s_add_u32 s49, s49, s38')
    gemv_load(k, 8, 47, 48)
    xloads()
    if OPT.get('p0st'): stamp(k, 1)
    if MEGA:
        lab = k.L('z')
        k('s_or_b32 s27, s2, s26')
        k('s_cmp_lg_u32 s27, 0')
        k('s_cbranch_scc1 %s' % lab)
        srd(k, 16, PWS, 192*128, WS_CNT)
        k('v_lshlrev_b32 v16, 7, v1')
        k('v_mov_b32 v17, 0')
        for z in range(3): k('buffer_store_dword v17, v16, s[16:19], 0 offen offset:0 %s' % ST) if z == 0 else (k('v_add_u32 v%d, %d, v16' % (18+z, 8192*z)), k('buffer_store_dword v17, v%d, s[16:19], 0 offen %s' % (18+z, ST)))
        k('s_waitcnt vmcnt(0)')
        k.label(lab)
    srd(k, 16, PWS, 0x8000, WS_MOD or None)
    gemv_compute(k, 8, 49, 16, LN_LDS, 4)
    if not OPT.get('p0st'): stamp(k, 1)
    arrive(k, s1addr, count=128, only_w0=True, flag_off=128)
    lab = k.L('w0'); k('s_cmp_eq_u32 s26, 0'); k('s_cbranch_scc1 %s' % lab); k('s_waitcnt vmcnt(0)'); k.label(lab)
    if OPT.get('p0st'): stamp(k, 4)
    k('s_branch %s_pf' % name)
    k.label(name + '_kv')
    kv_part(k, xloads, 4)
    if not MEGA:
        modb_addr(k, 128)
        gemv_load(k, 16, 47, 48)
        srd(k, 16, PWS, 0x8000, WS_MODB)
        gemv_compute(k, 16, 49, 16, LN_LDS, 0)
    stamp(k, 1)
    arrive(k, kvaddr)
    k.label(name + '_pf')
    if MEGA: ticket_publish(k, name)
    tr8x8(k, RAW, 4, 240, 241)
    ln_unpack(k, RAW)
    ln_stats(k)
    if MEGA: ticket_fetch(k)
    wq_touch()
    if not OPT.get('p0st'): stamp(k, 2)

def modb_addr(k, first):
    srd(k, 8, PWMOD, 1024*6144*2)
    srd(k, 12, PC_, 2048)
    k('s_sub_u32 s38, s2, %d' % first)
    k('s_lshr_b32 s39, s38, 6')
    k('s_and_b32 s38, s38, 63')
    k('s_lshl_b32 s47, s39, 9')
    k('s_lshl_b32 s48, s38, 7')
    k('s_add_u32 s48, s48, 4096')
    k('s_lshl_b32 s49, s39, 14')
    k('s_lshl_b32 s38, s38, 8')
    k('s_add_u32 s49, s49, s38')

def phase_ln1b(k):
    def s1addr():
        k('s_mov_b32 s6, s%d' % PDBG)
        k('s_mov_b32 s7, s%d' % (PDBG+1))
    waitfor(k, s1addr, 1, off=128)
    if not OPT.get('p0st'): stamp(k, 3)
    vecs = [(0, False), (1, True)]
    mod_loads(k, vecs, 4, WS_MOD, 96, 8192)
    k('s_waitcnt vmcnt(0)')
    mod_to_lds(k, vecs, 4, 96, f2u(128**-0.5 * LOG2E))
    k('s_waitcnt lgkmcnt(0)')
    k('s_barrier')
    ln_apply_store(k, 0, 1, WS_H)
    def a():
        k('s_add_u32 s27, s63, %d' % C_S2); cnt_addr(k, 27)
    arrive(k, a, count=32, flag_off=128)
    if not OPT.get('p0st'): stamp(k, 4)
    stamp_flush(k, 'p0', 5)

def phase_ln2(k, mode):
    stamp_rt0(k, mode)
    stamp(k, 0)
    ln_addr(k)
    vecs = [(0, False), (1, False), (2, True)] if mode == 'ln2' else [(3, False)]
    MV = 144
    if MEGA and mode == 'ln2':
        def s1b():
            k('s_mov_b32 s6, s%d' % PDBG); k('s_mov_b32 s7, s%d' % (PDBG+1))
        waitfor(k, s1b, 256, off=8)
    NPB = 4 if MEGA else 2
    if NPB == 4: MV = 168
    mod_loads(k, vecs, NPB, WS_MODB, MV, 16384)
    if mode == 'ln2':
        srd(k, 12, PX, 0x400000)
        for j in range(4): k('buffer_load_dwordx4 %s, v6, s[12:15], s44 offen offset:%d' % (vr(RAW + 4*j, 4), j*128))
    k('s_waitcnt vmcnt(%d)' % (4 if mode == 'ln2' else 0))
    mod_to_lds(k, vecs, NPB, MV)
    def a():
        k('s_add_u32 s27, s24, %d' % (C_S4 if mode == 'ln2' else C_S7)); cnt_addr(k, 27)
    k('s_waitcnt lgkmcnt(0)')
    if MEGA: waitfor(k, a, 1, off=128)
    else: k('s_barrier')
    stamp(k, 1)
    srd(k, 12, PWS, 0x1000000, WS_P1 if mode == 'ln2' else WS_P2)
    for j in range(4):
        for q in range(4):
            k('s_add_u32 s27, s%d, 0x%x' % (40+j, q*0x400000))
            k('buffer_load_dwordx4 %s, v5, s[12:15], s27 offen %s' % (vr(RAW + 16 + q*16 + 4*j, 4), LD()))
    if mode == 'final':
        srd(k, 8, PWS, 0x400000, WS_X1)
        for j in range(4): k('buffer_load_dwordx4 %s, v5, s[8:11], s%d offen %s' % (vr(RAW + 4*j, 4), 40+j, LD()))
        k('s_waitcnt vmcnt(0)')
        ln_unpack(k, RAW)
    else:
        k('s_waitcnt vmcnt(16)')
        tr8x8(k, RAW, 4, 240, 241)
        ln_unpack(k, RAW)
    for j in range(4):
        k('ds_read_b128 v[16:19], v8 offset:%d' % (j*256))
        k('ds_read_b128 v[20:23], v8 offset:%d' % (j*256 + 16))
        if mode == 'ln2': k('s_waitcnt vmcnt(%d)' % (12 - 4*j))
        for i in range(4):
            k('v_lshlrev_b32 v24, 16, v%d' % (RAW + 16 + 4*j + i))
            k('v_and_b32 v25, 0xffff0000, v%d' % (RAW + 16 + 4*j + i))
            for q in range(1, 4):
                k('v_lshlrev_b32 v26, 16, v%d' % (RAW + 16 + q*16 + 4*j + i))
                k('v_and_b32 v27, 0xffff0000, v%d' % (RAW + 16 + q*16 + 4*j + i))
                k('v_add_f32 v24, v24, v26')
                k('v_add_f32 v25, v25, v27')
            if i == 0: k('s_waitcnt lgkmcnt(0)')
            k('v_fmac_f32 v%d, v24, v%d' % (X_ + 8*j + 2*i, 16 + 2*i))
            k('v_fmac_f32 v%d, v25, v%d' % (X_ + 8*j + 2*i + 1, 17 + 2*i))
    for j in range(4):
        for i in range(4):
            k('v_cvt_pk_bf16_f32 v%d, v%d, v%d' % (RAW + 4*j + i, X_ + 8*j + 2*i, X_ + 8*j + 2*i + 1))
    if mode == 'final':
        srd(k, 12, POUT, 0x400000)
        tr8x8(k, RAW, 4, 240, 241)
        for j in range(4): k('buffer_store_dwordx4 %s, v6, s[12:15], s44 offen offset:%d' % (vr(RAW + 4*j, 4), j*128))
    else:
        srd(k, 16, PWS, 0x400000, WS_X1)
        for j in range(4): k('buffer_store_dwordx4 %s, v5, s[16:19], s%d offen %s' % (vr(RAW + 4*j, 4), 40+j, ST))
        ln_unpack(k, RAW)
        ln_stats(k)
        ln_apply_store(k, 1, 2, WS_H2)
        def a5():
            k('s_add_u32 s27, s24, %d' % C_S5); cnt_addr(k, 27)
        arrive(k, a5, count=32, flag_off=128)
    stamp(k, 2)
    stamp_flush(k, mode, 3)

def attn_setup(k):
    vL = [4, 5, 6, 7]; vX = [8, 9]; vW = [10, 11, 12, 13]
    ldw = 8192
    k('s_lshl_b32 s35, s22, 3')
    k('s_add_u32 s35, s35, s25')
    k('s_mov_b32 s62, s35')
    lds_addr_128(k, vL, tmp=40)
    k('v_lshlrev_b32 v8, 4, v1')
    k('v_add_u32 v9, 0x10000, v8')
    k('s_lshl_b32 s28, s62, 8')
    w128_voffsets(k, vW, ldw, 28, 40)
    srd(k, 8, PWS, 0x400000, WS_H)
    srd(k, 12, PWQ, 0x800000)
    k('s_lshl_b32 s27, s24, 3')
    k('s_lshl_b32 s28, s26, 1')
    k('s_add_u32 s34, s27, s28')
    k('s_lshl_b32 s30, s34, 16')
    k('s_sub_u32 s30, s30, 4096')
    k('s_mov_b32 s31, 0x%x' % ((-64*ldw) & 0xffffffff))
    k('s_lshl_b32 s32, s26, 12')
    return vL, vX, vW, ldw

def phase_attn(k, name, next_prefetch=None):
    stamp_rt0(k, 'attn')
    if not OPT.get('tailst'): stamp(k, 0)
    vL, vX, vW, ldw = attn_setup(k)
    KSLOT = [65536, 81920, 98304, 0, 16384]
    VSLOT = [114688, 131072, 147456, 32768, 49152]
    FLAG = 33792
    QF = lambda mb, ks: 64 + (mb*8 + ks)*4
    SB = lambda par, mb: 128 + (par*2 + mb)*16
    PB = lambda par, mb, kk: 192 + ((par*2 + mb)*2 + kk)*4
    CB = lambda mb: 224 + mb*16
    def OA(db, mb):
        i = db*2 + mb
        return i*16 if i < 6 else 192 + (i-6)*16
    KF = lambda ks: 128 + ks*4
    VF = lambda q: 160 + q*4
    LS = lambda mb, p: 33 + mb*2 + p
    MG = lambda mb: 37 + mb
    KT = (36, 37, 38, 39, 40); VT = (41, 42, 43, 29, 35)
    TT = (8, 9, 10, 12, 13, 14, 54, 55, 56, 57, 61, 63)
    kvflag = LD()
    def kdma(soff, pre0, tagid):
        return [(pre0 if i == 0 else [], 'buffer_load_dwordx4 v28, s[44:47], s%d offen offset:%d %s lds' % (soff, i*1024, kvflag), ('K', tagid, i)) for i in range(4)]
    def vdma(soff, pre0, tagid):
        return [(pre0 if i == 0 else [], 'buffer_load_dwordx4 v28, s[48:51], s%d offen offset:%d %s lds' % (soff, i*1024, kvflag), ('V', tagid, i)) for i in range(4)]
    def dma_list(lst):
        ops = []
        for (kind, s_) in lst:
            if kind == 'K': ops += kdma(52, ['s_mov_b32 s52, %d' % (s_*16384), 's_add_u32 m0, s32, %d' % KSLOT[s_ % 5]], s_)
            else: ops += vdma(53, ['s_mov_b32 s53, %d' % (s_*16384), 's_add_u32 m0, s32, %d' % VSLOT[s_ % 5]], s_)
        return ops
    def initial_dmas(): return dma_list([('K', 0), ('V', 0), ('K', 1), ('V', 1), ('K', 2), ('V', 2)])
    ini = initial_dmas()
    zero_list = ['v_accvgpr_write_b32 a%d, 0' % r for r in list(range(192, 224)) + list(range(0, 96))]
    def extra(t, j):
        out = []
        order = [(12, 3)] + [(tt, jj) for tt in (13, 14, 15) for jj in range(4)]
        if (t, j) in order:
            p = order.index((t, j))
            out += ini[(p*len(ini))//13:((p+1)*len(ini))//13]
        if t in (12, 13, 14, 15):
            z = zero_list[(t-12)*32:(t-11)*32]
            out += z[j*8:(j+1)*8]
        return out
    g = Gemm(k, 4, 16, acc=128, xr=0, wf=128, vX=vX, vW=vW, sXsrd=8, sWsrd=12, sXoff=30, sWoff=31, sM0=32, sCnt=33,
             stage_bytes=16384, ldw_step=64*ldw, nW=4,
             lds_imm=lambda buf, j, nb, sec: (vL[nb], buf*16384 + j*4096 + sec*1024), extra=extra, xflag=LD())
    if MEGA: g.prologue_w()
    k('s_lshl_b32 s27, s26, 12')
    k('v_add_u32 v28, s27, v8')
    k('v_add_u32 v16, %d, v8' % KSLOT[0])
    k('v_add_u32 v17, %d, v8' % VSLOT[0])
    k('v_lshlrev_b32 v18, 7, v1')
    k('s_lshl_b32 s27, s26, 13')
    k('v_add_u32 v18, s27, v18')
    k('s_lshl_b32 s27, s22, 17')
    k('s_add_u32 s28, s27, 0x%x' % WS_KF)
    srd_s(k, 44, PWS, 28, 0x20000)
    k('s_add_u32 s28, s27, 0x%x' % WS_VF)
    srd_s(k, 48, PWS, 28, 0x20000)
    k('v_mov_b32 v%d, 0xff800000' % MG(0))
    k('v_mov_b32 v%d, 0xff800000' % MG(1))
    k('s_mov_b32 s59, 0')
    if MEGA:
        def a():
            k('s_add_u32 s27, s24, %d' % C_S2); cnt_addr(k, 27)
        def kvw():
            k('s_mov_b32 s6, s%d' % PDBG); k('s_mov_b32 s7, s%d' % (PDBG+1))
        waitfor(k, kvw, 128, off=4)
        waitfor(k, a, 1, off=128)
        g.prologue_x()
    else:
        g.prologue_mixed()
    if not OPT.get('tailst'): stamp(k, 1)
    g.start()
    def epiQ(nb):
        out = []
        for mb in range(2):
            a = g.accr(nb, mb)
            for hh in range(2):
                for r in range(4):
                    out.append('v_cvt_pk_bf16_f32 v%d, v%d, v%d' % (QF(mb, 2*nb+hh) + r, a + hh*8 + 2*r, a + hh*8 + 2*r + 1))
        return out
    g.mainloop(epiQ, tail=1)
    if not OPT.get('tailst'): stamp(k, 2)
    k('s_mul_i32 s27, s%d, 28672' % (3 if MEGA else 2))
    for n_, (lo, sz, add) in enumerate([(PWG, 1024*3584*2, 0), (PWG, 1024*3584*2, 4096), (PWU, 1024*3584*2, 0), (PWU, 1024*3584*2, 4096)]):
        k('s_add_u32 s28, s27, %d' % add)
        k('s_add_u32 s%d, s%d, s28' % (TT[3*n_], lo))
        k('s_addc_u32 s%d, s%d, 0' % (TT[3*n_+1], lo+1))
        k('s_sub_u32 s%d, 0x%x, s28' % (TT[3*n_+2], sz))
    n = k.vm_wait_n(lambda tg: tg[0] in 'KV' and tg[1] == 0)
    k('s_waitcnt vmcnt(%d)' % n)
    k.label(name + '_pro')
    k('s_barrier')
    for i_ in range(5):
        k('s_mov_b32 s%d, %d' % (KT[i_], KSLOT[i_]))
        k('s_mov_b32 s%d, %d' % (VT[i_], VSLOT[i_]))
    for ks in range(8): k('ds_read_b128 %s, v16 offset:%d' % (ar(KF(ks), 4), ks*1024))
    for mb in range(2):
        for p in range(2): k('v_mov_b32 v%d, 0' % LS(mb, p))
    k('s_waitcnt lgkmcnt(0)')
    for mb in range(2):
        for ks in range(8):
            d = vr(SB(0, mb), 16)
            k('%s %s, %s, %s, %s' % (MFMA, d, ar(KF(ks), 4), vr(QF(mb, ks), 4), '0' if ks == 0 else d))
    k('s_nop 3')
    k('s_nop 7')
    for mb in range(2):
        s0 = SB(0, mb); m = 40 + mb
        k('v_max3_f32 v%d, v%d, v%d, v%d' % (m, s0, s0+1, MG(mb)))
        for r in range(2, 16, 2): k('v_max3_f32 v%d, v%d, v%d, v%d' % (m, m, s0+r, s0+r+1))
    k('v_mov_b32 v42, v40')
    k('v_mov_b32 v43, v41')
    k('s_nop 1')
    k('v_permlane32_swap_b32 v40, v42')
    k('v_permlane32_swap_b32 v41, v43')
    k('s_nop 1')
    k('v_max_f32 v40, v40, v42')
    k('v_max_f32 v41, v41, v43')
    for mb in range(2):
        for r in range(16): k('v_sub_f32 v%d, 0, v%d' % (CB(mb) + r, 40+mb))
        for r in range(16): k('v_sub_f32 v%d, v%d, v%d' % (SB(0, mb) + r, SB(0, mb) + r, 40+mb))
    if not OPT.get('tailst'): stamp(k, 3)

    def pair_ops(par, p):
        mb, pp = p // 8, p % 8
        s0 = SB(par, mb); a, b = s0 + 2*pp, s0 + 2*pp + 1
        E = ['v_exp_f32 v%d, v%d' % (a, a), 'v_exp_f32 v%d, v%d' % (b, b)]
        A_ = ['v_add_f32 v%d, v%d, v%d' % (LS(mb, 0), LS(mb, 0), a), 'v_add_f32 v%d, v%d, v%d' % (LS(mb, 1), LS(mb, 1), b)]
        C_ = ['v_cvt_pk_bf16_f32 v%d, v%d, v%d' % (PB(par, mb, pp // 4) + pp % 4, a, b)]
        return E, A_, C_
    def iteration(par, do_pv, do_s, kread_kb, vread_kb, carry_in, gap_extra=None):
        gap_extra = gap_extra or {}
        mf = []
        if do_pv:
            for kk in range(2):
                for db in range(4):
                    for mb in range(2):
                        d = ar(OA(db, mb), 16)
                        mf.append('%s %s, %s, %s, %s' % (MFMA, d, ar(VF(kk*4+db), 4), vr(PB(1-par, mb, kk), 4), d))
        else: mf += [None]*16
        if do_s:
            for mb in range(2):
                for ks in range(8):
                    d = vr(SB(1-par, mb), 16)
                    mf.append('%s %s, %s, %s, %s' % (MFMA, d, ar(KF(ks), 4), vr(QF(mb, ks), 4), vr(CB(mb), 16) if ks == 0 else d))
        else: mf += [None]*16
        pre = {0: ['s_waitcnt lgkmcnt(2)'] if do_pv else []}
        nk = 8 if kread_kb is not None else 0
        if do_pv: pre[12] = ['s_waitcnt lgkmcnt(%d)' % (6 if nk else 0)]
        if do_s:
            pre[16] = ['s_waitcnt lgkmcnt(2)']
            pre[22] = ['s_waitcnt lgkmcnt(3)']
        for g_ in range(32):
            for x in pre.get(g_, []): k(x)
            if mf[g_]: k(mf[g_])
            p = g_ // 2
            if g_ % 2 == 0:
                for x in pair_ops(par, p)[0]: k(x)
                if p >= 1: k(pair_ops(par, p-1)[2][0])
                elif carry_in: k(pair_ops(1-par, 15)[2][0])
            else:
                if p >= 1:
                    for x in pair_ops(par, p-1)[1]: k(x)
                elif carry_in:
                    for x in pair_ops(1-par, 15)[1]: k(x)
                if g_ < 16:
                    if kread_kb is not None: k('ds_read_b128 %s, v16 offset:%d' % (ar(KF(p), 4), kread_kb*8192 + p*1024))
                else:
                    k('ds_read_b128 %s, v17 offset:%d' % (ar(VF(p-8), 4), vread_kb*8192 + (p-8)*1024))
            for x in gap_extra.get(g_, []):
                if isinstance(x, str): k(x)
                else:
                    pre_, ins, tag = x[0], x[1], x[2]
                    for p_ in pre_: k(p_)
                    if pre_ and 'm0' in pre_[-1]: k('s_nop 0')
                    k.vm(ins, tag)
                    if len(x) > 3:
                        for p_ in x[3]: k(p_)
    def touch(half):
        pre = ['s_mov_b32 s16, s%d' % TT[0], 's_mov_b32 s17, s%d' % TT[1], 's_mov_b32 s18, s%d' % TT[2], 's_mov_b32 s19, 0x20000']
        if half: pre += ['s_mov_b32 exec_hi, 0']
        return (pre, 'buffer_load_dword v19, v18, s[16:19], 0 offen', ('T', 0, 0), ['s_mov_b32 exec_hi, -1'] if half else [])
    sh = ['s_mov_b32 s%d, s%d' % (TT[n_], TT[n_+3]) for n_ in range(9)]
    g0 = {}
    for i_, op in enumerate(dma_list([('K', 3), ('V', 3), ('K', 4)])): g0.setdefault(1 + i_, []).append(op)
    g0.setdefault(20, []).extend(['s_mov_b32 s52, %d' % (5*16384), 's_mov_b32 s53, %d' % (4*16384)])
    iteration(0, False, True, 1, 0, False, g0)
    def rot(T): return ['s_mov_b32 s58, s%d' % T[0]] + ['s_mov_b32 s%d, s%d' % (T[i_], T[i_+1]) for i_ in range(4)] + ['s_mov_b32 s%d, s58' % T[4]]
    def trip(with_dma):
        ge = {0: ['v_add_u32 v16, s%d, v8' % KT[1]]}
        if with_dma:
            ge[0] += ['s_waitcnt vmcnt(20)', 's_barrier']
            dm = vdma(53, ['s_add_u32 m0, s32, s%d' % VT[4]], 'n') + kdma(52, ['s_add_u32 m0, s32, s%d' % KT[0]], 'n')
            for i_, op in enumerate(dm): ge.setdefault(2 + 2*i_, []).append(op)
            ge.setdefault(27, []).extend(['s_add_u32 s52, s52, 16384', 's_add_u32 s53, s53, 16384'])
            if not OPT.get('notouch'):
                ge.setdefault(19, []).append(touch(True))
                ge.setdefault(21, []).extend(sh[:5]); ge.setdefault(23, []).extend(sh[5:])
        elif not OPT.get('notouch'):
            ge.setdefault(2, []).append(touch(False))
            ge.setdefault(5, []).extend(sh[:5]); ge.setdefault(7, []).extend(sh[5:])
        ge.setdefault(29, []).extend(rot(KT))
        iteration(1, True, True, 0, 1, True, ge)
        ge2 = {2: ['v_add_u32 v17, s%d, v8' % VT[1]], 4: rot(VT), 31: ['s_sub_u32 s60, s60, 1', 's_cmp_lg_u32 s60, 0']}
        iteration(0, True, True, 1, 0, True, ge2)
    k('s_mov_b32 s60, 4')
    lab = k.L('aloop'); k.label(lab)
    trip(True)
    k('s_cbranch_scc1 %s' % lab)
    k('s_mul_i32 s27, s%d, 28672' % (3 if MEGA else 2))
    k('s_add_u32 s%d, s%d, s27' % (TT[0], PWD))
    k('s_addc_u32 s%d, s%d, 0' % (TT[1], PWD+1))
    k('s_sub_u32 s%d, 0x%x, s27' % (TT[2], 3584*1024*2))
    k('s_lshl_b32 s27, s20, 20')
    k('s_lshl_b32 s28, s21, 15')
    k('s_add_u32 s27, s27, s28')
    k('s_add_u32 s%d, s%d, s27' % (TT[3], PWO))
    k('s_addc_u32 s%d, s%d, 0' % (TT[4], PWO+1))
    k('s_mov_b32 s%d, 0x8000' % TT[5])
    for n_ in (2, 3):
        k('s_mov_b32 s%d, s%d' % (TT[3*n_], PWS))
        k('s_mov_b32 s%d, s%d' % (TT[3*n_+1], PWS+1))
        k('s_mov_b32 s%d, 0' % TT[3*n_+2])
    k('s_waitcnt vmcnt(%d)' % (0 if OPT.get('notouch') else 1))
    k('s_barrier')
    if MEGA: code_touch(k, name + '_L_oproj', name + '_L_gateup', 30)
    k('s_mov_b32 s60, 3')
    lab = k.L('bloop'); k.label(lab)
    trip(False)
    k('s_cbranch_scc1 %s' % lab)
    g15 = {}
    if MEGA:
        pre15 = ['s_mov_b32 s8, s%d' % PWMOD, 's_mov_b32 s9, s%d' % (PWMOD+1), 's_mov_b32 s10, 0x%x' % (1024*6144*2), 's_mov_b32 s11, 0x20000',
                 's_mov_b32 s12, s%d' % PC_, 's_mov_b32 s13, s%d' % (PC_+1), 's_mov_b32 s14, 2048', 's_mov_b32 s15, 0x20000',
                 's_lshr_b32 s52, s2, 6', 's_and_b32 s53, s2, 63', 's_lshl_b32 s54, s52, 14', 's_lshl_b32 s55, s53, 8', 's_add_u32 s54, s54, s55',
                 's_lshl_b32 s52, s52, 8', 's_lshl_b32 s53, s53, 7', 's_add_u32 s53, s53, 4096']
        gl = gemv_load(k, 8, 52, 53, AD=48, C=52, LDB=128, emit=False)
        items = pre15 + gl
        for i_, x in enumerate(items): g15.setdefault(2 + (i_ * 24) // len(items), []).append(x)
    iteration(1, True, False, None, 1, True, g15)
    for x in pair_ops(1, 15)[1] + pair_ops(1, 15)[2]: k(x)
    k('v_add_f32 v40, v%d, v%d' % (LS(0, 0), LS(0, 1)))
    k('v_add_f32 v41, v%d, v%d' % (LS(1, 0), LS(1, 1)))
    k('v_mov_b32 v42, v40')
    k('v_mov_b32 v43, v41')
    k('s_nop 1')
    k('v_permlane32_swap_b32 v40, v42')
    k('v_permlane32_swap_b32 v41, v43')
    k('s_nop 1')
    k('v_add_f32 v40, v40, v42')
    k('v_add_f32 v41, v41, v43')
    k('v_mov_b32 v43, 0x%x' % f2u(2.0**100))
    k('v_cmp_nlt_f32 vcc, v40, v43')
    k('v_cmp_nlt_f32 s[6:7], v41, v43')
    k('v_rcp_f32 v40, v40')
    k('v_rcp_f32 v41, v41')
    k('s_or_b64 vcc, vcc, s[6:7]')
    k('s_cmp_lg_u64 vcc, 0')
    k('s_cselect_b32 s58, 1, 0')
    k('v_mov_b32 v43, s58')
    k('s_lshl_b32 s58, s26, 2')
    k('s_add_u32 s58, s58, %d' % FLAG)
    k('v_mov_b32 v44, s58')
    k('ds_write_b32 v44, v43')
    srd(k, 16, PWS, 0x1000000, WS_O)
    k('s_lshl_b32 s27, s34, 8')
    k('s_lshl_b32 s28, s62, 3')
    k('s_add_u32 s27, s27, s28')
    k('s_lshl_b32 s60, s27, 10')
    k('s_add_u32 s61, s60, 0x40000')
    k('v_add_u32 v20, 4096, v8')
    k('s_waitcnt lgkmcnt(0)')
    stamp(k, 4 if not OPT.get('tailst') else 0)
    order = [(db, mb) for db in range(4) for mb in range(2)]
    def epiO(i):
        db, mb = order[i]; a = OA(db, mb); out = []
        for hh in range(2):
            t = (224, 240, 192)[(2*i + hh) % 3]
            out += ['v_accvgpr_read_b32 v%d, a%d' % (t+r, a + hh*8 + r) for r in range(8)]
            out += ['v_mul_f32 v%d, v%d, v%d' % (t+r, t+r, 40+mb) for r in range(8)]
            out += ['v_cvt_pk_bf16_f32 v%d, v%d, v%d' % (t+8+r, t+2*r, t+2*r+1) for r in range(4)]
            ks = 2*db + hh
            out.append('buffer_store_dwordx4 %s, v%d, s[16:19], s%d offen offset:%d %s' % (vr(t+8, 4), 8 if ks < 4 else 20, 60+mb, (ks % 4)*1024, '' if OPT.get('plainO') else ST))
        return out
    M = []
    for i, (db, mb) in enumerate(order):
        d = ar(OA(db, mb), 16)
        for kk in range(2):
            M.append('%s %s, %s, %s, %s' % (MFMA, d, ar(VF(kk*4+db), 4), vr(PB(1, mb, kk), 4), d))
    for idx in range(6): k(M[idx])
    k('s_nop 7')
    for i in range(8):
        for x in epiO(i): k(x)
        for idx in (2*i+6, 2*i+7):
            if idx < 16: k(M[idx])
    if OPT.get('tailst'): stamp(k, 1)
    k('s_barrier')
    k('v_mov_b32 v44, %d' % FLAG)
    k('ds_read_b128 v[44:47], v44')
    k('s_waitcnt lgkmcnt(0)')
    k('v_or3_b32 v44, v44, v45, v46')
    k('v_or_b32 v44, v44, v47')
    k('s_nop 0')
    k('v_readfirstlane_b32 s58, v44')
    k('s_nop 3')
    k('s_cmp_lg_u32 s59, 0')
    k('s_cbranch_scc1 %s_fin' % name)
    k('s_cmp_lg_u32 s58, 0')
    k('s_cbranch_scc1 %s_slow' % name)
    k.label(name + '_fin')
    def post():
        srd(k, 16, PWS, 0x10000, WS_MODB)
        gemv_compute(k, 8, 54, 16, 65536, 24, B=192, C=52, LDB=128)
        lab = k.L('mb')
        k('s_cmp_lg_u32 s26, 0')
        k('s_cbranch_scc1 %s' % lab)
        k('s_waitcnt vmcnt(0)')
        k('v_mov_b32 v2, 8')
        k('v_mov_b32 v3, 1')
        k('s_mov_b64 exec, 1')
        k('global_atomic_add v2, v3, s[%d:%d] sc1' % (PDBG, PDBG+1))
        k('s_mov_b64 exec, -1')
        k.label(lab)
    def slow():
        k.label(name + '_slow')
        k('s_mov_b32 s59, 1')
        k('s_lshl_b32 s27, s22, 17')
        k('s_add_u32 s28, s27, 0x%x' % WS_KF)
        srd_s(k, 44, PWS, 28, 0x20000)
        k('s_mov_b32 s58, 0')
        lab2 = k.L('slow'); k.label(lab2)
        k('s_add_u32 s27, s58, 4096')
        for ks in range(8): k('buffer_load_dwordx4 %s, v8, s[44:47], s%d offen offset:%d %s' % (ar(KF(ks), 4), 58 if ks < 4 else 27, (ks % 4)*1024, kvflag))
        k('s_waitcnt vmcnt(0)')
        for mb in range(2):
            for ks in range(8):
                d = vr(SB(0, mb), 16)
                k('%s %s, %s, %s, %s' % (MFMA, d, ar(KF(ks), 4), vr(QF(mb, ks), 4), '0' if ks == 0 else d))
        k('s_nop 7')
        k('s_nop 7')
        for mb in range(2):
            s0 = SB(0, mb)
            for r in range(0, 16, 2): k('v_max3_f32 v%d, v%d, v%d, v%d' % (MG(mb), MG(mb), s0+r, s0+r+1))
        k('s_add_u32 s58, s58, 8192')
        k('s_cmp_lt_u32 s58, 0x20000')
        k('s_cbranch_scc1 %s' % lab2)
        k('v_add_u32 v16, %d, v8' % KSLOT[0])
        k('v_add_u32 v17, %d, v8' % VSLOT[0])
        for db in range(4):
            for mb in range(2):
                for r in range(16): k('v_accvgpr_write_b32 a%d, 0' % (OA(db, mb) + r))
        for n_ in range(4):
            k('s_mov_b32 s%d, s%d' % (TT[3*n_], PWS))
            k('s_mov_b32 s%d, s%d' % (TT[3*n_+1], PWS+1))
            k('s_mov_b32 s%d, 0' % TT[3*n_+2])
        k('s_barrier')
        for pre, ins, tag in initial_dmas():
            for p_ in pre: k(p_)
            if pre: k('s_nop 0')
            k(ins)
        k('s_waitcnt vmcnt(0)')
        k('s_branch %s_pro' % name)
    return slow, post

GU_STG = 28928; GU_UP = 14464
def gateup_setup(k, init_state=True):
    vL = [4, 5]; vX = [8, 9]; vW = [10, 11, 12, 13, 14, 15, 16]
    k('s_lshl_b32 s35, s22, 3')
    k('s_add_u32 s35, s35, s25')
    k('v_lshrrev_b32 v20, 5, v1')
    k('v_lshlrev_b32 v20, 3, v20')
    k('v_bfe_u32 v21, v1, 2, 2')
    k('v_add_u32 v20, v20, v21')
    k('v_mul_u32_u24 v20, 224, v20')
    k('v_bfe_u32 v21, v1, 4, 1')
    k('v_mul_u32_u24 v21, %d, v21' % GU_UP)
    k('v_add_u32 v20, v20, v21')
    k('v_and_b32 v21, 1, v1')
    k('v_lshl_add_u32 v20, v21, 4, v20')
    k('v_bfe_u32 v21, v1, 1, 1')
    k('v_lshl_add_u32 v4, v21, 3, v20')
    k('v_add_u32 v5, %d, v4' % (2*GU_STG))
    k('v_lshlrev_b32 v8, 4, v1')
    k('v_add_u32 v9, 0x10000, v8')
    k('s_and_b32 s27, s26, 1')
    k('s_mul_i32 s28, s27, 448')
    k('s_mul_i32 s29, s35, 224')
    for i in range(7):
        k('v_add_u32 v20, s28, v1')
        if i: k('v_add_u32 v20, %d, v20' % (64*i))
        k('v_mul_u32_u24 v21, 4682, v20')
        k('v_lshrrev_b32 v21, 16, v21')
        k('v_mul_u32_u24 v22, 14, v21')
        k('v_sub_u32 v22, v20, v22')
        k('v_mul_u32_u24 v21, 7168, v21')
        k('v_lshl_add_u32 v21, v22, 4, v21')
        k('v_add_u32 v21, s29, v21')
        k('v_subrev_u32 v%d, %d, v21' % (vW[i], (i % 4)*1024))
    srd(k, 8, PWS, 0x400000, WS_H2)
    k('s_cmp_ge_u32 s26, 2')
    k('s_cselect_b32 s12, s%d, s%d' % (PWU, PWG))
    k('s_cselect_b32 s13, s%d, s%d' % (PWU+1, PWG+1))
    k('s_mov_b32 s14, 0x%x' % (1024*7168))
    k('s_mov_b32 s15, 0x20000')
    k('s_lshl_b32 s27, s24, 3')
    k('s_lshl_b32 s28, s26, 1')
    k('s_add_u32 s34, s27, s28')
    if init_state:
        k('s_lshl_b32 s30, s34, 16')
        k('s_sub_u32 s30, s30, 4096')
        k('s_mov_b32 s31, 0x%x' % ((-64*7168) & 0xffffffff))
    k('s_lshr_b32 s27, s26, 1')
    k('s_mul_i32 s32, s27, %d' % GU_UP)
    k('s_and_b32 s27, s26, 1')
    k('s_mul_i32 s27, s27, 7168')
    k('s_add_u32 s32, s32, s27')
    return vL, vX, vW

def gateup_gemm(k, regs, extra=None):
    vL, vX, vW = regs
    return Gemm(k, 7, 16, acc=32, xr=0, wf=128, vX=vX, vW=vW, sXsrd=8, sWsrd=12, sXoff=30, sWoff=31, sM0=32, sCnt=33,
             stage_bytes=GU_STG, ldw_step=64*7168, nW=7,
             lds_imm=lambda buf, j, nb, sec: (vL[buf // 2], (buf % 2)*GU_STG + j*3584 + sec*896 + nb*32), extra=extra, xflag=LD())

def gateup_main(k, g, next_prefetch=None):
    srd(k, 16, PWS, 2048*3584*2, WS_ACT)
    k('s_mul_i32 s27, s34, 224')
    k('s_mul_i32 s28, s35, 7')
    k('s_add_u32 s27, s27, s28')
    k('s_lshl_b32 s36, s27, 10')
    k('s_add_u32 s37, s36, %d' % (224*1024))
    k('s_mov_b32 s40, 0x%x' % f2u(-LOG2E))
    k('s_mov_b32 s41, 0x%x' % f2u(-LOG2E))
    k('v_add_u32 v31, 4096, v8')
    k('v_mov_b32 v30, v8')
    k('v_mov_b32 v29, 0x%x' % f2u(-LOG2E))
    stamp(k, 1)
    g.start()
    stamp(k, 2)
    def epi(b):
        out = []
        for mb in range(2):
            a = g.accr(b, mb)
            t = 17 + mb*4
            for h in range(2):
                e = a + 4*h
                out += ['v_mul_f32 v%d, v29, v%d' % (t+i, e+i) for i in range(4)]
                out += ['v_exp_f32 v%d, v%d' % (t+i, t+i) for i in range(4)]
                out += ['v_mul_f32 v%d, v%d, v%d' % (e+i, e+i, e+8+i) for i in range(4)]
                out += ['v_add_f32 v%d, 1.0, v%d' % (t+i, t+i) for i in range(4)]
                out += ['v_rcp_f32 v%d, v%d' % (t+i, t+i) for i in range(4)]
                out += ['s_nop 0']
                out += ['v_mul_f32 v%d, v%d, v%d' % (e+i, e+i, t+i) for i in range(4)]
            out += ['v_cvt_pk_bf16_f32 v%d, v%d, v%d' % (a+8+i, a+2*i, a+2*i+1) for i in range(4)]
            out.append(([], 'buffer_store_dwordx4 %s, v%d, s[16:19], s%d offen offset:%d %s' % (vr(a+8, 4), 30 if b < 4 else 31, 36+mb, (b % 4)*1024, '' if OPT.get('plainO') else ST), ('S', 0, 0)))
        return out
    g.mainloop(epi)
    stamp(k, 3)
    if next_prefetch: next_prefetch()

def resume_m0(k, g):
    k('s_add_u32 m0, s%d, 0x%x' % (g.sM0, 2*g.stage))

def build():
    kerns = []
    if MEGA:
        name = NAME + '_kernel'
        k = Kern(name, nvgpr=512, accum=256, nsgpr=102, lds=163840)
        def early():
            code_touch(k, name + '_c1', name + '_cend', 30)
            k.label(name + '_c1')
        header(k, name, early)
        phase_p0(k, name)
        phase_ln1b(k)
        slow, post = phase_attn(k, name)
        def a3():
            k('s_lshl_b32 s27, s24, 2'); k('s_add_u32 s27, s27, s22'); k('s_add_u32 s27, s27, %d' % C_S3); cnt_addr(k, 27)
        arrive(k, a3, count=8, flag_off=128)
        g = gemm128_setup(k, 'oproj'); g.prologue_w()
        post()
        stamp_flush(k, 'attn', 5)
        k.label(name + '_L_oproj')
        stamp_rt0(k, 'oproj'); stamp(k, 0)
        waitfor(k, a3, 1, off=128)
        resume_m0(k, g)
        g.prologue_x()
        gemm128_main(k, 'oproj', g)
        def a4():
            k('s_add_u32 s27, s24, %d' % C_S4); cnt_addr(k, 27)
        arrive(k, a4, count=32, flag_off=128)
        regs = gateup_setup(k)
        gg = gateup_gemm(k, regs)
        gg.prologue_w()
        code_touch(k, name + '_L_gateup', name + '_L_down', 30)
        stamp_flush(k, 'oproj', 4)
        phase_ln2(k, 'ln2')
        k.label(name + '_L_gateup')
        stamp_rt0(k, 'gateup'); stamp(k, 0)
        gateup_setup(k, init_state=False)
        def a5():
            k('s_add_u32 s27, s24, %d' % C_S5); cnt_addr(k, 27)
        waitfor(k, a5, 1, off=128)
        resume_m0(k, gg)
        gg.prologue_x()
        gateup_main(k, gg)
        def a6():
            k('s_lshl_b32 s27, s24, 2'); k('s_add_u32 s27, s27, s22'); k('s_add_u32 s27, s27, %d' % C_S6); cnt_addr(k, 27)
        arrive(k, a6, count=8, flag_off=128)
        g = gemm128_setup(k, 'down'); g.prologue_w()
        code_touch(k, name + '_L_down', name + '_cend', 60)
        stamp_flush(k, 'gateup', 4)
        k.label(name + '_L_down')
        stamp_rt0(k, 'down'); stamp(k, 0)
        waitfor(k, a6, 1, off=128)
        resume_m0(k, g)
        g.prologue_x()
        gemm128_main(k, 'down', g)
        def a7():
            k('s_add_u32 s27, s24, %d' % C_S7); cnt_addr(k, 27)
        arrive(k, a7, count=32, flag_off=128)
        stamp_flush(k, 'down', 4)
        phase_ln2(k, 'final')
        k('s_endpgm')
        slow()
        k.label(name + '_cend')
        k.label(name + '_end')
        k('s_endpgm')
        kerns.append(k)
    else:
        def kern(nm, lds):
            k = Kern(nm, nvgpr=512, accum=256, nsgpr=102, lds=lds); header(k, nm); return k
        def fin(k):
            k.label(k.name + '_end'); k('s_endpgm'); kerns.append(k)
        k = kern('p0_kernel', 163840); phase_p0(k, k.name); stamp_flush(k, 'p0', 3); fin(k)
        k = kern('ln1_kernel', 163840)
        ln_addr(k); srd(k, 8, PX, 0x400000)
        for j in range(4): k('buffer_load_dwordx4 %s, v6, s[8:11], s44 offen offset:%d' % (vr(RAW + 4*j, 4), j*128))
        k('s_waitcnt vmcnt(0)'); tr8x8(k, RAW, 4, 240, 241); ln_unpack(k, RAW); ln_stats(k); phase_ln1b(k); fin(k)
        k = kern('attn_kernel', 163840); slow, post = phase_attn(k, k.name); stamp_flush(k, 'attn', 5); k('s_endpgm'); slow(); fin(k)
        k = kern('oproj_kernel', 65536); stamp_rt0(k, 'oproj'); stamp(k, 0); g = gemm128_setup(k, 'oproj'); g.prologue_mixed(); gemm128_main(k, 'oproj', g); stamp_flush(k, 'oproj', 4); fin(k)
        k = kern('ln2_kernel', 163840); phase_ln2(k, 'ln2'); fin(k)
        k = kern('gateup_kernel', 4*GU_STG); stamp_rt0(k, 'gateup'); stamp(k, 0); regs = gateup_setup(k); gg = gateup_gemm(k, regs); gg.prologue_mixed(); gateup_main(k, gg); stamp_flush(k, 'gateup', 4); fin(k)
        k = kern('down_kernel', 65536); stamp_rt0(k, 'down'); stamp(k, 0); g = gemm128_setup(k, 'down'); g.prologue_mixed(); gemm128_main(k, 'down', g); stamp_flush(k, 'down', 4); fin(k)
        k = kern('final_kernel', 163840); phase_ln2(k, 'final'); fin(k)
    return kerns

HEADER = open('cdna_kernels/%s.s.ref' % NAME).read().split('; Override launch')[0] if os.path.exists('cdna_kernels/%s.s.ref' % NAME) else ''

def assemble(kerns):
    out = [HEADER.rstrip()]
    if MEGA:
        kn = kerns[0]
        out.append('; @launch grid=(%d,1,1) block=(%d,1,1) lds=%d' % (kn.grid, kn.block, kn.lds))
    else:
        for kn in kerns:
            out.append('; @launch kernel=%s grid=(%d,1,1) block=(%d,1,1) lds=%d' % (kn.name, kn.grid, kn.block, kn.lds))
    out.append('.amdgcn_target "amdgcn-amd-amdhsa--gfx950"')
    for kn in kerns: out.append(kn.text())
    out.append('.section .rodata,"a"')
    for kn in kerns:
        out.append('.p2align 6'); out.append(kn.desc())
    return '\n'.join(out) + '\n'

if __name__ == '__main__':
    for a in sys.argv[2:]:
        if a == 'instr': INSTR = True
        elif a == 'mega': MEGA = True
        elif a.startswith('opt:'): OPT[a[4:].split('=')[0]] = (a.split('=')[1].replace('+', ' ') if '=' in a else True)
    ks = build()
    bad = 0
    for kn in ks: bad += len(check(kn))
    txt = assemble(ks)
    txt = '\n'.join(l[4:] if l.startswith('    ') else l for l in txt.split('\n'))
    open(sys.argv[1], 'w').write(txt)
    print('generated', len(txt), 'bytes; check errors:', bad)
```

```python
import sys, math, os, struct as _st
from asmlib import *

NAME = 'adaLN_cond__sliding_block_cached__swiglu_ffn__prompt'
KA = dict(x=0, k=8, v=16, wq=24, wo=32, bx=40, wg=48, wu=56, wd=64, c=72, wmod=80, out=88, dbg=96, ws=104)
PX, PK, PV, PWQ, PWO, PWG, PWU, PWD, PC_, PWMOD, POUT, PDBG, PWS = 64, 66, 68, 70, 72, 76, 78, 80, 82, 84, 86, 88, 90
WS_MOD  = 0x0
WS_MODB = 0x10000
WS_CNT  = 0x20000
WS_H   = 0x100000
WS_O   = 0x500000
WS_P1  = 0x1500000
WS_X1  = 0x3500000
WS_H2  = 0x3900000
WS_ACT = 0x3D00000
WS_P2  = 0x4B00000
WS_KF  = 0x5B00000
WS_VF  = 0x5B80000
WS_STAMP = 0x8000000
MFMA = 'v_mfma_f32_32x32x16_bf16'
LOG2E = 1.4426950408889634
def f2u(x): return _st.unpack('<I', _st.pack('<f', x))[0]
INSTR = False
MEGA = False
OPT = {}
PHASES = ['p0', 'attn', 'oproj', 'ln2', 'gateup', 'down', 'final']
PIDX = {p: i for i, p in enumerate(PHASES)}
ST = 'sc1'
def LD(): return 'sc1' if (MEGA and not OPT.get('plainld')) else ''
C_S2, C_S3, C_S4, C_S5, C_S6, C_S7 = 0, 8, 40, 48, 56, 88
LN_LDS = 147456

def srd(k, s, lo, size, add=None):
    if add:
        k('s_add_u32 s%d, s%d, 0x%x' % (s, lo, add))
        k('s_addc_u32 s%d, s%d, 0' % (s+1, lo+1))
    else:
        k('s_mov_b32 s%d, s%d' % (s, lo))
        k('s_mov_b32 s%d, s%d' % (s+1, lo+1))
    k('s_mov_b32 s%d, 0x%x' % (s+2, size))
    k('s_mov_b32 s%d, 0x20000' % (s+3))
def srd_s(k, s, lo, soff, size):
    k('s_add_u32 s%d, s%d, s%d' % (s, lo, soff))
    k('s_addc_u32 s%d, s%d, 0' % (s+1, lo+1))
    k('s_mov_b32 s%d, 0x%x' % (s+2, size))
    k('s_mov_b32 s%d, 0x20000' % (s+3))

def stamp(k, i):
    if INSTR:
        k('s_memtime s[%d:%d]' % (92+2*i, 93+2*i)) if i < 5 else None
def stamp_begin(k):
    if INSTR:
        k('s_memrealtime s[60:61]') if False else None
        k('s_memrealtime s[18:19]') if False else None
def stamp_flush(k, phase, n):
    if not INSTR: return
    k('s_waitcnt lgkmcnt(0)')
    k('s_memrealtime s[28:29]') if False else None
    srd(k, 16, PWS, 0x10000, WS_STAMP + PIDX[phase]*0x10000)
    k('s_lshl_b32 s27, s2, 6')
    k('v_cmp_eq_u32 vcc, 0, v0')
    k('s_and_saveexec_b64 s[28:29], vcc')
    lab = k.L('so')
    k('s_cbranch_execz %s' % lab)
    k('v_mov_b32 v2, s27')
    for i in range(n):
        k('v_mov_b32 v3, s%d' % (92+2*i))
        k('buffer_store_dword v3, v2, s[16:19], 0 offen offset:%d' % (4*i))
    k('s_memrealtime s[92:93]')
    k('s_memtime s[94:95]')
    k('s_waitcnt lgkmcnt(0)')
    k('v_mov_b32 v3, s92')
    k('buffer_store_dword v3, v2, s[16:19], 0 offen offset:56')
    k('v_mov_b32 v3, s94')
    k('buffer_store_dword v3, v2, s[16:19], 0 offen offset:60')
    k.label(lab)
    k('s_mov_b64 exec, s[28:29]')
def stamp_rt0(k, phase):
    if not INSTR: return
    k('s_memrealtime s[92:93]')
    k('s_memtime s[94:95]')
    srd(k, 16, PWS, 0x10000, WS_STAMP + PIDX[phase]*0x10000)
    k('s_lshl_b32 s27, s2, 6')
    k('s_waitcnt lgkmcnt(0)')
    k('v_cmp_eq_u32 vcc, 0, v0')
    k('s_and_saveexec_b64 s[28:29], vcc')
    lab = k.L('s0')
    k('s_cbranch_execz %s' % lab)
    k('v_mov_b32 v2, s27')
    k('v_mov_b32 v3, s92')
    k('buffer_store_dword v3, v2, s[16:19], 0 offen offset:48')
    k('v_mov_b32 v3, s94')
    k('buffer_store_dword v3, v2, s[16:19], 0 offen offset:52')
    k.label(lab)
    k('s_mov_b64 exec, s[28:29]')

def header(k, name, early=None):
    k('s_cmp_ge_u32 s2, 256')
    k('s_cbranch_scc1 %s_end' % name)
    if OPT.get('scramble'):
        k('s_and_b32 s3, s2, 31')
        k('s_lshl_b32 s3, s3, 3')
        k('s_lshr_b32 s2, s2, 5')
        k('s_or_b32 s2, s2, s3')
    k('s_load_dwordx8 s[80:87], s[0:1], 64')
    k('s_load_dwordx16 s[64:79], s[0:1], 0')
    k('s_load_dwordx4 s[88:91], s[0:1], 96')
    k('v_lshrrev_b32 v2, 6, v0')
    k('v_and_b32 v1, 63, v0')
    k('s_lshr_b32 s21, s2, 3')
    k('v_readfirstlane_b32 s26, v2')
    if early: early()
    k('s_and_b32 s20, s2, 7')
    k('s_lshr_b32 s22, s20, 1')
    k('s_and_b32 s23, s20, 1')
    k('s_and_b32 s24, s21, 3')
    k('s_lshl_b32 s27, s23, 2')
    k('s_add_u32 s24, s24, s27')
    k('s_lshr_b32 s25, s21, 2')
    k('s_waitcnt lgkmcnt(0)')

def cnt_addr(k, sreg, dst=6):
    k('s_lshl_b32 s%d, s%d, 8' % (dst, sreg))
    k('s_add_u32 s%d, s%d, 0x%x' % (dst, dst, WS_CNT))
    k('s_add_u32 s%d, s%d, s%d' % (dst, dst, PWS))
    k('s_addc_u32 s%d, s%d, 0' % (dst+1, PWS+1))
def arrive(k, setup, count=None, extra_dbg=None, only_w0=False, flag_off=None):
    if not MEGA: return
    if not only_w0:
        k('s_waitcnt vmcnt(0)')
        k('s_barrier')
    lab = k.L('arr')
    k('s_cmp_lg_u32 s26, 0')
    k('s_cbranch_scc1 %s' % lab)
    if only_w0: k('s_waitcnt vmcnt(0)')
    setup()
    k('v_mov_b32 v2, 0')
    k('v_mov_b32 v3, 1')
    k('s_mov_b64 exec, 1')
    if extra_dbg is not None:
        k('v_mov_b32 v29, %d' % extra_dbg)
        k('global_atomic_add v29, v3, s[%d:%d] sc1' % (PDBG, PDBG+1))
    if count is None:
        k('global_atomic_add v2, v3, s[6:7] sc1')
    else:
        k('global_atomic_add v29, v2, v3, s[6:7] sc0 sc1')
        k('s_waitcnt vmcnt(0)')
        k('v_readfirstlane_b32 s27, v29')
        k('s_nop 3')
        k('s_cmp_lg_u32 s27, %d' % (count - 1))
        k('s_cbranch_scc1 %s_n' % lab)
        k('global_store_dword v2, v3, s[6:7] offset:%d sc1' % flag_off)
        k.label(lab + '_n')
    k('s_mov_b64 exec, -1')
    k.label(lab)
def waitfor(k, setup, count, off=0, sleep=2):
    if not MEGA: return
    lab = k.L('wt'); done = k.L('wd'); skip = k.L('ws')
    k('s_cmp_lg_u32 s26, 0')
    k('s_cbranch_scc1 %s' % skip)
    setup()
    k('v_mov_b32 v2, 0')
    k('s_mov_b32 s27, 0')
    k('s_mov_b64 exec, 1')
    k.label(lab)
    k('global_load_dword v3, v2, s[6:7] offset:%d sc1' % off)
    k('s_waitcnt vmcnt(0)')
    k('v_readfirstlane_b32 s28, v3')
    k('s_add_u32 s27, s27, 1')
    k('s_cmp_ge_u32 s28, %d' % count)
    k('s_cbranch_scc1 %s' % done)
    k('s_cmp_ge_u32 s27, 0x40000')
    k('s_cbranch_scc1 %s' % done)
    k('s_sleep %d' % sleep)
    k('s_branch %s' % lab)
    k.label(done)
    k('s_mov_b64 exec, -1')
    k.label(skip)
    k('s_barrier')

def code_touch(k, lab0, lab1, vtmp):
    if OPT.get('nocode'): return
    here = k.L('pc'); skip = k.L('ct')
    k('s_cmp_lg_u32 s26, 0')
    k('s_cbranch_scc1 %s' % skip)
    k('s_getpc_b64 s[6:7]')
    k.label(here)
    k('s_add_u32 s6, s6, %s-%s' % (lab0, here))
    k('s_addc_u32 s7, s7, %s' % ('0' if True else ''))
    k('v_lshlrev_b32 v%d, 5, v1' % vtmp)
    k('v_add_u32 v%d, s21, v%d' % (vtmp, vtmp))
    k('v_lshlrev_b32 v%d, 7, v%d' % (vtmp, vtmp))
    k('v_cmp_gt_u32 vcc, %s-%s, v%d' % (lab1, lab0, vtmp))
    k('s_and_saveexec_b64 s[4:5], vcc')
    k('s_cbranch_execz %s_r' % skip)
    k('global_load_dword v%d, v%d, s[6:7]' % (vtmp+1, vtmp))
    k.label(skip + '_r')
    k('s_mov_b64 exec, s[4:5]')
    k.label(skip)

class Gemm:
    def __init__(self, k, NB, nsteps, acc, xr, wf, vX, vW, sXsrd, sWsrd, sXoff, sWoff, sM0, sCnt,
                 stage_bytes, ldw_step, nW, lds_imm, extra=None, xflag=''):
        self.k = k; self.NB = NB; self.nsteps = nsteps; self.acc = acc; self.xr = xr; self.wf = wf
        self.vX = vX; self.vW = vW; self.sX = sXsrd; self.sW = sWsrd; self.sXoff = sXoff; self.sWoff = sWoff
        self.sM0 = sM0; self.sCnt = sCnt; self.stage = stage_bytes; self.ldw_step = ldw_step; self.nW = nW
        self.lds_imm = lds_imm; self.xflag = xflag
        self.extra = extra or (lambda t, j: [])
        if nW == 4: wsl = {3: [0], 0: [1], 1: [2], 2: [3]}
        else: wsl = {3: [0, 1], 0: [2, 3], 1: [4, 5], 2: [6]}
        Q = []
        for i in wsl[3]: Q.append((('W', 0, i), -13))
        for s_ in range(nsteps):
            for j in range(4):
                slot = 4*(s_-3) + j
                ws = [('W', s_, i) for i in wsl[j]] if j < 3 else ([('W', s_+1, i) for i in wsl[3]] if s_+1 < nsteps else [])
                for o in [('X', s_, j, 0)] + ws + [('X', s_, j, 1)]: Q.append((o, slot))
        self.Q = Q
        self.P = len([1 for o, sl in Q if sl < -4])
        self.sched = {}
        pos = self.P
        for t in range(nsteps):
            for j in range(4):
                slot = 4*t + j
                steady = len([1 for o, sl in Q if sl <= slot])
                per = len([1 for o, sl in Q if sl == 16 + j])
                n = min(steady, pos + per + 1)
                self.sched[(t, j)] = [o for o, sl in Q[pos:n]]
                pos = n
    def accr(self, nb, mb): return self.acc + (nb*2 + mb)*16
    def xreg(self, s, mb, j): return self.xr + (s % 4)*32 + (mb*4 + j)*4
    def wreg(self, par, nb): return self.wf + par*self.NB*4 + nb*4
    def mkop(self, o):
        if o[0] == 'X':
            _, s_, j, mb = o
            pre = ['s_add_u32 s%d, s%d, 4096' % (self.sXoff, self.sXoff)] if (j == 0 and mb == 0) else []
            return (pre, 'buffer_load_dwordx4 %s, v%d, s[%d:%d], s%d offen offset:%d %s' % (ar(self.xreg(s_, mb, j), 4), self.vX[mb], self.sX, self.sX+3, self.sXoff, j*1024, self.xflag), ('X', s_, j))
        _, s_, i = o
        pre = []
        if i == 0:
            pre.append('s_add_u32 s%d, s%d, 0x%x' % (self.sWoff, self.sWoff, self.ldw_step))
            pre.append('s_add_u32 m0, s%d, 0x%x' % (self.sM0, (s_ % 4)*self.stage))
        elif i == 4:
            pre.append('s_add_u32 m0, s%d, 0x%x' % (self.sM0, (s_ % 4)*self.stage + 4096))
        return (pre, 'buffer_load_dwordx4 v%d, s[%d:%d], s%d offen offset:%d lds' % (self.vW[i], self.sW, self.sW+3, self.sWoff, (i % 4)*1024), ('W', s_, i))
    def emit_vm(self, op):
        k = self.k
        pre, ins, tag = op[0], op[1], op[2]
        for p in pre: k(p)
        if pre and 'm0' in pre[-1]: k('s_nop 0')
        k.vm(ins, tag)
    def lds_reads(self, t, j):
        out = []
        for nb in range(self.NB):
            for sec in range(2):
                v, imm = self.lds_imm(t % 4, j, nb, sec)
                out.append('ds_read_b64_tr_b16 %s, v%d offset:%d' % (ar(self.wreg(j % 2, nb) + 2*sec, 2), v, imm))
        return out
    def blk_reads(self, t, nb):
        out = []
        for j in range(4):
            for sec in range(2):
                v, imm = self.lds_imm(t % 4, j, nb, sec)
                out.append('ds_read_b64_tr_b16 %s, v%d offset:%d' % (ar(self.wf + (nb % 2)*16 + j*4 + 2*sec, 2), v, imm))
        return out
    def prologue_w(self):
        for o, sl in self.Q[:self.P]:
            if o[0] == 'W': self.emit_vm(self.mkop(o))
    def prologue_x(self):
        for o, sl in self.Q[:self.P]:
            if o[0] == 'X': self.emit_vm(self.mkop(o))
    def prologue_mixed(self):
        for o, sl in self.Q[:self.P]: self.emit_vm(self.mkop(o))
    def start(self):
        k = self.k
        n = k.vm_wait_n(lambda tg: (tg[0] == 'W' and tg[1] == 0) or (tg[0] == 'X' and tg[1] == 0 and tg[2] <= 2))
        k('s_waitcnt vmcnt(%d)' % n)
        k('s_barrier')
        for r in self.lds_reads(0, 0): k(r)
    def emit_gaps(self, mfmas, gaps):
        k = self.k
        for m, mf in enumerate(mfmas):
            k(mf)
            for kind, x in gaps[m]:
                if kind == 'i': k(x)
                else: self.emit_vm(x)
    def frag_reads(self, t, j, nb, slot):
        out = []
        for sec in range(2):
            v, imm = self.lds_imm(t % 4, j, nb, sec)
            out.append('ds_read_b64_tr_b16 %s, v%d offset:%d' % (ar(self.wf + slot*4 + 2*sec, 2), v, imm))
        return out
    def step(self, t, tail=0):
        k = self.k; NB = self.NB; n = self.nsteps
        last = (t == n - 1)
        pre_tail = tail and t == n - tail - 1
        for j in range(4):
            if j == 3 and not last:
                if pre_tail:
                    nn = k.vm_wait_n(lambda tg: tg[0] in 'WX' and tg[1] <= (n-2 if tail >= 3 else n-1))
                else:
                    nn = k.vm_wait_n(lambda tg: (tg[0] == 'W' and tg[1] <= t+1) or (tg[0] == 'X' and (tg[1] <= t or (tg[1] == t+1 and tg[2] <= 2))))
                k('s_waitcnt vmcnt(%d) lgkmcnt(0)' % nn)
                k('s_barrier')
            elif j == 3:
                nn = k.vm_wait_n(lambda tg: tg[0] == 'X' and tg[1] <= t)
                k('s_waitcnt vmcnt(%d) lgkmcnt(0)' % nn)
            else:
                k('s_waitcnt lgkmcnt(0)')
            if j < 3: reads = self.lds_reads(t, j+1)
            elif last: reads = []
            elif pre_tail:
                reads = []
                for f in range(4): reads += self.frag_reads(n - tail, f, 0, f)
            else: reads = self.lds_reads(t+1, 0)
            vms = [self.mkop(o) for o in self.sched[(t, j)]]
            extra = list(self.extra(t, j))
            vms += [e for e in extra if not isinstance(e, str)]
            plain = [e for e in extra if isinstance(e, str)]
            nm = 2*NB
            gaps = [[] for _ in range(nm)]
            for i, r in enumerate(reads): gaps[i // 2].append(('i', r))
            for i, op in enumerate(vms): gaps[NB + (i * NB) // max(1, len(vms))].append(('vm', op))
            for i, e in enumerate(plain): gaps[(i * nm) // len(plain)].append(('i', e))
            mf = []
            for nb in range(NB):
                for mb in range(2):
                    d = vr(self.accr(nb, mb), 16)
                    mf.append('%s %s, %s, %s, %s' % (MFMA, d, ar(self.wreg(j % 2, nb), 4), ar(self.xreg(t, mb, j), 4), '0' if (t == 0 and j == 0) else d))
            self.emit_gaps(mf, gaps)
    def tail_blocks(self, tail, epi):
        k = self.k; NB = self.NB; n = self.nsteps
        frs = [(nb, t, j) for nb in range(NB) for t in range(n - tail, n) for j in range(4)]
        per = tail*4
        NS = 8
        pending = []
        for f, (nb, t, j) in enumerate(frs):
            fo = f % per
            if fo == 0:
                items = list(pending)
                if nb < tail:
                    for jj in range(4): items += list(self.extra(n - tail + nb, jj))
                ng = 2*per
                blockgaps = [[] for _ in range(ng)]
                for i, e in enumerate(items): blockgaps[4 + (i * (ng - 4)) // max(1, len(items))].append(e)
            if f == 4 and tail >= 3:
                nn = k.vm_wait_n(lambda tg: tg[0] in 'WX' and tg[1] <= n-1)
                k('s_waitcnt vmcnt(%d)' % nn)
                k('s_barrier')
            ahead = min(len(frs) - 1 - f, 3)
            k('s_waitcnt lgkmcnt(%d)' % (2*ahead))
            nxt = self.frag_reads(frs[f+4][1], frs[f+4][2], frs[f+4][0], (f+4) % NS) if f + 4 < len(frs) else []
            for mb in range(2):
                d = vr(self.accr(nb, mb), 16)
                k('%s %s, %s, %s, %s' % (MFMA, d, ar(self.wf + (f % NS)*4, 4), ar(self.xreg(t, mb, j), 4), d))
                if nxt: k(nxt[mb])
                for e in blockgaps[2*fo + mb]:
                    if isinstance(e, str): k(e)
                    else: self.emit_vm(e)
            if fo == per - 1: pending = epi(nb)
        k('s_nop 7')
        k('s_nop 3')
        for e in pending:
            if isinstance(e, str): k(e)
            else: self.emit_vm(e)
    def mainloop(self, epi=None, tail=3):
        k = self.k; n = self.nsteps
        tl = tail if epi is not None else 0
        for t in range(4): self.step(t, tl)
        t = 4
        trips = 0
        while t + 4*trips + 3 + 4 <= n - 1: trips += 1
        if trips >= 2:
            lab = k.L('loop')
            k('s_mov_b32 s%d, %d' % (self.sCnt, trips))
            k.label(lab)
            q0 = len(k.vmq)
            for tt in range(t, t+4): self.step(tt, tl)
            k('s_sub_u32 s%d, s%d, 1' % (self.sCnt, self.sCnt))
            k('s_cmp_lg_u32 s%d, 0' % self.sCnt)
            k('s_cbranch_scc1 %s' % lab)
            body = k.vmq[q0:]
            for r in range(1, trips):
                for tg in body: k.vmq.append((tg[0], tg[1] + 4*r, tg[2]))
            t += 4*trips
        for tt in range(t, n - tl): self.step(tt, tl)
        if tl: self.tail_blocks(tl, epi)

def lds_addr_128(k, vL, tmp):
    a, b, c = tmp, tmp+1, tmp+2
    k('v_lshrrev_b32 v%d, 5, v1' % a)
    k('v_lshlrev_b32 v%d, 11, v%d' % (a, a))
    k('v_bfe_u32 v%d, v1, 2, 2' % b)
    k('v_lshl_add_u32 v%d, v%d, 8, v%d' % (a, b, a))
    k('v_bfe_u32 v%d, v1, 4, 1' % c)
    k('v_lshl_add_u32 v%d, v%d, 5, v%d' % (a, c, a))
    k('v_and_b32 v%d, 1, v1' % c)
    k('v_lshl_add_u32 v%d, v%d, 4, v%d' % (a, c, a))
    k('v_bfe_u32 v%d, v1, 1, 1' % c)
    k('v_lshl_add_u32 v%d, v%d, 3, v%d' % (a, c, a))
    for nb in range(4):
        k('v_xor_b32 v%d, %d, v%d' % (c, nb, b))
        k('v_lshl_add_u32 v%d, v%d, 6, v%d' % (vL[nb], c, a))

def w128_voffsets(k, vW, ldw, s_colbytes, tmp):
    a, b, c = tmp, tmp+1, tmp+2
    k('v_lshrrev_b32 v%d, 4, v1' % a)
    k('v_bfe_u32 v%d, v1, 2, 2' % b)
    k('v_xor_b32 v%d, v%d, v%d' % (b, b, a))
    k('v_and_b32 v%d, 3, v1' % c)
    k('v_lshlrev_b32 v%d, 4, v%d' % (c, c))
    k('v_lshl_add_u32 v%d, v%d, 6, v%d' % (c, b, c))
    k('s_lshl_b32 s27, s26, 4')
    k('v_add_u32 v%d, s27, v%d' % (a, a))
    k('v_mul_u32_u24 v%d, %d, v%d' % (a, ldw, a))
    k('v_add3_u32 v%d, v%d, v%d, s%d' % (vW[0], a, c, s_colbytes))
    for i in range(1, 4): k('v_add_u32 v%d, 0x%x, v%d' % (vW[i], i*4*ldw - i*1024, vW[0]))

def gemm128_setup(k, which):
    if which == 'oproj': xoff, xsize, KS, ksq, wptr, ldw, nsteps = WS_O, 0x1000000, 256, 64, PWO, 2048, 16
    else: xoff, xsize, KS, ksq, wptr, ldw, nsteps = WS_ACT, 2048*3584*2, 224, 56, PWD, 2048, 14
    vL = [4, 5, 6, 7]; vX = [8, 9]; vW = [10, 11, 12, 13]
    lds_addr_128(k, vL, tmp=14)
    k('v_lshlrev_b32 v8, 4, v1')
    k('v_add_u32 v9, 0x%x, v8' % (KS*1024))
    k('s_lshl_b32 s28, s25, 8')
    w128_voffsets(k, vW, ldw, 28, 14)
    srd(k, 8, PWS, xsize, xoff)
    srd(k, 12, wptr, ksq*4*16*ldw)
    k('s_lshl_b32 s27, s24, 3')
    k('s_lshl_b32 s28, s26, 1')
    k('s_add_u32 s34, s27, s28')
    k('s_mul_i32 s30, s34, %d' % KS)
    k('s_mul_i32 s28, s22, %d' % ksq)
    k('s_add_u32 s30, s30, s28')
    k('s_lshl_b32 s30, s30, 10')
    k('s_sub_u32 s30, s30, 4096')
    k('s_mul_i32 s31, s22, 0x%x' % (ksq*16*ldw))
    k('s_sub_u32 s31, s31, 0x%x' % (64*ldw))
    k('s_lshl_b32 s32, s26, 12')
    return Gemm(k, 4, nsteps, acc=128, xr=0, wf=128, vX=vX, vW=vW, sXsrd=8, sWsrd=12, sXoff=30, sWoff=31, sM0=32, sCnt=33,
                stage_bytes=16384, ldw_step=64*ldw, nW=4,
                lds_imm=lambda buf, j, nb, sec: (vL[nb], buf*16384 + j*4096 + sec*1024), xflag=LD())

def gemm128_main(k, which, g):
    poff = WS_P1 if which == 'oproj' else WS_P2
    k('s_lshl_b32 s27, s22, 22')
    k('s_add_u32 s27, s27, 0x%x' % poff)
    srd_s(k, 16, PWS, 27, 0x400000)
    k('s_lshl_b32 s27, s34, 6')
    k('s_lshl_b32 s28, s25, 3')
    k('s_add_u32 s27, s27, s28')
    k('s_lshl_b32 s36, s27, 10')
    k('s_add_u32 s37, s36, 0x10000')
    k('v_add_u32 v14, 4096, v8')
    stamp(k, 1)
    g.start()
    stamp(k, 2)
    cnt = [0]
    def epi(nb):
        out = []
        for mb in range(2):
            a = g.accr(nb, mb)
            for hh in range(2):
                t = 16 + (cnt[0] % 8)*4; cnt[0] += 1
                for r in range(4): out.append('v_cvt_pk_bf16_f32 v%d, v%d, v%d' % (t+r, a + hh*8 + 2*r, a + hh*8 + 2*r + 1))
                ks = 2*nb + hh
                out.append(([], 'buffer_store_dwordx4 %s, v%d, s[16:19], s%d offen offset:%d %s' % (vr(t, 4), 8 if ks < 4 else 14, 36+mb, (ks % 4)*1024, ST), ('S', 0, 0)))
        return out
    g.mainloop(epi)
    stamp(k, 3)

def reduce8(k, v, t):
    k('s_nop 1')
    k('v_add_f32_dpp v%d, v%d, v%d row_ror:8 row_mask:0xf bank_mask:0xf' % (v, v, v))
    k('v_mov_b32 v%d, v%d' % (t, v))
    k('s_nop 1')
    k('v_permlane16_swap_b32 v%d, v%d' % (v, t))
    k('s_nop 1')
    k('v_add_f32 v%d, v%d, v%d' % (v, v, t))
    k('v_mov_b32 v%d, v%d' % (t, v))
    k('s_nop 1')
    k('v_permlane32_swap_b32 v%d, v%d' % (v, t))
    k('s_nop 1')
    k('v_add_f32 v%d, v%d, v%d' % (v, v, t))

def gemv_load(k, nj, s_row0, s_col0bytes, AD=160, C=168, LDB=96, emit=True):
    o = []
    o.append('v_and_b32 v%d, 7, v0' % AD)
    o.append('v_lshrrev_b32 v%d, 3, v0' % (AD+1))
    o.append('v_mul_u32_u24 v%d, %d, v%d' % (AD+2, nj*12288, AD+1))
    o.append('v_lshl_add_u32 v%d, v%d, 4, v%d' % (AD+2, AD, AD+2))
    o.append('v_mul_u32_u24 v%d, %d, v%d' % (AD+3, nj*2, AD+1))
    o.append('s_mul_i32 s36, s%d, 12288' % s_row0)
    o.append('s_add_u32 s36, s36, s%d' % s_col0bytes)
    o.append('s_lshl_b32 s37, s%d, 1' % s_row0)
    for i in range(nj // 8): o.append('buffer_load_dwordx4 %s, v%d, s[12:15], s37 offen offset:%d' % (vr(C+4*i, 4), AD+3, 16*i))
    for j in range(nj):
        o.append('buffer_load_dwordx4 %s, v%d, s[8:11], s36 offen' % (vr(LDB+4*j, 4), AD+2))
        if j < nj-1: o.append('s_add_u32 s36, s36, 12288')
    if emit:
        for x in o: k(x)
    return o
def gemv_compute(k, nj, s_outoff, out_srd, L0, after, B=160, C=168, LDB=96):
    S = B+16; T = B+32; A = B+48
    k('v_and_b32 v%d, 7, v0' % B)
    k('v_lshrrev_b32 v%d, 3, v0' % (B+1))
    k('s_waitcnt vmcnt(%d)' % (nj + after))
    if OPT.get('p0st') and L0 == LN_LDS: stamp(k, 2)
    for i in range(nj//2):
        k('v_lshlrev_b32 v%d, 16, v%d' % (S+2*i, C+i))
        k('v_and_b32 v%d, 0xffff0000, v%d' % (S+1+2*i, C+i))
    for i in range(nj): k('v_mul_f32 v%d, 0x%x, v%d' % (T+i, f2u(-LOG2E), S+i))
    for i in range(nj): k('v_exp_f32 v%d, v%d' % (T+i, T+i))
    k('s_nop 0')
    for i in range(nj): k('v_add_f32 v%d, 1.0, v%d' % (T+i, T+i))
    for i in range(nj): k('v_rcp_f32 v%d, v%d' % (T+i, T+i))
    k('s_nop 0')
    for i in range(nj): k('v_mul_f32 v%d, v%d, v%d' % (S+i, S+i, T+i))
    for i in range(nj//2): k('v_cvt_pk_bf16_f32 v%d, v%d, v%d' % (T+i, S+2*i, S+1+2*i))
    for i in range(nj//2):
        k('v_lshlrev_b32 v%d, 16, v%d' % (S+2*i, T+i))
        k('v_and_b32 v%d, 0xffff0000, v%d' % (S+1+2*i, T+i))
    for i in range(8): k('v_mov_b32 v%d, 0' % (A+i))
    U = B+56
    for j in range(nj):
        k('s_waitcnt vmcnt(%d)' % (nj-1-j + after))
        for i in range(4):
            k('v_lshlrev_b32 v%d, 16, v%d' % (U+2*(i%2), LDB+4*j+i))
            k('v_and_b32 v%d, 0xffff0000, v%d' % (U+1+2*(i%2), LDB+4*j+i))
            k('v_fmac_f32 v%d, v%d, v%d' % (A+2*i, U+2*(i%2), S+j))
            k('v_fmac_f32 v%d, v%d, v%d' % (A+2*i+1, U+1+2*(i%2), S+j))
    if OPT.get('p0st') and L0 == LN_LDS: stamp(k, 3)
    k('v_lshlrev_b32 v%d, 8, v%d' % (B+4, B+1))
    k('v_lshl_add_u32 v%d, v%d, 5, v%d' % (B+4, B, B+4))
    k('v_add_u32 v%d, %d, v%d' % (B+4, L0, B+4))
    k('ds_write_b128 v%d, %s' % (B+4, vr(A, 4)))
    k('ds_write_b128 v%d, %s offset:16' % (B+4, vr(A+4, 4)))
    k('s_waitcnt lgkmcnt(0)')
    k('s_barrier')
    lab = k.L('skip')
    k('s_cmp_lg_u32 s26, 0')
    k('s_cbranch_scc1 %s' % lab)
    k('v_lshlrev_b32 v%d, 2, v1' % (B+6))
    k('v_add_u32 v%d, %d, v%d' % (B+4, L0, B+6))
    for h in range(4):
        for i in range(8): k('ds_read_b32 v%d, v%d offset:%d' % (LDB+8*h+i, B+4, (8*h+i)*256))
        if h in (1, 2): k('s_waitcnt lgkmcnt(7)')
    k('s_waitcnt lgkmcnt(0)')
    for i in range(16): k('v_add_f32 v%d, v%d, v%d' % (LDB+i, LDB+i, LDB+16+i))
    for st in (8, 4, 2, 1):
        for i in range(st): k('v_add_f32 v%d, v%d, v%d' % (LDB+i, LDB+i, LDB+st+i))
    k('buffer_store_dword v%d, v%d, s[%d:%d], s%d offen %s' % (LDB, B+6, out_srd, out_srd+3, s_outoff, ST))
    k.label(lab)

def kv_part(k, mid=None, nmid=1):
    B = 160
    k('s_sub_u32 s50, s2, 128')
    k('s_lshl_b32 s50, s50, 2')
    k('s_add_u32 s50, s50, s26')
    srd(k, 8, PK, 0x200000)
    srd(k, 12, PV, 0x200000)
    srd(k, 16, PWS, 0x100000, WS_KF)
    k('s_lshr_b32 s51, s50, 7')
    k('s_bfe_u32 s52, s50, 0x40003')
    k('s_lshl_b32 s54, s51, 19')
    k('s_lshl_b32 s55, s52, 13')
    k('s_add_u32 s54, s54, s55')
    k('s_add_u32 s54, s54, 0x60000')
    k('v_lshrrev_b32 v%d, 3, v1' % B)
    k('v_and_b32 v%d, 7, v1' % (B+1))
    k('v_lshlrev_b32 v%d, 8, v%d' % (B+2, B))
    k('v_lshl_add_u32 v%d, v%d, 4, v%d' % (B+2, B+1, B+2))
    k('s_bfe_u32 s53, s50, 0x20001')
    k('s_and_b32 s56, s50, 1')
    k('s_lshl_b32 s55, s53, 11')
    k('s_add_u32 s55, s55, s54')
    k('s_lshl_b32 s57, s56, 7')
    k('s_add_u32 s55, s55, s57')
    k('buffer_load_dwordx4 %s, v%d, s[8:11], s55 offen' % (vr(B+8, 4), B+2))
    k('v_lshrrev_b32 v%d, 2, v1' % (B+3))
    k('v_lshlrev_b32 v%d, 8, v%d' % (B+3, B+3))
    k('v_and_b32 v%d, 3, v1' % (B+4))
    k('v_lshl_add_u32 v%d, v%d, 4, v%d' % (B+3, B+4, B+3))
    k('s_bfe_u32 s55, s50, 0x10002')
    k('s_lshl_b32 s55, s55, 12')
    k('s_and_b32 s57, s50, 3')
    k('s_lshl_b32 s57, s57, 6')
    k('s_add_u32 s55, s55, s57')
    k('s_add_u32 s55, s55, s54')
    k('s_mul_i32 s57, s26, 4608')
    k('s_add_u32 s57, s57, %d' % (TR_LDS + 2304))
    k('s_mov_b32 m0, s57')
    k('s_nop 0')
    k('buffer_load_dwordx4 v%d, s[12:15], s55 offen lds' % (B+3))
    if mid:
        k('s_mov_b32 s58, s16'); k('s_mov_b32 s59, s17'); k('s_mov_b32 s60, s18')
        mid()
        k('s_mov_b32 s16, s58'); k('s_mov_b32 s17, s59'); k('s_mov_b32 s18, s60')
    k('v_lshrrev_b32 v%d, 5, v1' % (B+4))
    k('v_lshlrev_b32 v%d, 2, v%d' % (B+4, B+4))
    k('v_bfe_u32 v%d, v1, 2, 2' % (B+5))
    k('v_add_u32 v%d, v%d, v%d' % (B+4, B+4, B+5))
    k('v_lshlrev_b32 v%d, 6, v%d' % (B+4, B+4))
    k('v_bfe_u32 v%d, v1, 4, 1' % (B+5))
    k('v_lshl_add_u32 v%d, v%d, 5, v%d' % (B+4, B+5, B+4))
    k('v_and_b32 v%d, 1, v1' % (B+5))
    k('v_lshl_add_u32 v%d, v%d, 4, v%d' % (B+4, B+5, B+4))
    k('v_bfe_u32 v%d, v1, 1, 1' % (B+5))
    k('v_lshl_add_u32 v%d, v%d, 3, v%d' % (B+4, B+5, B+4))
    k('v_add_u32 v%d, s57, v%d' % (B+4, B+4))
    k('v_lshrrev_b32 v%d, 4, v1' % (B+6))
    k('v_lshlrev_b32 v%d, 10, v%d' % (B+6, B+6))
    k('v_bfe_u32 v%d, v1, 3, 1' % (B+5))
    k('v_lshl_add_u32 v%d, v%d, 9, v%d' % (B+6, B+5, B+6))
    k('v_lshl_add_u32 v%d, v%d, 4, v%d' % (B+6, B+1, B+6))
    k('s_lshr_b32 s55, s50, 3')
    k('s_lshl_b32 s55, s55, 13')
    k('s_lshl_b32 s57, s56, 12')
    k('s_add_u32 s55, s55, s57')
    k('s_lshl_b32 s57, s53, 7')
    k('s_add_u32 s55, s55, s57')
    k('s_waitcnt vmcnt(%d)' % (1 + nmid if mid else 1))
    tr8x8(k, B+8, 1, 240, 241)
    k('buffer_store_dwordx4 %s, v%d, s[16:19], s55 offen %s' % (vr(B+8, 4), B+6, ST))
    k('s_waitcnt vmcnt(%d)' % (1 + nmid if mid else 1))
    k('ds_read_b64_tr_b16 %s, v%d' % (vr(B+12, 2), B+4))
    k('ds_read_b64_tr_b16 %s, v%d offset:512' % (vr(B+14, 2), B+4))
    k('v_lshlrev_b32 v%d, 4, v1' % (B+5))
    k('s_lshl_b32 s55, s50, 10')
    k('s_add_u32 s55, s55, 0x%x' % (WS_VF - WS_KF))
    k('s_waitcnt lgkmcnt(0)')
    k('buffer_store_dwordx4 %s, v%d, s[16:19], s55 offen %s' % (vr(B+12, 4), B+5, ST))

def ln_addr(k):
    k('v_lshrrev_b32 v2, 6, v0')
    k('v_and_b32 v3, 7, v1')
    k('v_lshrrev_b32 v4, 3, v1')
    k('v_lshrrev_b32 v5, 1, v4')
    k('v_lshlrev_b32 v5, 10, v5')
    k('v_and_b32 v6, 1, v4')
    k('v_lshl_add_u32 v5, v6, 9, v5')
    k('v_lshl_add_u32 v5, v3, 4, v5')
    k('v_lshl_add_u32 v5, v2, 14, v5')
    k('v_lshlrev_b32 v6, 11, v4')
    k('v_lshl_add_u32 v6, v3, 4, v6')
    k('v_lshl_add_u32 v6, v2, 9, v6')
    tr_addr(k, 240, 241)
    k('v_lshlrev_b32 v7, 4, v0')
    k('v_lshlrev_b32 v8, 10, v2')
    k('v_lshl_add_u32 v8, v4, 5, v8')
    k('v_add_u32 v8, %d, v8' % LN_LDS)
    k('v_add_u32 v11, %d, v7' % LN_LDS)
    k('v_lshlrev_b32 v9, 4, v3')
    k('v_add_u32 v9, %d, v9' % (LN_LDS + 12288))
    k('v_lshl_add_u32 v10, v2, 2, v9')
    k('s_lshl_b32 s45, s24, 5')
    k('s_lshl_b32 s46, s22, 3')
    k('s_add_u32 s45, s45, s46')
    k('s_add_u32 s45, s45, s25')
    k('s_lshr_b32 s40, s45, 2')
    k('s_lshl_b32 s40, s40, 16')
    k('s_and_b32 s46, s45, 3')
    k('s_lshl_b32 s46, s46, 7')
    k('s_add_u32 s40, s40, s46')
    for j in range(1, 4): k('s_add_u32 s%d, s40, %d' % (40+j, j*4096))
    k('s_lshl_b32 s44, s45, 14')

TR_LDS = 126976
def tr_addr(k, vw, vrd):
    k('v_lshrrev_b32 v%d, 3, v1' % vw)
    k('v_mul_u32_u24 v%d, 144, v%d' % (vw, vw))
    k('v_and_b32 v%d, 7, v1' % vrd)
    k('v_lshl_add_u32 v%d, v%d, 4, v%d' % (vw, vrd, vw))
    k('v_mul_u32_u24 v%d, 144, v%d' % (vrd, vrd))
    k('v_lshrrev_b32 v29, 3, v1')
    k('v_lshl_add_u32 v%d, v29, 4, v%d' % (vrd, vrd))
    k('s_mul_i32 s27, s26, 4608')
    k('s_add_u32 s27, s27, %d' % TR_LDS)
    k('v_add_u32 v%d, s27, v%d' % (vw, vw))
    k('v_add_u32 v%d, s27, v%d' % (vrd, vrd))
def tr8x8(k, base, n, vw, vrd):
    for j in range(n): k('ds_write_b128 v%d, %s offset:%d' % (vw, vr(base + 4*j, 4), j*1152))
    k('s_waitcnt lgkmcnt(0)')
    for j in range(n): k('ds_read_b128 %s, v%d offset:%d' % (vr(base + 4*j, 4), vrd, j*1152))
    k('s_waitcnt lgkmcnt(0)')

X_ = 32
RAW = 64
def ln_unpack(k, src):
    for j in range(4):
        for i in range(4):
            k('v_lshlrev_b32 v%d, 16, v%d' % (X_ + 8*j + 2*i, src + 4*j + i))
            k('v_and_b32 v%d, 0xffff0000, v%d' % (X_ + 8*j + 2*i + 1, src + 4*j + i))
def ln_stats(k):
    RED = 0
    k('v_add_f32 v24, v%d, v%d' % (X_, X_+1))
    k('v_add_f32 v25, v%d, v%d' % (X_+2, X_+3))
    for i in range(4, 32, 2):
        k('v_add_f32 v24, v24, v%d' % (X_+i))
        k('v_add_f32 v25, v25, v%d' % (X_+i+1))
    k('v_add_f32 v24, v24, v25')
    reduce8(k, 24, 25)
    k('ds_write_b32 v10, v24 offset:%d' % RED)
    k('s_waitcnt lgkmcnt(0)')
    k('s_barrier')
    k('ds_read_b128 v[24:27], v9 offset:%d' % RED)
    k('s_waitcnt lgkmcnt(0)')
    k('v_add_f32 v24, v24, v25')
    k('v_add_f32 v26, v26, v27')
    k('v_add_f32 v24, v24, v26')
    k('v_mul_f32 v24, 0x%x, v24' % f2u(1.0/1024))
    for i in range(32): k('v_sub_f32 v%d, v%d, v24' % (X_+i, X_+i))
    k('v_mul_f32 v24, v%d, v%d' % (X_, X_))
    k('v_mul_f32 v25, v%d, v%d' % (X_+1, X_+1))
    for i in range(2, 32, 2):
        k('v_fmac_f32 v24, v%d, v%d' % (X_+i, X_+i))
        k('v_fmac_f32 v25, v%d, v%d' % (X_+i+1, X_+i+1))
    k('v_add_f32 v24, v24, v25')
    reduce8(k, 24, 25)
    k('ds_write_b32 v10, v24 offset:%d' % (RED + 128))
    k('s_waitcnt lgkmcnt(0)')
    k('s_barrier')
    k('ds_read_b128 v[24:27], v9 offset:%d' % (RED + 128))
    k('s_waitcnt lgkmcnt(0)')
    k('v_add_f32 v24, v24, v25')
    k('v_add_f32 v26, v26, v27')
    k('v_add_f32 v24, v24, v26')
    k('v_mov_b32 v25, 0x%x' % f2u(1e-5))
    k('v_fmac_f32 v25, 0x%x, v24' % f2u(1.0/1024))
    k('v_rsq_f32 v28, v25')
    k('s_nop 0')
    for i in range(32): k('v_mul_f32 v%d, v%d, v28' % (X_+i, X_+i))
def mod_loads(k, vecs, npart, base_off, MV, pstride):
    srd(k, 8, PWS, 0x10000, base_off or None)
    for n, (c, isscale) in enumerate(vecs):
        for p in range(npart):
            k('s_mov_b32 s27, %d' % (p*pstride + c*4096))
            k('buffer_load_dwordx4 %s, v7, s[8:11], s27 offen %s' % (vr(MV + (n*npart + p)*4, 4), LD()))
def mod_to_lds(k, vecs, npart, MV, mulc=None):
    for n, (c, isscale) in enumerate(vecs):
        b = MV + n*npart*4
        for p in range(1, npart):
            for i in range(4): k('v_add_f32 v%d, v%d, v%d' % (b+i, b+i, b+4*p+i))
        def rnd():
            k('v_cvt_pk_bf16_f32 v%d, v%d, v%d' % (b+4, b, b+1))
            k('v_cvt_pk_bf16_f32 v%d, v%d, v%d' % (b+5, b+2, b+3))
            k('v_lshlrev_b32 v%d, 16, v%d' % (b, b+4))
            k('v_and_b32 v%d, 0xffff0000, v%d' % (b+1, b+4))
            k('v_lshlrev_b32 v%d, 16, v%d' % (b+2, b+5))
            k('v_and_b32 v%d, 0xffff0000, v%d' % (b+3, b+5))
        rnd()
        if isscale:
            for i in range(4): k('v_add_f32 v%d, 1.0, v%d' % (b+i, b+i))
            rnd()
        if mulc:
            for i in range(4): k('v_mul_f32 v%d, 0x%x, v%d' % (b+i, mulc, b+i))
        k('ds_write_b128 v11, %s offset:%d' % (vr(b, 4), n*4096))
def ln_apply_store(k, sh, sc, hoff):
    srd(k, 16, PWS, 0x400000, hoff)
    for j in range(4):
        k('ds_read_b128 v[16:19], v8 offset:%d' % (sc*4096 + j*256))
        k('ds_read_b128 v[20:23], v8 offset:%d' % (sc*4096 + j*256 + 16))
        k('ds_read_b128 v[96:99], v8 offset:%d' % (sh*4096 + j*256))
        k('ds_read_b128 v[100:103], v8 offset:%d' % (sh*4096 + j*256 + 16))
        k('s_waitcnt lgkmcnt(0)')
        for i in range(8): k('v_fma_f32 v%d, v%d, v%d, v%d' % (X_ + 8*j + i, X_ + 8*j + i, 16+i, 96+i))
        for i in range(4): k('v_cvt_pk_bf16_f32 v%d, v%d, v%d' % (104 + 4*j + i, X_ + 8*j + 2*i, X_ + 8*j + 2*i + 1))
        k('buffer_store_dwordx4 %s, v5, s[16:19], s%d offen %s' % (vr(104 + 4*j, 4), 40+j, ST))

TICKET_LDS = LN_LDS + 12288 + 512
def ticket_issue(k):
    lab = k.L('tk')
    k('s_getreg_b32 s3, hwreg(HW_REG_XCC_ID, 0, 4)')
    k('s_and_b32 s3, s3, 7')
    k('s_cmp_lg_u32 s26, 0')
    k('s_cbranch_scc1 %s' % lab)
    k('s_lshl_b32 s27, s3, 2')
    k('s_add_u32 s27, s27, 132')
    k('v_mov_b32 v2, s27')
    k('v_mov_b32 v3, 1')
    k('s_mov_b64 exec, 1')
    k('global_atomic_add v250, v2, v3, s[%d:%d] sc0 sc1' % (PDBG, PDBG+1))
    k('s_mov_b64 exec, -1')
    k.label(lab)
def ticket_publish(k, name):
    lab = k.L('tp'); ok = k.L('tok'); sp = k.L('tsp'); spd = k.L('tsd')
    k('s_cmp_lg_u32 s26, 0')
    k('s_cbranch_scc1 %s' % lab)
    k('s_waitcnt vmcnt(0)')
    k('v_readfirstlane_b32 s27, v250')
    k('s_mov_b32 s28, s3')
    k('s_cmp_lt_u32 s27, 32')
    k('s_cbranch_scc1 %s' % ok)
    k('s_mov_b64 exec, 1')
    k('v_mov_b32 v2, 0')
    k('s_mov_b32 s29, 0')
    k.label(sp)
    k('global_load_dwordx4 v[16:19], v2, s[%d:%d] offset:132 sc1' % (PDBG, PDBG+1))
    k('global_load_dwordx4 v[20:23], v2, s[%d:%d] offset:148 sc1' % (PDBG, PDBG+1))
    k('s_waitcnt vmcnt(0)')
    for i in range(8): k('v_readfirstlane_b32 s%d, v%d' % (50+i, 16+i))
    k('s_nop 3')
    k('s_mov_b32 s58, 0')
    for i in range(8): k('s_add_u32 s58, s58, s%d' % (50+i))
    k('s_add_u32 s29, s29, 1')
    k('s_cmp_ge_u32 s58, 256')
    k('s_cbranch_scc1 %s' % spd)
    k('s_cmp_ge_u32 s29, 0x40000')
    k('s_cbranch_scc1 %s' % spd)
    k('s_sleep 4')
    k('s_branch %s' % sp)
    k.label(spd)
    k('v_mov_b32 v2, 164')
    k('v_mov_b32 v3, 1')
    k('global_atomic_add v16, v2, v3, s[%d:%d] sc0 sc1' % (PDBG, PDBG+1))
    k('s_waitcnt vmcnt(0)')
    k('v_readfirstlane_b32 s29, v16')
    k('s_mov_b64 exec, -1')
    k('s_mov_b32 s28, 0')
    k('s_mov_b32 s27, 31')
    for i in range(8):
        nx = k.L('tn')
        k('s_min_u32 s58, s%d, 32' % (50+i))
        k('s_sub_u32 s59, 32, s58')
        k('s_cmp_lt_u32 s29, s59')
        k('s_cbranch_scc0 %s' % nx)
        k('s_mov_b32 s28, %d' % i)
        k('s_add_u32 s27, s58, s29')
        k('s_branch %s' % ok)
        k.label(nx)
        k('s_sub_u32 s29, s29, s59')
    k.label(ok)
    k('s_lshl_b32 s27, s27, 3')
    k('s_or_b32 s27, s27, s28')
    k('v_mov_b32 v2, %d' % TICKET_LDS)
    k('v_mov_b32 v3, s27')
    k('ds_write_b32 v2, v3')
    k('s_waitcnt lgkmcnt(0)')
    k.label(lab)
def ticket_fetch(k):
    k('v_mov_b32 v2, %d' % TICKET_LDS)
    k('ds_read_b32 v3, v2')
    k('s_mov_b32 s63, s24')
    k('s_waitcnt lgkmcnt(0)')
    k('v_readfirstlane_b32 s3, v3')
    k('s_nop 3')
    k('s_and_b32 s20, s3, 7')
    k('s_lshr_b32 s21, s3, 3')
    k('s_lshr_b32 s22, s20, 1')
    k('s_and_b32 s23, s20, 1')
    k('s_and_b32 s24, s21, 3')
    k('s_lshl_b32 s27, s23, 2')
    k('s_add_u32 s24, s24, s27')
    k('s_lshr_b32 s25, s21, 2')

def phase_p0(k, name):
    stamp_rt0(k, 'p0')
    stamp(k, 0)
    if MEGA and not OPT.get('noticket'): ticket_issue(k)
    def xloads():
        ln_addr(k)
        srd(k, 16, PX, 0x400000)
        for j in range(4): k('buffer_load_dwordx4 %s, v6, s[16:19], s44 offen offset:%d' % (vr(RAW + 4*j, 4), j*128))
    def s1addr():
        k('s_mov_b32 s6, s%d' % PDBG)
        k('s_mov_b32 s7, s%d' % (PDBG+1))
    def kvaddr():
        k('s_add_u32 s6, s%d, 4' % PDBG)
        k('s_addc_u32 s7, s%d, 0' % (PDBG+1))
    def wq_touch():
        lab = k.L('wq')
        k('s_cmp_eq_u32 s26, 0')
        k('s_cbranch_scc1 %s' % lab)
        srd(k, 16, PWQ, 1024*4096*2)
        k('v_lshrrev_b32 v15, 4, v0')
        k('v_and_b32 v12, 15, v0')
        k('v_lshlrev_b32 v15, 13, v15')
        k('v_lshl_add_u32 v15, v12, 7, v15')
        k('s_lshl_b32 s36, s21, 17')
        k('s_lshl_b32 s37, s22, 11')
        k('s_add_u32 s36, s36, s37')
        k('s_lshl_b32 s37, s23, 22')
        k('s_add_u32 s36, s36, s37')
        k('buffer_load_dword v13, v15, s[16:19], s36 offen')
        k('s_cmp_lg_u32 s26, 1')
        k('s_cbranch_scc1 %s' % lab)
        k('v_subrev_u32 v15, 0x8000, v15')
        k('buffer_load_dword v14, v15, s[16:19], s36 offen')
        k.label(lab)
    k('s_cmp_ge_u32 s2, 128')
    k('s_cbranch_scc1 %s_kv' % name)
    srd(k, 8, PWMOD, 1024*6144*2)
    srd(k, 12, PC_, 2048)
    k('s_and_b32 s38, s2, 31')
    k('s_lshr_b32 s39, s2, 5')
    k('s_lshl_b32 s47, s39, 8')
    k('s_lshl_b32 s48, s38, 7')
    k('s_lshl_b32 s49, s39, 13')
    k('s_lshl_b32 s38, s38, 8')
    k('s_add_u32 s49, s49, s38')
    gemv_load(k, 8, 47, 48)
    xloads()
    if OPT.get('p0st'): stamp(k, 1)
    if MEGA:
        lab = k.L('z')
        k('s_or_b32 s27, s2, s26')
        k('s_cmp_lg_u32 s27, 0')
        k('s_cbranch_scc1 %s' % lab)
        srd(k, 16, PWS, 192*128, WS_CNT)
        k('v_lshlrev_b32 v16, 7, v1')
        k('v_mov_b32 v17, 0')
        for z in range(3): k('buffer_store_dword v17, v16, s[16:19], 0 offen offset:0 %s' % ST) if z == 0 else (k('v_add_u32 v%d, %d, v16' % (18+z, 8192*z)), k('buffer_store_dword v17, v%d, s[16:19], 0 offen %s' % (18+z, ST)))
        k('s_waitcnt vmcnt(0)')
        k.label(lab)
    srd(k, 16, PWS, 0x8000, WS_MOD or None)
    gemv_compute(k, 8, 49, 16, LN_LDS, 4)
    if not OPT.get('p0st'): stamp(k, 1)
    arrive(k, s1addr, count=128, only_w0=True, flag_off=128)
    lab = k.L('w0'); k('s_cmp_eq_u32 s26, 0'); k('s_cbranch_scc1 %s' % lab); k('s_waitcnt vmcnt(0)'); k.label(lab)
    if OPT.get('p0st'): stamp(k, 4)
    k('s_branch %s_pf' % name)
    k.label(name + '_kv')
    kv_part(k, xloads, 4)
    if not MEGA:
        modb_addr(k, 128)
        gemv_load(k, 16, 47, 48)
        srd(k, 16, PWS, 0x8000, WS_MODB)
        gemv_compute(k, 16, 49, 16, LN_LDS, 0)
    stamp(k, 1)
    arrive(k, kvaddr)
    k.label(name + '_pf')
    if MEGA and not OPT.get('noticket'): ticket_publish(k, name)
    tr8x8(k, RAW, 4, 240, 241)
    ln_unpack(k, RAW)
    ln_stats(k)
    if MEGA and not OPT.get('noticket'): ticket_fetch(k)
    elif MEGA: k('s_mov_b32 s63, s24'); k('s_mov_b32 s3, s2')
    wq_touch()
    if not OPT.get('p0st'): stamp(k, 2)

def modb_addr(k, first):
    srd(k, 8, PWMOD, 1024*6144*2)
    srd(k, 12, PC_, 2048)
    k('s_sub_u32 s38, s2, %d' % first)
    k('s_lshr_b32 s39, s38, 6')
    k('s_and_b32 s38, s38, 63')
    k('s_lshl_b32 s47, s39, 9')
    k('s_lshl_b32 s48, s38, 7')
    k('s_add_u32 s48, s48, 4096')
    k('s_lshl_b32 s49, s39, 14')
    k('s_lshl_b32 s38, s38, 8')
    k('s_add_u32 s49, s49, s38')

def phase_ln1b(k):
    def s1addr():
        k('s_mov_b32 s6, s%d' % PDBG)
        k('s_mov_b32 s7, s%d' % (PDBG+1))
    waitfor(k, s1addr, 1, off=128)
    if not OPT.get('p0st'): stamp(k, 3)
    vecs = [(0, False), (1, True)]
    mod_loads(k, vecs, 4, WS_MOD, 96, 8192)
    k('s_waitcnt vmcnt(0)')
    mod_to_lds(k, vecs, 4, 96, f2u(128**-0.5 * LOG2E))
    k('s_waitcnt lgkmcnt(0)')
    k('s_barrier')
    ln_apply_store(k, 0, 1, WS_H)
    def a():
        k('s_add_u32 s27, s63, %d' % C_S2); cnt_addr(k, 27)
    arrive(k, a, count=32, flag_off=128)
    if not OPT.get('p0st'): stamp(k, 4)
    stamp_flush(k, 'p0', 5)

def phase_ln2(k, mode):
    stamp_rt0(k, mode)
    stamp(k, 0)
    ln_addr(k)
    vecs = [(0, False), (1, False), (2, True)] if mode == 'ln2' else [(3, False)]
    MV = 144
    if MEGA and mode == 'ln2':
        def s1b():
            k('s_mov_b32 s6, s%d' % PDBG); k('s_mov_b32 s7, s%d' % (PDBG+1))
        waitfor(k, s1b, 256, off=8)
    NPB = 4 if MEGA else 2
    if NPB == 4: MV = 168
    mod_loads(k, vecs, NPB, WS_MODB, MV, 16384)
    if mode == 'ln2':
        srd(k, 12, PX, 0x400000)
        for j in range(4): k('buffer_load_dwordx4 %s, v6, s[12:15], s44 offen offset:%d' % (vr(RAW + 4*j, 4), j*128))
    k('s_waitcnt vmcnt(%d)' % (4 if mode == 'ln2' else 0))
    mod_to_lds(k, vecs, NPB, MV)
    def a():
        k('s_add_u32 s27, s24, %d' % (C_S4 if mode == 'ln2' else C_S7)); cnt_addr(k, 27)
    k('s_waitcnt lgkmcnt(0)')
    if MEGA: waitfor(k, a, 1, off=128)
    else: k('s_barrier')
    stamp(k, 1)
    srd(k, 12, PWS, 0x1000000, WS_P1 if mode == 'ln2' else WS_P2)
    for j in range(4):
        for q in range(4):
            k('s_add_u32 s27, s%d, 0x%x' % (40+j, q*0x400000))
            k('buffer_load_dwordx4 %s, v5, s[12:15], s27 offen %s' % (vr(RAW + 16 + q*16 + 4*j, 4), LD()))
    if mode == 'final':
        srd(k, 8, PWS, 0x400000, WS_X1)
        for j in range(4): k('buffer_load_dwordx4 %s, v5, s[8:11], s%d offen %s' % (vr(RAW + 4*j, 4), 40+j, LD()))
        k('s_waitcnt vmcnt(0)')
        ln_unpack(k, RAW)
    else:
        k('s_waitcnt vmcnt(16)')
        tr8x8(k, RAW, 4, 240, 241)
        ln_unpack(k, RAW)
    for j in range(4):
        k('ds_read_b128 v[16:19], v8 offset:%d' % (j*256))
        k('ds_read_b128 v[20:23], v8 offset:%d' % (j*256 + 16))
        if mode == 'ln2': k('s_waitcnt vmcnt(%d)' % (12 - 4*j))
        for i in range(4):
            k('v_lshlrev_b32 v24, 16, v%d' % (RAW + 16 + 4*j + i))
            k('v_and_b32 v25, 0xffff0000, v%d' % (RAW + 16 + 4*j + i))
            for q in range(1, 4):
                k('v_lshlrev_b32 v26, 16, v%d' % (RAW + 16 + q*16 + 4*j + i))
                k('v_and_b32 v27, 0xffff0000, v%d' % (RAW + 16 + q*16 + 4*j + i))
                k('v_add_f32 v24, v24, v26')
                k('v_add_f32 v25, v25, v27')
            if i == 0: k('s_waitcnt lgkmcnt(0)')
            k('v_fmac_f32 v%d, v24, v%d' % (X_ + 8*j + 2*i, 16 + 2*i))
            k('v_fmac_f32 v%d, v25, v%d' % (X_ + 8*j + 2*i + 1, 17 + 2*i))
    for j in range(4):
        for i in range(4):
            k('v_cvt_pk_bf16_f32 v%d, v%d, v%d' % (RAW + 4*j + i, X_ + 8*j + 2*i, X_ + 8*j + 2*i + 1))
    if mode == 'final':
        srd(k, 12, POUT, 0x400000)
        tr8x8(k, RAW, 4, 240, 241)
        for j in range(4): k('buffer_store_dwordx4 %s, v6, s[12:15], s44 offen offset:%d' % (vr(RAW + 4*j, 4), j*128))
    else:
        srd(k, 16, PWS, 0x400000, WS_X1)
        for j in range(4): k('buffer_store_dwordx4 %s, v5, s[16:19], s%d offen %s' % (vr(RAW + 4*j, 4), 40+j, ST))
        ln_unpack(k, RAW)
        ln_stats(k)
        ln_apply_store(k, 1, 2, WS_H2)
        def a5():
            k('s_add_u32 s27, s24, %d' % C_S5); cnt_addr(k, 27)
        arrive(k, a5, count=32, flag_off=128)
    stamp(k, 2)
    stamp_flush(k, mode, 3)

def attn_setup(k):
    vL = [4, 5, 6, 7]; vX = [8, 9]; vW = [10, 11, 12, 13]
    ldw = 8192
    k('s_lshl_b32 s35, s22, 3')
    k('s_add_u32 s35, s35, s25')
    k('s_mov_b32 s62, s35')
    lds_addr_128(k, vL, tmp=40)
    k('v_lshlrev_b32 v8, 4, v1')
    k('v_add_u32 v9, 0x10000, v8')
    k('s_lshl_b32 s28, s62, 8')
    w128_voffsets(k, vW, ldw, 28, 40)
    srd(k, 8, PWS, 0x400000, WS_H)
    srd(k, 12, PWQ, 0x800000)
    k('s_lshl_b32 s27, s24, 3')
    k('s_lshl_b32 s28, s26, 1')
    k('s_add_u32 s34, s27, s28')
    k('s_lshl_b32 s30, s34, 16')
    k('s_sub_u32 s30, s30, 4096')
    k('s_mov_b32 s31, 0x%x' % ((-64*ldw) & 0xffffffff))
    k('s_lshl_b32 s32, s26, 12')
    return vL, vX, vW, ldw

def phase_attn(k, name, next_prefetch=None):
    stamp_rt0(k, 'attn')
    if not OPT.get('tailst'): stamp(k, 0)
    vL, vX, vW, ldw = attn_setup(k)
    KSLOT = [65536, 81920, 98304, 0, 16384]
    VSLOT = [114688, 131072, 147456, 32768, 49152]
    FLAG = 33792
    QF = lambda mb, ks: 64 + (mb*8 + ks)*4
    SB = lambda par, mb: 128 + (par*2 + mb)*16
    PB = lambda par, mb, kk: 192 + ((par*2 + mb)*2 + kk)*4
    CB = lambda mb: 224 + mb*16
    def OA(db, mb):
        i = db*2 + mb
        return i*16 if i < 6 else 192 + (i-6)*16
    KF = lambda ks: 128 + ks*4
    VF = lambda q: 160 + q*4
    LS = lambda mb, p: 33 + mb*2 + p
    MG = lambda mb: 37 + mb
    KT = (36, 37, 38, 39, 40); VT = (41, 42, 43, 29, 35)
    TT = (8, 9, 10, 12, 13, 14, 54, 55, 56, 57, 61, 63)
    kvflag = LD()
    def kdma(soff, pre0, tagid):
        return [(pre0 if i == 0 else [], 'buffer_load_dwordx4 v28, s[44:47], s%d offen offset:%d %s lds' % (soff, i*1024, kvflag), ('K', tagid, i)) for i in range(4)]
    def vdma(soff, pre0, tagid):
        return [(pre0 if i == 0 else [], 'buffer_load_dwordx4 v28, s[48:51], s%d offen offset:%d %s lds' % (soff, i*1024, kvflag), ('V', tagid, i)) for i in range(4)]
    def dma_list(lst):
        ops = []
        for (kind, s_) in lst:
            if kind == 'K': ops += kdma(52, ['s_mov_b32 s52, %d' % (s_*16384), 's_add_u32 m0, s32, %d' % KSLOT[s_ % 5]], s_)
            else: ops += vdma(53, ['s_mov_b32 s53, %d' % (s_*16384), 's_add_u32 m0, s32, %d' % VSLOT[s_ % 5]], s_)
        return ops
    def initial_dmas(): return dma_list([('K', 0), ('V', 0), ('K', 1), ('V', 1), ('K', 2), ('V', 2)])
    ini = initial_dmas()
    zero_list = ['v_accvgpr_write_b32 a%d, 0' % r for r in list(range(192, 224)) + list(range(0, 96))]
    def extra(t, j):
        out = []
        order = [(12, 3)] + [(tt, jj) for tt in (13, 14, 15) for jj in range(4)]
        if (t, j) in order:
            p = order.index((t, j))
            out += ini[(p*len(ini))//13:((p+1)*len(ini))//13]
        if t in (12, 13, 14, 15):
            z = zero_list[(t-12)*32:(t-11)*32]
            out += z[j*8:(j+1)*8]
        return out
    g = Gemm(k, 4, 16, acc=128, xr=0, wf=128, vX=vX, vW=vW, sXsrd=8, sWsrd=12, sXoff=30, sWoff=31, sM0=32, sCnt=33,
             stage_bytes=16384, ldw_step=64*ldw, nW=4,
             lds_imm=lambda buf, j, nb, sec: (vL[nb], buf*16384 + j*4096 + sec*1024), extra=extra, xflag=LD())
    if MEGA: g.prologue_w()
    k('s_lshl_b32 s27, s26, 12')
    k('v_add_u32 v28, s27, v8')
    k('v_add_u32 v16, %d, v8' % KSLOT[0])
    k('v_add_u32 v17, %d, v8' % VSLOT[0])
    k('v_lshlrev_b32 v18, 7, v1')
    k('s_lshl_b32 s27, s26, 13')
    k('v_add_u32 v18, s27, v18')
    k('s_lshl_b32 s27, s22, 17')
    k('s_add_u32 s28, s27, 0x%x' % WS_KF)
    srd_s(k, 44, PWS, 28, 0x20000)
    k('s_add_u32 s28, s27, 0x%x' % WS_VF)
    srd_s(k, 48, PWS, 28, 0x20000)
    k('v_mov_b32 v%d, 0xff800000' % MG(0))
    k('v_mov_b32 v%d, 0xff800000' % MG(1))
    k('s_mov_b32 s59, 0')
    if MEGA:
        def a():
            k('s_add_u32 s27, s24, %d' % C_S2); cnt_addr(k, 27)
        def kvw():
            k('s_mov_b32 s6, s%d' % PDBG); k('s_mov_b32 s7, s%d' % (PDBG+1))
        waitfor(k, kvw, 128, off=4)
        waitfor(k, a, 1, off=128)
        g.prologue_x()
    else:
        g.prologue_mixed()
    if not OPT.get('tailst'): stamp(k, 1)
    g.start()
    def epiQ(nb):
        out = []
        for mb in range(2):
            a = g.accr(nb, mb)
            for hh in range(2):
                for r in range(4):
                    out.append('v_cvt_pk_bf16_f32 v%d, v%d, v%d' % (QF(mb, 2*nb+hh) + r, a + hh*8 + 2*r, a + hh*8 + 2*r + 1))
        return out
    g.mainloop(epiQ, tail=1)
    if not OPT.get('tailst'): stamp(k, 2)
    k('s_mul_i32 s27, s%d, 28672' % (3 if MEGA else 2))
    for n_, (lo, sz, add) in enumerate([(PWG, 1024*3584*2, 0), (PWG, 1024*3584*2, 4096), (PWU, 1024*3584*2, 0), (PWU, 1024*3584*2, 4096)]):
        k('s_add_u32 s28, s27, %d' % add)
        k('s_add_u32 s%d, s%d, s28' % (TT[3*n_], lo))
        k('s_addc_u32 s%d, s%d, 0' % (TT[3*n_+1], lo+1))
        k('s_sub_u32 s%d, 0x%x, s28' % (TT[3*n_+2], sz))
    n = k.vm_wait_n(lambda tg: tg[0] in 'KV' and tg[1] == 0)
    k('s_waitcnt vmcnt(%d)' % n)
    k.label(name + '_pro')
    k('s_barrier')
    for i_ in range(5):
        k('s_mov_b32 s%d, %d' % (KT[i_], KSLOT[i_]))
        k('s_mov_b32 s%d, %d' % (VT[i_], VSLOT[i_]))
    for ks in range(8): k('ds_read_b128 %s, v16 offset:%d' % (ar(KF(ks), 4), ks*1024))
    for mb in range(2):
        for p in range(2): k('v_mov_b32 v%d, 0' % LS(mb, p))
    k('s_waitcnt lgkmcnt(0)')
    for mb in range(2):
        for ks in range(8):
            d = vr(SB(0, mb), 16)
            k('%s %s, %s, %s, %s' % (MFMA, d, ar(KF(ks), 4), vr(QF(mb, ks), 4), '0' if ks == 0 else d))
    k('s_nop 3')
    k('s_nop 7')
    for mb in range(2):
        s0 = SB(0, mb); m = 40 + mb
        k('v_max3_f32 v%d, v%d, v%d, v%d' % (m, s0, s0+1, MG(mb)))
        for r in range(2, 16, 2): k('v_max3_f32 v%d, v%d, v%d, v%d' % (m, m, s0+r, s0+r+1))
    k('v_mov_b32 v42, v40')
    k('v_mov_b32 v43, v41')
    k('s_nop 1')
    k('v_permlane32_swap_b32 v40, v42')
    k('v_permlane32_swap_b32 v41, v43')
    k('s_nop 1')
    k('v_max_f32 v40, v40, v42')
    k('v_max_f32 v41, v41, v43')
    for mb in range(2):
        for r in range(16): k('v_sub_f32 v%d, 0, v%d' % (CB(mb) + r, 40+mb))
        for r in range(16): k('v_sub_f32 v%d, v%d, v%d' % (SB(0, mb) + r, SB(0, mb) + r, 40+mb))
    if not OPT.get('tailst'): stamp(k, 3)

    def pair_ops(par, p):
        mb, pp = p // 8, p % 8
        s0 = SB(par, mb); a, b = s0 + 2*pp, s0 + 2*pp + 1
        E = ['v_exp_f32 v%d, v%d' % (a, a), 'v_exp_f32 v%d, v%d' % (b, b)]
        A_ = ['v_add_f32 v%d, v%d, v%d' % (LS(mb, 0), LS(mb, 0), a), 'v_add_f32 v%d, v%d, v%d' % (LS(mb, 1), LS(mb, 1), b)]
        C_ = ['v_cvt_pk_bf16_f32 v%d, v%d, v%d' % (PB(par, mb, pp // 4) + pp % 4, a, b)]
        return E, A_, C_
    def iteration(par, do_pv, do_s, kread_kb, vread_kb, carry_in, gap_extra=None):
        gap_extra = gap_extra or {}
        mf = []
        if do_pv:
            for kk in range(2):
                for db in range(4):
                    for mb in range(2):
                        d = ar(OA(db, mb), 16)
                        mf.append('%s %s, %s, %s, %s' % (MFMA, d, ar(VF(kk*4+db), 4), vr(PB(1-par, mb, kk), 4), d))
        else: mf += [None]*16
        if do_s:
            for mb in range(2):
                for ks in range(8):
                    d = vr(SB(1-par, mb), 16)
                    mf.append('%s %s, %s, %s, %s' % (MFMA, d, ar(KF(ks), 4), vr(QF(mb, ks), 4), vr(CB(mb), 16) if ks == 0 else d))
        else: mf += [None]*16
        pre = {0: ['s_waitcnt lgkmcnt(2)'] if do_pv else []}
        nk = 8 if kread_kb is not None else 0
        if do_pv: pre[12] = ['s_waitcnt lgkmcnt(%d)' % (6 if nk else 0)]
        if do_s:
            pre[16] = ['s_waitcnt lgkmcnt(2)']
            pre[22] = ['s_waitcnt lgkmcnt(3)']
        for g_ in range(32):
            for x in pre.get(g_, []): k(x)
            if mf[g_]: k(mf[g_])
            p = g_ // 2
            if g_ % 2 == 0:
                for x in pair_ops(par, p)[0]: k(x)
                if p >= 1: k(pair_ops(par, p-1)[2][0])
                elif carry_in: k(pair_ops(1-par, 15)[2][0])
            else:
                if p >= 1:
                    for x in pair_ops(par, p-1)[1]: k(x)
                elif carry_in:
                    for x in pair_ops(1-par, 15)[1]: k(x)
                if g_ < 16:
                    if kread_kb is not None: k('ds_read_b128 %s, v16 offset:%d' % (ar(KF(p), 4), kread_kb*8192 + p*1024))
                else:
                    k('ds_read_b128 %s, v17 offset:%d' % (ar(VF(p-8), 4), vread_kb*8192 + (p-8)*1024))
            for x in gap_extra.get(g_, []):
                if isinstance(x, str): k(x)
                else:
                    pre_, ins, tag = x[0], x[1], x[2]
                    for p_ in pre_: k(p_)
                    if pre_ and 'm0' in pre_[-1]: k('s_nop 0')
                    k.vm(ins, tag)
                    if len(x) > 3:
                        for p_ in x[3]: k(p_)
    def touch(half):
        pre = ['s_mov_b32 s16, s%d' % TT[0], 's_mov_b32 s17, s%d' % TT[1], 's_mov_b32 s18, s%d' % TT[2], 's_mov_b32 s19, 0x20000']
        if half: pre += ['s_mov_b32 exec_hi, 0']
        return (pre, 'buffer_load_dword v19, v18, s[16:19], 0 offen', ('T', 0, 0), ['s_mov_b32 exec_hi, -1'] if half else [])
    sh = ['s_mov_b32 s%d, s%d' % (TT[n_], TT[n_+3]) for n_ in range(9)]
    g0 = {}
    for i_, op in enumerate(dma_list([('K', 3), ('V', 3), ('K', 4)])): g0.setdefault(1 + i_, []).append(op)
    g0.setdefault(20, []).extend(['s_mov_b32 s52, %d' % (5*16384), 's_mov_b32 s53, %d' % (4*16384)])
    iteration(0, False, True, 1, 0, False, g0)
    def rot(T): return ['s_mov_b32 s58, s%d' % T[0]] + ['s_mov_b32 s%d, s%d' % (T[i_], T[i_+1]) for i_ in range(4)] + ['s_mov_b32 s%d, s58' % T[4]]
    def trip(with_dma):
        ge = {0: ['v_add_u32 v16, s%d, v8' % KT[1]]}
        if with_dma:
            ge[0] += ['s_waitcnt vmcnt(20)', 's_barrier']
            dm = vdma(53, ['s_add_u32 m0, s32, s%d' % VT[4]], 'n') + kdma(52, ['s_add_u32 m0, s32, s%d' % KT[0]], 'n')
            for i_, op in enumerate(dm): ge.setdefault(2 + 2*i_, []).append(op)
            ge.setdefault(27, []).extend(['s_add_u32 s52, s52, 16384', 's_add_u32 s53, s53, 16384'])
            if not OPT.get('notouch'):
                ge.setdefault(19, []).append(touch(True))
                ge.setdefault(21, []).extend(sh[:5]); ge.setdefault(23, []).extend(sh[5:])
        elif not OPT.get('notouch'):
            ge.setdefault(2, []).append(touch(False))
            ge.setdefault(5, []).extend(sh[:5]); ge.setdefault(7, []).extend(sh[5:])
        ge.setdefault(29, []).extend(rot(KT))
        iteration(1, True, True, 0, 1, True, ge)
        ge2 = {2: ['v_add_u32 v17, s%d, v8' % VT[1]], 4: rot(VT), 31: ['s_sub_u32 s60, s60, 1', 's_cmp_lg_u32 s60, 0']}
        iteration(0, True, True, 1, 0, True, ge2)
    k('s_mov_b32 s60, 4')
    lab = k.L('aloop'); k.label(lab)
    trip(True)
    k('s_cbranch_scc1 %s' % lab)
    k('s_mul_i32 s27, s%d, 28672' % (3 if MEGA else 2))
    k('s_add_u32 s%d, s%d, s27' % (TT[0], PWD))
    k('s_addc_u32 s%d, s%d, 0' % (TT[1], PWD+1))
    k('s_sub_u32 s%d, 0x%x, s27' % (TT[2], 3584*1024*2))
    k('s_lshl_b32 s27, s20, 20')
    k('s_lshl_b32 s28, s21, 15')
    k('s_add_u32 s27, s27, s28')
    k('s_add_u32 s%d, s%d, s27' % (TT[3], PWO))
    k('s_addc_u32 s%d, s%d, 0' % (TT[4], PWO+1))
    k('s_mov_b32 s%d, 0x8000' % TT[5])
    for n_ in (2, 3):
        k('s_mov_b32 s%d, s%d' % (TT[3*n_], PWS))
        k('s_mov_b32 s%d, s%d' % (TT[3*n_+1], PWS+1))
        k('s_mov_b32 s%d, 0' % TT[3*n_+2])
    k('s_waitcnt vmcnt(%d)' % (0 if OPT.get('notouch') else 1))
    k('s_barrier')
    if MEGA: code_touch(k, name + '_L_oproj', name + '_L_gateup', 30)
    k('s_mov_b32 s60, 3')
    lab = k.L('bloop'); k.label(lab)
    trip(False)
    k('s_cbranch_scc1 %s' % lab)
    g15 = {}
    if MEGA:
        pre15 = ['s_mov_b32 s8, s%d' % PWMOD, 's_mov_b32 s9, s%d' % (PWMOD+1), 's_mov_b32 s10, 0x%x' % (1024*6144*2), 's_mov_b32 s11, 0x20000',
                 's_mov_b32 s12, s%d' % PC_, 's_mov_b32 s13, s%d' % (PC_+1), 's_mov_b32 s14, 2048', 's_mov_b32 s15, 0x20000',
                 's_lshr_b32 s52, s2, 6', 's_and_b32 s53, s2, 63', 's_lshl_b32 s54, s52, 14', 's_lshl_b32 s55, s53, 8', 's_add_u32 s54, s54, s55',
                 's_lshl_b32 s52, s52, 8', 's_lshl_b32 s53, s53, 7', 's_add_u32 s53, s53, 4096']
        gl = gemv_load(k, 8, 52, 53, AD=48, C=52, LDB=128, emit=False)
        items = pre15 + gl
        for i_, x in enumerate(items): g15.setdefault(2 + (i_ * 24) // len(items), []).append(x)
    iteration(1, True, False, None, 1, True, g15)
    for x in pair_ops(1, 15)[1] + pair_ops(1, 15)[2]: k(x)
    k('v_add_f32 v40, v%d, v%d' % (LS(0, 0), LS(0, 1)))
    k('v_add_f32 v41, v%d, v%d' % (LS(1, 0), LS(1, 1)))
    k('v_mov_b32 v42, v40')
    k('v_mov_b32 v43, v41')
    k('s_nop 1')
    k('v_permlane32_swap_b32 v40, v42')
    k('v_permlane32_swap_b32 v41, v43')
    k('s_nop 1')
    k('v_add_f32 v40, v40, v42')
    k('v_add_f32 v41, v41, v43')
    k('v_mov_b32 v43, 0x%x' % f2u(2.0**100))
    k('v_cmp_nlt_f32 vcc, v40, v43')
    k('v_cmp_nlt_f32 s[6:7], v41, v43')
    k('v_rcp_f32 v40, v40')
    k('v_rcp_f32 v41, v41')
    k('s_or_b64 vcc, vcc, s[6:7]')
    k('s_cmp_lg_u64 vcc, 0')
    k('s_cselect_b32 s58, 1, 0')
    k('v_mov_b32 v43, s58')
    k('s_lshl_b32 s58, s26, 2')
    k('s_add_u32 s58, s58, %d' % FLAG)
    k('v_mov_b32 v44, s58')
    k('ds_write_b32 v44, v43')
    srd(k, 16, PWS, 0x1000000, WS_O)
    k('s_lshl_b32 s27, s34, 8')
    k('s_lshl_b32 s28, s62, 3')
    k('s_add_u32 s27, s27, s28')
    k('s_lshl_b32 s60, s27, 10')
    k('s_add_u32 s61, s60, 0x40000')
    k('v_add_u32 v20, 4096, v8')
    k('s_waitcnt lgkmcnt(0)')
    stamp(k, 4 if not OPT.get('tailst') else 0)
    order = [(db, mb) for db in range(4) for mb in range(2)]
    def epiO(i):
        db, mb = order[i]; a = OA(db, mb); out = []
        for hh in range(2):
            t = (224, 240, 192)[(2*i + hh) % 3]
            out += ['v_accvgpr_read_b32 v%d, a%d' % (t+r, a + hh*8 + r) for r in range(8)]
            out += ['v_mul_f32 v%d, v%d, v%d' % (t+r, t+r, 40+mb) for r in range(8)]
            out += ['v_cvt_pk_bf16_f32 v%d, v%d, v%d' % (t+8+r, t+2*r, t+2*r+1) for r in range(4)]
            ks = 2*db + hh
            out.append('buffer_store_dwordx4 %s, v%d, s[16:19], s%d offen offset:%d %s' % (vr(t+8, 4), 8 if ks < 4 else 20, 60+mb, (ks % 4)*1024, '' if OPT.get('plainO') else ST))
        return out
    M = []
    for i, (db, mb) in enumerate(order):
        d = ar(OA(db, mb), 16)
        for kk in range(2):
            M.append('%s %s, %s, %s, %s' % (MFMA, d, ar(VF(kk*4+db), 4), vr(PB(1, mb, kk), 4), d))
    for idx in range(6): k(M[idx])
    k('s_nop 7')
    for i in range(8):
        for x in epiO(i): k(x)
        for idx in (2*i+6, 2*i+7):
            if idx < 16: k(M[idx])
    if OPT.get('tailst'): stamp(k, 1)
    k('s_barrier')
    k('v_mov_b32 v44, %d' % FLAG)
    k('ds_read_b128 v[44:47], v44')
    k('s_waitcnt lgkmcnt(0)')
    k('v_or3_b32 v44, v44, v45, v46')
    k('v_or_b32 v44, v44, v47')
    k('s_nop 0')
    k('v_readfirstlane_b32 s58, v44')
    k('s_nop 3')
    k('s_cmp_lg_u32 s59, 0')
    k('s_cbranch_scc1 %s_fin' % name)
    k('s_cmp_lg_u32 s58, 0')
    k('s_cbranch_scc1 %s_slow' % name)
    k.label(name + '_fin')
    def post():
        srd(k, 16, PWS, 0x10000, WS_MODB)
        gemv_compute(k, 8, 54, 16, 65536, 24, B=192, C=52, LDB=128)
        lab = k.L('mb')
        k('s_cmp_lg_u32 s26, 0')
        k('s_cbranch_scc1 %s' % lab)
        k('s_waitcnt vmcnt(0)')
        k('v_mov_b32 v2, 8')
        k('v_mov_b32 v3, 1')
        k('s_mov_b64 exec, 1')
        k('global_atomic_add v2, v3, s[%d:%d] sc1' % (PDBG, PDBG+1))
        k('s_mov_b64 exec, -1')
        k.label(lab)
    def slow():
        k.label(name + '_slow')
        k('s_mov_b32 s59, 1')
        k('s_lshl_b32 s27, s22, 17')
        k('s_add_u32 s28, s27, 0x%x' % WS_KF)
        srd_s(k, 44, PWS, 28, 0x20000)
        k('s_mov_b32 s58, 0')
        lab2 = k.L('slow'); k.label(lab2)
        k('s_add_u32 s27, s58, 4096')
        for ks in range(8): k('buffer_load_dwordx4 %s, v8, s[44:47], s%d offen offset:%d %s' % (ar(KF(ks), 4), 58 if ks < 4 else 27, (ks % 4)*1024, kvflag))
        k('s_waitcnt vmcnt(0)')
        for mb in range(2):
            for ks in range(8):
                d = vr(SB(0, mb), 16)
                k('%s %s, %s, %s, %s' % (MFMA, d, ar(KF(ks), 4), vr(QF(mb, ks), 4), '0' if ks == 0 else d))
        k('s_nop 7')
        k('s_nop 7')
        for mb in range(2):
            s0 = SB(0, mb)
            for r in range(0, 16, 2): k('v_max3_f32 v%d, v%d, v%d, v%d' % (MG(mb), MG(mb), s0+r, s0+r+1))
        k('s_add_u32 s58, s58, 8192')
        k('s_cmp_lt_u32 s58, 0x20000')
        k('s_cbranch_scc1 %s' % lab2)
        k('v_add_u32 v16, %d, v8' % KSLOT[0])
        k('v_add_u32 v17, %d, v8' % VSLOT[0])
        for db in range(4):
            for mb in range(2):
                for r in range(16): k('v_accvgpr_write_b32 a%d, 0' % (OA(db, mb) + r))
        for n_ in range(4):
            k('s_mov_b32 s%d, s%d' % (TT[3*n_], PWS))
            k('s_mov_b32 s%d, s%d' % (TT[3*n_+1], PWS+1))
            k('s_mov_b32 s%d, 0' % TT[3*n_+2])
        k('s_barrier')
        for pre, ins, tag in initial_dmas():
            for p_ in pre: k(p_)
            if pre: k('s_nop 0')
            k(ins)
        k('s_waitcnt vmcnt(0)')
        k('s_branch %s_pro' % name)
    return slow, post

GU_STG = 28928; GU_UP = 14464
def gateup_setup(k, init_state=True):
    vL = [4, 5]; vX = [8, 9]; vW = [10, 11, 12, 13, 14, 15, 16]
    k('s_lshl_b32 s35, s22, 3')
    k('s_add_u32 s35, s35, s25')
    k('v_lshrrev_b32 v20, 5, v1')
    k('v_lshlrev_b32 v20, 3, v20')
    k('v_bfe_u32 v21, v1, 2, 2')
    k('v_add_u32 v20, v20, v21')
    k('v_mul_u32_u24 v20, 224, v20')
    k('v_bfe_u32 v21, v1, 4, 1')
    k('v_mul_u32_u24 v21, %d, v21' % GU_UP)
    k('v_add_u32 v20, v20, v21')
    k('v_and_b32 v21, 1, v1')
    k('v_lshl_add_u32 v20, v21, 4, v20')
    k('v_bfe_u32 v21, v1, 1, 1')
    k('v_lshl_add_u32 v4, v21, 3, v20')
    k('v_add_u32 v5, %d, v4' % (2*GU_STG))
    k('v_lshlrev_b32 v8, 4, v1')
    k('v_add_u32 v9, 0x10000, v8')
    k('s_and_b32 s27, s26, 1')
    k('s_mul_i32 s28, s27, 448')
    k('s_mul_i32 s29, s35, 224')
    for i in range(7):
        k('v_add_u32 v20, s28, v1')
        if i: k('v_add_u32 v20, %d, v20' % (64*i))
        k('v_mul_u32_u24 v21, 4682, v20')
        k('v_lshrrev_b32 v21, 16, v21')
        k('v_mul_u32_u24 v22, 14, v21')
        k('v_sub_u32 v22, v20, v22')
        k('v_mul_u32_u24 v21, 7168, v21')
        k('v_lshl_add_u32 v21, v22, 4, v21')
        k('v_add_u32 v21, s29, v21')
        k('v_subrev_u32 v%d, %d, v21' % (vW[i], (i % 4)*1024))
    srd(k, 8, PWS, 0x400000, WS_H2)
    k('s_cmp_ge_u32 s26, 2')
    k('s_cselect_b32 s12, s%d, s%d' % (PWU, PWG))
    k('s_cselect_b32 s13, s%d, s%d' % (PWU+1, PWG+1))
    k('s_mov_b32 s14, 0x%x' % (1024*7168))
    k('s_mov_b32 s15, 0x20000')
    k('s_lshl_b32 s27, s24, 3')
    k('s_lshl_b32 s28, s26, 1')
    k('s_add_u32 s34, s27, s28')
    if init_state:
        k('s_lshl_b32 s30, s34, 16')
        k('s_sub_u32 s30, s30, 4096')
        k('s_mov_b32 s31, 0x%x' % ((-64*7168) & 0xffffffff))
    k('s_lshr_b32 s27, s26, 1')
    k('s_mul_i32 s32, s27, %d' % GU_UP)
    k('s_and_b32 s27, s26, 1')
    k('s_mul_i32 s27, s27, 7168')
    k('s_add_u32 s32, s32, s27')
    return vL, vX, vW

def gateup_gemm(k, regs, extra=None):
    vL, vX, vW = regs
    return Gemm(k, 7, 16, acc=32, xr=0, wf=128, vX=vX, vW=vW, sXsrd=8, sWsrd=12, sXoff=30, sWoff=31, sM0=32, sCnt=33,
             stage_bytes=GU_STG, ldw_step=64*7168, nW=7,
             lds_imm=lambda buf, j, nb, sec: (vL[buf // 2], (buf % 2)*GU_STG + j*3584 + sec*896 + nb*32), extra=extra, xflag=LD())

def gateup_main(k, g, next_prefetch=None):
    srd(k, 16, PWS, 2048*3584*2, WS_ACT)
    k('s_mul_i32 s27, s34, 224')
    k('s_mul_i32 s28, s35, 7')
    k('s_add_u32 s27, s27, s28')
    k('s_lshl_b32 s36, s27, 10')
    k('s_add_u32 s37, s36, %d' % (224*1024))
    k('s_mov_b32 s40, 0x%x' % f2u(-LOG2E))
    k('s_mov_b32 s41, 0x%x' % f2u(-LOG2E))
    k('v_add_u32 v31, 4096, v8')
    k('v_mov_b32 v30, v8')
    k('v_mov_b32 v29, 0x%x' % f2u(-LOG2E))
    stamp(k, 1)
    g.start()
    stamp(k, 2)
    def epi(b):
        out = []
        for mb in range(2):
            a = g.accr(b, mb)
            t = 17 + mb*4
            for h in range(2):
                e = a + 4*h
                out += ['v_mul_f32 v%d, v29, v%d' % (t+i, e+i) for i in range(4)]
                out += ['v_exp_f32 v%d, v%d' % (t+i, t+i) for i in range(4)]
                out += ['v_mul_f32 v%d, v%d, v%d' % (e+i, e+i, e+8+i) for i in range(4)]
                out += ['v_add_f32 v%d, 1.0, v%d' % (t+i, t+i) for i in range(4)]
                out += ['v_rcp_f32 v%d, v%d' % (t+i, t+i) for i in range(4)]
                out += ['s_nop 0']
                out += ['v_mul_f32 v%d, v%d, v%d' % (e+i, e+i, t+i) for i in range(4)]
            out += ['v_cvt_pk_bf16_f32 v%d, v%d, v%d' % (a+8+i, a+2*i, a+2*i+1) for i in range(4)]
            out.append(([], 'buffer_store_dwordx4 %s, v%d, s[16:19], s%d offen offset:%d %s' % (vr(a+8, 4), 30 if b < 4 else 31, 36+mb, (b % 4)*1024, '' if OPT.get('plainO') else ST), ('S', 0, 0)))
        return out
    g.mainloop(epi)
    stamp(k, 3)
    if next_prefetch: next_prefetch()

def resume_m0(k, g):
    k('s_add_u32 m0, s%d, 0x%x' % (g.sM0, 2*g.stage))

def build():
    kerns = []
    if MEGA:
        name = NAME + '_kernel'
        k = Kern(name, nvgpr=512, accum=256, nsgpr=102, lds=163840)
        def early():
            code_touch(k, name + '_c1', name + '_cend', 30)
            k.label(name + '_c1')
        header(k, name, early)
        phase_p0(k, name)
        phase_ln1b(k)
        slow, post = phase_attn(k, name)
        def a3():
            k('s_lshl_b32 s27, s24, 2'); k('s_add_u32 s27, s27, s22'); k('s_add_u32 s27, s27, %d' % C_S3); cnt_addr(k, 27)
        arrive(k, a3, count=8, flag_off=128)
        g = gemm128_setup(k, 'oproj'); g.prologue_w()
        post()
        stamp_flush(k, 'attn', 5)
        k.label(name + '_L_oproj')
        stamp_rt0(k, 'oproj'); stamp(k, 0)
        waitfor(k, a3, 1, off=128)
        resume_m0(k, g)
        g.prologue_x()
        gemm128_main(k, 'oproj', g)
        def a4():
            k('s_add_u32 s27, s24, %d' % C_S4); cnt_addr(k, 27)
        arrive(k, a4, count=32, flag_off=128)
        regs = gateup_setup(k)
        gg = gateup_gemm(k, regs)
        gg.prologue_w()
        code_touch(k, name + '_L_gateup', name + '_L_down', 30)
        stamp_flush(k, 'oproj', 4)
        phase_ln2(k, 'ln2')
        k.label(name + '_L_gateup')
        stamp_rt0(k, 'gateup'); stamp(k, 0)
        gateup_setup(k, init_state=False)
        def a5():
            k('s_add_u32 s27, s24, %d' % C_S5); cnt_addr(k, 27)
        waitfor(k, a5, 1, off=128)
        resume_m0(k, gg)
        gg.prologue_x()
        gateup_main(k, gg)
        def a6():
            k('s_lshl_b32 s27, s24, 2'); k('s_add_u32 s27, s27, s22'); k('s_add_u32 s27, s27, %d' % C_S6); cnt_addr(k, 27)
        arrive(k, a6, count=8, flag_off=128)
        g = gemm128_setup(k, 'down'); g.prologue_w()
        code_touch(k, name + '_L_down', name + '_cend', 60)
        stamp_flush(k, 'gateup', 4)
        k.label(name + '_L_down')
        stamp_rt0(k, 'down'); stamp(k, 0)
        waitfor(k, a6, 1, off=128)
        resume_m0(k, g)
        g.prologue_x()
        gemm128_main(k, 'down', g)
        def a7():
            k('s_add_u32 s27, s24, %d' % C_S7); cnt_addr(k, 27)
        arrive(k, a7, count=32, flag_off=128)
        stamp_flush(k, 'down', 4)
        phase_ln2(k, 'final')
        k('s_endpgm')
        slow()
        k.label(name + '_cend')
        k.label(name + '_end')
        k('s_endpgm')
        kerns.append(k)
    else:
        def kern(nm, lds):
            k = Kern(nm, nvgpr=512, accum=256, nsgpr=102, lds=lds); header(k, nm); return k
        def fin(k):
            k.label(k.name + '_end'); k('s_endpgm'); kerns.append(k)
        k = kern('p0_kernel', 163840); phase_p0(k, k.name); stamp_flush(k, 'p0', 3); fin(k)
        k = kern('ln1_kernel', 163840)
        ln_addr(k); srd(k, 8, PX, 0x400000)
        for j in range(4): k('buffer_load_dwordx4 %s, v6, s[8:11], s44 offen offset:%d' % (vr(RAW + 4*j, 4), j*128))
        k('s_waitcnt vmcnt(0)'); tr8x8(k, RAW, 4, 240, 241); ln_unpack(k, RAW); ln_stats(k); phase_ln1b(k); fin(k)
        k = kern('attn_kernel', 163840); slow, post = phase_attn(k, k.name); stamp_flush(k, 'attn', 5); k('s_endpgm'); slow(); fin(k)
        k = kern('oproj_kernel', 65536); stamp_rt0(k, 'oproj'); stamp(k, 0); g = gemm128_setup(k, 'oproj'); g.prologue_mixed(); gemm128_main(k, 'oproj', g); stamp_flush(k, 'oproj', 4); fin(k)
        k = kern('ln2_kernel', 163840); phase_ln2(k, 'ln2'); fin(k)
        k = kern('gateup_kernel', 4*GU_STG); stamp_rt0(k, 'gateup'); stamp(k, 0); regs = gateup_setup(k); gg = gateup_gemm(k, regs); gg.prologue_mixed(); gateup_main(k, gg); stamp_flush(k, 'gateup', 4); fin(k)
        k = kern('down_kernel', 65536); stamp_rt0(k, 'down'); stamp(k, 0); g = gemm128_setup(k, 'down'); g.prologue_mixed(); gemm128_main(k, 'down', g); stamp_flush(k, 'down', 4); fin(k)
        k = kern('final_kernel', 163840); phase_ln2(k, 'final'); fin(k)
    return kerns

HEADER = open('cdna_kernels/%s.s.ref' % NAME).read().split('; Override launch')[0] if os.path.exists('cdna_kernels/%s.s.ref' % NAME) else ''

def assemble(kerns):
    out = [HEADER.rstrip()]
    if MEGA:
        kn = kerns[0]
        out.append('; @launch grid=(%d,1,1) block=(%d,1,1) lds=%d' % (kn.grid, kn.block, kn.lds))
    else:
        for kn in kerns:
            out.append('; @launch kernel=%s grid=(%d,1,1) block=(%d,1,1) lds=%d' % (kn.name, kn.grid, kn.block, kn.lds))
    out.append('.amdgcn_target "amdgcn-amd-amdhsa--gfx950"')
    for kn in kerns: out.append(kn.text())
    out.append('.section .rodata,"a"')
    for kn in kerns:
        out.append('.p2align 6'); out.append(kn.desc())
    return '\n'.join(out) + '\n'

if __name__ == '__main__':
    for a in sys.argv[2:]:
        if a == 'instr': INSTR = True
        elif a == 'mega': MEGA = True
        elif a.startswith('opt:'): OPT[a[4:].split('=')[0]] = (a.split('=')[1].replace('+', ' ') if '=' in a else True)
    ks = build()
    bad = 0
    for kn in ks: bad += len(check(kn))
    txt = assemble(ks)
    txt = '\n'.join(l[4:] if l.startswith('    ') else l for l in txt.split('\n'))
    open(sys.argv[1], 'w').write(txt)
    print('generated', len(txt), 'bytes; check errors:', bad)
```

```python
import sys, math, os, struct as _st
from asmlib import *

NAME = 'adaLN_cond__sliding_block_cached__swiglu_ffn__prompt'
KA = dict(x=0, k=8, v=16, wq=24, wo=32, bx=40, wg=48, wu=56, wd=64, c=72, wmod=80, out=88, dbg=96, ws=104)
PX, PK, PV, PWQ, PWO, PWG, PWU, PWD, PC_, PWMOD, POUT, PDBG, PWS = 64, 66, 68, 70, 72, 76, 78, 80, 82, 84, 86, 88, 90
WS_MOD  = 0x0
WS_MODB = 0x10000
WS_CNT  = 0x20000
WS_XCC  = 0x30000
WS_H   = 0x100000
WS_O   = 0x500000
WS_P1  = 0x1500000
WS_X1  = 0x3500000
WS_H2  = 0x3900000
WS_ACT = 0x3D00000
WS_P2  = 0x4B00000
WS_KF  = 0x5B00000
WS_VF  = 0x5B80000
WS_STAMP = 0x8000000
MFMA = 'v_mfma_f32_32x32x16_bf16'
LOG2E = 1.4426950408889634
def f2u(x): return _st.unpack('<I', _st.pack('<f', x))[0]
INSTR = False
MEGA = False
OPT = {}
PHASES = ['p0', 'attn', 'oproj', 'ln2', 'gateup', 'down', 'final']
PIDX = {p: i for i, p in enumerate(PHASES)}
ST = 'sc1'
def LD(): return 'sc1' if (MEGA and not OPT.get('plainld')) else ''
C_S2, C_S3, C_S4, C_S5, C_S6, C_S7 = 0, 8, 40, 48, 56, 88
LN_LDS = 147456

def srd(k, s, lo, size, add=None):
    if add:
        k('s_add_u32 s%d, s%d, 0x%x' % (s, lo, add))
        k('s_addc_u32 s%d, s%d, 0' % (s+1, lo+1))
    else:
        k('s_mov_b32 s%d, s%d' % (s, lo))
        k('s_mov_b32 s%d, s%d' % (s+1, lo+1))
    k('s_mov_b32 s%d, 0x%x' % (s+2, size))
    k('s_mov_b32 s%d, 0x20000' % (s+3))
def srd_s(k, s, lo, soff, size):
    k('s_add_u32 s%d, s%d, s%d' % (s, lo, soff))
    k('s_addc_u32 s%d, s%d, 0' % (s+1, lo+1))
    k('s_mov_b32 s%d, 0x%x' % (s+2, size))
    k('s_mov_b32 s%d, 0x20000' % (s+3))

def stamp(k, i):
    if INSTR:
        k('s_memtime s[%d:%d]' % (92+2*i, 93+2*i)) if i < 5 else None
def stamp_begin(k):
    if INSTR:
        k('s_memrealtime s[60:61]') if False else None
        k('s_memrealtime s[18:19]') if False else None
def stamp_flush(k, phase, n):
    if not INSTR: return
    k('s_waitcnt lgkmcnt(0)')
    k('s_memrealtime s[28:29]') if False else None
    srd(k, 16, PWS, 0x10000, WS_STAMP + PIDX[phase]*0x10000)
    k('s_lshl_b32 s27, s2, 6')
    k('v_cmp_eq_u32 vcc, 0, v0')
    k('s_and_saveexec_b64 s[28:29], vcc')
    lab = k.L('so')
    k('s_cbranch_execz %s' % lab)
    k('v_mov_b32 v2, s27')
    for i in range(n):
        k('v_mov_b32 v3, s%d' % (92+2*i))
        k('buffer_store_dword v3, v2, s[16:19], 0 offen offset:%d' % (4*i))
    k('s_memrealtime s[92:93]')
    k('s_memtime s[94:95]')
    k('s_waitcnt lgkmcnt(0)')
    k('v_mov_b32 v3, s92')
    k('buffer_store_dword v3, v2, s[16:19], 0 offen offset:56')
    k('v_mov_b32 v3, s94')
    k('buffer_store_dword v3, v2, s[16:19], 0 offen offset:60')
    k.label(lab)
    k('s_mov_b64 exec, s[28:29]')
def stamp_rt0(k, phase):
    if not INSTR: return
    k('s_memrealtime s[92:93]')
    k('s_memtime s[94:95]')
    srd(k, 16, PWS, 0x10000, WS_STAMP + PIDX[phase]*0x10000)
    k('s_lshl_b32 s27, s2, 6')
    k('s_waitcnt lgkmcnt(0)')
    k('v_cmp_eq_u32 vcc, 0, v0')
    k('s_and_saveexec_b64 s[28:29], vcc')
    lab = k.L('s0')
    k('s_cbranch_execz %s' % lab)
    k('v_mov_b32 v2, s27')
    k('v_mov_b32 v3, s92')
    k('buffer_store_dword v3, v2, s[16:19], 0 offen offset:48')
    k('v_mov_b32 v3, s94')
    k('buffer_store_dword v3, v2, s[16:19], 0 offen offset:52')
    k.label(lab)
    k('s_mov_b64 exec, s[28:29]')

def header(k, name, early=None):
    k('s_cmp_ge_u32 s2, 256')
    k('s_cbranch_scc1 %s_end' % name)
    if OPT.get('scramble'):
        k('s_and_b32 s3, s2, 31')
        k('s_lshl_b32 s3, s3, 3')
        k('s_lshr_b32 s2, s2, 5')
        k('s_or_b32 s2, s2, s3')
    k('s_load_dwordx8 s[80:87], s[0:1], 64')
    k('s_load_dwordx16 s[64:79], s[0:1], 0')
    k('s_load_dwordx4 s[88:91], s[0:1], 96')
    k('v_lshrrev_b32 v2, 6, v0')
    k('v_and_b32 v1, 63, v0')
    k('s_lshr_b32 s21, s2, 3')
    k('v_readfirstlane_b32 s26, v2')
    if early: early()
    k('s_and_b32 s20, s2, 7')
    k('s_lshr_b32 s22, s20, 1')
    k('s_and_b32 s23, s20, 1')
    k('s_and_b32 s24, s21, 3')
    k('s_lshl_b32 s27, s23, 2')
    k('s_add_u32 s24, s24, s27')
    k('s_lshr_b32 s25, s21, 2')
    k('s_waitcnt lgkmcnt(0)')

def cnt_addr(k, sreg, dst=6):
    k('s_lshl_b32 s%d, s%d, 8' % (dst, sreg))
    k('s_add_u32 s%d, s%d, 0x%x' % (dst, dst, WS_CNT))
    k('s_add_u32 s%d, s%d, s%d' % (dst, dst, PWS))
    k('s_addc_u32 s%d, s%d, 0' % (dst+1, PWS+1))
def arrive(k, setup, count=None, extra_dbg=None, only_w0=False, flag_off=None):
    if not MEGA: return
    if not only_w0:
        k('s_waitcnt vmcnt(0)')
        k('s_barrier')
    lab = k.L('arr')
    k('s_cmp_lg_u32 s26, 0')
    k('s_cbranch_scc1 %s' % lab)
    if only_w0: k('s_waitcnt vmcnt(0)')
    setup()
    k('v_mov_b32 v2, 0')
    k('v_mov_b32 v3, 1')
    k('s_mov_b64 exec, 1')
    if extra_dbg is not None:
        k('v_mov_b32 v29, %d' % extra_dbg)
        k('global_atomic_add v29, v3, s[%d:%d] sc1' % (PDBG, PDBG+1))
    if count is None:
        k('global_atomic_add v2, v3, s[6:7] sc1')
    else:
        k('global_atomic_add v29, v2, v3, s[6:7] sc0 sc1')
        k('s_waitcnt vmcnt(0)')
        k('v_readfirstlane_b32 s27, v29')
        k('s_nop 3')
        k('s_cmp_lg_u32 s27, %d' % (count - 1))
        k('s_cbranch_scc1 %s_n' % lab)
        k('global_store_dword v2, v3, s[6:7] offset:%d sc1' % flag_off)
        k.label(lab + '_n')
    k('s_mov_b64 exec, -1')
    k.label(lab)
def waitfor(k, setup, count, off=0, sleep=2):
    if not MEGA: return
    lab = k.L('wt'); done = k.L('wd'); skip = k.L('ws')
    k('s_cmp_lg_u32 s26, 0')
    k('s_cbranch_scc1 %s' % skip)
    setup()
    k('v_mov_b32 v2, 0')
    k('s_mov_b32 s27, 0')
    k('s_mov_b64 exec, 1')
    k.label(lab)
    k('global_load_dword v3, v2, s[6:7] offset:%d sc1' % off)
    k('s_waitcnt vmcnt(0)')
    k('v_readfirstlane_b32 s28, v3')
    k('s_add_u32 s27, s27, 1')
    k('s_cmp_ge_u32 s28, %d' % count)
    k('s_cbranch_scc1 %s' % done)
    k('s_cmp_ge_u32 s27, 0x40000')
    k('s_cbranch_scc1 %s' % done)
    k('s_sleep %d' % sleep)
    k('s_branch %s' % lab)
    k.label(done)
    k('s_mov_b64 exec, -1')
    k.label(skip)
    k('s_barrier')

def local_store(k, ins):
    if not MEGA or OPT.get('nolocal'): return [ins + ' ' + ST]
    a = k.L('ls'); b = k.L('lt')
    return ['s_cbranch_vccnz %s' % a, ins + ' ' + ST, a + ':', 's_cbranch_vccz %s' % b, ins, b + ':']
def set_local_vcc(k):
    if MEGA:
        k('s_cmp_eq_u32 s3, 1')
        k('s_cselect_b64 vcc, -1, 0')

def code_touch(k, lab0, lab1, vtmp):
    if OPT.get('nocode'): return
    here = k.L('pc'); skip = k.L('ct')
    k('s_cmp_lg_u32 s26, 0')
    k('s_cbranch_scc1 %s' % skip)
    k('s_getpc_b64 s[6:7]')
    k.label(here)
    k('s_add_u32 s6, s6, %s-%s' % (lab0, here))
    k('s_addc_u32 s7, s7, %s' % ('0' if True else ''))
    k('v_lshlrev_b32 v%d, 5, v1' % vtmp)
    k('v_add_u32 v%d, s21, v%d' % (vtmp, vtmp))
    k('v_lshlrev_b32 v%d, 7, v%d' % (vtmp, vtmp))
    k('v_cmp_gt_u32 vcc, %s-%s, v%d' % (lab1, lab0, vtmp))
    k('s_and_saveexec_b64 s[4:5], vcc')
    k('s_cbranch_execz %s_r' % skip)
    k('global_load_dword v%d, v%d, s[6:7]' % (vtmp+1, vtmp))
    k.label(skip + '_r')
    k('s_mov_b64 exec, s[4:5]')
    k.label(skip)

class Gemm:
    def __init__(self, k, NB, nsteps, acc, xr, wf, vX, vW, sXsrd, sWsrd, sXoff, sWoff, sM0, sCnt,
                 stage_bytes, ldw_step, nW, lds_imm, extra=None, xflag=''):
        self.k = k; self.NB = NB; self.nsteps = nsteps; self.acc = acc; self.xr = xr; self.wf = wf
        self.vX = vX; self.vW = vW; self.sX = sXsrd; self.sW = sWsrd; self.sXoff = sXoff; self.sWoff = sWoff
        self.sM0 = sM0; self.sCnt = sCnt; self.stage = stage_bytes; self.ldw_step = ldw_step; self.nW = nW
        self.lds_imm = lds_imm; self.xflag = xflag
        self.extra = extra or (lambda t, j: [])
        if nW == 4: wsl = {3: [0], 0: [1], 1: [2], 2: [3]}
        else: wsl = {3: [0, 1], 0: [2, 3], 1: [4, 5], 2: [6]}
        Q = []
        for i in wsl[3]: Q.append((('W', 0, i), -13))
        for s_ in range(nsteps):
            for j in range(4):
                slot = 4*(s_-3) + j
                ws = [('W', s_, i) for i in wsl[j]] if j < 3 else ([('W', s_+1, i) for i in wsl[3]] if s_+1 < nsteps else [])
                for o in [('X', s_, j, 0)] + ws + [('X', s_, j, 1)]: Q.append((o, slot))
        self.Q = Q
        self.P = len([1 for o, sl in Q if sl < -4])
        self.sched = {}
        pos = self.P
        for t in range(nsteps):
            for j in range(4):
                slot = 4*t + j
                steady = len([1 for o, sl in Q if sl <= slot])
                per = len([1 for o, sl in Q if sl == 16 + j])
                n = min(steady, pos + per + 1)
                self.sched[(t, j)] = [o for o, sl in Q[pos:n]]
                pos = n
    def accr(self, nb, mb): return self.acc + (nb*2 + mb)*16
    def xreg(self, s, mb, j): return self.xr + (s % 4)*32 + (mb*4 + j)*4
    def wreg(self, par, nb): return self.wf + par*self.NB*4 + nb*4
    def mkop(self, o):
        if o[0] == 'X':
            _, s_, j, mb = o
            pre = ['s_add_u32 s%d, s%d, 4096' % (self.sXoff, self.sXoff)] if (j == 0 and mb == 0) else []
            return (pre, 'buffer_load_dwordx4 %s, v%d, s[%d:%d], s%d offen offset:%d %s' % (ar(self.xreg(s_, mb, j), 4), self.vX[mb], self.sX, self.sX+3, self.sXoff, j*1024, self.xflag), ('X', s_, j))
        _, s_, i = o
        pre = []
        if i == 0:
            pre.append('s_add_u32 s%d, s%d, 0x%x' % (self.sWoff, self.sWoff, self.ldw_step))
            pre.append('s_add_u32 m0, s%d, 0x%x' % (self.sM0, (s_ % 4)*self.stage))
        elif i == 4:
            pre.append('s_add_u32 m0, s%d, 0x%x' % (self.sM0, (s_ % 4)*self.stage + 4096))
        return (pre, 'buffer_load_dwordx4 v%d, s[%d:%d], s%d offen offset:%d lds' % (self.vW[i], self.sW, self.sW+3, self.sWoff, (i % 4)*1024), ('W', s_, i))
    def emit_vm(self, op):
        k = self.k
        pre, ins, tag = op[0], op[1], op[2]
        for p in pre: k(p)
        if pre and 'm0' in pre[-1]: k('s_nop 0')
        k.vm(ins, tag)
    def lds_reads(self, t, j):
        out = []
        for nb in range(self.NB):
            for sec in range(2):
                v, imm = self.lds_imm(t % 4, j, nb, sec)
                out.append('ds_read_b64_tr_b16 %s, v%d offset:%d' % (ar(self.wreg(j % 2, nb) + 2*sec, 2), v, imm))
        return out
    def blk_reads(self, t, nb):
        out = []
        for j in range(4):
            for sec in range(2):
                v, imm = self.lds_imm(t % 4, j, nb, sec)
                out.append('ds_read_b64_tr_b16 %s, v%d offset:%d' % (ar(self.wf + (nb % 2)*16 + j*4 + 2*sec, 2), v, imm))
        return out
    def prologue_w(self):
        for o, sl in self.Q[:self.P]:
            if o[0] == 'W': self.emit_vm(self.mkop(o))
    def prologue_x(self):
        for o, sl in self.Q[:self.P]:
            if o[0] == 'X': self.emit_vm(self.mkop(o))
    def prologue_mixed(self):
        for o, sl in self.Q[:self.P]: self.emit_vm(self.mkop(o))
    def start(self):
        k = self.k
        n = k.vm_wait_n(lambda tg: (tg[0] == 'W' and tg[1] == 0) or (tg[0] == 'X' and tg[1] == 0 and tg[2] <= 2))
        k('s_waitcnt vmcnt(%d)' % n)
        k('s_barrier')
        for r in self.lds_reads(0, 0): k(r)
    def emit_gaps(self, mfmas, gaps):
        k = self.k
        for m, mf in enumerate(mfmas):
            k(mf)
            for kind, x in gaps[m]:
                if kind == 'i': k(x)
                else: self.emit_vm(x)
    def frag_reads(self, t, j, nb, slot):
        out = []
        for sec in range(2):
            v, imm = self.lds_imm(t % 4, j, nb, sec)
            out.append('ds_read_b64_tr_b16 %s, v%d offset:%d' % (ar(self.wf + slot*4 + 2*sec, 2), v, imm))
        return out
    def step(self, t, tail=0):
        k = self.k; NB = self.NB; n = self.nsteps
        last = (t == n - 1)
        pre_tail = tail and t == n - tail - 1
        for j in range(4):
            if j == 3 and not last:
                if pre_tail:
                    nn = k.vm_wait_n(lambda tg: tg[0] in 'WX' and tg[1] <= (n-2 if tail >= 3 else n-1))
                else:
                    nn = k.vm_wait_n(lambda tg: (tg[0] == 'W' and tg[1] <= t+1) or (tg[0] == 'X' and (tg[1] <= t or (tg[1] == t+1 and tg[2] <= 2))))
                k('s_waitcnt vmcnt(%d) lgkmcnt(0)' % nn)
                k('s_barrier')
            elif j == 3:
                nn = k.vm_wait_n(lambda tg: tg[0] == 'X' and tg[1] <= t)
                k('s_waitcnt vmcnt(%d) lgkmcnt(0)' % nn)
            else:
                k('s_waitcnt lgkmcnt(0)')
            if j < 3: reads = self.lds_reads(t, j+1)
            elif last: reads = []
            elif pre_tail:
                reads = []
                for f in range(4): reads += self.frag_reads(n - tail, f, 0, f)
            else: reads = self.lds_reads(t+1, 0)
            vms = [self.mkop(o) for o in self.sched[(t, j)]]
            extra = list(self.extra(t, j))
            vms += [e for e in extra if not isinstance(e, str)]
            plain = [e for e in extra if isinstance(e, str)]
            nm = 2*NB
            gaps = [[] for _ in range(nm)]
            for i, r in enumerate(reads): gaps[i // 2].append(('i', r))
            for i, op in enumerate(vms): gaps[NB + (i * NB) // max(1, len(vms))].append(('vm', op))
            for i, e in enumerate(plain): gaps[(i * nm) // len(plain)].append(('i', e))
            mf = []
            for nb in range(NB):
                for mb in range(2):
                    d = vr(self.accr(nb, mb), 16)
                    mf.append('%s %s, %s, %s, %s' % (MFMA, d, ar(self.wreg(j % 2, nb), 4), ar(self.xreg(t, mb, j), 4), '0' if (t == 0 and j == 0) else d))
            self.emit_gaps(mf, gaps)
    def tail_blocks(self, tail, epi):
        k = self.k; NB = self.NB; n = self.nsteps
        frs = [(nb, t, j) for nb in range(NB) for t in range(n - tail, n) for j in range(4)]
        per = tail*4
        NS = 8
        pending = []
        for f, (nb, t, j) in enumerate(frs):
            fo = f % per
            if fo == 0:
                items = list(pending)
                if nb < tail:
                    for jj in range(4): items += list(self.extra(n - tail + nb, jj))
                ng = 2*per
                blockgaps = [[] for _ in range(ng)]
                for i, e in enumerate(items): blockgaps[4 + (i * (ng - 4)) // max(1, len(items))].append(e)
            if f == 4 and tail >= 3:
                nn = k.vm_wait_n(lambda tg: tg[0] in 'WX' and tg[1] <= n-1)
                k('s_waitcnt vmcnt(%d)' % nn)
                k('s_barrier')
            ahead = min(len(frs) - 1 - f, 3)
            k('s_waitcnt lgkmcnt(%d)' % (2*ahead))
            nxt = self.frag_reads(frs[f+4][1], frs[f+4][2], frs[f+4][0], (f+4) % NS) if f + 4 < len(frs) else []
            for mb in range(2):
                d = vr(self.accr(nb, mb), 16)
                k('%s %s, %s, %s, %s' % (MFMA, d, ar(self.wf + (f % NS)*4, 4), ar(self.xreg(t, mb, j), 4), d))
                if nxt: k(nxt[mb])
                for e in blockgaps[2*fo + mb]:
                    if isinstance(e, str): k(e)
                    else: self.emit_vm(e)
            if fo == per - 1: pending = epi(nb)
        k('s_nop 7')
        k('s_nop 3')
        for e in pending:
            if isinstance(e, str): k(e)
            else: self.emit_vm(e)
    def mainloop(self, epi=None, tail=3):
        k = self.k; n = self.nsteps
        tl = tail if epi is not None else 0
        for t in range(4): self.step(t, tl)
        if OPT.get('stepst'): stamp(k, 0)
        t = 4
        trips = 0
        while t + 4*trips + 3 + 4 <= n - 1: trips += 1
        if trips >= 2:
            lab = k.L('loop')
            k('s_mov_b32 s%d, %d' % (self.sCnt, trips))
            k.label(lab)
            q0 = len(k.vmq)
            for tt in range(t, t+4): self.step(tt, tl)
            k('s_sub_u32 s%d, s%d, 1' % (self.sCnt, self.sCnt))
            k('s_cmp_lg_u32 s%d, 0' % self.sCnt)
            k('s_cbranch_scc1 %s' % lab)
            body = k.vmq[q0:]
            for r in range(1, trips):
                for tg in body: k.vmq.append((tg[0], tg[1] + 4*r, tg[2]))
            t += 4*trips
        for tt in range(t, n - tl): self.step(tt, tl)
        if OPT.get('stepst'): stamp(k, 1)
        if tl: self.tail_blocks(tl, epi)

def lds_addr_128(k, vL, tmp):
    a, b, c = tmp, tmp+1, tmp+2
    k('v_lshrrev_b32 v%d, 5, v1' % a)
    k('v_lshlrev_b32 v%d, 11, v%d' % (a, a))
    k('v_bfe_u32 v%d, v1, 2, 2' % b)
    k('v_lshl_add_u32 v%d, v%d, 8, v%d' % (a, b, a))
    k('v_bfe_u32 v%d, v1, 4, 1' % c)
    k('v_lshl_add_u32 v%d, v%d, 5, v%d' % (a, c, a))
    k('v_and_b32 v%d, 1, v1' % c)
    k('v_lshl_add_u32 v%d, v%d, 4, v%d' % (a, c, a))
    k('v_bfe_u32 v%d, v1, 1, 1' % c)
    k('v_lshl_add_u32 v%d, v%d, 3, v%d' % (a, c, a))
    for nb in range(4):
        k('v_xor_b32 v%d, %d, v%d' % (c, nb, b))
        k('v_lshl_add_u32 v%d, v%d, 6, v%d' % (vL[nb], c, a))

def w128_voffsets(k, vW, ldw, s_colbytes, tmp):
    a, b, c = tmp, tmp+1, tmp+2
    k('v_lshrrev_b32 v%d, 4, v1' % a)
    k('v_bfe_u32 v%d, v1, 2, 2' % b)
    k('v_xor_b32 v%d, v%d, v%d' % (b, b, a))
    k('v_and_b32 v%d, 3, v1' % c)
    k('v_lshlrev_b32 v%d, 4, v%d' % (c, c))
    k('v_lshl_add_u32 v%d, v%d, 6, v%d' % (c, b, c))
    k('s_lshl_b32 s27, s26, 4')
    k('v_add_u32 v%d, s27, v%d' % (a, a))
    k('v_mul_u32_u24 v%d, %d, v%d' % (a, ldw, a))
    k('v_add3_u32 v%d, v%d, v%d, s%d' % (vW[0], a, c, s_colbytes))
    for i in range(1, 4): k('v_add_u32 v%d, 0x%x, v%d' % (vW[i], i*4*ldw - i*1024, vW[0]))

def gemm128_setup(k, which):
    if which == 'oproj': xoff, xsize, KS, ksq, wptr, ldw, nsteps = WS_O, 0x1000000, 256, 64, PWO, 2048, 16
    else: xoff, xsize, KS, ksq, wptr, ldw, nsteps = WS_ACT, 2048*3584*2, 224, 56, PWD, 2048, 14
    vL = [4, 5, 6, 7]; vX = [8, 9]; vW = [10, 11, 12, 13]
    lds_addr_128(k, vL, tmp=14)
    k('v_lshlrev_b32 v8, 4, v1')
    k('v_add_u32 v9, 0x%x, v8' % (KS*1024))
    k('s_lshl_b32 s28, s25, 8')
    w128_voffsets(k, vW, ldw, 28, 14)
    srd(k, 8, PWS, xsize, xoff)
    srd(k, 12, wptr, ksq*4*16*ldw)
    k('s_lshl_b32 s27, s24, 3')
    k('s_lshl_b32 s28, s26, 1')
    k('s_add_u32 s34, s27, s28')
    k('s_mul_i32 s30, s34, %d' % KS)
    k('s_mul_i32 s28, s22, %d' % ksq)
    k('s_add_u32 s30, s30, s28')
    k('s_lshl_b32 s30, s30, 10')
    k('s_sub_u32 s30, s30, 4096')
    k('s_mul_i32 s31, s22, 0x%x' % (ksq*16*ldw))
    k('s_sub_u32 s31, s31, 0x%x' % (64*ldw))
    k('s_lshl_b32 s32, s26, 12')
    return Gemm(k, 4, nsteps, acc=128, xr=0, wf=128, vX=vX, vW=vW, sXsrd=8, sWsrd=12, sXoff=30, sWoff=31, sM0=32, sCnt=33,
                stage_bytes=16384, ldw_step=64*ldw, nW=4,
                lds_imm=lambda buf, j, nb, sec: (vL[nb], buf*16384 + j*4096 + sec*1024), xflag=LD())

def gemm128_main(k, which, g):
    poff = WS_P1 if which == 'oproj' else WS_P2
    k('s_lshl_b32 s27, s22, 22')
    k('s_add_u32 s27, s27, 0x%x' % poff)
    srd_s(k, 16, PWS, 27, 0x400000)
    k('s_lshl_b32 s27, s34, 6')
    k('s_lshl_b32 s28, s25, 3')
    k('s_add_u32 s27, s27, s28')
    k('s_lshl_b32 s36, s27, 10')
    k('s_add_u32 s37, s36, 0x10000')
    k('v_add_u32 v14, 4096, v8')
    if not OPT.get('stepst'): stamp(k, 1)
    g.start()
    stamp(k, 2)
    cnt = [0]
    def epi(nb):
        out = []
        for mb in range(2):
            a = g.accr(nb, mb)
            for hh in range(2):
                t = 16 + (cnt[0] % 8)*4; cnt[0] += 1
                for r in range(4): out.append('v_cvt_pk_bf16_f32 v%d, v%d, v%d' % (t+r, a + hh*8 + 2*r, a + hh*8 + 2*r + 1))
                ks = 2*nb + hh
                out.append(([], 'buffer_store_dwordx4 %s, v%d, s[16:19], s%d offen offset:%d %s' % (vr(t, 4), 8 if ks < 4 else 14, 36+mb, (ks % 4)*1024, ST), ('S', 0, 0)))
        return out
    g.mainloop(epi)
    stamp(k, 3)

def reduce8(k, v, t):
    k('s_nop 1')
    k('v_add_f32_dpp v%d, v%d, v%d row_ror:8 row_mask:0xf bank_mask:0xf' % (v, v, v))
    k('v_mov_b32 v%d, v%d' % (t, v))
    k('s_nop 1')
    k('v_permlane16_swap_b32 v%d, v%d' % (v, t))
    k('s_nop 1')
    k('v_add_f32 v%d, v%d, v%d' % (v, v, t))
    k('v_mov_b32 v%d, v%d' % (t, v))
    k('s_nop 1')
    k('v_permlane32_swap_b32 v%d, v%d' % (v, t))
    k('s_nop 1')
    k('v_add_f32 v%d, v%d, v%d' % (v, v, t))

def gemv_load(k, nj, s_row0, s_col0bytes, AD=160, C=168, LDB=96, emit=True):
    o = []
    o.append('v_and_b32 v%d, 7, v0' % AD)
    o.append('v_lshrrev_b32 v%d, 3, v0' % (AD+1))
    o.append('v_mul_u32_u24 v%d, %d, v%d' % (AD+2, nj*12288, AD+1))
    o.append('v_lshl_add_u32 v%d, v%d, 4, v%d' % (AD+2, AD, AD+2))
    o.append('v_mul_u32_u24 v%d, %d, v%d' % (AD+3, nj*2, AD+1))
    o.append('s_mul_i32 s36, s%d, 12288' % s_row0)
    o.append('s_add_u32 s36, s36, s%d' % s_col0bytes)
    o.append('s_lshl_b32 s37, s%d, 1' % s_row0)
    for i in range(nj // 8): o.append('buffer_load_dwordx4 %s, v%d, s[12:15], s37 offen offset:%d' % (vr(C+4*i, 4), AD+3, 16*i))
    for j in range(nj):
        o.append('buffer_load_dwordx4 %s, v%d, s[8:11], s36 offen' % (vr(LDB+4*j, 4), AD+2))
        if j < nj-1: o.append('s_add_u32 s36, s36, 12288')
    if emit:
        for x in o: k(x)
    return o
def gemv_compute(k, nj, s_outoff, out_srd, L0, after, B=160, C=168, LDB=96):
    S = B+16; T = B+32; A = B+48
    k('v_and_b32 v%d, 7, v0' % B)
    k('v_lshrrev_b32 v%d, 3, v0' % (B+1))
    k('s_waitcnt vmcnt(%d)' % (nj + after))
    if OPT.get('p0st') and L0 == LN_LDS: stamp(k, 2)
    for i in range(nj//2):
        k('v_lshlrev_b32 v%d, 16, v%d' % (S+2*i, C+i))
        k('v_and_b32 v%d, 0xffff0000, v%d' % (S+1+2*i, C+i))
    for i in range(nj): k('v_mul_f32 v%d, 0x%x, v%d' % (T+i, f2u(-LOG2E), S+i))
    for i in range(nj): k('v_exp_f32 v%d, v%d' % (T+i, T+i))
    k('s_nop 0')
    for i in range(nj): k('v_add_f32 v%d, 1.0, v%d' % (T+i, T+i))
    for i in range(nj): k('v_rcp_f32 v%d, v%d' % (T+i, T+i))
    k('s_nop 0')
    for i in range(nj): k('v_mul_f32 v%d, v%d, v%d' % (S+i, S+i, T+i))
    for i in range(nj//2): k('v_cvt_pk_bf16_f32 v%d, v%d, v%d' % (T+i, S+2*i, S+1+2*i))
    for i in range(nj//2):
        k('v_lshlrev_b32 v%d, 16, v%d' % (S+2*i, T+i))
        k('v_and_b32 v%d, 0xffff0000, v%d' % (S+1+2*i, T+i))
    for i in range(8): k('v_mov_b32 v%d, 0' % (A+i))
    U = B+56
    for j in range(nj):
        k('s_waitcnt vmcnt(%d)' % (nj-1-j + after))
        for i in range(4):
            k('v_lshlrev_b32 v%d, 16, v%d' % (U+2*(i%2), LDB+4*j+i))
            k('v_and_b32 v%d, 0xffff0000, v%d' % (U+1+2*(i%2), LDB+4*j+i))
            k('v_fmac_f32 v%d, v%d, v%d' % (A+2*i, U+2*(i%2), S+j))
            k('v_fmac_f32 v%d, v%d, v%d' % (A+2*i+1, U+1+2*(i%2), S+j))
    if OPT.get('p0st') and L0 == LN_LDS: stamp(k, 3)
    k('v_lshlrev_b32 v%d, 8, v%d' % (B+4, B+1))
    k('v_lshl_add_u32 v%d, v%d, 5, v%d' % (B+4, B, B+4))
    k('v_add_u32 v%d, %d, v%d' % (B+4, L0, B+4))
    k('ds_write_b128 v%d, %s' % (B+4, vr(A, 4)))
    k('ds_write_b128 v%d, %s offset:16' % (B+4, vr(A+4, 4)))
    k('s_waitcnt lgkmcnt(0)')
    k('s_barrier')
    lab = k.L('skip')
    k('s_cmp_lg_u32 s26, 0')
    k('s_cbranch_scc1 %s' % lab)
    k('v_lshlrev_b32 v%d, 2, v1' % (B+6))
    k('v_add_u32 v%d, %d, v%d' % (B+4, L0, B+6))
    for h in range(4):
        for i in range(8): k('ds_read_b32 v%d, v%d offset:%d' % (LDB+8*h+i, B+4, (8*h+i)*256))
        if h in (1, 2): k('s_waitcnt lgkmcnt(7)')
    k('s_waitcnt lgkmcnt(0)')
    for i in range(16): k('v_add_f32 v%d, v%d, v%d' % (LDB+i, LDB+i, LDB+16+i))
    for st in (8, 4, 2, 1):
        for i in range(st): k('v_add_f32 v%d, v%d, v%d' % (LDB+i, LDB+i, LDB+st+i))
    k('buffer_store_dword v%d, v%d, s[%d:%d], s%d offen %s' % (LDB, B+6, out_srd, out_srd+3, s_outoff, ST))
    k.label(lab)

def kv_part(k, mid=None, nmid=1):
    B = 160
    k('s_sub_u32 s50, s2, 128')
    k('s_lshl_b32 s50, s50, 2')
    k('s_add_u32 s50, s50, s26')
    srd(k, 8, PK, 0x200000)
    srd(k, 12, PV, 0x200000)
    srd(k, 16, PWS, 0x100000, WS_KF)
    k('s_lshr_b32 s51, s50, 7')
    k('s_bfe_u32 s52, s50, 0x40003')
    k('s_lshl_b32 s54, s51, 19')
    k('s_lshl_b32 s55, s52, 13')
    k('s_add_u32 s54, s54, s55')
    k('s_add_u32 s54, s54, 0x60000')
    k('v_lshrrev_b32 v%d, 3, v1' % B)
    k('v_and_b32 v%d, 7, v1' % (B+1))
    k('v_lshlrev_b32 v%d, 8, v%d' % (B+2, B))
    k('v_lshl_add_u32 v%d, v%d, 4, v%d' % (B+2, B+1, B+2))
    k('s_bfe_u32 s53, s50, 0x20001')
    k('s_and_b32 s56, s50, 1')
    k('s_lshl_b32 s55, s53, 11')
    k('s_add_u32 s55, s55, s54')
    k('s_lshl_b32 s57, s56, 7')
    k('s_add_u32 s55, s55, s57')
    k('buffer_load_dwordx4 %s, v%d, s[8:11], s55 offen' % (vr(B+8, 4), B+2))
    k('v_lshrrev_b32 v%d, 2, v1' % (B+3))
    k('v_lshlrev_b32 v%d, 8, v%d' % (B+3, B+3))
    k('v_and_b32 v%d, 3, v1' % (B+4))
    k('v_lshl_add_u32 v%d, v%d, 4, v%d' % (B+3, B+4, B+3))
    k('s_bfe_u32 s55, s50, 0x10002')
    k('s_lshl_b32 s55, s55, 12')
    k('s_and_b32 s57, s50, 3')
    k('s_lshl_b32 s57, s57, 6')
    k('s_add_u32 s55, s55, s57')
    k('s_add_u32 s55, s55, s54')
    k('s_mul_i32 s57, s26, 4608')
    k('s_add_u32 s57, s57, %d' % (TR_LDS + 2304))
    k('s_mov_b32 m0, s57')
    k('s_nop 0')
    k('buffer_load_dwordx4 v%d, s[12:15], s55 offen lds' % (B+3))
    if mid:
        k('s_mov_b32 s58, s16'); k('s_mov_b32 s59, s17'); k('s_mov_b32 s60, s18')
        mid()
        k('s_mov_b32 s16, s58'); k('s_mov_b32 s17, s59'); k('s_mov_b32 s18, s60')
    k('v_lshrrev_b32 v%d, 5, v1' % (B+4))
    k('v_lshlrev_b32 v%d, 2, v%d' % (B+4, B+4))
    k('v_bfe_u32 v%d, v1, 2, 2' % (B+5))
    k('v_add_u32 v%d, v%d, v%d' % (B+4, B+4, B+5))
    k('v_lshlrev_b32 v%d, 6, v%d' % (B+4, B+4))
    k('v_bfe_u32 v%d, v1, 4, 1' % (B+5))
    k('v_lshl_add_u32 v%d, v%d, 5, v%d' % (B+4, B+5, B+4))
    k('v_and_b32 v%d, 1, v1' % (B+5))
    k('v_lshl_add_u32 v%d, v%d, 4, v%d' % (B+4, B+5, B+4))
    k('v_bfe_u32 v%d, v1, 1, 1' % (B+5))
    k('v_lshl_add_u32 v%d, v%d, 3, v%d' % (B+4, B+5, B+4))
    k('v_add_u32 v%d, s57, v%d' % (B+4, B+4))
    k('v_lshrrev_b32 v%d, 4, v1' % (B+6))
    k('v_lshlrev_b32 v%d, 10, v%d' % (B+6, B+6))
    k('v_bfe_u32 v%d, v1, 3, 1' % (B+5))
    k('v_lshl_add_u32 v%d, v%d, 9, v%d' % (B+6, B+5, B+6))
    k('v_lshl_add_u32 v%d, v%d, 4, v%d' % (B+6, B+1, B+6))
    k('s_lshr_b32 s55, s50, 3')
    k('s_lshl_b32 s55, s55, 13')
    k('s_lshl_b32 s57, s56, 12')
    k('s_add_u32 s55, s55, s57')
    k('s_lshl_b32 s57, s53, 7')
    k('s_add_u32 s55, s55, s57')
    k('s_waitcnt vmcnt(%d)' % (1 + nmid if mid else 1))
    tr8x8(k, B+8, 1, 240, 241)
    k('buffer_store_dwordx4 %s, v%d, s[16:19], s55 offen %s' % (vr(B+8, 4), B+6, ST))
    k('s_waitcnt vmcnt(%d)' % (1 + nmid if mid else 1))
    k('ds_read_b64_tr_b16 %s, v%d' % (vr(B+12, 2), B+4))
    k('ds_read_b64_tr_b16 %s, v%d offset:512' % (vr(B+14, 2), B+4))
    k('v_lshlrev_b32 v%d, 4, v1' % (B+5))
    k('s_lshl_b32 s55, s50, 10')
    k('s_add_u32 s55, s55, 0x%x' % (WS_VF - WS_KF))
    k('s_waitcnt lgkmcnt(0)')
    k('buffer_store_dwordx4 %s, v%d, s[16:19], s55 offen %s' % (vr(B+12, 4), B+5, ST))

def ln_addr(k):
    k('v_lshrrev_b32 v2, 6, v0')
    k('v_and_b32 v3, 7, v1')
    k('v_lshrrev_b32 v4, 3, v1')
    k('v_lshrrev_b32 v5, 1, v4')
    k('v_lshlrev_b32 v5, 10, v5')
    k('v_and_b32 v6, 1, v4')
    k('v_lshl_add_u32 v5, v6, 9, v5')
    k('v_lshl_add_u32 v5, v3, 4, v5')
    k('v_lshl_add_u32 v5, v2, 14, v5')
    k('v_lshlrev_b32 v6, 11, v4')
    k('v_lshl_add_u32 v6, v3, 4, v6')
    k('v_lshl_add_u32 v6, v2, 9, v6')
    tr_addr(k, 240, 241)
    k('v_lshlrev_b32 v7, 4, v0')
    k('v_lshlrev_b32 v8, 10, v2')
    k('v_lshl_add_u32 v8, v4, 5, v8')
    k('v_add_u32 v8, %d, v8' % LN_LDS)
    k('v_add_u32 v11, %d, v7' % LN_LDS)
    k('v_lshlrev_b32 v9, 4, v3')
    k('v_add_u32 v9, %d, v9' % (LN_LDS + 12288))
    k('v_lshl_add_u32 v10, v2, 2, v9')
    k('s_lshl_b32 s45, s24, 5')
    k('s_lshl_b32 s46, s22, 3')
    k('s_add_u32 s45, s45, s46')
    k('s_add_u32 s45, s45, s25')
    k('s_lshr_b32 s40, s45, 2')
    k('s_lshl_b32 s40, s40, 16')
    k('s_and_b32 s46, s45, 3')
    k('s_lshl_b32 s46, s46, 7')
    k('s_add_u32 s40, s40, s46')
    for j in range(1, 4): k('s_add_u32 s%d, s40, %d' % (40+j, j*4096))
    k('s_lshl_b32 s44, s45, 14')

TR_LDS = 126976
def tr_addr(k, vw, vrd):
    k('v_lshrrev_b32 v%d, 3, v1' % vw)
    k('v_mul_u32_u24 v%d, 144, v%d' % (vw, vw))
    k('v_and_b32 v%d, 7, v1' % vrd)
    k('v_lshl_add_u32 v%d, v%d, 4, v%d' % (vw, vrd, vw))
    k('v_mul_u32_u24 v%d, 144, v%d' % (vrd, vrd))
    k('v_lshrrev_b32 v29, 3, v1')
    k('v_lshl_add_u32 v%d, v29, 4, v%d' % (vrd, vrd))
    k('s_mul_i32 s27, s26, 4608')
    k('s_add_u32 s27, s27, %d' % TR_LDS)
    k('v_add_u32 v%d, s27, v%d' % (vw, vw))
    k('v_add_u32 v%d, s27, v%d' % (vrd, vrd))
def tr8x8(k, base, n, vw, vrd):
    for j in range(n): k('ds_write_b128 v%d, %s offset:%d' % (vw, vr(base + 4*j, 4), j*1152))
    k('s_waitcnt lgkmcnt(0)')
    for j in range(n): k('ds_read_b128 %s, v%d offset:%d' % (vr(base + 4*j, 4), vrd, j*1152))
    k('s_waitcnt lgkmcnt(0)')

X_ = 32
RAW = 64
def ln_unpack(k, src):
    for j in range(4):
        for i in range(4):
            k('v_lshlrev_b32 v%d, 16, v%d' % (X_ + 8*j + 2*i, src + 4*j + i))
            k('v_and_b32 v%d, 0xffff0000, v%d' % (X_ + 8*j + 2*i + 1, src + 4*j + i))
def ln_stats(k):
    RED = 0
    k('v_add_f32 v24, v%d, v%d' % (X_, X_+1))
    k('v_add_f32 v25, v%d, v%d' % (X_+2, X_+3))
    for i in range(4, 32, 2):
        k('v_add_f32 v24, v24, v%d' % (X_+i))
        k('v_add_f32 v25, v25, v%d' % (X_+i+1))
    k('v_add_f32 v24, v24, v25')
    reduce8(k, 24, 25)
    k('ds_write_b32 v10, v24 offset:%d' % RED)
    k('s_waitcnt lgkmcnt(0)')
    k('s_barrier')
    k('ds_read_b128 v[24:27], v9 offset:%d' % RED)
    k('s_waitcnt lgkmcnt(0)')
    k('v_add_f32 v24, v24, v25')
    k('v_add_f32 v26, v26, v27')
    k('v_add_f32 v24, v24, v26')
    k('v_mul_f32 v24, 0x%x, v24' % f2u(1.0/1024))
    for i in range(32): k('v_sub_f32 v%d, v%d, v24' % (X_+i, X_+i))
    k('v_mul_f32 v24, v%d, v%d' % (X_, X_))
    k('v_mul_f32 v25, v%d, v%d' % (X_+1, X_+1))
    for i in range(2, 32, 2):
        k('v_fmac_f32 v24, v%d, v%d' % (X_+i, X_+i))
        k('v_fmac_f32 v25, v%d, v%d' % (X_+i+1, X_+i+1))
    k('v_add_f32 v24, v24, v25')
    reduce8(k, 24, 25)
    k('ds_write_b32 v10, v24 offset:%d' % (RED + 128))
    k('s_waitcnt lgkmcnt(0)')
    k('s_barrier')
    k('ds_read_b128 v[24:27], v9 offset:%d' % (RED + 128))
    k('s_waitcnt lgkmcnt(0)')
    k('v_add_f32 v24, v24, v25')
    k('v_add_f32 v26, v26, v27')
    k('v_add_f32 v24, v24, v26')
    k('v_mov_b32 v25, 0x%x' % f2u(1e-5))
    k('v_fmac_f32 v25, 0x%x, v24' % f2u(1.0/1024))
    k('v_rsq_f32 v28, v25')
    k('s_nop 0')
    for i in range(32): k('v_mul_f32 v%d, v%d, v28' % (X_+i, X_+i))
def mod_loads(k, vecs, npart, base_off, MV, pstride):
    srd(k, 8, PWS, 0x10000, base_off or None)
    for n, (c, isscale) in enumerate(vecs):
        for p in range(npart):
            k('s_mov_b32 s27, %d' % (p*pstride + c*4096))
            k('buffer_load_dwordx4 %s, v7, s[8:11], s27 offen %s' % (vr(MV + (n*npart + p)*4, 4), LD()))
def mod_to_lds(k, vecs, npart, MV, mulc=None):
    for n, (c, isscale) in enumerate(vecs):
        b = MV + n*npart*4
        for p in range(1, npart):
            for i in range(4): k('v_add_f32 v%d, v%d, v%d' % (b+i, b+i, b+4*p+i))
        def rnd():
            k('v_cvt_pk_bf16_f32 v%d, v%d, v%d' % (b+4, b, b+1))
            k('v_cvt_pk_bf16_f32 v%d, v%d, v%d' % (b+5, b+2, b+3))
            k('v_lshlrev_b32 v%d, 16, v%d' % (b, b+4))
            k('v_and_b32 v%d, 0xffff0000, v%d' % (b+1, b+4))
            k('v_lshlrev_b32 v%d, 16, v%d' % (b+2, b+5))
            k('v_and_b32 v%d, 0xffff0000, v%d' % (b+3, b+5))
        rnd()
        if isscale:
            for i in range(4): k('v_add_f32 v%d, 1.0, v%d' % (b+i, b+i))
            rnd()
        if mulc:
            for i in range(4): k('v_mul_f32 v%d, 0x%x, v%d' % (b+i, mulc, b+i))
        k('ds_write_b128 v11, %s offset:%d' % (vr(b, 4), n*4096))
def ln_apply_store(k, sh, sc, hoff):
    srd(k, 16, PWS, 0x400000, hoff)
    for j in range(4):
        k('ds_read_b128 v[16:19], v8 offset:%d' % (sc*4096 + j*256))
        k('ds_read_b128 v[20:23], v8 offset:%d' % (sc*4096 + j*256 + 16))
        k('ds_read_b128 v[96:99], v8 offset:%d' % (sh*4096 + j*256))
        k('ds_read_b128 v[100:103], v8 offset:%d' % (sh*4096 + j*256 + 16))
        k('s_waitcnt lgkmcnt(0)')
        for i in range(8): k('v_fma_f32 v%d, v%d, v%d, v%d' % (X_ + 8*j + i, X_ + 8*j + i, 16+i, 96+i))
        for i in range(4): k('v_cvt_pk_bf16_f32 v%d, v%d, v%d' % (104 + 4*j + i, X_ + 8*j + 2*i, X_ + 8*j + 2*i + 1))
        k('buffer_store_dwordx4 %s, v5, s[16:19], s%d offen %s' % (vr(104 + 4*j, 4), 40+j, ST))

TICKET_LDS = LN_LDS + 12288 + 512
def ticket_issue(k):
    lab = k.L('tk')
    k('s_getreg_b32 s3, hwreg(HW_REG_XCC_ID, 0, 4)')
    k('s_and_b32 s3, s3, 7')
    k('s_cmp_lg_u32 s26, 0')
    k('s_cbranch_scc1 %s' % lab)
    k('s_lshl_b32 s27, s3, 2')
    k('s_add_u32 s27, s27, 132')
    k('v_mov_b32 v2, s27')
    k('v_mov_b32 v3, 1')
    k('s_mov_b64 exec, 1')
    k('global_atomic_add v250, v2, v3, s[%d:%d] sc0 sc1' % (PDBG, PDBG+1))
    k('s_mov_b64 exec, -1')
    k.label(lab)
def ticket_publish(k, name):
    lab = k.L('tp'); ok = k.L('tok'); sp = k.L('tsp'); spd = k.L('tsd')
    k('s_cmp_lg_u32 s26, 0')
    k('s_cbranch_scc1 %s' % lab)
    k('s_waitcnt vmcnt(0)')
    k('v_readfirstlane_b32 s27, v250')
    k('s_mov_b32 s28, s3')
    k('s_cmp_lt_u32 s27, 32')
    k('s_cbranch_scc1 %s' % ok)
    k('s_mov_b64 exec, 1')
    k('v_mov_b32 v2, 0')
    k('s_mov_b32 s29, 0')
    k.label(sp)
    k('global_load_dwordx4 v[16:19], v2, s[%d:%d] offset:132 sc1' % (PDBG, PDBG+1))
    k('global_load_dwordx4 v[20:23], v2, s[%d:%d] offset:148 sc1' % (PDBG, PDBG+1))
    k('s_waitcnt vmcnt(0)')
    for i in range(8): k('v_readfirstlane_b32 s%d, v%d' % (50+i, 16+i))
    k('s_nop 3')
    k('s_mov_b32 s58, 0')
    for i in range(8): k('s_add_u32 s58, s58, s%d' % (50+i))
    k('s_add_u32 s29, s29, 1')
    k('s_cmp_ge_u32 s58, 256')
    k('s_cbranch_scc1 %s' % spd)
    k('s_cmp_ge_u32 s29, 0x40000')
    k('s_cbranch_scc1 %s' % spd)
    k('s_sleep 4')
    k('s_branch %s' % sp)
    k.label(spd)
    k('v_mov_b32 v2, 164')
    k('v_mov_b32 v3, 1')
    k('global_atomic_add v16, v2, v3, s[%d:%d] sc0 sc1' % (PDBG, PDBG+1))
    k('s_waitcnt vmcnt(0)')
    k('v_readfirstlane_b32 s29, v16')
    k('s_mov_b64 exec, -1')
    k('s_mov_b32 s28, 0')
    k('s_mov_b32 s27, 31')
    for i in range(8):
        nx = k.L('tn')
        k('s_min_u32 s58, s%d, 32' % (50+i))
        k('s_sub_u32 s59, 32, s58')
        k('s_cmp_lt_u32 s29, s59')
        k('s_cbranch_scc0 %s' % nx)
        k('s_mov_b32 s28, %d' % i)
        k('s_add_u32 s27, s58, s29')
        k('s_branch %s' % ok)
        k.label(nx)
        k('s_sub_u32 s29, s29, s59')
    k.label(ok)
    k('s_lshl_b32 s27, s27, 3')
    k('s_or_b32 s27, s27, s28')
    k('v_mov_b32 v2, %d' % TICKET_LDS)
    k('v_mov_b32 v3, s27')
    k('ds_write_b32 v2, v3')
    k('s_waitcnt lgkmcnt(0)')
    k.label(lab)
def ticket_fetch(k):
    k('v_mov_b32 v2, %d' % TICKET_LDS)
    k('ds_read_b32 v3, v2')
    k('s_mov_b32 s63, s24')
    k('s_waitcnt lgkmcnt(0)')
    k('v_readfirstlane_b32 s3, v3')
    k('s_nop 3')
    k('s_and_b32 s20, s3, 7')
    k('s_lshr_b32 s21, s3, 3')
    k('s_lshr_b32 s22, s20, 1')
    k('s_and_b32 s23, s20, 1')
    k('s_and_b32 s24, s21, 3')
    k('s_lshl_b32 s27, s23, 2')
    k('s_add_u32 s24, s24, s27')
    k('s_lshr_b32 s25, s21, 2')

def phase_p0(k, name):
    stamp_rt0(k, 'p0')
    stamp(k, 0)
    if MEGA and OPT.get('ticket'): ticket_issue(k)
    if MEGA:
        lab = k.L('xp')
        k('s_getreg_b32 s3, hwreg(HW_REG_XCC_ID, 0, 4)')
        k('s_cmp_lg_u32 s26, 0')
        k('s_cbranch_scc1 %s' % lab)
        k('s_lshl_b32 s27, s2, 2')
        k('s_add_u32 s27, s27, 0x%x' % WS_XCC)
        k('v_mov_b32 v2, s27')
        k('v_mov_b32 v3, s3')
        k('s_mov_b64 exec, 1')
        k('global_store_dword v2, v3, s[%d:%d] sc1' % (PWS, PWS+1))
        k('s_mov_b64 exec, -1')
        k.label(lab)
    if OPT.get('diagxcd'):
        lab = k.L('dx')
        k('s_getreg_b32 s58, hwreg(HW_REG_XCC_ID, 0, 4)')
        k('s_and_b32 s58, s58, 7')
        k('s_cmp_lg_u32 s26, 0')
        k('s_cbranch_scc1 %s' % lab)
        k('s_lshl_b32 s27, s58, 2')
        k('s_add_u32 s27, s27, 168')
        k('v_mov_b32 v2, s27')
        k('s_and_b32 s27, s2, 7')
        k('s_lshl_b32 s27, 1, s27')
        k('v_mov_b32 v3, s27')
        k('s_mov_b64 exec, 1')
        k('global_atomic_or v2, v3, s[%d:%d] sc1' % (PDBG, PDBG+1))
        k('s_mov_b64 exec, -1')
        k.label(lab)
    def xloads():
        ln_addr(k)
        srd(k, 16, PX, 0x400000)
        for j in range(4): k('buffer_load_dwordx4 %s, v6, s[16:19], s44 offen offset:%d' % (vr(RAW + 4*j, 4), j*128))
    def s1addr():
        k('s_mov_b32 s6, s%d' % PDBG)
        k('s_mov_b32 s7, s%d' % (PDBG+1))
    def kvaddr():
        k('s_add_u32 s6, s%d, 4' % PDBG)
        k('s_addc_u32 s7, s%d, 0' % (PDBG+1))
    def wq_touch():
        lab = k.L('wq')
        k('s_cmp_eq_u32 s26, 0')
        k('s_cbranch_scc1 %s' % lab)
        srd(k, 16, PWQ, 1024*4096*2)
        k('v_lshrrev_b32 v15, 4, v0')
        k('v_and_b32 v12, 15, v0')
        k('v_lshlrev_b32 v15, 13, v15')
        k('v_lshl_add_u32 v15, v12, 7, v15')
        k('s_lshl_b32 s36, s21, 17')
        k('s_lshl_b32 s37, s22, 11')
        k('s_add_u32 s36, s36, s37')
        k('s_lshl_b32 s37, s23, 22')
        k('s_add_u32 s36, s36, s37')
        k('buffer_load_dword v13, v15, s[16:19], s36 offen')
        k('s_cmp_lg_u32 s26, 1')
        k('s_cbranch_scc1 %s' % lab)
        k('v_subrev_u32 v15, 0x8000, v15')
        k('buffer_load_dword v14, v15, s[16:19], s36 offen')
        k.label(lab)
    k('s_cmp_ge_u32 s2, 128')
    k('s_cbranch_scc1 %s_kv' % name)
    srd(k, 8, PWMOD, 1024*6144*2)
    srd(k, 12, PC_, 2048)
    k('s_and_b32 s38, s2, 31')
    k('s_lshr_b32 s39, s2, 5')
    k('s_lshl_b32 s47, s39, 8')
    k('s_lshl_b32 s48, s38, 7')
    k('s_lshl_b32 s49, s39, 13')
    k('s_lshl_b32 s38, s38, 8')
    k('s_add_u32 s49, s49, s38')
    gemv_load(k, 8, 47, 48)
    xloads()
    if OPT.get('p0st'): stamp(k, 1)
    if MEGA:
        lab = k.L('z')
        k('s_or_b32 s27, s2, s26')
        k('s_cmp_lg_u32 s27, 0')
        k('s_cbranch_scc1 %s' % lab)
        srd(k, 16, PWS, 192*128, WS_CNT)
        k('v_lshlrev_b32 v16, 7, v1')
        k('v_mov_b32 v17, 0')
        for z in range(3): k('buffer_store_dword v17, v16, s[16:19], 0 offen offset:0 %s' % ST) if z == 0 else (k('v_add_u32 v%d, %d, v16' % (18+z, 8192*z)), k('buffer_store_dword v17, v%d, s[16:19], 0 offen %s' % (18+z, ST)))
        k('s_waitcnt vmcnt(0)')
        k.label(lab)
    srd(k, 16, PWS, 0x8000, WS_MOD or None)
    gemv_compute(k, 8, 49, 16, LN_LDS, 4)
    if not OPT.get('p0st'): stamp(k, 1)
    arrive(k, s1addr, count=128, only_w0=True, flag_off=128)
    lab = k.L('w0'); k('s_cmp_eq_u32 s26, 0'); k('s_cbranch_scc1 %s' % lab); k('s_waitcnt vmcnt(0)'); k.label(lab)
    if OPT.get('p0st'): stamp(k, 4)
    k('s_branch %s_pf' % name)
    k.label(name + '_kv')
    kv_part(k, xloads, 4)
    if not MEGA:
        modb_addr(k, 128)
        gemv_load(k, 16, 47, 48)
        srd(k, 16, PWS, 0x8000, WS_MODB)
        gemv_compute(k, 16, 49, 16, LN_LDS, 0)
    stamp(k, 1)
    arrive(k, kvaddr)
    k.label(name + '_pf')
    if MEGA and OPT.get('ticket'): ticket_publish(k, name)
    tr8x8(k, RAW, 4, 240, 241)
    ln_unpack(k, RAW)
    ln_stats(k)
    if MEGA: k('s_mov_b32 s63, s24')
    wq_touch()
    if not OPT.get('p0st'): stamp(k, 2)

def modb_addr(k, first):
    srd(k, 8, PWMOD, 1024*6144*2)
    srd(k, 12, PC_, 2048)
    k('s_sub_u32 s38, s2, %d' % first)
    k('s_lshr_b32 s39, s38, 6')
    k('s_and_b32 s38, s38, 63')
    k('s_lshl_b32 s47, s39, 9')
    k('s_lshl_b32 s48, s38, 7')
    k('s_add_u32 s48, s48, 4096')
    k('s_lshl_b32 s49, s39, 14')
    k('s_lshl_b32 s38, s38, 8')
    k('s_add_u32 s49, s49, s38')

def phase_ln1b(k):
    def s1addr():
        k('s_mov_b32 s6, s%d' % PDBG)
        k('s_mov_b32 s7, s%d' % (PDBG+1))
    waitfor(k, s1addr, 1, off=128)
    if not OPT.get('p0st'): stamp(k, 3)
    vecs = [(0, False), (1, True)]
    mod_loads(k, vecs, 4, WS_MOD, 96, 8192)
    k('s_waitcnt vmcnt(0)')
    mod_to_lds(k, vecs, 4, 96, f2u(128**-0.5 * LOG2E))
    k('s_waitcnt lgkmcnt(0)')
    k('s_barrier')
    ln_apply_store(k, 0, 1, WS_H)
    def a():
        k('s_add_u32 s27, s63, %d' % C_S2); cnt_addr(k, 27)
    arrive(k, a, count=32, flag_off=128)
    if not OPT.get('p0st'): stamp(k, 4)
    stamp_flush(k, 'p0', 5)

def phase_ln2(k, mode):
    stamp_rt0(k, mode)
    stamp(k, 0)
    ln_addr(k)
    vecs = [(0, False), (1, False), (2, True)] if mode == 'ln2' else [(3, False)]
    MV = 144
    if MEGA and mode == 'ln2':
        def s1b():
            k('s_mov_b32 s6, s%d' % PDBG); k('s_mov_b32 s7, s%d' % (PDBG+1))
        waitfor(k, s1b, 256, off=8)
    NPB = 4 if MEGA else 2
    if NPB == 4: MV = 168
    mod_loads(k, vecs, NPB, WS_MODB, MV, 16384)
    if mode == 'ln2':
        srd(k, 12, PX, 0x400000)
        for j in range(4): k('buffer_load_dwordx4 %s, v6, s[12:15], s44 offen offset:%d' % (vr(RAW + 4*j, 4), j*128))
    k('s_waitcnt vmcnt(%d)' % (4 if mode == 'ln2' else 0))
    mod_to_lds(k, vecs, NPB, MV)
    def a():
        k('s_add_u32 s27, s24, %d' % (C_S4 if mode == 'ln2' else C_S7)); cnt_addr(k, 27)
    k('s_waitcnt lgkmcnt(0)')
    if MEGA: waitfor(k, a, 1, off=128)
    else: k('s_barrier')
    stamp(k, 1)
    srd(k, 12, PWS, 0x1000000, WS_P1 if mode == 'ln2' else WS_P2)
    for j in range(4):
        for q in range(4):
            k('s_add_u32 s27, s%d, 0x%x' % (40+j, q*0x400000))
            k('buffer_load_dwordx4 %s, v5, s[12:15], s27 offen %s' % (vr(RAW + 16 + q*16 + 4*j, 4), LD()))
    if mode == 'final':
        srd(k, 8, PWS, 0x400000, WS_X1)
        for j in range(4): k('buffer_load_dwordx4 %s, v5, s[8:11], s%d offen %s' % (vr(RAW + 4*j, 4), 40+j, LD()))
        k('s_waitcnt vmcnt(0)')
        ln_unpack(k, RAW)
    else:
        k('s_waitcnt vmcnt(16)')
        tr8x8(k, RAW, 4, 240, 241)
        ln_unpack(k, RAW)
    for j in range(4):
        k('ds_read_b128 v[16:19], v8 offset:%d' % (j*256))
        k('ds_read_b128 v[20:23], v8 offset:%d' % (j*256 + 16))
        if mode == 'ln2': k('s_waitcnt vmcnt(%d)' % (12 - 4*j))
        for i in range(4):
            k('v_lshlrev_b32 v24, 16, v%d' % (RAW + 16 + 4*j + i))
            k('v_and_b32 v25, 0xffff0000, v%d' % (RAW + 16 + 4*j + i))
            for q in range(1, 4):
                k('v_lshlrev_b32 v26, 16, v%d' % (RAW + 16 + q*16 + 4*j + i))
                k('v_and_b32 v27, 0xffff0000, v%d' % (RAW + 16 + q*16 + 4*j + i))
                k('v_add_f32 v24, v24, v26')
                k('v_add_f32 v25, v25, v27')
            if i == 0: k('s_waitcnt lgkmcnt(0)')
            k('v_fmac_f32 v%d, v24, v%d' % (X_ + 8*j + 2*i, 16 + 2*i))
            k('v_fmac_f32 v%d, v25, v%d' % (X_ + 8*j + 2*i + 1, 17 + 2*i))
    for j in range(4):
        for i in range(4):
            k('v_cvt_pk_bf16_f32 v%d, v%d, v%d' % (RAW + 4*j + i, X_ + 8*j + 2*i, X_ + 8*j + 2*i + 1))
    if mode == 'final':
        srd(k, 12, POUT, 0x400000)
        tr8x8(k, RAW, 4, 240, 241)
        for j in range(4): k('buffer_store_dwordx4 %s, v6, s[12:15], s44 offen offset:%d' % (vr(RAW + 4*j, 4), j*128))
    else:
        srd(k, 16, PWS, 0x400000, WS_X1)
        for j in range(4): k('buffer_store_dwordx4 %s, v5, s[16:19], s%d offen %s' % (vr(RAW + 4*j, 4), 40+j, ST))
        ln_unpack(k, RAW)
        ln_stats(k)
        ln_apply_store(k, 1, 2, WS_H2)
        def a5():
            k('s_add_u32 s27, s24, %d' % C_S5); cnt_addr(k, 27)
        arrive(k, a5, count=32, flag_off=128)
    stamp(k, 2)
    stamp_flush(k, mode, 3)

def attn_setup(k):
    vL = [4, 5, 6, 7]; vX = [8, 9]; vW = [10, 11, 12, 13]
    ldw = 8192
    k('s_lshl_b32 s35, s22, 3')
    k('s_add_u32 s35, s35, s25')
    k('s_mov_b32 s62, s35')
    lds_addr_128(k, vL, tmp=40)
    k('v_lshlrev_b32 v8, 4, v1')
    k('v_add_u32 v9, 0x10000, v8')
    k('s_lshl_b32 s28, s62, 8')
    w128_voffsets(k, vW, ldw, 28, 40)
    srd(k, 8, PWS, 0x400000, WS_H)
    srd(k, 12, PWQ, 0x800000)
    k('s_lshl_b32 s27, s24, 3')
    k('s_lshl_b32 s28, s26, 1')
    k('s_add_u32 s34, s27, s28')
    k('s_lshl_b32 s30, s34, 16')
    k('s_sub_u32 s30, s30, 4096')
    k('s_mov_b32 s31, 0x%x' % ((-64*ldw) & 0xffffffff))
    k('s_lshl_b32 s32, s26, 12')
    return vL, vX, vW, ldw

def phase_attn(k, name, next_prefetch=None):
    stamp_rt0(k, 'attn')
    if not OPT.get('tailst'): stamp(k, 0)
    vL, vX, vW, ldw = attn_setup(k)
    KSLOT = [65536, 81920, 98304, 0, 16384]
    VSLOT = [114688, 131072, 147456, 32768, 49152]
    FLAG = 33792
    QF = lambda mb, ks: 64 + (mb*8 + ks)*4
    SB = lambda par, mb: 128 + (par*2 + mb)*16
    PB = lambda par, mb, kk: 192 + ((par*2 + mb)*2 + kk)*4
    CB = lambda mb: 224 + mb*16
    def OA(db, mb):
        i = db*2 + mb
        return i*16 if i < 6 else 192 + (i-6)*16
    KF = lambda ks: 128 + ks*4
    VF = lambda q: 160 + q*4
    LS = lambda mb, p: 33 + mb*2 + p
    MG = lambda mb: 37 + mb
    KT = (36, 37, 38, 39, 40); VT = (41, 42, 43, 29, 35)
    TT = (8, 9, 10, 12, 13, 14, 54, 55, 56, 57, 61, 63)
    kvflag = LD()
    def kdma(soff, pre0, tagid):
        return [(pre0 if i == 0 else [], 'buffer_load_dwordx4 v28, s[44:47], s%d offen offset:%d %s lds' % (soff, i*1024, kvflag), ('K', tagid, i)) for i in range(4)]
    def vdma(soff, pre0, tagid):
        return [(pre0 if i == 0 else [], 'buffer_load_dwordx4 v28, s[48:51], s%d offen offset:%d %s lds' % (soff, i*1024, kvflag), ('V', tagid, i)) for i in range(4)]
    def dma_list(lst):
        ops = []
        for (kind, s_) in lst:
            if kind == 'K': ops += kdma(52, ['s_mov_b32 s52, %d' % (s_*16384), 's_add_u32 m0, s32, %d' % KSLOT[s_ % 5]], s_)
            else: ops += vdma(53, ['s_mov_b32 s53, %d' % (s_*16384), 's_add_u32 m0, s32, %d' % VSLOT[s_ % 5]], s_)
        return ops
    def initial_dmas(): return dma_list([('K', 0), ('V', 0), ('K', 1), ('V', 1), ('K', 2), ('V', 2)])
    ini = initial_dmas()
    zero_list = ['v_accvgpr_write_b32 a%d, 0' % r for r in list(range(192, 224)) + list(range(0, 96))]
    def extra(t, j):
        out = []
        order = [(12, 3)] + [(tt, jj) for tt in (13, 14, 15) for jj in range(4)]
        if (t, j) in order:
            p = order.index((t, j))
            out += ini[(p*len(ini))//13:((p+1)*len(ini))//13]
        if t in (12, 13, 14, 15):
            z = zero_list[(t-12)*32:(t-11)*32]
            out += z[j*8:(j+1)*8]
        return out
    g = Gemm(k, 4, 16, acc=128, xr=0, wf=128, vX=vX, vW=vW, sXsrd=8, sWsrd=12, sXoff=30, sWoff=31, sM0=32, sCnt=33,
             stage_bytes=16384, ldw_step=64*ldw, nW=4,
             lds_imm=lambda buf, j, nb, sec: (vL[nb], buf*16384 + j*4096 + sec*1024), extra=extra, xflag=LD())
    if MEGA: g.prologue_w()
    k('s_lshl_b32 s27, s26, 12')
    k('v_add_u32 v28, s27, v8')
    k('v_add_u32 v16, %d, v8' % KSLOT[0])
    k('v_add_u32 v17, %d, v8' % VSLOT[0])
    k('v_lshlrev_b32 v18, 7, v1')
    k('s_lshl_b32 s27, s26, 13')
    k('v_add_u32 v18, s27, v18')
    k('s_lshl_b32 s27, s22, 17')
    k('s_add_u32 s28, s27, 0x%x' % WS_KF)
    srd_s(k, 44, PWS, 28, 0x20000)
    k('s_add_u32 s28, s27, 0x%x' % WS_VF)
    srd_s(k, 48, PWS, 28, 0x20000)
    k('v_mov_b32 v%d, 0xff800000' % MG(0))
    k('v_mov_b32 v%d, 0xff800000' % MG(1))
    k('s_mov_b32 s59, 0')
    if MEGA:
        def a():
            k('s_add_u32 s27, s24, %d' % C_S2); cnt_addr(k, 27)
        def kvw():
            k('s_mov_b32 s6, s%d' % PDBG); k('s_mov_b32 s7, s%d' % (PDBG+1))
        waitfor(k, kvw, 128, off=4)
        waitfor(k, a, 1, off=128)
        g.prologue_x()
        k('v_lshlrev_b32 v21, 7, v1')
        k('s_and_b32 s27, s24, 3')
        k('s_lshl_b32 s27, s27, 5')
        k('s_lshl_b32 s28, s20, 2')
        k('s_add_u32 s27, s27, s28')
        k('s_add_u32 s27, s27, 0x%x' % WS_XCC)
        k('v_add_u32 v21, s27, v21')
        k('s_mov_b64 exec, 0xff')
        k.vm('global_load_dword v22, v21, s[%d:%d] sc1' % (PWS, PWS+1), ('Z', 0, 0))
        k('s_mov_b64 exec, -1')
    else:
        g.prologue_mixed()
    if not OPT.get('tailst'): stamp(k, 1)
    g.start()
    def epiQ(nb):
        out = []
        for mb in range(2):
            a = g.accr(nb, mb)
            for hh in range(2):
                for r in range(4):
                    out.append('v_cvt_pk_bf16_f32 v%d, v%d, v%d' % (QF(mb, 2*nb+hh) + r, a + hh*8 + 2*r, a + hh*8 + 2*r + 1))
        return out
    g.mainloop(epiQ, tail=1)
    if not OPT.get('tailst'): stamp(k, 2)
    if MEGA:
        k('s_mov_b64 exec, 0xff')
        k('v_cmp_eq_u32 vcc, s3, v22')
        k('s_mov_b64 exec, -1')
        k('s_nop 1')
        k('s_cmp_eq_u32 vcc_lo, 0xff')
        k('s_cselect_b32 s3, 1, 0')
        if OPT.get('forceslow'): k('s_mov_b32 s3, 0')
    k('s_mul_i32 s27, s2, 28672')
    for n_, (lo, sz, add) in enumerate([(PWG, 1024*3584*2, 0), (PWG, 1024*3584*2, 4096), (PWU, 1024*3584*2, 0), (PWU, 1024*3584*2, 4096)]):
        k('s_add_u32 s28, s27, %d' % add)
        k('s_add_u32 s%d, s%d, s28' % (TT[3*n_], lo))
        k('s_addc_u32 s%d, s%d, 0' % (TT[3*n_+1], lo+1))
        k('s_sub_u32 s%d, 0x%x, s28' % (TT[3*n_+2], sz))
    n = k.vm_wait_n(lambda tg: tg[0] in 'KV' and tg[1] == 0)
    k('s_waitcnt vmcnt(%d)' % n)
    k.label(name + '_pro')
    k('s_barrier')
    for i_ in range(5):
        k('s_mov_b32 s%d, %d' % (KT[i_], KSLOT[i_]))
        k('s_mov_b32 s%d, %d' % (VT[i_], VSLOT[i_]))
    for ks in range(8): k('ds_read_b128 %s, v16 offset:%d' % (ar(KF(ks), 4), ks*1024))
    for mb in range(2):
        for p in range(2): k('v_mov_b32 v%d, 0' % LS(mb, p))
    k('s_waitcnt lgkmcnt(0)')
    for mb in range(2):
        for ks in range(8):
            d = vr(SB(0, mb), 16)
            k('%s %s, %s, %s, %s' % (MFMA, d, ar(KF(ks), 4), vr(QF(mb, ks), 4), '0' if ks == 0 else d))
    k('s_nop 3')
    k('s_nop 7')
    for mb in range(2):
        s0 = SB(0, mb); m = 40 + mb
        k('v_max3_f32 v%d, v%d, v%d, v%d' % (m, s0, s0+1, MG(mb)))
        for r in range(2, 16, 2): k('v_max3_f32 v%d, v%d, v%d, v%d' % (m, m, s0+r, s0+r+1))
    k('v_mov_b32 v42, v40')
    k('v_mov_b32 v43, v41')
    k('s_nop 1')
    k('v_permlane32_swap_b32 v40, v42')
    k('v_permlane32_swap_b32 v41, v43')
    k('s_nop 1')
    k('v_max_f32 v40, v40, v42')
    k('v_max_f32 v41, v41, v43')
    for mb in range(2):
        for r in range(16): k('v_sub_f32 v%d, 0, v%d' % (CB(mb) + r, 40+mb))
        for r in range(16): k('v_sub_f32 v%d, v%d, v%d' % (SB(0, mb) + r, SB(0, mb) + r, 40+mb))
    if not OPT.get('tailst'): stamp(k, 3)

    def pair_ops(par, p):
        mb, pp = p // 8, p % 8
        s0 = SB(par, mb); a, b = s0 + 2*pp, s0 + 2*pp + 1
        E = ['v_exp_f32 v%d, v%d' % (a, a), 'v_exp_f32 v%d, v%d' % (b, b)]
        A_ = ['v_add_f32 v%d, v%d, v%d' % (LS(mb, 0), LS(mb, 0), a), 'v_add_f32 v%d, v%d, v%d' % (LS(mb, 1), LS(mb, 1), b)]
        C_ = ['v_cvt_pk_bf16_f32 v%d, v%d, v%d' % (PB(par, mb, pp // 4) + pp % 4, a, b)]
        return E, A_, C_
    def iteration(par, do_pv, do_s, kread_kb, vread_kb, carry_in, gap_extra=None):
        gap_extra = gap_extra or {}
        mf = []
        if do_pv:
            for kk in range(2):
                for db in range(4):
                    for mb in range(2):
                        d = ar(OA(db, mb), 16)
                        mf.append('%s %s, %s, %s, %s' % (MFMA, d, ar(VF(kk*4+db), 4), vr(PB(1-par, mb, kk), 4), d))
        else: mf += [None]*16
        if do_s:
            for mb in range(2):
                for ks in range(8):
                    d = vr(SB(1-par, mb), 16)
                    mf.append('%s %s, %s, %s, %s' % (MFMA, d, ar(KF(ks), 4), vr(QF(mb, ks), 4), vr(CB(mb), 16) if ks == 0 else d))
        else: mf += [None]*16
        pre = {0: ['s_waitcnt lgkmcnt(2)'] if do_pv else []}
        nk = 8 if kread_kb is not None else 0
        if do_pv: pre[12] = ['s_waitcnt lgkmcnt(%d)' % (6 if nk else 0)]
        if do_s:
            pre[16] = ['s_waitcnt lgkmcnt(2)']
            pre[22] = ['s_waitcnt lgkmcnt(3)']
        for g_ in range(32):
            for x in pre.get(g_, []): k(x)
            if mf[g_]: k(mf[g_])
            p = g_ // 2
            if g_ % 2 == 0:
                for x in pair_ops(par, p)[0]: k(x)
                if p >= 1: k(pair_ops(par, p-1)[2][0])
                elif carry_in: k(pair_ops(1-par, 15)[2][0])
            else:
                if p >= 1:
                    for x in pair_ops(par, p-1)[1]: k(x)
                elif carry_in:
                    for x in pair_ops(1-par, 15)[1]: k(x)
                if g_ < 16:
                    if kread_kb is not None: k('ds_read_b128 %s, v16 offset:%d' % (ar(KF(p), 4), kread_kb*8192 + p*1024))
                else:
                    k('ds_read_b128 %s, v17 offset:%d' % (ar(VF(p-8), 4), vread_kb*8192 + (p-8)*1024))
            for x in gap_extra.get(g_, []):
                if isinstance(x, str): k(x)
                else:
                    pre_, ins, tag = x[0], x[1], x[2]
                    for p_ in pre_: k(p_)
                    if pre_ and 'm0' in pre_[-1]: k('s_nop 0')
                    k.vm(ins, tag)
                    if len(x) > 3:
                        for p_ in x[3]: k(p_)
    def touch(half):
        pre = ['s_mov_b32 s16, s%d' % TT[0], 's_mov_b32 s17, s%d' % TT[1], 's_mov_b32 s18, s%d' % TT[2], 's_mov_b32 s19, 0x20000']
        if half: pre += ['s_mov_b32 exec_hi, 0']
        return (pre, 'buffer_load_dword v19, v18, s[16:19], 0 offen', ('T', 0, 0), ['s_mov_b32 exec_hi, -1'] if half else [])
    sh = ['s_mov_b32 s%d, s%d' % (TT[n_], TT[n_+3]) for n_ in range(9)]
    g0 = {}
    for i_, op in enumerate(dma_list([('K', 3), ('V', 3), ('K', 4)])): g0.setdefault(1 + i_, []).append(op)
    g0.setdefault(20, []).extend(['s_mov_b32 s52, %d' % (5*16384), 's_mov_b32 s53, %d' % (4*16384)])
    iteration(0, False, True, 1, 0, False, g0)
    def rot(T): return ['s_mov_b32 s58, s%d' % T[0]] + ['s_mov_b32 s%d, s%d' % (T[i_], T[i_+1]) for i_ in range(4)] + ['s_mov_b32 s%d, s58' % T[4]]
    def trip(with_dma):
        ge = {0: ['v_add_u32 v16, s%d, v8' % KT[1]]}
        if with_dma:
            ge[0] += ['s_waitcnt vmcnt(20)', 's_barrier']
            dm = vdma(53, ['s_add_u32 m0, s32, s%d' % VT[4]], 'n') + kdma(52, ['s_add_u32 m0, s32, s%d' % KT[0]], 'n')
            for i_, op in enumerate(dm): ge.setdefault(2 + 2*i_, []).append(op)
            ge.setdefault(27, []).extend(['s_add_u32 s52, s52, 16384', 's_add_u32 s53, s53, 16384'])
            if not OPT.get('notouch'):
                ge.setdefault(19, []).append(touch(True))
                ge.setdefault(21, []).extend(sh[:5]); ge.setdefault(23, []).extend(sh[5:])
        elif not OPT.get('notouch'):
            ge.setdefault(2, []).append(touch(False))
            ge.setdefault(5, []).extend(sh[:5]); ge.setdefault(7, []).extend(sh[5:])
        ge.setdefault(29, []).extend(rot(KT))
        iteration(1, True, True, 0, 1, True, ge)
        ge2 = {2: ['v_add_u32 v17, s%d, v8' % VT[1]], 4: rot(VT), 31: ['s_sub_u32 s60, s60, 1', 's_cmp_lg_u32 s60, 0']}
        iteration(0, True, True, 1, 0, True, ge2)
    k('s_mov_b32 s60, 4')
    lab = k.L('aloop'); k.label(lab)
    trip(True)
    k('s_cbranch_scc1 %s' % lab)
    k('s_mul_i32 s27, s2, 28672')
    k('s_add_u32 s%d, s%d, s27' % (TT[0], PWD))
    k('s_addc_u32 s%d, s%d, 0' % (TT[1], PWD+1))
    k('s_sub_u32 s%d, 0x%x, s27' % (TT[2], 3584*1024*2))
    k('s_lshl_b32 s27, s20, 20')
    k('s_lshl_b32 s28, s21, 15')
    k('s_add_u32 s27, s27, s28')
    k('s_add_u32 s%d, s%d, s27' % (TT[3], PWO))
    k('s_addc_u32 s%d, s%d, 0' % (TT[4], PWO+1))
    k('s_mov_b32 s%d, 0x8000' % TT[5])
    for n_ in (2, 3):
        k('s_mov_b32 s%d, s%d' % (TT[3*n_], PWS))
        k('s_mov_b32 s%d, s%d' % (TT[3*n_+1], PWS+1))
        k('s_mov_b32 s%d, 0' % TT[3*n_+2])
    k('s_waitcnt vmcnt(%d)' % (0 if OPT.get('notouch') else 1))
    k('s_barrier')
    if MEGA: code_touch(k, name + '_L_oproj', name + '_L_gateup', 30)
    k('s_mov_b32 s60, 3')
    lab = k.L('bloop'); k.label(lab)
    trip(False)
    k('s_cbranch_scc1 %s' % lab)
    g15 = {}
    if MEGA:
        pre15 = ['s_mov_b32 s8, s%d' % PWMOD, 's_mov_b32 s9, s%d' % (PWMOD+1), 's_mov_b32 s10, 0x%x' % (1024*6144*2), 's_mov_b32 s11, 0x20000',
                 's_mov_b32 s12, s%d' % PC_, 's_mov_b32 s13, s%d' % (PC_+1), 's_mov_b32 s14, 2048', 's_mov_b32 s15, 0x20000',
                 's_lshr_b32 s52, s2, 6', 's_and_b32 s53, s2, 63', 's_lshl_b32 s54, s52, 14', 's_lshl_b32 s55, s53, 8', 's_add_u32 s54, s54, s55',
                 's_lshl_b32 s52, s52, 8', 's_lshl_b32 s53, s53, 7', 's_add_u32 s53, s53, 4096']
        gl = gemv_load(k, 8, 52, 53, AD=48, C=52, LDB=128, emit=False)
        items = pre15 + gl
        for i_, x in enumerate(items): g15.setdefault(2 + (i_ * 24) // len(items), []).append(x)
    iteration(1, True, False, None, 1, True, g15)
    for x in pair_ops(1, 15)[1] + pair_ops(1, 15)[2]: k(x)
    k('v_add_f32 v40, v%d, v%d' % (LS(0, 0), LS(0, 1)))
    k('v_add_f32 v41, v%d, v%d' % (LS(1, 0), LS(1, 1)))
    k('v_mov_b32 v42, v40')
    k('v_mov_b32 v43, v41')
    k('s_nop 1')
    k('v_permlane32_swap_b32 v40, v42')
    k('v_permlane32_swap_b32 v41, v43')
    k('s_nop 1')
    k('v_add_f32 v40, v40, v42')
    k('v_add_f32 v41, v41, v43')
    k('v_mov_b32 v43, 0x%x' % f2u(2.0**100))
    k('v_cmp_nlt_f32 vcc, v40, v43')
    k('v_cmp_nlt_f32 s[6:7], v41, v43')
    k('v_rcp_f32 v40, v40')
    k('v_rcp_f32 v41, v41')
    k('s_or_b64 vcc, vcc, s[6:7]')
    k('s_cmp_lg_u64 vcc, 0')
    k('s_cselect_b32 s58, 1, 0')
    k('v_mov_b32 v43, s58')
    k('s_lshl_b32 s58, s26, 2')
    k('s_add_u32 s58, s58, %d' % FLAG)
    k('v_mov_b32 v44, s58')
    k('ds_write_b32 v44, v43')
    srd(k, 16, PWS, 0x1000000, WS_O)
    k('s_lshl_b32 s27, s34, 8')
    k('s_lshl_b32 s28, s62, 3')
    k('s_add_u32 s27, s27, s28')
    k('s_lshl_b32 s60, s27, 10')
    k('s_add_u32 s61, s60, 0x40000')
    k('v_add_u32 v20, 4096, v8')
    k('s_waitcnt lgkmcnt(0)')
    set_local_vcc(k)
    stamp(k, 4 if not OPT.get('tailst') else 0)
    order = [(db, mb) for db in range(4) for mb in range(2)]
    def epiO(i):
        db, mb = order[i]; a = OA(db, mb); out = []
        for hh in range(2):
            t = (224, 240, 192)[(2*i + hh) % 3]
            out += ['v_accvgpr_read_b32 v%d, a%d' % (t+r, a + hh*8 + r) for r in range(8)]
            out += ['v_mul_f32 v%d, v%d, v%d' % (t+r, t+r, 40+mb) for r in range(8)]
            out += ['v_cvt_pk_bf16_f32 v%d, v%d, v%d' % (t+8+r, t+2*r, t+2*r+1) for r in range(4)]
            ks = 2*db + hh
            out += local_store(k, 'buffer_store_dwordx4 %s, v%d, s[16:19], s%d offen offset:%d' % (vr(t+8, 4), 8 if ks < 4 else 20, 60+mb, (ks % 4)*1024))
        return out
    M = []
    for i, (db, mb) in enumerate(order):
        d = ar(OA(db, mb), 16)
        for kk in range(2):
            M.append('%s %s, %s, %s, %s' % (MFMA, d, ar(VF(kk*4+db), 4), vr(PB(1, mb, kk), 4), d))
    for idx in range(6): k(M[idx])
    k('s_nop 7')
    for i in range(8):
        for x in epiO(i): k(x)
        for idx in (2*i+6, 2*i+7):
            if idx < 16: k(M[idx])
    if OPT.get('tailst'): stamp(k, 1)
    k('s_barrier')
    k('v_mov_b32 v44, %d' % FLAG)
    k('ds_read_b128 v[44:47], v44')
    k('s_waitcnt lgkmcnt(0)')
    k('v_or3_b32 v44, v44, v45, v46')
    k('v_or_b32 v44, v44, v47')
    k('s_nop 0')
    k('v_readfirstlane_b32 s58, v44')
    k('s_nop 3')
    k('s_cmp_lg_u32 s59, 0')
    k('s_cbranch_scc1 %s_fin' % name)
    k('s_cmp_lg_u32 s58, 0')
    k('s_cbranch_scc1 %s_slow' % name)
    k.label(name + '_fin')
    def post():
        srd(k, 16, PWS, 0x10000, WS_MODB)
        gemv_compute(k, 8, 54, 16, 65536, 24, B=192, C=52, LDB=128)
        lab = k.L('mb')
        k('s_cmp_lg_u32 s26, 0')
        k('s_cbranch_scc1 %s' % lab)
        k('s_waitcnt vmcnt(0)')
        k('v_mov_b32 v2, 8')
        k('v_mov_b32 v3, 1')
        k('s_mov_b64 exec, 1')
        k('global_atomic_add v2, v3, s[%d:%d] sc1' % (PDBG, PDBG+1))
        k('s_mov_b64 exec, -1')
        k.label(lab)
    def slow():
        k.label(name + '_slow')
        k('s_mov_b32 s59, 1')
        k('s_lshl_b32 s27, s22, 17')
        k('s_add_u32 s28, s27, 0x%x' % WS_KF)
        srd_s(k, 44, PWS, 28, 0x20000)
        k('s_mov_b32 s58, 0')
        lab2 = k.L('slow'); k.label(lab2)
        k('s_add_u32 s27, s58, 4096')
        for ks in range(8): k('buffer_load_dwordx4 %s, v8, s[44:47], s%d offen offset:%d %s' % (ar(KF(ks), 4), 58 if ks < 4 else 27, (ks % 4)*1024, kvflag))
        k('s_waitcnt vmcnt(0)')
        for mb in range(2):
            for ks in range(8):
                d = vr(SB(0, mb), 16)
                k('%s %s, %s, %s, %s' % (MFMA, d, ar(KF(ks), 4), vr(QF(mb, ks), 4), '0' if ks == 0 else d))
        k('s_nop 7')
        k('s_nop 7')
        for mb in range(2):
            s0 = SB(0, mb)
            for r in range(0, 16, 2): k('v_max3_f32 v%d, v%d, v%d, v%d' % (MG(mb), MG(mb), s0+r, s0+r+1))
        k('s_add_u32 s58, s58, 8192')
        k('s_cmp_lt_u32 s58, 0x20000')
        k('s_cbranch_scc1 %s' % lab2)
        k('v_add_u32 v16, %d, v8' % KSLOT[0])
        k('v_add_u32 v17, %d, v8' % VSLOT[0])
        for db in range(4):
            for mb in range(2):
                for r in range(16): k('v_accvgpr_write_b32 a%d, 0' % (OA(db, mb) + r))
        for n_ in range(4):
            k('s_mov_b32 s%d, s%d' % (TT[3*n_], PWS))
            k('s_mov_b32 s%d, s%d' % (TT[3*n_+1], PWS+1))
            k('s_mov_b32 s%d, 0' % TT[3*n_+2])
        k('s_barrier')
        for pre, ins, tag in initial_dmas():
            for p_ in pre: k(p_)
            if pre: k('s_nop 0')
            k(ins)
        k('s_waitcnt vmcnt(0)')
        k('s_branch %s_pro' % name)
    return slow, post

GU_STG = 28928; GU_UP = 14464
def gateup_setup(k, init_state=True):
    vL = [4, 5]; vX = [8, 9]; vW = [10, 11, 12, 13, 14, 15, 16]
    k('s_lshl_b32 s35, s22, 3')
    k('s_add_u32 s35, s35, s25')
    k('v_lshrrev_b32 v20, 5, v1')
    k('v_lshlrev_b32 v20, 3, v20')
    k('v_bfe_u32 v21, v1, 2, 2')
    k('v_add_u32 v20, v20, v21')
    k('v_mul_u32_u24 v20, 224, v20')
    k('v_bfe_u32 v21, v1, 4, 1')
    k('v_mul_u32_u24 v21, %d, v21' % GU_UP)
    k('v_add_u32 v20, v20, v21')
    k('v_and_b32 v21, 1, v1')
    k('v_lshl_add_u32 v20, v21, 4, v20')
    k('v_bfe_u32 v21, v1, 1, 1')
    k('v_lshl_add_u32 v4, v21, 3, v20')
    k('v_add_u32 v5, %d, v4' % (2*GU_STG))
    k('v_lshlrev_b32 v8, 4, v1')
    k('v_add_u32 v9, 0x10000, v8')
    k('s_and_b32 s27, s26, 1')
    k('s_mul_i32 s28, s27, 448')
    k('s_mul_i32 s29, s35, 224')
    for i in range(7):
        k('v_add_u32 v20, s28, v1')
        if i: k('v_add_u32 v20, %d, v20' % (64*i))
        k('v_mul_u32_u24 v21, 4682, v20')
        k('v_lshrrev_b32 v21, 16, v21')
        k('v_mul_u32_u24 v22, 14, v21')
        k('v_sub_u32 v22, v20, v22')
        k('v_mul_u32_u24 v21, 7168, v21')
        k('v_lshl_add_u32 v21, v22, 4, v21')
        k('v_add_u32 v21, s29, v21')
        k('v_subrev_u32 v%d, %d, v21' % (vW[i], (i % 4)*1024))
    srd(k, 8, PWS, 0x400000, WS_H2)
    k('s_cmp_ge_u32 s26, 2')
    k('s_cselect_b32 s12, s%d, s%d' % (PWU, PWG))
    k('s_cselect_b32 s13, s%d, s%d' % (PWU+1, PWG+1))
    k('s_mov_b32 s14, 0x%x' % (1024*7168))
    k('s_mov_b32 s15, 0x20000')
    k('s_lshl_b32 s27, s24, 3')
    k('s_lshl_b32 s28, s26, 1')
    k('s_add_u32 s34, s27, s28')
    if init_state:
        k('s_lshl_b32 s30, s34, 16')
        k('s_sub_u32 s30, s30, 4096')
        k('s_mov_b32 s31, 0x%x' % ((-64*7168) & 0xffffffff))
    k('s_lshr_b32 s27, s26, 1')
    k('s_mul_i32 s32, s27, %d' % GU_UP)
    k('s_and_b32 s27, s26, 1')
    k('s_mul_i32 s27, s27, 7168')
    k('s_add_u32 s32, s32, s27')
    return vL, vX, vW

def gateup_gemm(k, regs, extra=None):
    vL, vX, vW = regs
    return Gemm(k, 7, 16, acc=32, xr=0, wf=128, vX=vX, vW=vW, sXsrd=8, sWsrd=12, sXoff=30, sWoff=31, sM0=32, sCnt=33,
             stage_bytes=GU_STG, ldw_step=64*7168, nW=7,
             lds_imm=lambda buf, j, nb, sec: (vL[buf // 2], (buf % 2)*GU_STG + j*3584 + sec*896 + nb*32), extra=extra, xflag=LD())

def gateup_main(k, g, next_prefetch=None):
    srd(k, 16, PWS, 2048*3584*2, WS_ACT)
    k('s_mul_i32 s27, s34, 224')
    k('s_mul_i32 s28, s35, 7')
    k('s_add_u32 s27, s27, s28')
    k('s_lshl_b32 s36, s27, 10')
    k('s_add_u32 s37, s36, %d' % (224*1024))
    k('s_mov_b32 s40, 0x%x' % f2u(-LOG2E))
    k('s_mov_b32 s41, 0x%x' % f2u(-LOG2E))
    k('v_add_u32 v31, 4096, v8')
    k('v_mov_b32 v30, v8')
    k('v_mov_b32 v29, 0x%x' % f2u(-LOG2E))
    set_local_vcc(k)
    if not OPT.get('stepst'): stamp(k, 1)
    g.start()
    stamp(k, 2)
    def epi(b):
        out = []
        for mb in range(2):
            a = g.accr(b, mb)
            t = 17 + mb*4
            for h in range(2):
                e = a + 4*h
                out += ['v_mul_f32 v%d, v29, v%d' % (t+i, e+i) for i in range(4)]
                out += ['v_exp_f32 v%d, v%d' % (t+i, t+i) for i in range(4)]
                out += ['v_mul_f32 v%d, v%d, v%d' % (e+i, e+i, e+8+i) for i in range(4)]
                out += ['v_add_f32 v%d, 1.0, v%d' % (t+i, t+i) for i in range(4)]
                out += ['v_rcp_f32 v%d, v%d' % (t+i, t+i) for i in range(4)]
                out += ['s_nop 0']
                out += ['v_mul_f32 v%d, v%d, v%d' % (e+i, e+i, t+i) for i in range(4)]
            out += ['v_cvt_pk_bf16_f32 v%d, v%d, v%d' % (a+8+i, a+2*i, a+2*i+1) for i in range(4)]
            out.append('\n'.join(local_store(k, 'buffer_store_dwordx4 %s, v%d, s[16:19], s%d offen offset:%d' % (vr(a+8, 4), 30 if b < 4 else 31, 36+mb, (b % 4)*1024))))
        return out
    g.mainloop(epi)
    stamp(k, 3)
    if next_prefetch: next_prefetch()

def resume_m0(k, g):
    k('s_add_u32 m0, s%d, 0x%x' % (g.sM0, 2*g.stage))

def build():
    kerns = []
    if MEGA:
        name = NAME + '_kernel'
        k = Kern(name, nvgpr=512, accum=256, nsgpr=102, lds=163840)
        def early():
            code_touch(k, name + '_c1', name + '_cend', 30)
            k.label(name + '_c1')
        header(k, name, early)
        phase_p0(k, name)
        phase_ln1b(k)
        slow, post = phase_attn(k, name)
        def a3():
            k('s_lshl_b32 s27, s24, 2'); k('s_add_u32 s27, s27, s22'); k('s_add_u32 s27, s27, %d' % C_S3); cnt_addr(k, 27)
        arrive(k, a3, count=8, flag_off=128)
        g = gemm128_setup(k, 'oproj'); g.prologue_w()
        post()
        stamp_flush(k, 'attn', 5)
        k.label(name + '_L_oproj')
        stamp_rt0(k, 'oproj'); stamp(k, 0) if not OPT.get('stepst') else None
        waitfor(k, a3, 1, off=128)
        resume_m0(k, g)
        g.prologue_x()
        gemm128_main(k, 'oproj', g)
        def a4():
            k('s_add_u32 s27, s24, %d' % C_S4); cnt_addr(k, 27)
        arrive(k, a4, count=32, flag_off=128)
        regs = gateup_setup(k)
        gg = gateup_gemm(k, regs)
        gg.prologue_w()
        code_touch(k, name + '_L_gateup', name + '_L_down', 30)
        stamp_flush(k, 'oproj', 4)
        phase_ln2(k, 'ln2')
        k.label(name + '_L_gateup')
        stamp_rt0(k, 'gateup'); stamp(k, 0) if not OPT.get('stepst') else None
        gateup_setup(k, init_state=False)
        def a5():
            k('s_add_u32 s27, s24, %d' % C_S5); cnt_addr(k, 27)
        waitfor(k, a5, 1, off=128)
        resume_m0(k, gg)
        gg.prologue_x()
        gateup_main(k, gg)
        def a6():
            k('s_lshl_b32 s27, s24, 2'); k('s_add_u32 s27, s27, s22'); k('s_add_u32 s27, s27, %d' % C_S6); cnt_addr(k, 27)
        arrive(k, a6, count=8, flag_off=128)
        g = gemm128_setup(k, 'down'); g.prologue_w()
        code_touch(k, name + '_L_down', name + '_cend', 60)
        stamp_flush(k, 'gateup', 4)
        k.label(name + '_L_down')
        stamp_rt0(k, 'down'); stamp(k, 0) if not OPT.get('stepst') else None
        waitfor(k, a6, 1, off=128)
        resume_m0(k, g)
        g.prologue_x()
        gemm128_main(k, 'down', g)
        def a7():
            k('s_add_u32 s27, s24, %d' % C_S7); cnt_addr(k, 27)
        arrive(k, a7, count=32, flag_off=128)
        stamp_flush(k, 'down', 4)
        phase_ln2(k, 'final')
        if OPT.get('diagxcd'):
            lab = k.L('de')
            k('s_or_b32 s27, s2, s26')
            k('s_cmp_lg_u32 s27, 0')
            k('s_cbranch_scc1 %s' % lab)
            k('v_mov_b32 v2, 0')
            k('global_load_dwordx4 v[4:7], v2, s[%d:%d] offset:168 sc1' % (PDBG, PDBG+1))
            k('global_load_dwordx4 v[8:11], v2, s[%d:%d] offset:184 sc1' % (PDBG, PDBG+1))
            k('s_waitcnt vmcnt(0)')
            k('s_mov_b32 s29, 0')
            for i in range(8):
                k('v_readfirstlane_b32 s27, v%d' % (4+i))
                k('s_nop 3')
                k('s_bcnt1_i32_b32 s27, s27')
                k('s_add_u32 s29, s29, s27')
            k('s_sub_u32 s29, s29, 8')
            k('s_mul_i32 s29, s29, 2')
            k.label(lab + '_l')
            k('s_cmp_eq_u32 s29, 0')
            k('s_cbranch_scc1 %s' % lab)
            k('s_sleep 64')
            k('s_sub_u32 s29, s29, 1')
            k('s_branch %s_l' % lab)
            k.label(lab)
        k('s_endpgm')
        slow()
        k.label(name + '_cend')
        k.label(name + '_end')
        k('s_endpgm')
        kerns.append(k)
    else:
        def kern(nm, lds):
            k = Kern(nm, nvgpr=512, accum=256, nsgpr=102, lds=lds); header(k, nm); return k
        def fin(k):
            k.label(k.name + '_end'); k('s_endpgm'); kerns.append(k)
        k = kern('p0_kernel', 163840); phase_p0(k, k.name); stamp_flush(k, 'p0', 3); fin(k)
        k = kern('ln1_kernel', 163840)
        ln_addr(k); srd(k, 8, PX, 0x400000)
        for j in range(4): k('buffer_load_dwordx4 %s, v6, s[8:11], s44 offen offset:%d' % (vr(RAW + 4*j, 4), j*128))
        k('s_waitcnt vmcnt(0)'); tr8x8(k, RAW, 4, 240, 241); ln_unpack(k, RAW); ln_stats(k); phase_ln1b(k); fin(k)
        k = kern('attn_kernel', 163840); slow, post = phase_attn(k, k.name); stamp_flush(k, 'attn', 5); k('s_endpgm'); slow(); fin(k)
        k = kern('oproj_kernel', 65536); stamp_rt0(k, 'oproj'); stamp(k, 0); g = gemm128_setup(k, 'oproj'); g.prologue_mixed(); gemm128_main(k, 'oproj', g); stamp_flush(k, 'oproj', 4); fin(k)
        k = kern('ln2_kernel', 163840); phase_ln2(k, 'ln2'); fin(k)
        k = kern('gateup_kernel', 4*GU_STG); stamp_rt0(k, 'gateup'); stamp(k, 0); regs = gateup_setup(k); gg = gateup_gemm(k, regs); gg.prologue_mixed(); gateup_main(k, gg); stamp_flush(k, 'gateup', 4); fin(k)
        k = kern('down_kernel', 65536); stamp_rt0(k, 'down'); stamp(k, 0); g = gemm128_setup(k, 'down'); g.prologue_mixed(); gemm128_main(k, 'down', g); stamp_flush(k, 'down', 4); fin(k)
        k = kern('final_kernel', 163840); phase_ln2(k, 'final'); fin(k)
    return kerns

HEADER = open('cdna_kernels/%s.s.ref' % NAME).read().split('; Override launch')[0] if os.path.exists('cdna_kernels/%s.s.ref' % NAME) else ''

def assemble(kerns):
    out = [HEADER.rstrip()]
    if MEGA:
        kn = kerns[0]
        out.append('; @launch grid=(%d,1,1) block=(%d,1,1) lds=%d' % (kn.grid, kn.block, kn.lds))
    else:
        for kn in kerns:
            out.append('; @launch kernel=%s grid=(%d,1,1) block=(%d,1,1) lds=%d' % (kn.name, kn.grid, kn.block, kn.lds))
    out.append('.amdgcn_target "amdgcn-amd-amdhsa--gfx950"')
    for kn in kerns: out.append(kn.text())
    out.append('.section .rodata,"a"')
    for kn in kerns:
        out.append('.p2align 6'); out.append(kn.desc())
    return '\n'.join(out) + '\n'

if __name__ == '__main__':
    for a in sys.argv[2:]:
        if a == 'instr': INSTR = True
        elif a == 'mega': MEGA = True
        elif a.startswith('opt:'): OPT[a[4:].split('=')[0]] = (a.split('=')[1].replace('+', ' ') if '=' in a else True)
    ks = build()
    bad = 0
    for kn in ks: bad += len(check(kn))
    txt = assemble(ks)
    txt = '\n'.join(l[4:] if l.startswith('    ') else l for l in txt.split('\n'))
    open(sys.argv[1], 'w').write(txt)
    print('generated', len(txt), 'bytes; check errors:', bad)
```

```python
import sys, math, os, struct as _st
from asmlib import *

NAME = 'adaLN_cond__sliding_block_cached__swiglu_ffn__prompt'
KA = dict(x=0, k=8, v=16, wq=24, wo=32, bx=40, wg=48, wu=56, wd=64, c=72, wmod=80, out=88, dbg=96, ws=104)
PX, PK, PV, PWQ, PWO, PWG, PWU, PWD, PC_, PWMOD, POUT, PDBG, PWS = 64, 66, 68, 70, 72, 76, 78, 80, 82, 84, 86, 88, 90
WS_MOD  = 0x0
WS_MODB = 0x10000
WS_CNT  = 0x20000
WS_XCC  = 0x30000
WS_H   = 0x100000
WS_O   = 0x500000
WS_P1  = 0x1500000
WS_X1  = 0x3500000
WS_H2  = 0x3900000
WS_ACT = 0x3D00000
WS_P2  = 0x4B00000
WS_KF  = 0x5B00000
WS_VF  = 0x5B80000
WS_STAMP = 0x8000000
MFMA = 'v_mfma_f32_32x32x16_bf16'
LOG2E = 1.4426950408889634
def f2u(x): return _st.unpack('<I', _st.pack('<f', x))[0]
INSTR = False
MEGA = False
OPT = {}
PHASES = ['p0', 'attn', 'oproj', 'ln2', 'gateup', 'down', 'final']
PIDX = {p: i for i, p in enumerate(PHASES)}
ST = 'sc1'
def LD(): return 'sc1' if (MEGA and not OPT.get('plainld')) else ''
C_S2, C_S3, C_S4, C_S5, C_S6, C_S7 = 0, 8, 40, 48, 56, 88
LN_LDS = 147456

def srd(k, s, lo, size, add=None):
    if add:
        k('s_add_u32 s%d, s%d, 0x%x' % (s, lo, add))
        k('s_addc_u32 s%d, s%d, 0' % (s+1, lo+1))
    else:
        k('s_mov_b32 s%d, s%d' % (s, lo))
        k('s_mov_b32 s%d, s%d' % (s+1, lo+1))
    k('s_mov_b32 s%d, 0x%x' % (s+2, size))
    k('s_mov_b32 s%d, 0x20000' % (s+3))
def srd_s(k, s, lo, soff, size):
    k('s_add_u32 s%d, s%d, s%d' % (s, lo, soff))
    k('s_addc_u32 s%d, s%d, 0' % (s+1, lo+1))
    k('s_mov_b32 s%d, 0x%x' % (s+2, size))
    k('s_mov_b32 s%d, 0x20000' % (s+3))

def stamp(k, i):
    if INSTR:
        k('s_memtime s[%d:%d]' % (92+2*i, 93+2*i)) if i < 5 else None
def stamp_begin(k):
    if INSTR:
        k('s_memrealtime s[60:61]') if False else None
        k('s_memrealtime s[18:19]') if False else None
def stamp_flush(k, phase, n):
    if not INSTR: return
    k('s_waitcnt lgkmcnt(0)')
    k('s_memrealtime s[28:29]') if False else None
    srd(k, 16, PWS, 0x10000, WS_STAMP + PIDX[phase]*0x10000)
    k('s_lshl_b32 s27, s2, 6')
    k('v_cmp_eq_u32 vcc, 0, v0')
    k('s_and_saveexec_b64 s[28:29], vcc')
    lab = k.L('so')
    k('s_cbranch_execz %s' % lab)
    k('v_mov_b32 v2, s27')
    for i in range(n):
        k('v_mov_b32 v3, s%d' % (92+2*i))
        k('buffer_store_dword v3, v2, s[16:19], 0 offen offset:%d' % (4*i))
    k('s_memrealtime s[92:93]')
    k('s_memtime s[94:95]')
    k('s_waitcnt lgkmcnt(0)')
    k('v_mov_b32 v3, s92')
    k('buffer_store_dword v3, v2, s[16:19], 0 offen offset:56')
    k('v_mov_b32 v3, s94')
    k('buffer_store_dword v3, v2, s[16:19], 0 offen offset:60')
    k.label(lab)
    k('s_mov_b64 exec, s[28:29]')
def stamp_rt0(k, phase):
    if not INSTR: return
    k('s_memrealtime s[92:93]')
    k('s_memtime s[94:95]')
    srd(k, 16, PWS, 0x10000, WS_STAMP + PIDX[phase]*0x10000)
    k('s_lshl_b32 s27, s2, 6')
    k('s_waitcnt lgkmcnt(0)')
    k('v_cmp_eq_u32 vcc, 0, v0')
    k('s_and_saveexec_b64 s[28:29], vcc')
    lab = k.L('s0')
    k('s_cbranch_execz %s' % lab)
    k('v_mov_b32 v2, s27')
    k('v_mov_b32 v3, s92')
    k('buffer_store_dword v3, v2, s[16:19], 0 offen offset:48')
    k('v_mov_b32 v3, s94')
    k('buffer_store_dword v3, v2, s[16:19], 0 offen offset:52')
    k.label(lab)
    k('s_mov_b64 exec, s[28:29]')

def header(k, name, early=None):
    k('s_cmp_ge_u32 s2, 256')
    k('s_cbranch_scc1 %s_end' % name)
    if OPT.get('scramble'):
        k('s_and_b32 s3, s2, 31')
        k('s_lshl_b32 s3, s3, 3')
        k('s_lshr_b32 s2, s2, 5')
        k('s_or_b32 s2, s2, s3')
    k('s_load_dwordx8 s[80:87], s[0:1], 64')
    k('s_load_dwordx16 s[64:79], s[0:1], 0')
    k('s_load_dwordx4 s[88:91], s[0:1], 96')
    k('v_lshrrev_b32 v2, 6, v0')
    k('v_and_b32 v1, 63, v0')
    k('s_lshr_b32 s21, s2, 3')
    k('v_readfirstlane_b32 s26, v2')
    if early: early()
    k('s_and_b32 s20, s2, 7')
    k('s_lshr_b32 s22, s20, 1')
    k('s_and_b32 s23, s20, 1')
    k('s_and_b32 s24, s21, 3')
    k('s_lshl_b32 s27, s23, 2')
    k('s_add_u32 s24, s24, s27')
    k('s_lshr_b32 s25, s21, 2')
    k('s_waitcnt lgkmcnt(0)')

def cnt_addr(k, sreg, dst=6):
    k('s_lshl_b32 s%d, s%d, 8' % (dst, sreg))
    k('s_add_u32 s%d, s%d, 0x%x' % (dst, dst, WS_CNT))
    k('s_add_u32 s%d, s%d, s%d' % (dst, dst, PWS))
    k('s_addc_u32 s%d, s%d, 0' % (dst+1, PWS+1))
def arrive(k, setup, count=None, extra_dbg=None, only_w0=False, flag_off=None):
    if not MEGA: return
    if OPT.get('direct') and count is not None and count <= 32: count = None
    if not only_w0:
        k('s_waitcnt vmcnt(0)')
        k('s_barrier')
    lab = k.L('arr')
    k('s_cmp_lg_u32 s26, 0')
    k('s_cbranch_scc1 %s' % lab)
    if only_w0: k('s_waitcnt vmcnt(0)')
    setup()
    k('v_mov_b32 v2, 0')
    k('v_mov_b32 v3, 1')
    k('s_mov_b64 exec, 1')
    if extra_dbg is not None:
        k('v_mov_b32 v29, %d' % extra_dbg)
        k('global_atomic_add v29, v3, s[%d:%d] sc1' % (PDBG, PDBG+1))
    if count is None:
        k('global_atomic_add v2, v3, s[6:7] sc1')
    else:
        k('global_atomic_add v29, v2, v3, s[6:7] sc0 sc1')
        k('s_waitcnt vmcnt(0)')
        k('v_readfirstlane_b32 s27, v29')
        k('s_nop 3')
        k('s_cmp_lg_u32 s27, %d' % (count - 1))
        k('s_cbranch_scc1 %s_n' % lab)
        k('global_store_dword v2, v3, s[6:7] offset:%d sc1' % flag_off)
        k.label(lab + '_n')
    k('s_mov_b64 exec, -1')
    k.label(lab)
def waitfor(k, setup, count, off=0, sleep=2, direct=None):
    if not MEGA: return
    if OPT.get('direct') and direct is not None: count, off = direct, 0
    lab = k.L('wt'); done = k.L('wd'); skip = k.L('ws')
    k('s_cmp_lg_u32 s26, 0')
    k('s_cbranch_scc1 %s' % skip)
    setup()
    k('v_mov_b32 v2, 0')
    k('s_mov_b32 s27, 0')
    k('s_mov_b64 exec, 1')
    k.label(lab)
    k('global_load_dword v3, v2, s[6:7] offset:%d sc1' % off)
    k('s_waitcnt vmcnt(0)')
    k('v_readfirstlane_b32 s28, v3')
    k('s_add_u32 s27, s27, 1')
    k('s_cmp_ge_u32 s28, %d' % count)
    k('s_cbranch_scc1 %s' % done)
    k('s_cmp_ge_u32 s27, 0x40000')
    k('s_cbranch_scc1 %s' % done)
    k('s_sleep %d' % sleep)
    k('s_branch %s' % lab)
    k.label(done)
    k('s_mov_b64 exec, -1')
    k.label(skip)
    k('s_barrier')

def local_store(k, ins):
    if not MEGA or not OPT.get('local'): return [ins + ' ' + ST]
    a = k.L('ls'); b = k.L('lt')
    return ['s_cbranch_vccnz %s' % a, ins + ' ' + ST, a + ':', 's_cbranch_vccz %s' % b, ins, b + ':']
def set_local_vcc(k):
    if MEGA and OPT.get('local'):
        k('s_cmp_eq_u32 s3, 1')
        k('s_cselect_b64 vcc, -1, 0')

def code_touch(k, lab0, lab1, vtmp):
    if OPT.get('nocode'): return
    here = k.L('pc'); skip = k.L('ct')
    k('s_cmp_lg_u32 s26, 0')
    k('s_cbranch_scc1 %s' % skip)
    k('s_getpc_b64 s[6:7]')
    k.label(here)
    k('s_add_u32 s6, s6, %s-%s' % (lab0, here))
    k('s_addc_u32 s7, s7, %s' % ('0' if True else ''))
    k('v_lshlrev_b32 v%d, 5, v1' % vtmp)
    k('v_add_u32 v%d, s21, v%d' % (vtmp, vtmp))
    k('v_lshlrev_b32 v%d, 7, v%d' % (vtmp, vtmp))
    k('v_cmp_gt_u32 vcc, %s-%s, v%d' % (lab1, lab0, vtmp))
    k('s_and_saveexec_b64 s[4:5], vcc')
    k('s_cbranch_execz %s_r' % skip)
    k('global_load_dword v%d, v%d, s[6:7]' % (vtmp+1, vtmp))
    k.label(skip + '_r')
    k('s_mov_b64 exec, s[4:5]')
    k.label(skip)

class Gemm:
    def __init__(self, k, NB, nsteps, acc, xr, wf, vX, vW, sXsrd, sWsrd, sXoff, sWoff, sM0, sCnt,
                 stage_bytes, ldw_step, nW, lds_imm, extra=None, xflag=''):
        self.k = k; self.NB = NB; self.nsteps = nsteps; self.acc = acc; self.xr = xr; self.wf = wf
        self.vX = vX; self.vW = vW; self.sX = sXsrd; self.sW = sWsrd; self.sXoff = sXoff; self.sWoff = sWoff
        self.sM0 = sM0; self.sCnt = sCnt; self.stage = stage_bytes; self.ldw_step = ldw_step; self.nW = nW
        self.lds_imm = lds_imm; self.xflag = xflag
        self.extra = extra or (lambda t, j: [])
        if nW == 4: wsl = {3: [0], 0: [1], 1: [2], 2: [3]}
        else: wsl = {3: [0, 1], 0: [2, 3], 1: [4, 5], 2: [6]}
        Q = []
        for i in wsl[3]: Q.append((('W', 0, i), -13))
        for s_ in range(nsteps):
            for j in range(4):
                slot = 4*(s_-3) + j
                ws = [('W', s_, i) for i in wsl[j]] if j < 3 else ([('W', s_+1, i) for i in wsl[3]] if s_+1 < nsteps else [])
                for o in [('X', s_, j, 0)] + ws + [('X', s_, j, 1)]: Q.append((o, slot))
        self.Q = Q
        self.P = len([1 for o, sl in Q if sl < -4])
        self.sched = {}
        pos = self.P
        for t in range(nsteps):
            for j in range(4):
                slot = 4*t + j
                steady = len([1 for o, sl in Q if sl <= slot])
                per = len([1 for o, sl in Q if sl == 16 + j])
                n = min(steady, pos + per + 1)
                self.sched[(t, j)] = [o for o, sl in Q[pos:n]]
                pos = n
    def accr(self, nb, mb): return self.acc + (nb*2 + mb)*16
    def xreg(self, s, mb, j): return self.xr + (s % 4)*32 + (mb*4 + j)*4
    def wreg(self, par, nb): return self.wf + par*self.NB*4 + nb*4
    def mkop(self, o):
        if o[0] == 'X':
            _, s_, j, mb = o
            pre = ['s_add_u32 s%d, s%d, 4096' % (self.sXoff, self.sXoff)] if (j == 0 and mb == 0) else []
            return (pre, 'buffer_load_dwordx4 %s, v%d, s[%d:%d], s%d offen offset:%d %s' % (ar(self.xreg(s_, mb, j), 4), self.vX[mb], self.sX, self.sX+3, self.sXoff, j*1024, self.xflag), ('X', s_, j))
        _, s_, i = o
        pre = []
        if i == 0:
            pre.append('s_add_u32 s%d, s%d, 0x%x' % (self.sWoff, self.sWoff, self.ldw_step))
            pre.append('s_add_u32 m0, s%d, 0x%x' % (self.sM0, (s_ % 4)*self.stage))
        elif i == 4:
            pre.append('s_add_u32 m0, s%d, 0x%x' % (self.sM0, (s_ % 4)*self.stage + 4096))
        return (pre, 'buffer_load_dwordx4 v%d, s[%d:%d], s%d offen offset:%d lds' % (self.vW[i], self.sW, self.sW+3, self.sWoff, (i % 4)*1024), ('W', s_, i))
    def emit_vm(self, op):
        k = self.k
        pre, ins, tag = op[0], op[1], op[2]
        for p in pre: k(p)
        if pre and 'm0' in pre[-1]: k('s_nop 0')
        k.vm(ins, tag)
    def lds_reads(self, t, j):
        out = []
        for nb in range(self.NB):
            for sec in range(2):
                v, imm = self.lds_imm(t % 4, j, nb, sec)
                out.append('ds_read_b64_tr_b16 %s, v%d offset:%d' % (ar(self.wreg(j % 2, nb) + 2*sec, 2), v, imm))
        return out
    def blk_reads(self, t, nb):
        out = []
        for j in range(4):
            for sec in range(2):
                v, imm = self.lds_imm(t % 4, j, nb, sec)
                out.append('ds_read_b64_tr_b16 %s, v%d offset:%d' % (ar(self.wf + (nb % 2)*16 + j*4 + 2*sec, 2), v, imm))
        return out
    def prologue_w(self):
        for o, sl in self.Q[:self.P]:
            if o[0] == 'W': self.emit_vm(self.mkop(o))
    def prologue_x(self):
        for o, sl in self.Q[:self.P]:
            if o[0] == 'X': self.emit_vm(self.mkop(o))
    def prologue_mixed(self):
        for o, sl in self.Q[:self.P]: self.emit_vm(self.mkop(o))
    def start(self):
        k = self.k
        n = k.vm_wait_n(lambda tg: (tg[0] == 'W' and tg[1] == 0) or (tg[0] == 'X' and tg[1] == 0 and tg[2] <= 2))
        k('s_waitcnt vmcnt(%d)' % n)
        k('s_barrier')
        for r in self.lds_reads(0, 0): k(r)
    def emit_gaps(self, mfmas, gaps):
        k = self.k
        for m, mf in enumerate(mfmas):
            k(mf)
            for kind, x in gaps[m]:
                if kind == 'i': k(x)
                else: self.emit_vm(x)
    def frag_reads(self, t, j, nb, slot):
        out = []
        for sec in range(2):
            v, imm = self.lds_imm(t % 4, j, nb, sec)
            out.append('ds_read_b64_tr_b16 %s, v%d offset:%d' % (ar(self.wf + slot*4 + 2*sec, 2), v, imm))
        return out
    def step(self, t, tail=0):
        k = self.k; NB = self.NB; n = self.nsteps
        last = (t == n - 1)
        pre_tail = tail and t == n - tail - 1
        for j in range(4):
            if j == 3 and not last:
                if pre_tail:
                    nn = k.vm_wait_n(lambda tg: tg[0] in 'WX' and tg[1] <= (n-2 if tail >= 3 else n-1))
                else:
                    nn = k.vm_wait_n(lambda tg: (tg[0] == 'W' and tg[1] <= t+1) or (tg[0] == 'X' and (tg[1] <= t or (tg[1] == t+1 and tg[2] <= 2))))
                k('s_waitcnt vmcnt(%d) lgkmcnt(0)' % nn)
                k('s_barrier')
            elif j == 3:
                nn = k.vm_wait_n(lambda tg: tg[0] == 'X' and tg[1] <= t)
                k('s_waitcnt vmcnt(%d) lgkmcnt(0)' % nn)
            else:
                k('s_waitcnt lgkmcnt(0)')
            if j < 3: reads = self.lds_reads(t, j+1)
            elif last: reads = []
            elif pre_tail:
                reads = []
                for f in range(4): reads += self.frag_reads(n - tail, f, 0, f)
            else: reads = self.lds_reads(t+1, 0)
            vms = [self.mkop(o) for o in self.sched[(t, j)]]
            extra = list(self.extra(t, j))
            vms += [e for e in extra if not isinstance(e, str)]
            plain = [e for e in extra if isinstance(e, str)]
            nm = 2*NB
            gaps = [[] for _ in range(nm)]
            for i, r in enumerate(reads): gaps[i // 2].append(('i', r))
            for i, op in enumerate(vms): gaps[NB + (i * NB) // max(1, len(vms))].append(('vm', op))
            for i, e in enumerate(plain): gaps[(i * nm) // len(plain)].append(('i', e))
            mf = []
            for nb in range(NB):
                for mb in range(2):
                    d = vr(self.accr(nb, mb), 16)
                    mf.append('%s %s, %s, %s, %s' % (MFMA, d, ar(self.wreg(j % 2, nb), 4), ar(self.xreg(t, mb, j), 4), '0' if (t == 0 and j == 0) else d))
            self.emit_gaps(mf, gaps)
    def tail_blocks(self, tail, epi):
        k = self.k; NB = self.NB; n = self.nsteps
        frs = [(nb, t, j) for nb in range(NB) for t in range(n - tail, n) for j in range(4)]
        per = tail*4
        NS = 8
        pending = []
        for f, (nb, t, j) in enumerate(frs):
            fo = f % per
            if fo == 0:
                items = list(pending)
                if nb < tail:
                    for jj in range(4): items += list(self.extra(n - tail + nb, jj))
                ng = 2*per
                blockgaps = [[] for _ in range(ng)]
                for i, e in enumerate(items): blockgaps[4 + (i * (ng - 4)) // max(1, len(items))].append(e)
            if f == 4 and tail >= 3:
                nn = k.vm_wait_n(lambda tg: tg[0] in 'WX' and tg[1] <= n-1)
                k('s_waitcnt vmcnt(%d)' % nn)
                k('s_barrier')
            ahead = min(len(frs) - 1 - f, 3)
            k('s_waitcnt lgkmcnt(%d)' % (2*ahead))
            nxt = self.frag_reads(frs[f+4][1], frs[f+4][2], frs[f+4][0], (f+4) % NS) if f + 4 < len(frs) else []
            for mb in range(2):
                d = vr(self.accr(nb, mb), 16)
                k('%s %s, %s, %s, %s' % (MFMA, d, ar(self.wf + (f % NS)*4, 4), ar(self.xreg(t, mb, j), 4), d))
                if nxt: k(nxt[mb])
                for e in blockgaps[2*fo + mb]:
                    if isinstance(e, str): k(e)
                    else: self.emit_vm(e)
            if fo == per - 1: pending = epi(nb)
        k('s_nop 7')
        k('s_nop 3')
        for e in pending:
            if isinstance(e, str): k(e)
            else: self.emit_vm(e)
    def mainloop(self, epi=None, tail=3):
        k = self.k; n = self.nsteps
        tl = tail if epi is not None else 0
        for t in range(4): self.step(t, tl)
        if OPT.get('stepst'): stamp(k, 0)
        t = 4
        trips = 0
        while t + 4*trips + 3 + 4 <= n - 1: trips += 1
        if trips >= 2:
            lab = k.L('loop')
            k('s_mov_b32 s%d, %d' % (self.sCnt, trips))
            k.label(lab)
            q0 = len(k.vmq)
            for tt in range(t, t+4): self.step(tt, tl)
            k('s_sub_u32 s%d, s%d, 1' % (self.sCnt, self.sCnt))
            k('s_cmp_lg_u32 s%d, 0' % self.sCnt)
            k('s_cbranch_scc1 %s' % lab)
            body = k.vmq[q0:]
            for r in range(1, trips):
                for tg in body: k.vmq.append((tg[0], tg[1] + 4*r, tg[2]))
            t += 4*trips
        for tt in range(t, n - tl): self.step(tt, tl)
        if OPT.get('stepst'): stamp(k, 1)
        if tl: self.tail_blocks(tl, epi)

def lds_addr_128(k, vL, tmp):
    a, b, c = tmp, tmp+1, tmp+2
    k('v_lshrrev_b32 v%d, 5, v1' % a)
    k('v_lshlrev_b32 v%d, 11, v%d' % (a, a))
    k('v_bfe_u32 v%d, v1, 2, 2' % b)
    k('v_lshl_add_u32 v%d, v%d, 8, v%d' % (a, b, a))
    k('v_bfe_u32 v%d, v1, 4, 1' % c)
    k('v_lshl_add_u32 v%d, v%d, 5, v%d' % (a, c, a))
    k('v_and_b32 v%d, 1, v1' % c)
    k('v_lshl_add_u32 v%d, v%d, 4, v%d' % (a, c, a))
    k('v_bfe_u32 v%d, v1, 1, 1' % c)
    k('v_lshl_add_u32 v%d, v%d, 3, v%d' % (a, c, a))
    for nb in range(4):
        k('v_xor_b32 v%d, %d, v%d' % (c, nb, b))
        k('v_lshl_add_u32 v%d, v%d, 6, v%d' % (vL[nb], c, a))

def w128_voffsets(k, vW, ldw, s_colbytes, tmp):
    a, b, c = tmp, tmp+1, tmp+2
    k('v_lshrrev_b32 v%d, 4, v1' % a)
    k('v_bfe_u32 v%d, v1, 2, 2' % b)
    k('v_xor_b32 v%d, v%d, v%d' % (b, b, a))
    k('v_and_b32 v%d, 3, v1' % c)
    k('v_lshlrev_b32 v%d, 4, v%d' % (c, c))
    k('v_lshl_add_u32 v%d, v%d, 6, v%d' % (c, b, c))
    k('s_lshl_b32 s27, s26, 4')
    k('v_add_u32 v%d, s27, v%d' % (a, a))
    k('v_mul_u32_u24 v%d, %d, v%d' % (a, ldw, a))
    k('v_add3_u32 v%d, v%d, v%d, s%d' % (vW[0], a, c, s_colbytes))
    for i in range(1, 4): k('v_add_u32 v%d, 0x%x, v%d' % (vW[i], i*4*ldw - i*1024, vW[0]))

def gemm128_setup(k, which):
    if which == 'oproj': xoff, xsize, KS, ksq, wptr, ldw, nsteps = WS_O, 0x1000000, 256, 64, PWO, 2048, 16
    else: xoff, xsize, KS, ksq, wptr, ldw, nsteps = WS_ACT, 2048*3584*2, 224, 56, PWD, 2048, 14
    vL = [4, 5, 6, 7]; vX = [8, 9]; vW = [10, 11, 12, 13]
    lds_addr_128(k, vL, tmp=14)
    k('v_lshlrev_b32 v8, 4, v1')
    k('v_add_u32 v9, 0x%x, v8' % (KS*1024))
    k('s_lshl_b32 s28, s25, 8')
    w128_voffsets(k, vW, ldw, 28, 14)
    srd(k, 8, PWS, xsize, xoff)
    srd(k, 12, wptr, ksq*4*16*ldw)
    k('s_lshl_b32 s27, s24, 3')
    k('s_lshl_b32 s28, s26, 1')
    k('s_add_u32 s34, s27, s28')
    k('s_mul_i32 s30, s34, %d' % KS)
    k('s_mul_i32 s28, s22, %d' % ksq)
    k('s_add_u32 s30, s30, s28')
    k('s_lshl_b32 s30, s30, 10')
    k('s_sub_u32 s30, s30, 4096')
    k('s_mul_i32 s31, s22, 0x%x' % (ksq*16*ldw))
    k('s_sub_u32 s31, s31, 0x%x' % (64*ldw))
    k('s_lshl_b32 s32, s26, 12')
    return Gemm(k, 4, nsteps, acc=128, xr=0, wf=128, vX=vX, vW=vW, sXsrd=8, sWsrd=12, sXoff=30, sWoff=31, sM0=32, sCnt=33,
                stage_bytes=16384, ldw_step=64*ldw, nW=4,
                lds_imm=lambda buf, j, nb, sec: (vL[nb], buf*16384 + j*4096 + sec*1024), xflag=LD())

def gemm128_main(k, which, g):
    poff = WS_P1 if which == 'oproj' else WS_P2
    k('s_lshl_b32 s27, s22, 22')
    k('s_add_u32 s27, s27, 0x%x' % poff)
    srd_s(k, 16, PWS, 27, 0x400000)
    k('s_lshl_b32 s27, s34, 6')
    k('s_lshl_b32 s28, s25, 3')
    k('s_add_u32 s27, s27, s28')
    k('s_lshl_b32 s36, s27, 10')
    k('s_add_u32 s37, s36, 0x10000')
    k('v_add_u32 v14, 4096, v8')
    if not OPT.get('stepst'): stamp(k, 1)
    g.start()
    stamp(k, 2)
    cnt = [0]
    def epi(nb):
        out = []
        for mb in range(2):
            a = g.accr(nb, mb)
            for hh in range(2):
                t = 16 + (cnt[0] % 8)*4; cnt[0] += 1
                for r in range(4): out.append('v_cvt_pk_bf16_f32 v%d, v%d, v%d' % (t+r, a + hh*8 + 2*r, a + hh*8 + 2*r + 1))
                ks = 2*nb + hh
                out.append(([], 'buffer_store_dwordx4 %s, v%d, s[16:19], s%d offen offset:%d %s' % (vr(t, 4), 8 if ks < 4 else 14, 36+mb, (ks % 4)*1024, ST), ('S', 0, 0)))
        return out
    g.mainloop(epi)
    stamp(k, 3)

def reduce8(k, v, t):
    k('s_nop 1')
    k('v_add_f32_dpp v%d, v%d, v%d row_ror:8 row_mask:0xf bank_mask:0xf' % (v, v, v))
    k('v_mov_b32 v%d, v%d' % (t, v))
    k('s_nop 1')
    k('v_permlane16_swap_b32 v%d, v%d' % (v, t))
    k('s_nop 1')
    k('v_add_f32 v%d, v%d, v%d' % (v, v, t))
    k('v_mov_b32 v%d, v%d' % (t, v))
    k('s_nop 1')
    k('v_permlane32_swap_b32 v%d, v%d' % (v, t))
    k('s_nop 1')
    k('v_add_f32 v%d, v%d, v%d' % (v, v, t))

def gemv_load(k, nj, s_row0, s_col0bytes, AD=160, C=168, LDB=96, emit=True):
    o = []
    o.append('v_and_b32 v%d, 7, v0' % AD)
    o.append('v_lshrrev_b32 v%d, 3, v0' % (AD+1))
    o.append('v_mul_u32_u24 v%d, %d, v%d' % (AD+2, nj*12288, AD+1))
    o.append('v_lshl_add_u32 v%d, v%d, 4, v%d' % (AD+2, AD, AD+2))
    o.append('v_mul_u32_u24 v%d, %d, v%d' % (AD+3, nj*2, AD+1))
    o.append('s_mul_i32 s36, s%d, 12288' % s_row0)
    o.append('s_add_u32 s36, s36, s%d' % s_col0bytes)
    o.append('s_lshl_b32 s37, s%d, 1' % s_row0)
    for i in range(nj // 8): o.append('buffer_load_dwordx4 %s, v%d, s[12:15], s37 offen offset:%d' % (vr(C+4*i, 4), AD+3, 16*i))
    for j in range(nj):
        o.append('buffer_load_dwordx4 %s, v%d, s[8:11], s36 offen' % (vr(LDB+4*j, 4), AD+2))
        if j < nj-1: o.append('s_add_u32 s36, s36, 12288')
    if emit:
        for x in o: k(x)
    return o
def gemv_compute(k, nj, s_outoff, out_srd, L0, after, B=160, C=168, LDB=96):
    S = B+16; T = B+32; A = B+48
    k('v_and_b32 v%d, 7, v0' % B)
    k('v_lshrrev_b32 v%d, 3, v0' % (B+1))
    k('s_waitcnt vmcnt(%d)' % (nj + after))
    if OPT.get('p0st') and L0 == LN_LDS: stamp(k, 2)
    for i in range(nj//2):
        k('v_lshlrev_b32 v%d, 16, v%d' % (S+2*i, C+i))
        k('v_and_b32 v%d, 0xffff0000, v%d' % (S+1+2*i, C+i))
    for i in range(nj): k('v_mul_f32 v%d, 0x%x, v%d' % (T+i, f2u(-LOG2E), S+i))
    for i in range(nj): k('v_exp_f32 v%d, v%d' % (T+i, T+i))
    k('s_nop 0')
    for i in range(nj): k('v_add_f32 v%d, 1.0, v%d' % (T+i, T+i))
    for i in range(nj): k('v_rcp_f32 v%d, v%d' % (T+i, T+i))
    k('s_nop 0')
    for i in range(nj): k('v_mul_f32 v%d, v%d, v%d' % (S+i, S+i, T+i))
    for i in range(nj//2): k('v_cvt_pk_bf16_f32 v%d, v%d, v%d' % (T+i, S+2*i, S+1+2*i))
    for i in range(nj//2):
        k('v_lshlrev_b32 v%d, 16, v%d' % (S+2*i, T+i))
        k('v_and_b32 v%d, 0xffff0000, v%d' % (S+1+2*i, T+i))
    for i in range(8): k('v_mov_b32 v%d, 0' % (A+i))
    U = B+56
    for j in range(nj):
        k('s_waitcnt vmcnt(%d)' % (nj-1-j + after))
        for i in range(4):
            k('v_lshlrev_b32 v%d, 16, v%d' % (U+2*(i%2), LDB+4*j+i))
            k('v_and_b32 v%d, 0xffff0000, v%d' % (U+1+2*(i%2), LDB+4*j+i))
            k('v_fmac_f32 v%d, v%d, v%d' % (A+2*i, U+2*(i%2), S+j))
            k('v_fmac_f32 v%d, v%d, v%d' % (A+2*i+1, U+1+2*(i%2), S+j))
    if OPT.get('p0st') and L0 == LN_LDS: stamp(k, 3)
    k('v_lshlrev_b32 v%d, 8, v%d' % (B+4, B+1))
    k('v_lshl_add_u32 v%d, v%d, 5, v%d' % (B+4, B, B+4))
    k('v_add_u32 v%d, %d, v%d' % (B+4, L0, B+4))
    k('ds_write_b128 v%d, %s' % (B+4, vr(A, 4)))
    k('ds_write_b128 v%d, %s offset:16' % (B+4, vr(A+4, 4)))
    k('s_waitcnt lgkmcnt(0)')
    k('s_barrier')
    lab = k.L('skip')
    k('s_cmp_lg_u32 s26, 0')
    k('s_cbranch_scc1 %s' % lab)
    k('v_lshlrev_b32 v%d, 2, v1' % (B+6))
    k('v_add_u32 v%d, %d, v%d' % (B+4, L0, B+6))
    for h in range(4):
        for i in range(8): k('ds_read_b32 v%d, v%d offset:%d' % (LDB+8*h+i, B+4, (8*h+i)*256))
        if h in (1, 2): k('s_waitcnt lgkmcnt(7)')
    k('s_waitcnt lgkmcnt(0)')
    for i in range(16): k('v_add_f32 v%d, v%d, v%d' % (LDB+i, LDB+i, LDB+16+i))
    for st in (8, 4, 2, 1):
        for i in range(st): k('v_add_f32 v%d, v%d, v%d' % (LDB+i, LDB+i, LDB+st+i))
    k('buffer_store_dword v%d, v%d, s[%d:%d], s%d offen %s' % (LDB, B+6, out_srd, out_srd+3, s_outoff, ST))
    k.label(lab)

def kv_part(k, mid=None, nmid=1):
    B = 160
    k('s_sub_u32 s50, s2, 128')
    k('s_lshl_b32 s50, s50, 2')
    k('s_add_u32 s50, s50, s26')
    srd(k, 8, PK, 0x200000)
    srd(k, 12, PV, 0x200000)
    srd(k, 16, PWS, 0x100000, WS_KF)
    k('s_lshr_b32 s51, s50, 7')
    k('s_bfe_u32 s52, s50, 0x40003')
    k('s_lshl_b32 s54, s51, 19')
    k('s_lshl_b32 s55, s52, 13')
    k('s_add_u32 s54, s54, s55')
    k('s_add_u32 s54, s54, 0x60000')
    k('v_lshrrev_b32 v%d, 3, v1' % B)
    k('v_and_b32 v%d, 7, v1' % (B+1))
    k('v_lshlrev_b32 v%d, 8, v%d' % (B+2, B))
    k('v_lshl_add_u32 v%d, v%d, 4, v%d' % (B+2, B+1, B+2))
    k('s_bfe_u32 s53, s50, 0x20001')
    k('s_and_b32 s56, s50, 1')
    k('s_lshl_b32 s55, s53, 11')
    k('s_add_u32 s55, s55, s54')
    k('s_lshl_b32 s57, s56, 7')
    k('s_add_u32 s55, s55, s57')
    k('buffer_load_dwordx4 %s, v%d, s[8:11], s55 offen' % (vr(B+8, 4), B+2))
    k('v_lshrrev_b32 v%d, 2, v1' % (B+3))
    k('v_lshlrev_b32 v%d, 8, v%d' % (B+3, B+3))
    k('v_and_b32 v%d, 3, v1' % (B+4))
    k('v_lshl_add_u32 v%d, v%d, 4, v%d' % (B+3, B+4, B+3))
    k('s_bfe_u32 s55, s50, 0x10002')
    k('s_lshl_b32 s55, s55, 12')
    k('s_and_b32 s57, s50, 3')
    k('s_lshl_b32 s57, s57, 6')
    k('s_add_u32 s55, s55, s57')
    k('s_add_u32 s55, s55, s54')
    k('s_mul_i32 s57, s26, 4608')
    k('s_add_u32 s57, s57, %d' % (TR_LDS + 2304))
    k('s_mov_b32 m0, s57')
    k('s_nop 0')
    k('buffer_load_dwordx4 v%d, s[12:15], s55 offen lds' % (B+3))
    if mid:
        k('s_mov_b32 s58, s16'); k('s_mov_b32 s59, s17'); k('s_mov_b32 s60, s18')
        mid()
        k('s_mov_b32 s16, s58'); k('s_mov_b32 s17, s59'); k('s_mov_b32 s18, s60')
    k('v_lshrrev_b32 v%d, 5, v1' % (B+4))
    k('v_lshlrev_b32 v%d, 2, v%d' % (B+4, B+4))
    k('v_bfe_u32 v%d, v1, 2, 2' % (B+5))
    k('v_add_u32 v%d, v%d, v%d' % (B+4, B+4, B+5))
    k('v_lshlrev_b32 v%d, 6, v%d' % (B+4, B+4))
    k('v_bfe_u32 v%d, v1, 4, 1' % (B+5))
    k('v_lshl_add_u32 v%d, v%d, 5, v%d' % (B+4, B+5, B+4))
    k('v_and_b32 v%d, 1, v1' % (B+5))
    k('v_lshl_add_u32 v%d, v%d, 4, v%d' % (B+4, B+5, B+4))
    k('v_bfe_u32 v%d, v1, 1, 1' % (B+5))
    k('v_lshl_add_u32 v%d, v%d, 3, v%d' % (B+4, B+5, B+4))
    k('v_add_u32 v%d, s57, v%d' % (B+4, B+4))
    k('v_lshrrev_b32 v%d, 4, v1' % (B+6))
    k('v_lshlrev_b32 v%d, 10, v%d' % (B+6, B+6))
    k('v_bfe_u32 v%d, v1, 3, 1' % (B+5))
    k('v_lshl_add_u32 v%d, v%d, 9, v%d' % (B+6, B+5, B+6))
    k('v_lshl_add_u32 v%d, v%d, 4, v%d' % (B+6, B+1, B+6))
    k('s_lshr_b32 s55, s50, 3')
    k('s_lshl_b32 s55, s55, 13')
    k('s_lshl_b32 s57, s56, 12')
    k('s_add_u32 s55, s55, s57')
    k('s_lshl_b32 s57, s53, 7')
    k('s_add_u32 s55, s55, s57')
    k('s_waitcnt vmcnt(%d)' % (1 + nmid if mid else 1))
    tr8x8(k, B+8, 1, 240, 241)
    k('buffer_store_dwordx4 %s, v%d, s[16:19], s55 offen %s' % (vr(B+8, 4), B+6, ST))
    k('s_waitcnt vmcnt(%d)' % (1 + nmid if mid else 1))
    k('ds_read_b64_tr_b16 %s, v%d' % (vr(B+12, 2), B+4))
    k('ds_read_b64_tr_b16 %s, v%d offset:512' % (vr(B+14, 2), B+4))
    k('v_lshlrev_b32 v%d, 4, v1' % (B+5))
    k('s_lshl_b32 s55, s50, 10')
    k('s_add_u32 s55, s55, 0x%x' % (WS_VF - WS_KF))
    k('s_waitcnt lgkmcnt(0)')
    k('buffer_store_dwordx4 %s, v%d, s[16:19], s55 offen %s' % (vr(B+12, 4), B+5, ST))

def ln_addr(k):
    k('v_lshrrev_b32 v2, 6, v0')
    k('v_and_b32 v3, 7, v1')
    k('v_lshrrev_b32 v4, 3, v1')
    k('v_lshrrev_b32 v5, 1, v4')
    k('v_lshlrev_b32 v5, 10, v5')
    k('v_and_b32 v6, 1, v4')
    k('v_lshl_add_u32 v5, v6, 9, v5')
    k('v_lshl_add_u32 v5, v3, 4, v5')
    k('v_lshl_add_u32 v5, v2, 14, v5')
    k('v_lshlrev_b32 v6, 11, v4')
    k('v_lshl_add_u32 v6, v3, 4, v6')
    k('v_lshl_add_u32 v6, v2, 9, v6')
    tr_addr(k, 240, 241)
    k('v_lshlrev_b32 v7, 4, v0')
    k('v_lshlrev_b32 v8, 10, v2')
    k('v_lshl_add_u32 v8, v4, 5, v8')
    k('v_add_u32 v8, %d, v8' % LN_LDS)
    k('v_add_u32 v11, %d, v7' % LN_LDS)
    k('v_lshlrev_b32 v9, 4, v3')
    k('v_add_u32 v9, %d, v9' % (LN_LDS + 12288))
    k('v_lshl_add_u32 v10, v2, 2, v9')
    k('s_lshl_b32 s45, s24, 5')
    k('s_lshl_b32 s46, s22, 3')
    k('s_add_u32 s45, s45, s46')
    k('s_add_u32 s45, s45, s25')
    k('s_lshr_b32 s40, s45, 2')
    k('s_lshl_b32 s40, s40, 16')
    k('s_and_b32 s46, s45, 3')
    k('s_lshl_b32 s46, s46, 7')
    k('s_add_u32 s40, s40, s46')
    for j in range(1, 4): k('s_add_u32 s%d, s40, %d' % (40+j, j*4096))
    k('s_lshl_b32 s44, s45, 14')

TR_LDS = 126976
def tr_addr(k, vw, vrd):
    k('v_lshrrev_b32 v%d, 3, v1' % vw)
    k('v_mul_u32_u24 v%d, 144, v%d' % (vw, vw))
    k('v_and_b32 v%d, 7, v1' % vrd)
    k('v_lshl_add_u32 v%d, v%d, 4, v%d' % (vw, vrd, vw))
    k('v_mul_u32_u24 v%d, 144, v%d' % (vrd, vrd))
    k('v_lshrrev_b32 v29, 3, v1')
    k('v_lshl_add_u32 v%d, v29, 4, v%d' % (vrd, vrd))
    k('s_mul_i32 s27, s26, 4608')
    k('s_add_u32 s27, s27, %d' % TR_LDS)
    k('v_add_u32 v%d, s27, v%d' % (vw, vw))
    k('v_add_u32 v%d, s27, v%d' % (vrd, vrd))
def tr8x8(k, base, n, vw, vrd):
    for j in range(n): k('ds_write_b128 v%d, %s offset:%d' % (vw, vr(base + 4*j, 4), j*1152))
    k('s_waitcnt lgkmcnt(0)')
    for j in range(n): k('ds_read_b128 %s, v%d offset:%d' % (vr(base + 4*j, 4), vrd, j*1152))
    k('s_waitcnt lgkmcnt(0)')

X_ = 32
RAW = 64
def ln_unpack(k, src):
    for j in range(4):
        for i in range(4):
            k('v_lshlrev_b32 v%d, 16, v%d' % (X_ + 8*j + 2*i, src + 4*j + i))
            k('v_and_b32 v%d, 0xffff0000, v%d' % (X_ + 8*j + 2*i + 1, src + 4*j + i))
def ln_stats(k):
    RED = 0
    k('v_add_f32 v24, v%d, v%d' % (X_, X_+1))
    k('v_add_f32 v25, v%d, v%d' % (X_+2, X_+3))
    for i in range(4, 32, 2):
        k('v_add_f32 v24, v24, v%d' % (X_+i))
        k('v_add_f32 v25, v25, v%d' % (X_+i+1))
    k('v_add_f32 v24, v24, v25')
    reduce8(k, 24, 25)
    k('ds_write_b32 v10, v24 offset:%d' % RED)
    k('s_waitcnt lgkmcnt(0)')
    k('s_barrier')
    k('ds_read_b128 v[24:27], v9 offset:%d' % RED)
    k('s_waitcnt lgkmcnt(0)')
    k('v_add_f32 v24, v24, v25')
    k('v_add_f32 v26, v26, v27')
    k('v_add_f32 v24, v24, v26')
    k('v_mul_f32 v24, 0x%x, v24' % f2u(1.0/1024))
    for i in range(32): k('v_sub_f32 v%d, v%d, v24' % (X_+i, X_+i))
    k('v_mul_f32 v24, v%d, v%d' % (X_, X_))
    k('v_mul_f32 v25, v%d, v%d' % (X_+1, X_+1))
    for i in range(2, 32, 2):
        k('v_fmac_f32 v24, v%d, v%d' % (X_+i, X_+i))
        k('v_fmac_f32 v25, v%d, v%d' % (X_+i+1, X_+i+1))
    k('v_add_f32 v24, v24, v25')
    reduce8(k, 24, 25)
    k('ds_write_b32 v10, v24 offset:%d' % (RED + 128))
    k('s_waitcnt lgkmcnt(0)')
    k('s_barrier')
    k('ds_read_b128 v[24:27], v9 offset:%d' % (RED + 128))
    k('s_waitcnt lgkmcnt(0)')
    k('v_add_f32 v24, v24, v25')
    k('v_add_f32 v26, v26, v27')
    k('v_add_f32 v24, v24, v26')
    k('v_mov_b32 v25, 0x%x' % f2u(1e-5))
    k('v_fmac_f32 v25, 0x%x, v24' % f2u(1.0/1024))
    k('v_rsq_f32 v28, v25')
    k('s_nop 0')
    for i in range(32): k('v_mul_f32 v%d, v%d, v28' % (X_+i, X_+i))
def mod_loads(k, vecs, npart, base_off, MV, pstride):
    srd(k, 8, PWS, 0x10000, base_off or None)
    for n, (c, isscale) in enumerate(vecs):
        for p in range(npart):
            k('s_mov_b32 s27, %d' % (p*pstride + c*4096))
            k('buffer_load_dwordx4 %s, v7, s[8:11], s27 offen %s' % (vr(MV + (n*npart + p)*4, 4), LD()))
def mod_to_lds(k, vecs, npart, MV, mulc=None):
    for n, (c, isscale) in enumerate(vecs):
        b = MV + n*npart*4
        for p in range(1, npart):
            for i in range(4): k('v_add_f32 v%d, v%d, v%d' % (b+i, b+i, b+4*p+i))
        def rnd():
            k('v_cvt_pk_bf16_f32 v%d, v%d, v%d' % (b+4, b, b+1))
            k('v_cvt_pk_bf16_f32 v%d, v%d, v%d' % (b+5, b+2, b+3))
            k('v_lshlrev_b32 v%d, 16, v%d' % (b, b+4))
            k('v_and_b32 v%d, 0xffff0000, v%d' % (b+1, b+4))
            k('v_lshlrev_b32 v%d, 16, v%d' % (b+2, b+5))
            k('v_and_b32 v%d, 0xffff0000, v%d' % (b+3, b+5))
        rnd()
        if isscale:
            for i in range(4): k('v_add_f32 v%d, 1.0, v%d' % (b+i, b+i))
            rnd()
        if mulc:
            for i in range(4): k('v_mul_f32 v%d, 0x%x, v%d' % (b+i, mulc, b+i))
        k('ds_write_b128 v11, %s offset:%d' % (vr(b, 4), n*4096))
def ln_apply_store(k, sh, sc, hoff):
    srd(k, 16, PWS, 0x400000, hoff)
    for j in range(4):
        k('ds_read_b128 v[16:19], v8 offset:%d' % (sc*4096 + j*256))
        k('ds_read_b128 v[20:23], v8 offset:%d' % (sc*4096 + j*256 + 16))
        k('ds_read_b128 v[96:99], v8 offset:%d' % (sh*4096 + j*256))
        k('ds_read_b128 v[100:103], v8 offset:%d' % (sh*4096 + j*256 + 16))
        k('s_waitcnt lgkmcnt(0)')
        for i in range(8): k('v_fma_f32 v%d, v%d, v%d, v%d' % (X_ + 8*j + i, X_ + 8*j + i, 16+i, 96+i))
        for i in range(4): k('v_cvt_pk_bf16_f32 v%d, v%d, v%d' % (104 + 4*j + i, X_ + 8*j + 2*i, X_ + 8*j + 2*i + 1))
        k('buffer_store_dwordx4 %s, v5, s[16:19], s%d offen %s' % (vr(104 + 4*j, 4), 40+j, ST))

TICKET_LDS = LN_LDS + 12288 + 512
def ticket_issue(k):
    lab = k.L('tk')
    k('s_getreg_b32 s3, hwreg(HW_REG_XCC_ID, 0, 4)')
    k('s_and_b32 s3, s3, 7')
    k('s_cmp_lg_u32 s26, 0')
    k('s_cbranch_scc1 %s' % lab)
    k('s_lshl_b32 s27, s3, 2')
    k('s_add_u32 s27, s27, 132')
    k('v_mov_b32 v2, s27')
    k('v_mov_b32 v3, 1')
    k('s_mov_b64 exec, 1')
    k('global_atomic_add v250, v2, v3, s[%d:%d] sc0 sc1' % (PDBG, PDBG+1))
    k('s_mov_b64 exec, -1')
    k.label(lab)
def ticket_publish(k, name):
    lab = k.L('tp'); ok = k.L('tok'); sp = k.L('tsp'); spd = k.L('tsd')
    k('s_cmp_lg_u32 s26, 0')
    k('s_cbranch_scc1 %s' % lab)
    k('s_waitcnt vmcnt(0)')
    k('v_readfirstlane_b32 s27, v250')
    k('s_mov_b32 s28, s3')
    k('s_cmp_lt_u32 s27, 32')
    k('s_cbranch_scc1 %s' % ok)
    k('s_mov_b64 exec, 1')
    k('v_mov_b32 v2, 0')
    k('s_mov_b32 s29, 0')
    k.label(sp)
    k('global_load_dwordx4 v[16:19], v2, s[%d:%d] offset:132 sc1' % (PDBG, PDBG+1))
    k('global_load_dwordx4 v[20:23], v2, s[%d:%d] offset:148 sc1' % (PDBG, PDBG+1))
    k('s_waitcnt vmcnt(0)')
    for i in range(8): k('v_readfirstlane_b32 s%d, v%d' % (50+i, 16+i))
    k('s_nop 3')
    k('s_mov_b32 s58, 0')
    for i in range(8): k('s_add_u32 s58, s58, s%d' % (50+i))
    k('s_add_u32 s29, s29, 1')
    k('s_cmp_ge_u32 s58, 256')
    k('s_cbranch_scc1 %s' % spd)
    k('s_cmp_ge_u32 s29, 0x40000')
    k('s_cbranch_scc1 %s' % spd)
    k('s_sleep 4')
    k('s_branch %s' % sp)
    k.label(spd)
    k('v_mov_b32 v2, 164')
    k('v_mov_b32 v3, 1')
    k('global_atomic_add v16, v2, v3, s[%d:%d] sc0 sc1' % (PDBG, PDBG+1))
    k('s_waitcnt vmcnt(0)')
    k('v_readfirstlane_b32 s29, v16')
    k('s_mov_b64 exec, -1')
    k('s_mov_b32 s28, 0')
    k('s_mov_b32 s27, 31')
    for i in range(8):
        nx = k.L('tn')
        k('s_min_u32 s58, s%d, 32' % (50+i))
        k('s_sub_u32 s59, 32, s58')
        k('s_cmp_lt_u32 s29, s59')
        k('s_cbranch_scc0 %s' % nx)
        k('s_mov_b32 s28, %d' % i)
        k('s_add_u32 s27, s58, s29')
        k('s_branch %s' % ok)
        k.label(nx)
        k('s_sub_u32 s29, s29, s59')
    k.label(ok)
    k('s_lshl_b32 s27, s27, 3')
    k('s_or_b32 s27, s27, s28')
    k('v_mov_b32 v2, %d' % TICKET_LDS)
    k('v_mov_b32 v3, s27')
    k('ds_write_b32 v2, v3')
    k('s_waitcnt lgkmcnt(0)')
    k.label(lab)
def ticket_fetch(k):
    k('v_mov_b32 v2, %d' % TICKET_LDS)
    k('ds_read_b32 v3, v2')
    k('s_mov_b32 s63, s24')
    k('s_waitcnt lgkmcnt(0)')
    k('v_readfirstlane_b32 s3, v3')
    k('s_nop 3')
    k('s_and_b32 s20, s3, 7')
    k('s_lshr_b32 s21, s3, 3')
    k('s_lshr_b32 s22, s20, 1')
    k('s_and_b32 s23, s20, 1')
    k('s_and_b32 s24, s21, 3')
    k('s_lshl_b32 s27, s23, 2')
    k('s_add_u32 s24, s24, s27')
    k('s_lshr_b32 s25, s21, 2')

def phase_p0(k, name):
    stamp_rt0(k, 'p0')
    stamp(k, 0)
    if MEGA and OPT.get('ticket'): ticket_issue(k)
    if MEGA and OPT.get('local'):
        lab = k.L('xp')
        k('s_getreg_b32 s3, hwreg(HW_REG_XCC_ID, 0, 4)')
        k('s_cmp_lg_u32 s26, 0')
        k('s_cbranch_scc1 %s' % lab)
        k('s_lshl_b32 s27, s2, 2')
        k('s_add_u32 s27, s27, 0x%x' % WS_XCC)
        k('v_mov_b32 v2, s27')
        k('v_mov_b32 v3, s3')
        k('s_mov_b64 exec, 1')
        k('global_store_dword v2, v3, s[%d:%d] sc1' % (PWS, PWS+1))
        k('s_mov_b64 exec, -1')
        k.label(lab)
    if OPT.get('diagxcd'):
        lab = k.L('dx')
        k('s_getreg_b32 s58, hwreg(HW_REG_XCC_ID, 0, 4)')
        k('s_and_b32 s58, s58, 7')
        k('s_cmp_lg_u32 s26, 0')
        k('s_cbranch_scc1 %s' % lab)
        k('s_lshl_b32 s27, s58, 2')
        k('s_add_u32 s27, s27, 168')
        k('v_mov_b32 v2, s27')
        k('s_and_b32 s27, s2, 7')
        k('s_lshl_b32 s27, 1, s27')
        k('v_mov_b32 v3, s27')
        k('s_mov_b64 exec, 1')
        k('global_atomic_or v2, v3, s[%d:%d] sc1' % (PDBG, PDBG+1))
        k('s_mov_b64 exec, -1')
        k.label(lab)
    def xloads():
        ln_addr(k)
        srd(k, 16, PX, 0x400000)
        for j in range(4): k('buffer_load_dwordx4 %s, v6, s[16:19], s44 offen offset:%d' % (vr(RAW + 4*j, 4), j*128))
    def s1addr():
        k('s_mov_b32 s6, s%d' % PDBG)
        k('s_mov_b32 s7, s%d' % (PDBG+1))
    def kvaddr():
        k('s_add_u32 s6, s%d, 4' % PDBG)
        k('s_addc_u32 s7, s%d, 0' % (PDBG+1))
    def wq_touch():
        lab = k.L('wq')
        k('s_cmp_eq_u32 s26, 0')
        k('s_cbranch_scc1 %s' % lab)
        srd(k, 16, PWQ, 1024*4096*2)
        k('v_lshrrev_b32 v15, 4, v0')
        k('v_and_b32 v12, 15, v0')
        k('v_lshlrev_b32 v15, 13, v15')
        k('v_lshl_add_u32 v15, v12, 7, v15')
        k('s_lshl_b32 s36, s21, 17')
        k('s_lshl_b32 s37, s22, 11')
        k('s_add_u32 s36, s36, s37')
        k('s_lshl_b32 s37, s23, 22')
        k('s_add_u32 s36, s36, s37')
        k('buffer_load_dword v13, v15, s[16:19], s36 offen')
        k('s_cmp_lg_u32 s26, 1')
        k('s_cbranch_scc1 %s' % lab)
        k('v_subrev_u32 v15, 0x8000, v15')
        k('buffer_load_dword v14, v15, s[16:19], s36 offen')
        k.label(lab)
    k('s_cmp_ge_u32 s2, 128')
    k('s_cbranch_scc1 %s_kv' % name)
    srd(k, 8, PWMOD, 1024*6144*2)
    srd(k, 12, PC_, 2048)
    k('s_and_b32 s38, s2, 31')
    k('s_lshr_b32 s39, s2, 5')
    k('s_lshl_b32 s47, s39, 8')
    k('s_lshl_b32 s48, s38, 7')
    k('s_lshl_b32 s49, s39, 13')
    k('s_lshl_b32 s38, s38, 8')
    k('s_add_u32 s49, s49, s38')
    gemv_load(k, 8, 47, 48)
    xloads()
    if OPT.get('p0st'): stamp(k, 1)
    if MEGA:
        lab = k.L('z')
        k('s_or_b32 s27, s2, s26')
        k('s_cmp_lg_u32 s27, 0')
        k('s_cbranch_scc1 %s' % lab)
        srd(k, 16, PWS, 192*128, WS_CNT)
        k('v_lshlrev_b32 v16, 7, v1')
        k('v_mov_b32 v17, 0')
        for z in range(3): k('buffer_store_dword v17, v16, s[16:19], 0 offen offset:0 %s' % ST) if z == 0 else (k('v_add_u32 v%d, %d, v16' % (18+z, 8192*z)), k('buffer_store_dword v17, v%d, s[16:19], 0 offen %s' % (18+z, ST)))
        k('s_waitcnt vmcnt(0)')
        k.label(lab)
    srd(k, 16, PWS, 0x8000, WS_MOD or None)
    gemv_compute(k, 8, 49, 16, LN_LDS, 4)
    if not OPT.get('p0st'): stamp(k, 1)
    arrive(k, s1addr, count=128, only_w0=True, flag_off=128)
    lab = k.L('w0'); k('s_cmp_eq_u32 s26, 0'); k('s_cbranch_scc1 %s' % lab); k('s_waitcnt vmcnt(0)'); k.label(lab)
    if OPT.get('p0st'): stamp(k, 4)
    k('s_branch %s_pf' % name)
    k.label(name + '_kv')
    kv_part(k, xloads, 4)
    if not MEGA:
        modb_addr(k, 128)
        gemv_load(k, 16, 47, 48)
        srd(k, 16, PWS, 0x8000, WS_MODB)
        gemv_compute(k, 16, 49, 16, LN_LDS, 0)
    stamp(k, 1)
    arrive(k, kvaddr)
    k.label(name + '_pf')
    if MEGA and OPT.get('ticket'): ticket_publish(k, name)
    tr8x8(k, RAW, 4, 240, 241)
    ln_unpack(k, RAW)
    ln_stats(k)
    if MEGA: k('s_mov_b32 s63, s24')
    wq_touch()
    if not OPT.get('p0st'): stamp(k, 2)

def modb_addr(k, first):
    srd(k, 8, PWMOD, 1024*6144*2)
    srd(k, 12, PC_, 2048)
    k('s_sub_u32 s38, s2, %d' % first)
    k('s_lshr_b32 s39, s38, 6')
    k('s_and_b32 s38, s38, 63')
    k('s_lshl_b32 s47, s39, 9')
    k('s_lshl_b32 s48, s38, 7')
    k('s_add_u32 s48, s48, 4096')
    k('s_lshl_b32 s49, s39, 14')
    k('s_lshl_b32 s38, s38, 8')
    k('s_add_u32 s49, s49, s38')

def phase_ln1b(k):
    def s1addr():
        k('s_mov_b32 s6, s%d' % PDBG)
        k('s_mov_b32 s7, s%d' % (PDBG+1))
    waitfor(k, s1addr, 1, off=128)
    if not OPT.get('p0st'): stamp(k, 3)
    vecs = [(0, False), (1, True)]
    mod_loads(k, vecs, 4, WS_MOD, 96, 8192)
    k('s_waitcnt vmcnt(0)')
    mod_to_lds(k, vecs, 4, 96, f2u(128**-0.5 * LOG2E))
    k('s_waitcnt lgkmcnt(0)')
    k('s_barrier')
    ln_apply_store(k, 0, 1, WS_H)
    def a():
        k('s_add_u32 s27, s63, %d' % C_S2); cnt_addr(k, 27)
    arrive(k, a, count=32, flag_off=128)
    if not OPT.get('p0st'): stamp(k, 4)
    stamp_flush(k, 'p0', 5)

def phase_ln2(k, mode):
    stamp_rt0(k, mode)
    stamp(k, 0)
    ln_addr(k)
    vecs = [(0, False), (1, False), (2, True)] if mode == 'ln2' else [(3, False)]
    MV = 144
    if MEGA and mode == 'ln2':
        def s1b():
            k('s_mov_b32 s6, s%d' % PDBG); k('s_mov_b32 s7, s%d' % (PDBG+1))
        waitfor(k, s1b, 256, off=8)
    NPB = 4 if MEGA else 2
    if NPB == 4: MV = 168
    mod_loads(k, vecs, NPB, WS_MODB, MV, 16384)
    if mode == 'ln2':
        srd(k, 12, PX, 0x400000)
        for j in range(4): k('buffer_load_dwordx4 %s, v6, s[12:15], s44 offen offset:%d' % (vr(RAW + 4*j, 4), j*128))
    k('s_waitcnt vmcnt(%d)' % (4 if mode == 'ln2' else 0))
    mod_to_lds(k, vecs, NPB, MV)
    def a():
        k('s_add_u32 s27, s24, %d' % (C_S4 if mode == 'ln2' else C_S7)); cnt_addr(k, 27)
    k('s_waitcnt lgkmcnt(0)')
    if MEGA: waitfor(k, a, 1, off=128, direct=32)
    else: k('s_barrier')
    stamp(k, 1)
    srd(k, 12, PWS, 0x1000000, WS_P1 if mode == 'ln2' else WS_P2)
    for j in range(4):
        for q in range(4):
            k('s_add_u32 s27, s%d, 0x%x' % (40+j, q*0x400000))
            k('buffer_load_dwordx4 %s, v5, s[12:15], s27 offen %s' % (vr(RAW + 16 + q*16 + 4*j, 4), LD()))
    if mode == 'final':
        srd(k, 8, PWS, 0x400000, WS_X1)
        for j in range(4): k('buffer_load_dwordx4 %s, v5, s[8:11], s%d offen %s' % (vr(RAW + 4*j, 4), 40+j, LD()))
        k('s_waitcnt vmcnt(0)')
        ln_unpack(k, RAW)
    else:
        k('s_waitcnt vmcnt(16)')
        tr8x8(k, RAW, 4, 240, 241)
        ln_unpack(k, RAW)
    for j in range(4):
        k('ds_read_b128 v[16:19], v8 offset:%d' % (j*256))
        k('ds_read_b128 v[20:23], v8 offset:%d' % (j*256 + 16))
        if mode == 'ln2': k('s_waitcnt vmcnt(%d)' % (12 - 4*j))
        for i in range(4):
            k('v_lshlrev_b32 v24, 16, v%d' % (RAW + 16 + 4*j + i))
            k('v_and_b32 v25, 0xffff0000, v%d' % (RAW + 16 + 4*j + i))
            for q in range(1, 4):
                k('v_lshlrev_b32 v26, 16, v%d' % (RAW + 16 + q*16 + 4*j + i))
                k('v_and_b32 v27, 0xffff0000, v%d' % (RAW + 16 + q*16 + 4*j + i))
                k('v_add_f32 v24, v24, v26')
                k('v_add_f32 v25, v25, v27')
            if i == 0: k('s_waitcnt lgkmcnt(0)')
            k('v_fmac_f32 v%d, v24, v%d' % (X_ + 8*j + 2*i, 16 + 2*i))
            k('v_fmac_f32 v%d, v25, v%d' % (X_ + 8*j + 2*i + 1, 17 + 2*i))
    for j in range(4):
        for i in range(4):
            k('v_cvt_pk_bf16_f32 v%d, v%d, v%d' % (RAW + 4*j + i, X_ + 8*j + 2*i, X_ + 8*j + 2*i + 1))
    if mode == 'final':
        srd(k, 12, POUT, 0x400000)
        tr8x8(k, RAW, 4, 240, 241)
        for j in range(4): k('buffer_store_dwordx4 %s, v6, s[12:15], s44 offen offset:%d' % (vr(RAW + 4*j, 4), j*128))
    else:
        srd(k, 16, PWS, 0x400000, WS_X1)
        for j in range(4): k('buffer_store_dwordx4 %s, v5, s[16:19], s%d offen %s' % (vr(RAW + 4*j, 4), 40+j, ST))
        ln_unpack(k, RAW)
        ln_stats(k)
        ln_apply_store(k, 1, 2, WS_H2)
        def a5():
            k('s_add_u32 s27, s24, %d' % C_S5); cnt_addr(k, 27)
        arrive(k, a5, count=32, flag_off=128)
    stamp(k, 2)
    stamp_flush(k, mode, 3)

def attn_setup(k):
    vL = [4, 5, 6, 7]; vX = [8, 9]; vW = [10, 11, 12, 13]
    ldw = 8192
    k('s_lshl_b32 s35, s22, 3')
    k('s_add_u32 s35, s35, s25')
    k('s_mov_b32 s62, s35')
    lds_addr_128(k, vL, tmp=40)
    k('v_lshlrev_b32 v8, 4, v1')
    k('v_add_u32 v9, 0x10000, v8')
    k('s_lshl_b32 s28, s62, 8')
    w128_voffsets(k, vW, ldw, 28, 40)
    srd(k, 8, PWS, 0x400000, WS_H)
    srd(k, 12, PWQ, 0x800000)
    k('s_lshl_b32 s27, s24, 3')
    k('s_lshl_b32 s28, s26, 1')
    k('s_add_u32 s34, s27, s28')
    k('s_lshl_b32 s30, s34, 16')
    k('s_sub_u32 s30, s30, 4096')
    k('s_mov_b32 s31, 0x%x' % ((-64*ldw) & 0xffffffff))
    k('s_lshl_b32 s32, s26, 12')
    return vL, vX, vW, ldw

def phase_attn(k, name, next_prefetch=None):
    stamp_rt0(k, 'attn')
    if not OPT.get('tailst'): stamp(k, 0)
    vL, vX, vW, ldw = attn_setup(k)
    KSLOT = [65536, 81920, 98304, 0, 16384]
    VSLOT = [114688, 131072, 147456, 32768, 49152]
    FLAG = 33792
    QF = lambda mb, ks: 64 + (mb*8 + ks)*4
    SB = lambda par, mb: 128 + (par*2 + mb)*16
    PB = lambda par, mb, kk: 192 + ((par*2 + mb)*2 + kk)*4
    CB = lambda mb: 224 + mb*16
    def OA(db, mb):
        i = db*2 + mb
        return i*16 if i < 6 else 192 + (i-6)*16
    KF = lambda ks: 128 + ks*4
    VF = lambda q: 160 + q*4
    LS = lambda mb, p: 33 + mb*2 + p
    MG = lambda mb: 37 + mb
    KT = (36, 37, 38, 39, 40); VT = (41, 42, 43, 29, 35)
    TT = (8, 9, 10, 12, 13, 14, 54, 55, 56, 57, 61, 63)
    kvflag = LD()
    def kdma(soff, pre0, tagid):
        return [(pre0 if i == 0 else [], 'buffer_load_dwordx4 v28, s[44:47], s%d offen offset:%d %s lds' % (soff, i*1024, kvflag), ('K', tagid, i)) for i in range(4)]
    def vdma(soff, pre0, tagid):
        return [(pre0 if i == 0 else [], 'buffer_load_dwordx4 v28, s[48:51], s%d offen offset:%d %s lds' % (soff, i*1024, kvflag), ('V', tagid, i)) for i in range(4)]
    def dma_list(lst):
        ops = []
        for (kind, s_) in lst:
            if kind == 'K': ops += kdma(52, ['s_mov_b32 s52, %d' % (s_*16384), 's_add_u32 m0, s32, %d' % KSLOT[s_ % 5]], s_)
            else: ops += vdma(53, ['s_mov_b32 s53, %d' % (s_*16384), 's_add_u32 m0, s32, %d' % VSLOT[s_ % 5]], s_)
        return ops
    def initial_dmas(): return dma_list([('K', 0), ('V', 0), ('K', 1), ('V', 1), ('K', 2), ('V', 2)])
    ini = initial_dmas()
    zero_list = ['v_accvgpr_write_b32 a%d, 0' % r for r in list(range(192, 224)) + list(range(0, 96))]
    def extra(t, j):
        out = []
        order = [(12, 3)] + [(tt, jj) for tt in (13, 14, 15) for jj in range(4)]
        if (t, j) in order:
            p = order.index((t, j))
            out += ini[(p*len(ini))//13:((p+1)*len(ini))//13]
        if t in (12, 13, 14, 15):
            z = zero_list[(t-12)*32:(t-11)*32]
            out += z[j*8:(j+1)*8]
        return out
    g = Gemm(k, 4, 16, acc=128, xr=0, wf=128, vX=vX, vW=vW, sXsrd=8, sWsrd=12, sXoff=30, sWoff=31, sM0=32, sCnt=33,
             stage_bytes=16384, ldw_step=64*ldw, nW=4,
             lds_imm=lambda buf, j, nb, sec: (vL[nb], buf*16384 + j*4096 + sec*1024), extra=extra, xflag=LD())
    if MEGA: g.prologue_w()
    k('s_lshl_b32 s27, s26, 12')
    k('v_add_u32 v28, s27, v8')
    k('v_add_u32 v16, %d, v8' % KSLOT[0])
    k('v_add_u32 v17, %d, v8' % VSLOT[0])
    k('v_lshlrev_b32 v18, 7, v1')
    k('s_lshl_b32 s27, s26, 13')
    k('v_add_u32 v18, s27, v18')
    k('s_lshl_b32 s27, s22, 17')
    k('s_add_u32 s28, s27, 0x%x' % WS_KF)
    srd_s(k, 44, PWS, 28, 0x20000)
    k('s_add_u32 s28, s27, 0x%x' % WS_VF)
    srd_s(k, 48, PWS, 28, 0x20000)
    k('v_mov_b32 v%d, 0xff800000' % MG(0))
    k('v_mov_b32 v%d, 0xff800000' % MG(1))
    k('s_mov_b32 s59, 0')
    if MEGA:
        def a():
            k('s_add_u32 s27, s24, %d' % C_S2); cnt_addr(k, 27)
        def kvw():
            k('s_mov_b32 s6, s%d' % PDBG); k('s_mov_b32 s7, s%d' % (PDBG+1))
        waitfor(k, kvw, 128, off=4)
        waitfor(k, a, 1, off=128, direct=32)
        g.prologue_x()
    if MEGA and OPT.get('local'):
        k('v_lshlrev_b32 v21, 7, v1')
        k('s_and_b32 s27, s24, 3')
        k('s_lshl_b32 s27, s27, 5')
        k('s_lshl_b32 s28, s20, 2')
        k('s_add_u32 s27, s27, s28')
        k('s_add_u32 s27, s27, 0x%x' % WS_XCC)
        k('v_add_u32 v21, s27, v21')
        k('s_mov_b64 exec, 0xff')
        k.vm('global_load_dword v22, v21, s[%d:%d] sc1' % (PWS, PWS+1), ('Z', 0, 0))
        k('s_mov_b64 exec, -1')
    if not MEGA:
        g.prologue_mixed()
    if not OPT.get('tailst'): stamp(k, 1)
    g.start()
    def epiQ(nb):
        out = []
        for mb in range(2):
            a = g.accr(nb, mb)
            for hh in range(2):
                for r in range(4):
                    out.append('v_cvt_pk_bf16_f32 v%d, v%d, v%d' % (QF(mb, 2*nb+hh) + r, a + hh*8 + 2*r, a + hh*8 + 2*r + 1))
        return out
    g.mainloop(epiQ, tail=1)
    if not OPT.get('tailst'): stamp(k, 2)
    if MEGA and OPT.get('local'):
        k('s_mov_b64 exec, 0xff')
        k('v_cmp_eq_u32 vcc, s3, v22')
        k('s_mov_b64 exec, -1')
        k('s_nop 1')
        k('s_cmp_eq_u32 vcc_lo, 0xff')
        k('s_cselect_b32 s3, 1, 0')
        if OPT.get('forceslow'): k('s_mov_b32 s3, 0')
    k('s_mul_i32 s27, s2, 28672')
    for n_, (lo, sz, add) in enumerate([(PWG, 1024*3584*2, 0), (PWG, 1024*3584*2, 4096), (PWU, 1024*3584*2, 0), (PWU, 1024*3584*2, 4096)]):
        k('s_add_u32 s28, s27, %d' % add)
        k('s_add_u32 s%d, s%d, s28' % (TT[3*n_], lo))
        k('s_addc_u32 s%d, s%d, 0' % (TT[3*n_+1], lo+1))
        k('s_sub_u32 s%d, 0x%x, s28' % (TT[3*n_+2], sz))
    n = k.vm_wait_n(lambda tg: tg[0] in 'KV' and tg[1] == 0)
    k('s_waitcnt vmcnt(%d)' % n)
    k.label(name + '_pro')
    k('s_barrier')
    for i_ in range(5):
        k('s_mov_b32 s%d, %d' % (KT[i_], KSLOT[i_]))
        k('s_mov_b32 s%d, %d' % (VT[i_], VSLOT[i_]))
    for ks in range(8): k('ds_read_b128 %s, v16 offset:%d' % (ar(KF(ks), 4), ks*1024))
    for mb in range(2):
        for p in range(2): k('v_mov_b32 v%d, 0' % LS(mb, p))
    k('s_waitcnt lgkmcnt(0)')
    for mb in range(2):
        for ks in range(8):
            d = vr(SB(0, mb), 16)
            k('%s %s, %s, %s, %s' % (MFMA, d, ar(KF(ks), 4), vr(QF(mb, ks), 4), '0' if ks == 0 else d))
    k('s_nop 3')
    k('s_nop 7')
    for mb in range(2):
        s0 = SB(0, mb); m = 40 + mb
        k('v_max3_f32 v%d, v%d, v%d, v%d' % (m, s0, s0+1, MG(mb)))
        for r in range(2, 16, 2): k('v_max3_f32 v%d, v%d, v%d, v%d' % (m, m, s0+r, s0+r+1))
    k('v_mov_b32 v42, v40')
    k('v_mov_b32 v43, v41')
    k('s_nop 1')
    k('v_permlane32_swap_b32 v40, v42')
    k('v_permlane32_swap_b32 v41, v43')
    k('s_nop 1')
    k('v_max_f32 v40, v40, v42')
    k('v_max_f32 v41, v41, v43')
    for mb in range(2):
        for r in range(16): k('v_sub_f32 v%d, 0, v%d' % (CB(mb) + r, 40+mb))
        for r in range(16): k('v_sub_f32 v%d, v%d, v%d' % (SB(0, mb) + r, SB(0, mb) + r, 40+mb))
    if not OPT.get('tailst'): stamp(k, 3)

    def pair_ops(par, p):
        mb, pp = p // 8, p % 8
        s0 = SB(par, mb); a, b = s0 + 2*pp, s0 + 2*pp + 1
        E = ['v_exp_f32 v%d, v%d' % (a, a), 'v_exp_f32 v%d, v%d' % (b, b)]
        A_ = ['v_add_f32 v%d, v%d, v%d' % (LS(mb, 0), LS(mb, 0), a), 'v_add_f32 v%d, v%d, v%d' % (LS(mb, 1), LS(mb, 1), b)]
        C_ = ['v_cvt_pk_bf16_f32 v%d, v%d, v%d' % (PB(par, mb, pp // 4) + pp % 4, a, b)]
        return E, A_, C_
    def iteration(par, do_pv, do_s, kread_kb, vread_kb, carry_in, gap_extra=None):
        gap_extra = gap_extra or {}
        mf = []
        if do_pv:
            for kk in range(2):
                for db in range(4):
                    for mb in range(2):
                        d = ar(OA(db, mb), 16)
                        mf.append('%s %s, %s, %s, %s' % (MFMA, d, ar(VF(kk*4+db), 4), vr(PB(1-par, mb, kk), 4), d))
        else: mf += [None]*16
        if do_s:
            for mb in range(2):
                for ks in range(8):
                    d = vr(SB(1-par, mb), 16)
                    mf.append('%s %s, %s, %s, %s' % (MFMA, d, ar(KF(ks), 4), vr(QF(mb, ks), 4), vr(CB(mb), 16) if ks == 0 else d))
        else: mf += [None]*16
        pre = {0: ['s_waitcnt lgkmcnt(2)'] if do_pv else []}
        nk = 8 if kread_kb is not None else 0
        if do_pv: pre[12] = ['s_waitcnt lgkmcnt(%d)' % (6 if nk else 0)]
        if do_s:
            pre[16] = ['s_waitcnt lgkmcnt(2)']
            pre[22] = ['s_waitcnt lgkmcnt(3)']
        for g_ in range(32):
            for x in pre.get(g_, []): k(x)
            if mf[g_]: k(mf[g_])
            p = g_ // 2
            if g_ % 2 == 0:
                for x in pair_ops(par, p)[0]: k(x)
                if p >= 1: k(pair_ops(par, p-1)[2][0])
                elif carry_in: k(pair_ops(1-par, 15)[2][0])
            else:
                if p >= 1:
                    for x in pair_ops(par, p-1)[1]: k(x)
                elif carry_in:
                    for x in pair_ops(1-par, 15)[1]: k(x)
                if g_ < 16:
                    if kread_kb is not None: k('ds_read_b128 %s, v16 offset:%d' % (ar(KF(p), 4), kread_kb*8192 + p*1024))
                else:
                    k('ds_read_b128 %s, v17 offset:%d' % (ar(VF(p-8), 4), vread_kb*8192 + (p-8)*1024))
            for x in gap_extra.get(g_, []):
                if isinstance(x, str): k(x)
                else:
                    pre_, ins, tag = x[0], x[1], x[2]
                    for p_ in pre_: k(p_)
                    if pre_ and 'm0' in pre_[-1]: k('s_nop 0')
                    k.vm(ins, tag)
                    if len(x) > 3:
                        for p_ in x[3]: k(p_)
    def touch(half):
        pre = ['s_mov_b32 s16, s%d' % TT[0], 's_mov_b32 s17, s%d' % TT[1], 's_mov_b32 s18, s%d' % TT[2], 's_mov_b32 s19, 0x20000']
        if half: pre += ['s_mov_b32 exec_hi, 0']
        return (pre, 'buffer_load_dword v19, v18, s[16:19], 0 offen', ('T', 0, 0), ['s_mov_b32 exec_hi, -1'] if half else [])
    sh = ['s_mov_b32 s%d, s%d' % (TT[n_], TT[n_+3]) for n_ in range(9)]
    g0 = {}
    for i_, op in enumerate(dma_list([('K', 3), ('V', 3), ('K', 4)])): g0.setdefault(1 + i_, []).append(op)
    g0.setdefault(20, []).extend(['s_mov_b32 s52, %d' % (5*16384), 's_mov_b32 s53, %d' % (4*16384)])
    iteration(0, False, True, 1, 0, False, g0)
    def rot(T): return ['s_mov_b32 s58, s%d' % T[0]] + ['s_mov_b32 s%d, s%d' % (T[i_], T[i_+1]) for i_ in range(4)] + ['s_mov_b32 s%d, s58' % T[4]]
    def trip(with_dma):
        ge = {0: ['v_add_u32 v16, s%d, v8' % KT[1]]}
        if with_dma:
            ge[0] += ['s_waitcnt vmcnt(20)', 's_barrier']
            dm = vdma(53, ['s_add_u32 m0, s32, s%d' % VT[4]], 'n') + kdma(52, ['s_add_u32 m0, s32, s%d' % KT[0]], 'n')
            for i_, op in enumerate(dm): ge.setdefault(2 + 2*i_, []).append(op)
            ge.setdefault(27, []).extend(['s_add_u32 s52, s52, 16384', 's_add_u32 s53, s53, 16384'])
            if not OPT.get('notouch'):
                ge.setdefault(19, []).append(touch(True))
                ge.setdefault(21, []).extend(sh[:5]); ge.setdefault(23, []).extend(sh[5:])
        elif not OPT.get('notouch'):
            ge.setdefault(2, []).append(touch(False))
            ge.setdefault(5, []).extend(sh[:5]); ge.setdefault(7, []).extend(sh[5:])
        ge.setdefault(29, []).extend(rot(KT))
        iteration(1, True, True, 0, 1, True, ge)
        ge2 = {2: ['v_add_u32 v17, s%d, v8' % VT[1]], 4: rot(VT), 31: ['s_sub_u32 s60, s60, 1', 's_cmp_lg_u32 s60, 0']}
        iteration(0, True, True, 1, 0, True, ge2)
    k('s_mov_b32 s60, 4')
    lab = k.L('aloop'); k.label(lab)
    trip(True)
    k('s_cbranch_scc1 %s' % lab)
    k('s_mul_i32 s27, s2, 28672')
    k('s_add_u32 s%d, s%d, s27' % (TT[0], PWD))
    k('s_addc_u32 s%d, s%d, 0' % (TT[1], PWD+1))
    k('s_sub_u32 s%d, 0x%x, s27' % (TT[2], 3584*1024*2))
    k('s_lshl_b32 s27, s20, 20')
    k('s_lshl_b32 s28, s21, 15')
    k('s_add_u32 s27, s27, s28')
    k('s_add_u32 s%d, s%d, s27' % (TT[3], PWO))
    k('s_addc_u32 s%d, s%d, 0' % (TT[4], PWO+1))
    k('s_mov_b32 s%d, 0x8000' % TT[5])
    for n_ in (2, 3):
        k('s_mov_b32 s%d, s%d' % (TT[3*n_], PWS))
        k('s_mov_b32 s%d, s%d' % (TT[3*n_+1], PWS+1))
        k('s_mov_b32 s%d, 0' % TT[3*n_+2])
    k('s_waitcnt vmcnt(%d)' % (0 if OPT.get('notouch') else 1))
    k('s_barrier')
    if MEGA: code_touch(k, name + '_L_oproj', name + '_L_gateup', 30)
    k('s_mov_b32 s60, 3')
    lab = k.L('bloop'); k.label(lab)
    trip(False)
    k('s_cbranch_scc1 %s' % lab)
    g15 = {}
    if MEGA:
        pre15 = ['s_mov_b32 s8, s%d' % PWMOD, 's_mov_b32 s9, s%d' % (PWMOD+1), 's_mov_b32 s10, 0x%x' % (1024*6144*2), 's_mov_b32 s11, 0x20000',
                 's_mov_b32 s12, s%d' % PC_, 's_mov_b32 s13, s%d' % (PC_+1), 's_mov_b32 s14, 2048', 's_mov_b32 s15, 0x20000',
                 's_lshr_b32 s52, s2, 6', 's_and_b32 s53, s2, 63', 's_lshl_b32 s54, s52, 14', 's_lshl_b32 s55, s53, 8', 's_add_u32 s54, s54, s55',
                 's_lshl_b32 s52, s52, 8', 's_lshl_b32 s53, s53, 7', 's_add_u32 s53, s53, 4096']
        gl = gemv_load(k, 8, 52, 53, AD=48, C=52, LDB=128, emit=False)
        items = pre15 + gl
        for i_, x in enumerate(items): g15.setdefault(2 + (i_ * 24) // len(items), []).append(x)
    iteration(1, True, False, None, 1, True, g15)
    for x in pair_ops(1, 15)[1] + pair_ops(1, 15)[2]: k(x)
    k('v_add_f32 v40, v%d, v%d' % (LS(0, 0), LS(0, 1)))
    k('v_add_f32 v41, v%d, v%d' % (LS(1, 0), LS(1, 1)))
    k('v_mov_b32 v42, v40')
    k('v_mov_b32 v43, v41')
    k('s_nop 1')
    k('v_permlane32_swap_b32 v40, v42')
    k('v_permlane32_swap_b32 v41, v43')
    k('s_nop 1')
    k('v_add_f32 v40, v40, v42')
    k('v_add_f32 v41, v41, v43')
    k('v_mov_b32 v43, 0x%x' % f2u(2.0**100))
    k('v_cmp_nlt_f32 vcc, v40, v43')
    k('v_cmp_nlt_f32 s[6:7], v41, v43')
    k('v_rcp_f32 v40, v40')
    k('v_rcp_f32 v41, v41')
    k('s_or_b64 vcc, vcc, s[6:7]')
    k('s_cmp_lg_u64 vcc, 0')
    k('s_cselect_b32 s58, 1, 0')
    k('v_mov_b32 v43, s58')
    k('s_lshl_b32 s58, s26, 2')
    k('s_add_u32 s58, s58, %d' % FLAG)
    k('v_mov_b32 v44, s58')
    k('ds_write_b32 v44, v43')
    srd(k, 16, PWS, 0x1000000, WS_O)
    k('s_lshl_b32 s27, s34, 8')
    k('s_lshl_b32 s28, s62, 3')
    k('s_add_u32 s27, s27, s28')
    k('s_lshl_b32 s60, s27, 10')
    k('s_add_u32 s61, s60, 0x40000')
    k('v_add_u32 v20, 4096, v8')
    k('s_waitcnt lgkmcnt(0)')
    set_local_vcc(k)
    stamp(k, 4 if not OPT.get('tailst') else 0)
    order = [(db, mb) for db in range(4) for mb in range(2)]
    def epiO(i):
        db, mb = order[i]; a = OA(db, mb); out = []
        for hh in range(2):
            t = (224, 240, 192)[(2*i + hh) % 3]
            out += ['v_accvgpr_read_b32 v%d, a%d' % (t+r, a + hh*8 + r) for r in range(8)]
            out += ['v_mul_f32 v%d, v%d, v%d' % (t+r, t+r, 40+mb) for r in range(8)]
            out += ['v_cvt_pk_bf16_f32 v%d, v%d, v%d' % (t+8+r, t+2*r, t+2*r+1) for r in range(4)]
            ks = 2*db + hh
            out += local_store(k, 'buffer_store_dwordx4 %s, v%d, s[16:19], s%d offen offset:%d' % (vr(t+8, 4), 8 if ks < 4 else 20, 60+mb, (ks % 4)*1024))
        return out
    M = []
    for i, (db, mb) in enumerate(order):
        d = ar(OA(db, mb), 16)
        for kk in range(2):
            M.append('%s %s, %s, %s, %s' % (MFMA, d, ar(VF(kk*4+db), 4), vr(PB(1, mb, kk), 4), d))
    for idx in range(6): k(M[idx])
    k('s_nop 7')
    for i in range(8):
        for x in epiO(i): k(x)
        for idx in (2*i+6, 2*i+7):
            if idx < 16: k(M[idx])
    if OPT.get('tailst'): stamp(k, 1)
    k('s_barrier')
    k('v_mov_b32 v44, %d' % FLAG)
    k('ds_read_b128 v[44:47], v44')
    k('s_waitcnt lgkmcnt(0)')
    k('v_or3_b32 v44, v44, v45, v46')
    k('v_or_b32 v44, v44, v47')
    k('s_nop 0')
    k('v_readfirstlane_b32 s58, v44')
    k('s_nop 3')
    k('s_cmp_lg_u32 s59, 0')
    k('s_cbranch_scc1 %s_fin' % name)
    k('s_cmp_lg_u32 s58, 0')
    k('s_cbranch_scc1 %s_slow' % name)
    k.label(name + '_fin')
    def post():
        srd(k, 16, PWS, 0x10000, WS_MODB)
        gemv_compute(k, 8, 54, 16, 65536, 24, B=192, C=52, LDB=128)
        lab = k.L('mb')
        k('s_cmp_lg_u32 s26, 0')
        k('s_cbranch_scc1 %s' % lab)
        k('s_waitcnt vmcnt(0)')
        k('v_mov_b32 v2, 8')
        k('v_mov_b32 v3, 1')
        k('s_mov_b64 exec, 1')
        k('global_atomic_add v2, v3, s[%d:%d] sc1' % (PDBG, PDBG+1))
        k('s_mov_b64 exec, -1')
        k.label(lab)
    def slow():
        k.label(name + '_slow')
        k('s_mov_b32 s59, 1')
        k('s_lshl_b32 s27, s22, 17')
        k('s_add_u32 s28, s27, 0x%x' % WS_KF)
        srd_s(k, 44, PWS, 28, 0x20000)
        k('s_mov_b32 s58, 0')
        lab2 = k.L('slow'); k.label(lab2)
        k('s_add_u32 s27, s58, 4096')
        for ks in range(8): k('buffer_load_dwordx4 %s, v8, s[44:47], s%d offen offset:%d %s' % (ar(KF(ks), 4), 58 if ks < 4 else 27, (ks % 4)*1024, kvflag))
        k('s_waitcnt vmcnt(0)')
        for mb in range(2):
            for ks in range(8):
                d = vr(SB(0, mb), 16)
                k('%s %s, %s, %s, %s' % (MFMA, d, ar(KF(ks), 4), vr(QF(mb, ks), 4), '0' if ks == 0 else d))
        k('s_nop 7')
        k('s_nop 7')
        for mb in range(2):
            s0 = SB(0, mb)
            for r in range(0, 16, 2): k('v_max3_f32 v%d, v%d, v%d, v%d' % (MG(mb), MG(mb), s0+r, s0+r+1))
        k('s_add_u32 s58, s58, 8192')
        k('s_cmp_lt_u32 s58, 0x20000')
        k('s_cbranch_scc1 %s' % lab2)
        k('v_add_u32 v16, %d, v8' % KSLOT[0])
        k('v_add_u32 v17, %d, v8' % VSLOT[0])
        for db in range(4):
            for mb in range(2):
                for r in range(16): k('v_accvgpr_write_b32 a%d, 0' % (OA(db, mb) + r))
        for n_ in range(4):
            k('s_mov_b32 s%d, s%d' % (TT[3*n_], PWS))
            k('s_mov_b32 s%d, s%d' % (TT[3*n_+1], PWS+1))
            k('s_mov_b32 s%d, 0' % TT[3*n_+2])
        k('s_barrier')
        for pre, ins, tag in initial_dmas():
            for p_ in pre: k(p_)
            if pre: k('s_nop 0')
            k(ins)
        k('s_waitcnt vmcnt(0)')
        k('s_branch %s_pro' % name)
    return slow, post

GU_STG = 28928; GU_UP = 14464
def gateup_setup(k, init_state=True):
    vL = [4, 5]; vX = [8, 9]; vW = [10, 11, 12, 13, 14, 15, 16]
    k('s_lshl_b32 s35, s22, 3')
    k('s_add_u32 s35, s35, s25')
    k('v_lshrrev_b32 v20, 5, v1')
    k('v_lshlrev_b32 v20, 3, v20')
    k('v_bfe_u32 v21, v1, 2, 2')
    k('v_add_u32 v20, v20, v21')
    k('v_mul_u32_u24 v20, 224, v20')
    k('v_bfe_u32 v21, v1, 4, 1')
    k('v_mul_u32_u24 v21, %d, v21' % GU_UP)
    k('v_add_u32 v20, v20, v21')
    k('v_and_b32 v21, 1, v1')
    k('v_lshl_add_u32 v20, v21, 4, v20')
    k('v_bfe_u32 v21, v1, 1, 1')
    k('v_lshl_add_u32 v4, v21, 3, v20')
    k('v_add_u32 v5, %d, v4' % (2*GU_STG))
    k('v_lshlrev_b32 v8, 4, v1')
    k('v_add_u32 v9, 0x10000, v8')
    k('s_and_b32 s27, s26, 1')
    k('s_mul_i32 s28, s27, 448')
    k('s_mul_i32 s29, s35, 224')
    for i in range(7):
        k('v_add_u32 v20, s28, v1')
        if i: k('v_add_u32 v20, %d, v20' % (64*i))
        k('v_mul_u32_u24 v21, 4682, v20')
        k('v_lshrrev_b32 v21, 16, v21')
        k('v_mul_u32_u24 v22, 14, v21')
        k('v_sub_u32 v22, v20, v22')
        k('v_mul_u32_u24 v21, 7168, v21')
        k('v_lshl_add_u32 v21, v22, 4, v21')
        k('v_add_u32 v21, s29, v21')
        k('v_subrev_u32 v%d, %d, v21' % (vW[i], (i % 4)*1024))
    srd(k, 8, PWS, 0x400000, WS_H2)
    k('s_cmp_ge_u32 s26, 2')
    k('s_cselect_b32 s12, s%d, s%d' % (PWU, PWG))
    k('s_cselect_b32 s13, s%d, s%d' % (PWU+1, PWG+1))
    k('s_mov_b32 s14, 0x%x' % (1024*7168))
    k('s_mov_b32 s15, 0x20000')
    k('s_lshl_b32 s27, s24, 3')
    k('s_lshl_b32 s28, s26, 1')
    k('s_add_u32 s34, s27, s28')
    if init_state:
        k('s_lshl_b32 s30, s34, 16')
        k('s_sub_u32 s30, s30, 4096')
        k('s_mov_b32 s31, 0x%x' % ((-64*7168) & 0xffffffff))
    k('s_lshr_b32 s27, s26, 1')
    k('s_mul_i32 s32, s27, %d' % GU_UP)
    k('s_and_b32 s27, s26, 1')
    k('s_mul_i32 s27, s27, 7168')
    k('s_add_u32 s32, s32, s27')
    return vL, vX, vW

def gateup_gemm(k, regs, extra=None):
    vL, vX, vW = regs
    return Gemm(k, 7, 16, acc=32, xr=0, wf=128, vX=vX, vW=vW, sXsrd=8, sWsrd=12, sXoff=30, sWoff=31, sM0=32, sCnt=33,
             stage_bytes=GU_STG, ldw_step=64*7168, nW=7,
             lds_imm=lambda buf, j, nb, sec: (vL[buf // 2], (buf % 2)*GU_STG + j*3584 + sec*896 + nb*32), extra=extra, xflag=LD())

def gateup_main(k, g, next_prefetch=None):
    srd(k, 16, PWS, 2048*3584*2, WS_ACT)
    k('s_mul_i32 s27, s34, 224')
    k('s_mul_i32 s28, s35, 7')
    k('s_add_u32 s27, s27, s28')
    k('s_lshl_b32 s36, s27, 10')
    k('s_add_u32 s37, s36, %d' % (224*1024))
    k('s_mov_b32 s40, 0x%x' % f2u(-LOG2E))
    k('s_mov_b32 s41, 0x%x' % f2u(-LOG2E))
    k('v_add_u32 v31, 4096, v8')
    k('v_mov_b32 v30, v8')
    k('v_mov_b32 v29, 0x%x' % f2u(-LOG2E))
    set_local_vcc(k)
    if not OPT.get('stepst'): stamp(k, 1)
    g.start()
    stamp(k, 2)
    def epi(b):
        out = []
        for mb in range(2):
            a = g.accr(b, mb)
            t = 17 + mb*4
            for h in range(2):
                e = a + 4*h
                out += ['v_mul_f32 v%d, v29, v%d' % (t+i, e+i) for i in range(4)]
                out += ['v_exp_f32 v%d, v%d' % (t+i, t+i) for i in range(4)]
                out += ['v_mul_f32 v%d, v%d, v%d' % (e+i, e+i, e+8+i) for i in range(4)]
                out += ['v_add_f32 v%d, 1.0, v%d' % (t+i, t+i) for i in range(4)]
                out += ['v_rcp_f32 v%d, v%d' % (t+i, t+i) for i in range(4)]
                out += ['s_nop 0']
                out += ['v_mul_f32 v%d, v%d, v%d' % (e+i, e+i, t+i) for i in range(4)]
            out += ['v_cvt_pk_bf16_f32 v%d, v%d, v%d' % (a+8+i, a+2*i, a+2*i+1) for i in range(4)]
            out.append('\n'.join(local_store(k, 'buffer_store_dwordx4 %s, v%d, s[16:19], s%d offen offset:%d' % (vr(a+8, 4), 30 if b < 4 else 31, 36+mb, (b % 4)*1024))))
        return out
    g.mainloop(epi)
    stamp(k, 3)
    if next_prefetch: next_prefetch()

def resume_m0(k, g):
    k('s_add_u32 m0, s%d, 0x%x' % (g.sM0, 2*g.stage))

def build():
    kerns = []
    if MEGA:
        name = NAME + '_kernel'
        k = Kern(name, nvgpr=512, accum=256, nsgpr=102, lds=163840)
        def early():
            code_touch(k, name + '_c1', name + '_cend', 30)
            k.label(name + '_c1')
        header(k, name, early)
        phase_p0(k, name)
        phase_ln1b(k)
        slow, post = phase_attn(k, name)
        def a3():
            k('s_lshl_b32 s27, s24, 2'); k('s_add_u32 s27, s27, s22'); k('s_add_u32 s27, s27, %d' % C_S3); cnt_addr(k, 27)
        arrive(k, a3, count=8, flag_off=128)
        g = gemm128_setup(k, 'oproj'); g.prologue_w()
        post()
        stamp_flush(k, 'attn', 5)
        k.label(name + '_L_oproj')
        stamp_rt0(k, 'oproj'); stamp(k, 0) if not OPT.get('stepst') else None
        waitfor(k, a3, 1, off=128, direct=8)
        resume_m0(k, g)
        g.prologue_x()
        gemm128_main(k, 'oproj', g)
        def a4():
            k('s_add_u32 s27, s24, %d' % C_S4); cnt_addr(k, 27)
        arrive(k, a4, count=32, flag_off=128)
        regs = gateup_setup(k)
        gg = gateup_gemm(k, regs)
        gg.prologue_w()
        code_touch(k, name + '_L_gateup', name + '_L_down', 30)
        stamp_flush(k, 'oproj', 4)
        phase_ln2(k, 'ln2')
        k.label(name + '_L_gateup')
        stamp_rt0(k, 'gateup'); stamp(k, 0) if not OPT.get('stepst') else None
        gateup_setup(k, init_state=False)
        def a5():
            k('s_add_u32 s27, s24, %d' % C_S5); cnt_addr(k, 27)
        waitfor(k, a5, 1, off=128, direct=32)
        resume_m0(k, gg)
        gg.prologue_x()
        gateup_main(k, gg)
        def a6():
            k('s_lshl_b32 s27, s24, 2'); k('s_add_u32 s27, s27, s22'); k('s_add_u32 s27, s27, %d' % C_S6); cnt_addr(k, 27)
        arrive(k, a6, count=8, flag_off=128)
        g = gemm128_setup(k, 'down'); g.prologue_w()
        code_touch(k, name + '_L_down', name + '_cend', 60)
        stamp_flush(k, 'gateup', 4)
        k.label(name + '_L_down')
        stamp_rt0(k, 'down'); stamp(k, 0) if not OPT.get('stepst') else None
        waitfor(k, a6, 1, off=128, direct=8)
        resume_m0(k, g)
        g.prologue_x()
        gemm128_main(k, 'down', g)
        def a7():
            k('s_add_u32 s27, s24, %d' % C_S7); cnt_addr(k, 27)
        arrive(k, a7, count=32, flag_off=128)
        stamp_flush(k, 'down', 4)
        phase_ln2(k, 'final')
        if OPT.get('diagxcd'):
            lab = k.L('de')
            k('s_or_b32 s27, s2, s26')
            k('s_cmp_lg_u32 s27, 0')
            k('s_cbranch_scc1 %s' % lab)
            k('v_mov_b32 v2, 0')
            k('global_load_dwordx4 v[4:7], v2, s[%d:%d] offset:168 sc1' % (PDBG, PDBG+1))
            k('global_load_dwordx4 v[8:11], v2, s[%d:%d] offset:184 sc1' % (PDBG, PDBG+1))
            k('s_waitcnt vmcnt(0)')
            k('s_mov_b32 s29, 0')
            for i in range(8):
                k('v_readfirstlane_b32 s27, v%d' % (4+i))
                k('s_nop 3')
                k('s_bcnt1_i32_b32 s27, s27')
                k('s_add_u32 s29, s29, s27')
            k('s_sub_u32 s29, s29, 8')
            k('s_mul_i32 s29, s29, 2')
            k.label(lab + '_l')
            k('s_cmp_eq_u32 s29, 0')
            k('s_cbranch_scc1 %s' % lab)
            k('s_sleep 64')
            k('s_sub_u32 s29, s29, 1')
            k('s_branch %s_l' % lab)
            k.label(lab)
        k('s_endpgm')
        slow()
        k.label(name + '_cend')
        k.label(name + '_end')
        k('s_endpgm')
        kerns.append(k)
    else:
        def kern(nm, lds):
            k = Kern(nm, nvgpr=512, accum=256, nsgpr=102, lds=lds); header(k, nm); return k
        def fin(k):
            k.label(k.name + '_end'); k('s_endpgm'); kerns.append(k)
        k = kern('p0_kernel', 163840); phase_p0(k, k.name); stamp_flush(k, 'p0', 3); fin(k)
        k = kern('ln1_kernel', 163840)
        ln_addr(k); srd(k, 8, PX, 0x400000)
        for j in range(4): k('buffer_load_dwordx4 %s, v6, s[8:11], s44 offen offset:%d' % (vr(RAW + 4*j, 4), j*128))
        k('s_waitcnt vmcnt(0)'); tr8x8(k, RAW, 4, 240, 241); ln_unpack(k, RAW); ln_stats(k); phase_ln1b(k); fin(k)
        k = kern('attn_kernel', 163840); slow, post = phase_attn(k, k.name); stamp_flush(k, 'attn', 5); k('s_endpgm'); slow(); fin(k)
        k = kern('oproj_kernel', 65536); stamp_rt0(k, 'oproj'); stamp(k, 0); g = gemm128_setup(k, 'oproj'); g.prologue_mixed(); gemm128_main(k, 'oproj', g); stamp_flush(k, 'oproj', 4); fin(k)
        k = kern('ln2_kernel', 163840); phase_ln2(k, 'ln2'); fin(k)
        k = kern('gateup_kernel', 4*GU_STG); stamp_rt0(k, 'gateup'); stamp(k, 0); regs = gateup_setup(k); gg = gateup_gemm(k, regs); gg.prologue_mixed(); gateup_main(k, gg); stamp_flush(k, 'gateup', 4); fin(k)
        k = kern('down_kernel', 65536); stamp_rt0(k, 'down'); stamp(k, 0); g = gemm128_setup(k, 'down'); g.prologue_mixed(); gemm128_main(k, 'down', g); stamp_flush(k, 'down', 4); fin(k)
        k = kern('final_kernel', 163840); phase_ln2(k, 'final'); fin(k)
    return kerns

HEADER = open('cdna_kernels/%s.s.ref' % NAME).read().split('; Override launch')[0] if os.path.exists('cdna_kernels/%s.s.ref' % NAME) else ''

def assemble(kerns):
    out = [HEADER.rstrip()]
    if MEGA:
        kn = kerns[0]
        out.append('; @launch grid=(%d,1,1) block=(%d,1,1) lds=%d' % (kn.grid, kn.block, kn.lds))
    else:
        for kn in kerns:
            out.append('; @launch kernel=%s grid=(%d,1,1) block=(%d,1,1) lds=%d' % (kn.name, kn.grid, kn.block, kn.lds))
    out.append('.amdgcn_target "amdgcn-amd-amdhsa--gfx950"')
    for kn in kerns: out.append(kn.text())
    out.append('.section .rodata,"a"')
    for kn in kerns:
        out.append('.p2align 6'); out.append(kn.desc())
    return '\n'.join(out) + '\n'

if __name__ == '__main__':
    for a in sys.argv[2:]:
        if a == 'instr': INSTR = True
        elif a == 'mega': MEGA = True
        elif a.startswith('opt:'): OPT[a[4:].split('=')[0]] = (a.split('=')[1].replace('+', ' ') if '=' in a else True)
    ks = build()
    bad = 0
    for kn in ks: bad += len(check(kn))
    txt = assemble(ks)
    txt = '\n'.join(l[4:] if l.startswith('    ') else l for l in txt.split('\n'))
    open(sys.argv[1], 'w').write(txt)
    print('generated', len(txt), 'bytes; check errors:', bad)
```

```python
import sys, math, os, struct as _st
from asmlib import *

NAME = 'adaLN_cond__sliding_block_cached__swiglu_ffn__prompt'
KA = dict(x=0, k=8, v=16, wq=24, wo=32, bx=40, wg=48, wu=56, wd=64, c=72, wmod=80, out=88, dbg=96, ws=104)
PX, PK, PV, PWQ, PWO, PWG, PWU, PWD, PC_, PWMOD, POUT, PDBG, PWS = 64, 66, 68, 70, 72, 76, 78, 80, 82, 84, 86, 88, 90
WS_MOD  = 0x0
WS_MODB = 0x10000
WS_CNT  = 0x20000
WS_XCC  = 0x30000
WS_H   = 0x100000
WS_O   = 0x500000
WS_P1  = 0x1500000
WS_X1  = 0x3500000
WS_H2  = 0x3900000
WS_ACT = 0x3D00000
WS_P2  = 0x4B00000
WS_KF  = 0x5B00000
WS_VF  = 0x5B80000
WS_STAMP = 0x8000000
MFMA = 'v_mfma_f32_32x32x16_bf16'
LOG2E = 1.4426950408889634
def f2u(x): return _st.unpack('<I', _st.pack('<f', x))[0]
INSTR = False
MEGA = False
OPT = {}
PHASES = ['p0', 'attn', 'oproj', 'ln2', 'gateup', 'down', 'final']
PIDX = {p: i for i, p in enumerate(PHASES)}
ST = 'sc1'
def LD(): return 'sc1' if (MEGA and not OPT.get('plainld')) else ''
C_S2, C_S3, C_S4, C_S5, C_S6, C_S7 = 0, 8, 40, 48, 56, 88
LN_LDS = 147456

def srd(k, s, lo, size, add=None):
    if add:
        k('s_add_u32 s%d, s%d, 0x%x' % (s, lo, add))
        k('s_addc_u32 s%d, s%d, 0' % (s+1, lo+1))
    else:
        k('s_mov_b32 s%d, s%d' % (s, lo))
        k('s_mov_b32 s%d, s%d' % (s+1, lo+1))
    k('s_mov_b32 s%d, 0x%x' % (s+2, size))
    k('s_mov_b32 s%d, 0x20000' % (s+3))
def srd_s(k, s, lo, soff, size):
    k('s_add_u32 s%d, s%d, s%d' % (s, lo, soff))
    k('s_addc_u32 s%d, s%d, 0' % (s+1, lo+1))
    k('s_mov_b32 s%d, 0x%x' % (s+2, size))
    k('s_mov_b32 s%d, 0x20000' % (s+3))

def stamp(k, i):
    if INSTR:
        k('s_memtime s[%d:%d]' % (92+2*i, 93+2*i)) if i < 5 else None
def stamp_begin(k):
    if INSTR:
        k('s_memrealtime s[60:61]') if False else None
        k('s_memrealtime s[18:19]') if False else None
def stamp_flush(k, phase, n):
    if not INSTR: return
    k('s_waitcnt lgkmcnt(0)')
    k('s_memrealtime s[28:29]') if False else None
    srd(k, 16, PWS, 0x10000, WS_STAMP + PIDX[phase]*0x10000)
    k('s_lshl_b32 s27, s2, 6')
    k('v_cmp_eq_u32 vcc, 0, v0')
    k('s_and_saveexec_b64 s[28:29], vcc')
    lab = k.L('so')
    k('s_cbranch_execz %s' % lab)
    k('v_mov_b32 v2, s27')
    for i in range(n):
        k('v_mov_b32 v3, s%d' % (92+2*i))
        k('buffer_store_dword v3, v2, s[16:19], 0 offen offset:%d' % (4*i))
    k('s_memrealtime s[92:93]')
    k('s_memtime s[94:95]')
    k('s_waitcnt lgkmcnt(0)')
    k('v_mov_b32 v3, s92')
    k('buffer_store_dword v3, v2, s[16:19], 0 offen offset:56')
    k('v_mov_b32 v3, s94')
    k('buffer_store_dword v3, v2, s[16:19], 0 offen offset:60')
    k.label(lab)
    k('s_mov_b64 exec, s[28:29]')
def stamp_rt0(k, phase):
    if not INSTR: return
    k('s_memrealtime s[92:93]')
    k('s_memtime s[94:95]')
    srd(k, 16, PWS, 0x10000, WS_STAMP + PIDX[phase]*0x10000)
    k('s_lshl_b32 s27, s2, 6')
    k('s_waitcnt lgkmcnt(0)')
    k('v_cmp_eq_u32 vcc, 0, v0')
    k('s_and_saveexec_b64 s[28:29], vcc')
    lab = k.L('s0')
    k('s_cbranch_execz %s' % lab)
    k('v_mov_b32 v2, s27')
    k('v_mov_b32 v3, s92')
    k('buffer_store_dword v3, v2, s[16:19], 0 offen offset:48')
    k('v_mov_b32 v3, s94')
    k('buffer_store_dword v3, v2, s[16:19], 0 offen offset:52')
    k.label(lab)
    k('s_mov_b64 exec, s[28:29]')

def header(k, name, early=None):
    k('s_cmp_ge_u32 s2, 256')
    k('s_cbranch_scc1 %s_end' % name)
    if OPT.get('scramble'):
        k('s_and_b32 s3, s2, 31')
        k('s_lshl_b32 s3, s3, 3')
        k('s_lshr_b32 s2, s2, 5')
        k('s_or_b32 s2, s2, s3')
    k('s_load_dwordx8 s[80:87], s[0:1], 64')
    k('s_load_dwordx16 s[64:79], s[0:1], 0')
    k('s_load_dwordx4 s[88:91], s[0:1], 96')
    k('v_lshrrev_b32 v2, 6, v0')
    k('v_and_b32 v1, 63, v0')
    k('s_lshr_b32 s21, s2, 3')
    k('v_readfirstlane_b32 s26, v2')
    if early: early()
    k('s_and_b32 s20, s2, 7')
    k('s_lshr_b32 s22, s20, 1')
    k('s_and_b32 s23, s20, 1')
    k('s_and_b32 s24, s21, 3')
    k('s_lshl_b32 s27, s23, 2')
    k('s_add_u32 s24, s24, s27')
    k('s_lshr_b32 s25, s21, 2')
    k('s_waitcnt lgkmcnt(0)')

def cnt_addr(k, sreg, dst=6):
    k('s_lshl_b32 s%d, s%d, 8' % (dst, sreg))
    k('s_add_u32 s%d, s%d, 0x%x' % (dst, dst, WS_CNT))
    k('s_add_u32 s%d, s%d, s%d' % (dst, dst, PWS))
    k('s_addc_u32 s%d, s%d, 0' % (dst+1, PWS+1))
def arrive(k, setup, count=None, extra_dbg=None, only_w0=False, flag_off=None):
    if not MEGA: return
    if not OPT.get('flagsync') and count is not None and count <= 32: count = None
    if not only_w0:
        k('s_waitcnt vmcnt(0)')
        k('s_barrier')
    lab = k.L('arr')
    k('s_cmp_lg_u32 s26, 0')
    k('s_cbranch_scc1 %s' % lab)
    if only_w0: k('s_waitcnt vmcnt(0)')
    setup()
    k('v_mov_b32 v2, 0')
    k('v_mov_b32 v3, 1')
    k('s_mov_b64 exec, 1')
    if extra_dbg is not None:
        k('v_mov_b32 v29, %d' % extra_dbg)
        k('global_atomic_add v29, v3, s[%d:%d] sc1' % (PDBG, PDBG+1))
    if count is None:
        k('global_atomic_add v2, v3, s[6:7] sc1')
    else:
        k('global_atomic_add v29, v2, v3, s[6:7] sc0 sc1')
        k('s_waitcnt vmcnt(0)')
        k('v_readfirstlane_b32 s27, v29')
        k('s_nop 3')
        k('s_cmp_lg_u32 s27, %d' % (count - 1))
        k('s_cbranch_scc1 %s_n' % lab)
        k('global_store_dword v2, v3, s[6:7] offset:%d sc1' % flag_off)
        k.label(lab + '_n')
    k('s_mov_b64 exec, -1')
    k.label(lab)
def waitfor(k, setup, count, off=0, sleep=2, direct=None):
    if not MEGA: return
    if not OPT.get('flagsync') and direct is not None: count, off = direct, 0
    lab = k.L('wt'); done = k.L('wd'); skip = k.L('ws')
    k('s_cmp_lg_u32 s26, 0')
    k('s_cbranch_scc1 %s' % skip)
    setup()
    k('v_mov_b32 v2, 0')
    k('s_mov_b32 s27, 0')
    k('s_mov_b64 exec, 1')
    k.label(lab)
    k('global_load_dword v3, v2, s[6:7] offset:%d sc1' % off)
    k('s_waitcnt vmcnt(0)')
    k('v_readfirstlane_b32 s28, v3')
    k('s_add_u32 s27, s27, 1')
    k('s_cmp_ge_u32 s28, %d' % count)
    k('s_cbranch_scc1 %s' % done)
    k('s_cmp_ge_u32 s27, 0x40000')
    k('s_cbranch_scc1 %s' % done)
    k('s_sleep %d' % sleep)
    k('s_branch %s' % lab)
    k.label(done)
    k('s_mov_b64 exec, -1')
    k.label(skip)
    k('s_barrier')

def local_store(k, ins):
    if not MEGA or not OPT.get('local'): return [ins + ' ' + ST]
    a = k.L('ls'); b = k.L('lt')
    return ['s_cbranch_vccnz %s' % a, ins + ' ' + ST, a + ':', 's_cbranch_vccz %s' % b, ins, b + ':']
def set_local_vcc(k):
    if MEGA and OPT.get('local'):
        k('s_cmp_eq_u32 s3, 1')
        k('s_cselect_b64 vcc, -1, 0')

def code_touch(k, lab0, lab1, vtmp):
    if OPT.get('nocode'): return
    here = k.L('pc'); skip = k.L('ct')
    k('s_cmp_lg_u32 s26, 0')
    k('s_cbranch_scc1 %s' % skip)
    k('s_getpc_b64 s[6:7]')
    k.label(here)
    k('s_add_u32 s6, s6, %s-%s' % (lab0, here))
    k('s_addc_u32 s7, s7, %s' % ('0' if True else ''))
    k('v_lshlrev_b32 v%d, 5, v1' % vtmp)
    k('v_add_u32 v%d, s21, v%d' % (vtmp, vtmp))
    k('v_lshlrev_b32 v%d, 7, v%d' % (vtmp, vtmp))
    k('v_cmp_gt_u32 vcc, %s-%s, v%d' % (lab1, lab0, vtmp))
    k('s_and_saveexec_b64 s[4:5], vcc')
    k('s_cbranch_execz %s_r' % skip)
    k('global_load_dword v%d, v%d, s[6:7]' % (vtmp+1, vtmp))
    k.label(skip + '_r')
    k('s_mov_b64 exec, s[4:5]')
    k.label(skip)

class Gemm:
    def __init__(self, k, NB, nsteps, acc, xr, wf, vX, vW, sXsrd, sWsrd, sXoff, sWoff, sM0, sCnt,
                 stage_bytes, ldw_step, nW, lds_imm, extra=None, xflag=''):
        self.k = k; self.NB = NB; self.nsteps = nsteps; self.acc = acc; self.xr = xr; self.wf = wf
        self.vX = vX; self.vW = vW; self.sX = sXsrd; self.sW = sWsrd; self.sXoff = sXoff; self.sWoff = sWoff
        self.sM0 = sM0; self.sCnt = sCnt; self.stage = stage_bytes; self.ldw_step = ldw_step; self.nW = nW
        self.lds_imm = lds_imm; self.xflag = xflag
        self.extra = extra or (lambda t, j: [])
        if nW == 4: wsl = {3: [0], 0: [1], 1: [2], 2: [3]}
        else: wsl = {3: [0, 1], 0: [2, 3], 1: [4, 5], 2: [6]}
        Q = []
        for i in wsl[3]: Q.append((('W', 0, i), -13))
        for s_ in range(nsteps):
            for j in range(4):
                slot = 4*(s_-3) + j
                ws = [('W', s_, i) for i in wsl[j]] if j < 3 else ([('W', s_+1, i) for i in wsl[3]] if s_+1 < nsteps else [])
                for o in [('X', s_, j, 0)] + ws + [('X', s_, j, 1)]: Q.append((o, slot))
        self.Q = Q
        self.P = len([1 for o, sl in Q if sl < -4])
        self.sched = {}
        pos = self.P
        for t in range(nsteps):
            for j in range(4):
                slot = 4*t + j
                steady = len([1 for o, sl in Q if sl <= slot])
                per = len([1 for o, sl in Q if sl == 16 + j])
                n = min(steady, pos + per + 1)
                self.sched[(t, j)] = [o for o, sl in Q[pos:n]]
                pos = n
    def accr(self, nb, mb): return self.acc + (nb*2 + mb)*16
    def xreg(self, s, mb, j): return self.xr + (s % 4)*32 + (mb*4 + j)*4
    def wreg(self, par, nb): return self.wf + par*self.NB*4 + nb*4
    def mkop(self, o):
        if o[0] == 'X':
            _, s_, j, mb = o
            pre = ['s_add_u32 s%d, s%d, 4096' % (self.sXoff, self.sXoff)] if (j == 0 and mb == 0) else []
            return (pre, 'buffer_load_dwordx4 %s, v%d, s[%d:%d], s%d offen offset:%d %s' % (ar(self.xreg(s_, mb, j), 4), self.vX[mb], self.sX, self.sX+3, self.sXoff, j*1024, self.xflag), ('X', s_, j))
        _, s_, i = o
        pre = []
        if i == 0:
            pre.append('s_add_u32 s%d, s%d, 0x%x' % (self.sWoff, self.sWoff, self.ldw_step))
            pre.append('s_add_u32 m0, s%d, 0x%x' % (self.sM0, (s_ % 4)*self.stage))
        elif i == 4:
            pre.append('s_add_u32 m0, s%d, 0x%x' % (self.sM0, (s_ % 4)*self.stage + 4096))
        return (pre, 'buffer_load_dwordx4 v%d, s[%d:%d], s%d offen offset:%d lds' % (self.vW[i], self.sW, self.sW+3, self.sWoff, (i % 4)*1024), ('W', s_, i))
    def emit_vm(self, op):
        k = self.k
        pre, ins, tag = op[0], op[1], op[2]
        for p in pre: k(p)
        if pre and 'm0' in pre[-1]: k('s_nop 0')
        k.vm(ins, tag)
    def lds_reads(self, t, j):
        out = []
        for nb in range(self.NB):
            for sec in range(2):
                v, imm = self.lds_imm(t % 4, j, nb, sec)
                out.append('ds_read_b64_tr_b16 %s, v%d offset:%d' % (ar(self.wreg(j % 2, nb) + 2*sec, 2), v, imm))
        return out
    def blk_reads(self, t, nb):
        out = []
        for j in range(4):
            for sec in range(2):
                v, imm = self.lds_imm(t % 4, j, nb, sec)
                out.append('ds_read_b64_tr_b16 %s, v%d offset:%d' % (ar(self.wf + (nb % 2)*16 + j*4 + 2*sec, 2), v, imm))
        return out
    def prologue_w(self):
        for o, sl in self.Q[:self.P]:
            if o[0] == 'W': self.emit_vm(self.mkop(o))
    def prologue_x(self):
        for o, sl in self.Q[:self.P]:
            if o[0] == 'X': self.emit_vm(self.mkop(o))
    def prologue_mixed(self):
        for o, sl in self.Q[:self.P]: self.emit_vm(self.mkop(o))
    def start(self):
        k = self.k
        n = k.vm_wait_n(lambda tg: (tg[0] == 'W' and tg[1] == 0) or (tg[0] == 'X' and tg[1] == 0 and tg[2] <= 2))
        k('s_waitcnt vmcnt(%d)' % n)
        k('s_barrier')
        for r in self.lds_reads(0, 0): k(r)
    def emit_gaps(self, mfmas, gaps):
        k = self.k
        for m, mf in enumerate(mfmas):
            k(mf)
            for kind, x in gaps[m]:
                if kind == 'i': k(x)
                else: self.emit_vm(x)
    def frag_reads(self, t, j, nb, slot):
        out = []
        for sec in range(2):
            v, imm = self.lds_imm(t % 4, j, nb, sec)
            out.append('ds_read_b64_tr_b16 %s, v%d offset:%d' % (ar(self.wf + slot*4 + 2*sec, 2), v, imm))
        return out
    def step(self, t, tail=0):
        k = self.k; NB = self.NB; n = self.nsteps
        last = (t == n - 1)
        pre_tail = tail and t == n - tail - 1
        for j in range(4):
            if j == 3 and not last:
                if pre_tail:
                    nn = k.vm_wait_n(lambda tg: tg[0] in 'WX' and tg[1] <= (n-2 if tail >= 3 else n-1))
                else:
                    nn = k.vm_wait_n(lambda tg: (tg[0] == 'W' and tg[1] <= t+1) or (tg[0] == 'X' and (tg[1] <= t or (tg[1] == t+1 and tg[2] <= 2))))
                k('s_waitcnt vmcnt(%d) lgkmcnt(0)' % nn)
                k('s_barrier')
            elif j == 3:
                nn = k.vm_wait_n(lambda tg: tg[0] == 'X' and tg[1] <= t)
                k('s_waitcnt vmcnt(%d) lgkmcnt(0)' % nn)
            else:
                k('s_waitcnt lgkmcnt(0)')
            if j < 3: reads = self.lds_reads(t, j+1)
            elif last: reads = []
            elif pre_tail:
                reads = []
                for f in range(4): reads += self.frag_reads(n - tail, f, 0, f)
            else: reads = self.lds_reads(t+1, 0)
            vms = [self.mkop(o) for o in self.sched[(t, j)]]
            extra = list(self.extra(t, j))
            vms += [e for e in extra if not isinstance(e, str)]
            plain = [e for e in extra if isinstance(e, str)]
            nm = 2*NB
            gaps = [[] for _ in range(nm)]
            for i, r in enumerate(reads): gaps[i // 2].append(('i', r))
            for i, op in enumerate(vms): gaps[NB + (i * NB) // max(1, len(vms))].append(('vm', op))
            for i, e in enumerate(plain): gaps[(i * nm) // len(plain)].append(('i', e))
            mf = []
            for nb in range(NB):
                for mb in range(2):
                    d = vr(self.accr(nb, mb), 16)
                    mf.append('%s %s, %s, %s, %s' % (MFMA, d, ar(self.wreg(j % 2, nb), 4), ar(self.xreg(t, mb, j), 4), '0' if (t == 0 and j == 0) else d))
            self.emit_gaps(mf, gaps)
    def tail_blocks(self, tail, epi):
        k = self.k; NB = self.NB; n = self.nsteps
        frs = [(nb, t, j) for nb in range(NB) for t in range(n - tail, n) for j in range(4)]
        per = tail*4
        NS = 8
        pending = []
        for f, (nb, t, j) in enumerate(frs):
            fo = f % per
            if fo == 0:
                items = list(pending)
                if nb < tail:
                    for jj in range(4): items += list(self.extra(n - tail + nb, jj))
                ng = 2*per
                blockgaps = [[] for _ in range(ng)]
                for i, e in enumerate(items): blockgaps[4 + (i * (ng - 4)) // max(1, len(items))].append(e)
            if f == 4 and tail >= 3:
                nn = k.vm_wait_n(lambda tg: tg[0] in 'WX' and tg[1] <= n-1)
                k('s_waitcnt vmcnt(%d)' % nn)
                k('s_barrier')
            ahead = min(len(frs) - 1 - f, 3)
            k('s_waitcnt lgkmcnt(%d)' % (2*ahead))
            nxt = self.frag_reads(frs[f+4][1], frs[f+4][2], frs[f+4][0], (f+4) % NS) if f + 4 < len(frs) else []
            for mb in range(2):
                d = vr(self.accr(nb, mb), 16)
                k('%s %s, %s, %s, %s' % (MFMA, d, ar(self.wf + (f % NS)*4, 4), ar(self.xreg(t, mb, j), 4), d))
                if nxt: k(nxt[mb])
                for e in blockgaps[2*fo + mb]:
                    if isinstance(e, str): k(e)
                    else: self.emit_vm(e)
            if fo == per - 1: pending = epi(nb)
        k('s_nop 7')
        k('s_nop 3')
        for e in pending:
            if isinstance(e, str): k(e)
            else: self.emit_vm(e)
    def mainloop(self, epi=None, tail=3):
        k = self.k; n = self.nsteps
        tl = tail if epi is not None else 0
        for t in range(4): self.step(t, tl)
        if OPT.get('stepst'): stamp(k, 0)
        t = 4
        trips = 0
        while t + 4*trips + 3 + 4 <= n - 1: trips += 1
        if trips >= 2:
            lab = k.L('loop')
            k('s_mov_b32 s%d, %d' % (self.sCnt, trips))
            k.label(lab)
            q0 = len(k.vmq)
            for tt in range(t, t+4): self.step(tt, tl)
            k('s_sub_u32 s%d, s%d, 1' % (self.sCnt, self.sCnt))
            k('s_cmp_lg_u32 s%d, 0' % self.sCnt)
            k('s_cbranch_scc1 %s' % lab)
            body = k.vmq[q0:]
            for r in range(1, trips):
                for tg in body: k.vmq.append((tg[0], tg[1] + 4*r, tg[2]))
            t += 4*trips
        for tt in range(t, n - tl): self.step(tt, tl)
        if OPT.get('stepst'): stamp(k, 1)
        if tl: self.tail_blocks(tl, epi)

def lds_addr_128(k, vL, tmp):
    a, b, c = tmp, tmp+1, tmp+2
    k('v_lshrrev_b32 v%d, 5, v1' % a)
    k('v_lshlrev_b32 v%d, 11, v%d' % (a, a))
    k('v_bfe_u32 v%d, v1, 2, 2' % b)
    k('v_lshl_add_u32 v%d, v%d, 8, v%d' % (a, b, a))
    k('v_bfe_u32 v%d, v1, 4, 1' % c)
    k('v_lshl_add_u32 v%d, v%d, 5, v%d' % (a, c, a))
    k('v_and_b32 v%d, 1, v1' % c)
    k('v_lshl_add_u32 v%d, v%d, 4, v%d' % (a, c, a))
    k('v_bfe_u32 v%d, v1, 1, 1' % c)
    k('v_lshl_add_u32 v%d, v%d, 3, v%d' % (a, c, a))
    for nb in range(4):
        k('v_xor_b32 v%d, %d, v%d' % (c, nb, b))
        k('v_lshl_add_u32 v%d, v%d, 6, v%d' % (vL[nb], c, a))

def w128_voffsets(k, vW, ldw, s_colbytes, tmp):
    a, b, c = tmp, tmp+1, tmp+2
    k('v_lshrrev_b32 v%d, 4, v1' % a)
    k('v_bfe_u32 v%d, v1, 2, 2' % b)
    k('v_xor_b32 v%d, v%d, v%d' % (b, b, a))
    k('v_and_b32 v%d, 3, v1' % c)
    k('v_lshlrev_b32 v%d, 4, v%d' % (c, c))
    k('v_lshl_add_u32 v%d, v%d, 6, v%d' % (c, b, c))
    k('s_lshl_b32 s27, s26, 4')
    k('v_add_u32 v%d, s27, v%d' % (a, a))
    k('v_mul_u32_u24 v%d, %d, v%d' % (a, ldw, a))
    k('v_add3_u32 v%d, v%d, v%d, s%d' % (vW[0], a, c, s_colbytes))
    for i in range(1, 4): k('v_add_u32 v%d, 0x%x, v%d' % (vW[i], i*4*ldw - i*1024, vW[0]))

def gemm128_setup(k, which):
    if which == 'oproj': xoff, xsize, KS, ksq, wptr, ldw, nsteps = WS_O, 0x1000000, 256, 64, PWO, 2048, 16
    else: xoff, xsize, KS, ksq, wptr, ldw, nsteps = WS_ACT, 2048*3584*2, 224, 56, PWD, 2048, 14
    vL = [4, 5, 6, 7]; vX = [8, 9]; vW = [10, 11, 12, 13]
    lds_addr_128(k, vL, tmp=14)
    k('v_lshlrev_b32 v8, 4, v1')
    k('v_add_u32 v9, 0x%x, v8' % (KS*1024))
    k('s_lshl_b32 s28, s25, 8')
    w128_voffsets(k, vW, ldw, 28, 14)
    srd(k, 8, PWS, xsize, xoff)
    srd(k, 12, wptr, ksq*4*16*ldw)
    k('s_lshl_b32 s27, s24, 3')
    k('s_lshl_b32 s28, s26, 1')
    k('s_add_u32 s34, s27, s28')
    k('s_mul_i32 s30, s34, %d' % KS)
    k('s_mul_i32 s28, s22, %d' % ksq)
    k('s_add_u32 s30, s30, s28')
    k('s_lshl_b32 s30, s30, 10')
    k('s_sub_u32 s30, s30, 4096')
    k('s_mul_i32 s31, s22, 0x%x' % (ksq*16*ldw))
    k('s_sub_u32 s31, s31, 0x%x' % (64*ldw))
    k('s_lshl_b32 s32, s26, 12')
    return Gemm(k, 4, nsteps, acc=128, xr=0, wf=128, vX=vX, vW=vW, sXsrd=8, sWsrd=12, sXoff=30, sWoff=31, sM0=32, sCnt=33,
                stage_bytes=16384, ldw_step=64*ldw, nW=4,
                lds_imm=lambda buf, j, nb, sec: (vL[nb], buf*16384 + j*4096 + sec*1024), xflag=LD())

def gemm128_main(k, which, g):
    poff = WS_P1 if which == 'oproj' else WS_P2
    k('s_lshl_b32 s27, s22, 22')
    k('s_add_u32 s27, s27, 0x%x' % poff)
    srd_s(k, 16, PWS, 27, 0x400000)
    k('s_lshl_b32 s27, s34, 6')
    k('s_lshl_b32 s28, s25, 3')
    k('s_add_u32 s27, s27, s28')
    k('s_lshl_b32 s36, s27, 10')
    k('s_add_u32 s37, s36, 0x10000')
    k('v_add_u32 v14, 4096, v8')
    if not OPT.get('stepst'): stamp(k, 1)
    g.start()
    stamp(k, 2)
    cnt = [0]
    def epi(nb):
        out = []
        for mb in range(2):
            a = g.accr(nb, mb)
            for hh in range(2):
                t = 16 + (cnt[0] % 8)*4; cnt[0] += 1
                for r in range(4): out.append('v_cvt_pk_bf16_f32 v%d, v%d, v%d' % (t+r, a + hh*8 + 2*r, a + hh*8 + 2*r + 1))
                ks = 2*nb + hh
                out.append(([], 'buffer_store_dwordx4 %s, v%d, s[16:19], s%d offen offset:%d %s' % (vr(t, 4), 8 if ks < 4 else 14, 36+mb, (ks % 4)*1024, ST), ('S', 0, 0)))
        return out
    g.mainloop(epi)
    stamp(k, 3)

def reduce8(k, v, t):
    k('s_nop 1')
    k('v_add_f32_dpp v%d, v%d, v%d row_ror:8 row_mask:0xf bank_mask:0xf' % (v, v, v))
    k('v_mov_b32 v%d, v%d' % (t, v))
    k('s_nop 1')
    k('v_permlane16_swap_b32 v%d, v%d' % (v, t))
    k('s_nop 1')
    k('v_add_f32 v%d, v%d, v%d' % (v, v, t))
    k('v_mov_b32 v%d, v%d' % (t, v))
    k('s_nop 1')
    k('v_permlane32_swap_b32 v%d, v%d' % (v, t))
    k('s_nop 1')
    k('v_add_f32 v%d, v%d, v%d' % (v, v, t))

def gemv_load(k, nj, s_row0, s_col0bytes, AD=160, C=168, LDB=96, emit=True):
    o = []
    o.append('v_and_b32 v%d, 7, v0' % AD)
    o.append('v_lshrrev_b32 v%d, 3, v0' % (AD+1))
    o.append('v_mul_u32_u24 v%d, %d, v%d' % (AD+2, nj*12288, AD+1))
    o.append('v_lshl_add_u32 v%d, v%d, 4, v%d' % (AD+2, AD, AD+2))
    o.append('v_mul_u32_u24 v%d, %d, v%d' % (AD+3, nj*2, AD+1))
    o.append('s_mul_i32 s36, s%d, 12288' % s_row0)
    o.append('s_add_u32 s36, s36, s%d' % s_col0bytes)
    o.append('s_lshl_b32 s37, s%d, 1' % s_row0)
    for i in range(nj // 8): o.append('buffer_load_dwordx4 %s, v%d, s[12:15], s37 offen offset:%d' % (vr(C+4*i, 4), AD+3, 16*i))
    for j in range(nj):
        o.append('buffer_load_dwordx4 %s, v%d, s[8:11], s36 offen' % (vr(LDB+4*j, 4), AD+2))
        if j < nj-1: o.append('s_add_u32 s36, s36, 12288')
    if emit:
        for x in o: k(x)
    return o
def gemv_compute(k, nj, s_outoff, out_srd, L0, after, B=160, C=168, LDB=96):
    S = B+16; T = B+32; A = B+48
    k('v_and_b32 v%d, 7, v0' % B)
    k('v_lshrrev_b32 v%d, 3, v0' % (B+1))
    k('s_waitcnt vmcnt(%d)' % (nj + after))
    if OPT.get('p0st') and L0 == LN_LDS: stamp(k, 2)
    for i in range(nj//2):
        k('v_lshlrev_b32 v%d, 16, v%d' % (S+2*i, C+i))
        k('v_and_b32 v%d, 0xffff0000, v%d' % (S+1+2*i, C+i))
    for i in range(nj): k('v_mul_f32 v%d, 0x%x, v%d' % (T+i, f2u(-LOG2E), S+i))
    for i in range(nj): k('v_exp_f32 v%d, v%d' % (T+i, T+i))
    k('s_nop 0')
    for i in range(nj): k('v_add_f32 v%d, 1.0, v%d' % (T+i, T+i))
    for i in range(nj): k('v_rcp_f32 v%d, v%d' % (T+i, T+i))
    k('s_nop 0')
    for i in range(nj): k('v_mul_f32 v%d, v%d, v%d' % (S+i, S+i, T+i))
    for i in range(nj//2): k('v_cvt_pk_bf16_f32 v%d, v%d, v%d' % (T+i, S+2*i, S+1+2*i))
    for i in range(nj//2):
        k('v_lshlrev_b32 v%d, 16, v%d' % (S+2*i, T+i))
        k('v_and_b32 v%d, 0xffff0000, v%d' % (S+1+2*i, T+i))
    for i in range(8): k('v_mov_b32 v%d, 0' % (A+i))
    U = B+56
    for j in range(nj):
        k('s_waitcnt vmcnt(%d)' % (nj-1-j + after))
        for i in range(4):
            k('v_lshlrev_b32 v%d, 16, v%d' % (U+2*(i%2), LDB+4*j+i))
            k('v_and_b32 v%d, 0xffff0000, v%d' % (U+1+2*(i%2), LDB+4*j+i))
            k('v_fmac_f32 v%d, v%d, v%d' % (A+2*i, U+2*(i%2), S+j))
            k('v_fmac_f32 v%d, v%d, v%d' % (A+2*i+1, U+1+2*(i%2), S+j))
    if OPT.get('p0st') and L0 == LN_LDS: stamp(k, 3)
    k('v_lshlrev_b32 v%d, 8, v%d' % (B+4, B+1))
    k('v_lshl_add_u32 v%d, v%d, 5, v%d' % (B+4, B, B+4))
    k('v_add_u32 v%d, %d, v%d' % (B+4, L0, B+4))
    k('ds_write_b128 v%d, %s' % (B+4, vr(A, 4)))
    k('ds_write_b128 v%d, %s offset:16' % (B+4, vr(A+4, 4)))
    k('s_waitcnt lgkmcnt(0)')
    k('s_barrier')
    lab = k.L('skip')
    k('s_cmp_lg_u32 s26, 0')
    k('s_cbranch_scc1 %s' % lab)
    k('v_lshlrev_b32 v%d, 2, v1' % (B+6))
    k('v_add_u32 v%d, %d, v%d' % (B+4, L0, B+6))
    for h in range(4):
        for i in range(8): k('ds_read_b32 v%d, v%d offset:%d' % (LDB+8*h+i, B+4, (8*h+i)*256))
        if h in (1, 2): k('s_waitcnt lgkmcnt(7)')
    k('s_waitcnt lgkmcnt(0)')
    for i in range(16): k('v_add_f32 v%d, v%d, v%d' % (LDB+i, LDB+i, LDB+16+i))
    for st in (8, 4, 2, 1):
        for i in range(st): k('v_add_f32 v%d, v%d, v%d' % (LDB+i, LDB+i, LDB+st+i))
    k('buffer_store_dword v%d, v%d, s[%d:%d], s%d offen %s' % (LDB, B+6, out_srd, out_srd+3, s_outoff, ST))
    k.label(lab)

def kv_part(k, mid=None, nmid=1):
    B = 160
    k('s_sub_u32 s50, s2, 128')
    k('s_lshl_b32 s50, s50, 2')
    k('s_add_u32 s50, s50, s26')
    srd(k, 8, PK, 0x200000)
    srd(k, 12, PV, 0x200000)
    srd(k, 16, PWS, 0x100000, WS_KF)
    k('s_lshr_b32 s51, s50, 7')
    k('s_bfe_u32 s52, s50, 0x40003')
    k('s_lshl_b32 s54, s51, 19')
    k('s_lshl_b32 s55, s52, 13')
    k('s_add_u32 s54, s54, s55')
    k('s_add_u32 s54, s54, 0x60000')
    k('v_lshrrev_b32 v%d, 3, v1' % B)
    k('v_and_b32 v%d, 7, v1' % (B+1))
    k('v_lshlrev_b32 v%d, 8, v%d' % (B+2, B))
    k('v_lshl_add_u32 v%d, v%d, 4, v%d' % (B+2, B+1, B+2))
    k('s_bfe_u32 s53, s50, 0x20001')
    k('s_and_b32 s56, s50, 1')
    k('s_lshl_b32 s55, s53, 11')
    k('s_add_u32 s55, s55, s54')
    k('s_lshl_b32 s57, s56, 7')
    k('s_add_u32 s55, s55, s57')
    k('buffer_load_dwordx4 %s, v%d, s[8:11], s55 offen' % (vr(B+8, 4), B+2))
    k('v_lshrrev_b32 v%d, 2, v1' % (B+3))
    k('v_lshlrev_b32 v%d, 8, v%d' % (B+3, B+3))
    k('v_and_b32 v%d, 3, v1' % (B+4))
    k('v_lshl_add_u32 v%d, v%d, 4, v%d' % (B+3, B+4, B+3))
    k('s_bfe_u32 s55, s50, 0x10002')
    k('s_lshl_b32 s55, s55, 12')
    k('s_and_b32 s57, s50, 3')
    k('s_lshl_b32 s57, s57, 6')
    k('s_add_u32 s55, s55, s57')
    k('s_add_u32 s55, s55, s54')
    k('s_mul_i32 s57, s26, 4608')
    k('s_add_u32 s57, s57, %d' % (TR_LDS + 2304))
    k('s_mov_b32 m0, s57')
    k('s_nop 0')
    k('buffer_load_dwordx4 v%d, s[12:15], s55 offen lds' % (B+3))
    if mid:
        k('s_mov_b32 s58, s16'); k('s_mov_b32 s59, s17'); k('s_mov_b32 s60, s18')
        mid()
        k('s_mov_b32 s16, s58'); k('s_mov_b32 s17, s59'); k('s_mov_b32 s18, s60')
    k('v_lshrrev_b32 v%d, 5, v1' % (B+4))
    k('v_lshlrev_b32 v%d, 2, v%d' % (B+4, B+4))
    k('v_bfe_u32 v%d, v1, 2, 2' % (B+5))
    k('v_add_u32 v%d, v%d, v%d' % (B+4, B+4, B+5))
    k('v_lshlrev_b32 v%d, 6, v%d' % (B+4, B+4))
    k('v_bfe_u32 v%d, v1, 4, 1' % (B+5))
    k('v_lshl_add_u32 v%d, v%d, 5, v%d' % (B+4, B+5, B+4))
    k('v_and_b32 v%d, 1, v1' % (B+5))
    k('v_lshl_add_u32 v%d, v%d, 4, v%d' % (B+4, B+5, B+4))
    k('v_bfe_u32 v%d, v1, 1, 1' % (B+5))
    k('v_lshl_add_u32 v%d, v%d, 3, v%d' % (B+4, B+5, B+4))
    k('v_add_u32 v%d, s57, v%d' % (B+4, B+4))
    k('v_lshrrev_b32 v%d, 4, v1' % (B+6))
    k('v_lshlrev_b32 v%d, 10, v%d' % (B+6, B+6))
    k('v_bfe_u32 v%d, v1, 3, 1' % (B+5))
    k('v_lshl_add_u32 v%d, v%d, 9, v%d' % (B+6, B+5, B+6))
    k('v_lshl_add_u32 v%d, v%d, 4, v%d' % (B+6, B+1, B+6))
    k('s_lshr_b32 s55, s50, 3')
    k('s_lshl_b32 s55, s55, 13')
    k('s_lshl_b32 s57, s56, 12')
    k('s_add_u32 s55, s55, s57')
    k('s_lshl_b32 s57, s53, 7')
    k('s_add_u32 s55, s55, s57')
    k('s_waitcnt vmcnt(%d)' % (1 + nmid if mid else 1))
    tr8x8(k, B+8, 1, 240, 241)
    k('buffer_store_dwordx4 %s, v%d, s[16:19], s55 offen %s' % (vr(B+8, 4), B+6, ST))
    k('s_waitcnt vmcnt(%d)' % (1 + nmid if mid else 1))
    k('ds_read_b64_tr_b16 %s, v%d' % (vr(B+12, 2), B+4))
    k('ds_read_b64_tr_b16 %s, v%d offset:512' % (vr(B+14, 2), B+4))
    k('v_lshlrev_b32 v%d, 4, v1' % (B+5))
    k('s_lshl_b32 s55, s50, 10')
    k('s_add_u32 s55, s55, 0x%x' % (WS_VF - WS_KF))
    k('s_waitcnt lgkmcnt(0)')
    k('buffer_store_dwordx4 %s, v%d, s[16:19], s55 offen %s' % (vr(B+12, 4), B+5, ST))

def ln_addr(k):
    k('v_lshrrev_b32 v2, 6, v0')
    k('v_and_b32 v3, 7, v1')
    k('v_lshrrev_b32 v4, 3, v1')
    k('v_lshrrev_b32 v5, 1, v4')
    k('v_lshlrev_b32 v5, 10, v5')
    k('v_and_b32 v6, 1, v4')
    k('v_lshl_add_u32 v5, v6, 9, v5')
    k('v_lshl_add_u32 v5, v3, 4, v5')
    k('v_lshl_add_u32 v5, v2, 14, v5')
    k('v_lshlrev_b32 v6, 11, v4')
    k('v_lshl_add_u32 v6, v3, 4, v6')
    k('v_lshl_add_u32 v6, v2, 9, v6')
    tr_addr(k, 240, 241)
    k('v_lshlrev_b32 v7, 4, v0')
    k('v_lshlrev_b32 v8, 10, v2')
    k('v_lshl_add_u32 v8, v4, 5, v8')
    k('v_add_u32 v8, %d, v8' % LN_LDS)
    k('v_add_u32 v11, %d, v7' % LN_LDS)
    k('v_lshlrev_b32 v9, 4, v3')
    k('v_add_u32 v9, %d, v9' % (LN_LDS + 12288))
    k('v_lshl_add_u32 v10, v2, 2, v9')
    k('s_lshl_b32 s45, s24, 5')
    k('s_lshl_b32 s46, s22, 3')
    k('s_add_u32 s45, s45, s46')
    k('s_add_u32 s45, s45, s25')
    k('s_lshr_b32 s40, s45, 2')
    k('s_lshl_b32 s40, s40, 16')
    k('s_and_b32 s46, s45, 3')
    k('s_lshl_b32 s46, s46, 7')
    k('s_add_u32 s40, s40, s46')
    for j in range(1, 4): k('s_add_u32 s%d, s40, %d' % (40+j, j*4096))
    k('s_lshl_b32 s44, s45, 14')

TR_LDS = 126976
def tr_addr(k, vw, vrd):
    k('v_lshrrev_b32 v%d, 3, v1' % vw)
    k('v_mul_u32_u24 v%d, 144, v%d' % (vw, vw))
    k('v_and_b32 v%d, 7, v1' % vrd)
    k('v_lshl_add_u32 v%d, v%d, 4, v%d' % (vw, vrd, vw))
    k('v_mul_u32_u24 v%d, 144, v%d' % (vrd, vrd))
    k('v_lshrrev_b32 v29, 3, v1')
    k('v_lshl_add_u32 v%d, v29, 4, v%d' % (vrd, vrd))
    k('s_mul_i32 s27, s26, 4608')
    k('s_add_u32 s27, s27, %d' % TR_LDS)
    k('v_add_u32 v%d, s27, v%d' % (vw, vw))
    k('v_add_u32 v%d, s27, v%d' % (vrd, vrd))
def tr8x8(k, base, n, vw, vrd):
    for j in range(n): k('ds_write_b128 v%d, %s offset:%d' % (vw, vr(base + 4*j, 4), j*1152))
    k('s_waitcnt lgkmcnt(0)')
    for j in range(n): k('ds_read_b128 %s, v%d offset:%d' % (vr(base + 4*j, 4), vrd, j*1152))
    k('s_waitcnt lgkmcnt(0)')

X_ = 32
RAW = 64
def ln_unpack(k, src):
    for j in range(4):
        for i in range(4):
            k('v_lshlrev_b32 v%d, 16, v%d' % (X_ + 8*j + 2*i, src + 4*j + i))
            k('v_and_b32 v%d, 0xffff0000, v%d' % (X_ + 8*j + 2*i + 1, src + 4*j + i))
def ln_stats(k):
    RED = 0
    k('v_add_f32 v24, v%d, v%d' % (X_, X_+1))
    k('v_add_f32 v25, v%d, v%d' % (X_+2, X_+3))
    for i in range(4, 32, 2):
        k('v_add_f32 v24, v24, v%d' % (X_+i))
        k('v_add_f32 v25, v25, v%d' % (X_+i+1))
    k('v_add_f32 v24, v24, v25')
    reduce8(k, 24, 25)
    k('ds_write_b32 v10, v24 offset:%d' % RED)
    k('s_waitcnt lgkmcnt(0)')
    k('s_barrier')
    k('ds_read_b128 v[24:27], v9 offset:%d' % RED)
    k('s_waitcnt lgkmcnt(0)')
    k('v_add_f32 v24, v24, v25')
    k('v_add_f32 v26, v26, v27')
    k('v_add_f32 v24, v24, v26')
    k('v_mul_f32 v24, 0x%x, v24' % f2u(1.0/1024))
    for i in range(32): k('v_sub_f32 v%d, v%d, v24' % (X_+i, X_+i))
    k('v_mul_f32 v24, v%d, v%d' % (X_, X_))
    k('v_mul_f32 v25, v%d, v%d' % (X_+1, X_+1))
    for i in range(2, 32, 2):
        k('v_fmac_f32 v24, v%d, v%d' % (X_+i, X_+i))
        k('v_fmac_f32 v25, v%d, v%d' % (X_+i+1, X_+i+1))
    k('v_add_f32 v24, v24, v25')
    reduce8(k, 24, 25)
    k('ds_write_b32 v10, v24 offset:%d' % (RED + 128))
    k('s_waitcnt lgkmcnt(0)')
    k('s_barrier')
    k('ds_read_b128 v[24:27], v9 offset:%d' % (RED + 128))
    k('s_waitcnt lgkmcnt(0)')
    k('v_add_f32 v24, v24, v25')
    k('v_add_f32 v26, v26, v27')
    k('v_add_f32 v24, v24, v26')
    k('v_mov_b32 v25, 0x%x' % f2u(1e-5))
    k('v_fmac_f32 v25, 0x%x, v24' % f2u(1.0/1024))
    k('v_rsq_f32 v28, v25')
    k('s_nop 0')
    for i in range(32): k('v_mul_f32 v%d, v%d, v28' % (X_+i, X_+i))
def mod_loads(k, vecs, npart, base_off, MV, pstride):
    srd(k, 8, PWS, 0x10000, base_off or None)
    for n, (c, isscale) in enumerate(vecs):
        for p in range(npart):
            k('s_mov_b32 s27, %d' % (p*pstride + c*4096))
            k('buffer_load_dwordx4 %s, v7, s[8:11], s27 offen %s' % (vr(MV + (n*npart + p)*4, 4), LD()))
def mod_to_lds(k, vecs, npart, MV, mulc=None, mulsel=None):
    for n, (c, isscale) in enumerate(vecs):
        b = MV + n*npart*4
        for p in range(1, npart):
            for i in range(4): k('v_add_f32 v%d, v%d, v%d' % (b+i, b+i, b+4*p+i))
        def rnd():
            k('v_cvt_pk_bf16_f32 v%d, v%d, v%d' % (b+4, b, b+1))
            k('v_cvt_pk_bf16_f32 v%d, v%d, v%d' % (b+5, b+2, b+3))
            k('v_lshlrev_b32 v%d, 16, v%d' % (b, b+4))
            k('v_and_b32 v%d, 0xffff0000, v%d' % (b+1, b+4))
            k('v_lshlrev_b32 v%d, 16, v%d' % (b+2, b+5))
            k('v_and_b32 v%d, 0xffff0000, v%d' % (b+3, b+5))
        rnd()
        if isscale:
            for i in range(4): k('v_add_f32 v%d, 1.0, v%d' % (b+i, b+i))
            rnd()
        mc = mulc if mulc else (mulsel or {}).get(n)
        if mc:
            for i in range(4): k('v_mul_f32 v%d, 0x%x, v%d' % (b+i, mc, b+i))
        k('ds_write_b128 v11, %s offset:%d' % (vr(b, 4), n*4096))
def ln_apply_store(k, sh, sc, hoff):
    srd(k, 16, PWS, 0x400000, hoff)
    for j in range(4):
        k('ds_read_b128 v[16:19], v8 offset:%d' % (sc*4096 + j*256))
        k('ds_read_b128 v[20:23], v8 offset:%d' % (sc*4096 + j*256 + 16))
        k('ds_read_b128 v[96:99], v8 offset:%d' % (sh*4096 + j*256))
        k('ds_read_b128 v[100:103], v8 offset:%d' % (sh*4096 + j*256 + 16))
        k('s_waitcnt lgkmcnt(0)')
        for i in range(8): k('v_fma_f32 v%d, v%d, v%d, v%d' % (X_ + 8*j + i, X_ + 8*j + i, 16+i, 96+i))
        for i in range(4): k('v_cvt_pk_bf16_f32 v%d, v%d, v%d' % (104 + 4*j + i, X_ + 8*j + 2*i, X_ + 8*j + 2*i + 1))
        k('buffer_store_dwordx4 %s, v5, s[16:19], s%d offen %s' % (vr(104 + 4*j, 4), 40+j, ST))

TICKET_LDS = LN_LDS + 12288 + 512
def ticket_issue(k):
    lab = k.L('tk')
    k('s_getreg_b32 s3, hwreg(HW_REG_XCC_ID, 0, 4)')
    k('s_and_b32 s3, s3, 7')
    k('s_cmp_lg_u32 s26, 0')
    k('s_cbranch_scc1 %s' % lab)
    k('s_lshl_b32 s27, s3, 2')
    k('s_add_u32 s27, s27, 132')
    k('v_mov_b32 v2, s27')
    k('v_mov_b32 v3, 1')
    k('s_mov_b64 exec, 1')
    k('global_atomic_add v250, v2, v3, s[%d:%d] sc0 sc1' % (PDBG, PDBG+1))
    k('s_mov_b64 exec, -1')
    k.label(lab)
def ticket_publish(k, name):
    lab = k.L('tp'); ok = k.L('tok'); sp = k.L('tsp'); spd = k.L('tsd')
    k('s_cmp_lg_u32 s26, 0')
    k('s_cbranch_scc1 %s' % lab)
    k('s_waitcnt vmcnt(0)')
    k('v_readfirstlane_b32 s27, v250')
    k('s_mov_b32 s28, s3')
    k('s_cmp_lt_u32 s27, 32')
    k('s_cbranch_scc1 %s' % ok)
    k('s_mov_b64 exec, 1')
    k('v_mov_b32 v2, 0')
    k('s_mov_b32 s29, 0')
    k.label(sp)
    k('global_load_dwordx4 v[16:19], v2, s[%d:%d] offset:132 sc1' % (PDBG, PDBG+1))
    k('global_load_dwordx4 v[20:23], v2, s[%d:%d] offset:148 sc1' % (PDBG, PDBG+1))
    k('s_waitcnt vmcnt(0)')
    for i in range(8): k('v_readfirstlane_b32 s%d, v%d' % (50+i, 16+i))
    k('s_nop 3')
    k('s_mov_b32 s58, 0')
    for i in range(8): k('s_add_u32 s58, s58, s%d' % (50+i))
    k('s_add_u32 s29, s29, 1')
    k('s_cmp_ge_u32 s58, 256')
    k('s_cbranch_scc1 %s' % spd)
    k('s_cmp_ge_u32 s29, 0x40000')
    k('s_cbranch_scc1 %s' % spd)
    k('s_sleep 4')
    k('s_branch %s' % sp)
    k.label(spd)
    k('v_mov_b32 v2, 164')
    k('v_mov_b32 v3, 1')
    k('global_atomic_add v16, v2, v3, s[%d:%d] sc0 sc1' % (PDBG, PDBG+1))
    k('s_waitcnt vmcnt(0)')
    k('v_readfirstlane_b32 s29, v16')
    k('s_mov_b64 exec, -1')
    k('s_mov_b32 s28, 0')
    k('s_mov_b32 s27, 31')
    for i in range(8):
        nx = k.L('tn')
        k('s_min_u32 s58, s%d, 32' % (50+i))
        k('s_sub_u32 s59, 32, s58')
        k('s_cmp_lt_u32 s29, s59')
        k('s_cbranch_scc0 %s' % nx)
        k('s_mov_b32 s28, %d' % i)
        k('s_add_u32 s27, s58, s29')
        k('s_branch %s' % ok)
        k.label(nx)
        k('s_sub_u32 s29, s29, s59')
    k.label(ok)
    k('s_lshl_b32 s27, s27, 3')
    k('s_or_b32 s27, s27, s28')
    k('v_mov_b32 v2, %d' % TICKET_LDS)
    k('v_mov_b32 v3, s27')
    k('ds_write_b32 v2, v3')
    k('s_waitcnt lgkmcnt(0)')
    k.label(lab)
def ticket_fetch(k):
    k('v_mov_b32 v2, %d' % TICKET_LDS)
    k('ds_read_b32 v3, v2')
    k('s_mov_b32 s63, s24')
    k('s_waitcnt lgkmcnt(0)')
    k('v_readfirstlane_b32 s3, v3')
    k('s_nop 3')
    k('s_and_b32 s20, s3, 7')
    k('s_lshr_b32 s21, s3, 3')
    k('s_lshr_b32 s22, s20, 1')
    k('s_and_b32 s23, s20, 1')
    k('s_and_b32 s24, s21, 3')
    k('s_lshl_b32 s27, s23, 2')
    k('s_add_u32 s24, s24, s27')
    k('s_lshr_b32 s25, s21, 2')

def phase_p0(k, name):
    stamp_rt0(k, 'p0')
    stamp(k, 0)
    if MEGA and OPT.get('ticket'): ticket_issue(k)
    if MEGA and OPT.get('local'):
        lab = k.L('xp')
        k('s_getreg_b32 s3, hwreg(HW_REG_XCC_ID, 0, 4)')
        k('s_cmp_lg_u32 s26, 0')
        k('s_cbranch_scc1 %s' % lab)
        k('s_lshl_b32 s27, s2, 2')
        k('s_add_u32 s27, s27, 0x%x' % WS_XCC)
        k('v_mov_b32 v2, s27')
        k('v_mov_b32 v3, s3')
        k('s_mov_b64 exec, 1')
        k('global_store_dword v2, v3, s[%d:%d] sc1' % (PWS, PWS+1))
        k('s_mov_b64 exec, -1')
        k.label(lab)
    if OPT.get('diagxcd'):
        lab = k.L('dx')
        k('s_getreg_b32 s58, hwreg(HW_REG_XCC_ID, 0, 4)')
        k('s_and_b32 s58, s58, 7')
        k('s_cmp_lg_u32 s26, 0')
        k('s_cbranch_scc1 %s' % lab)
        k('s_lshl_b32 s27, s58, 2')
        k('s_add_u32 s27, s27, 168')
        k('v_mov_b32 v2, s27')
        k('s_and_b32 s27, s2, 7')
        k('s_lshl_b32 s27, 1, s27')
        k('v_mov_b32 v3, s27')
        k('s_mov_b64 exec, 1')
        k('global_atomic_or v2, v3, s[%d:%d] sc1' % (PDBG, PDBG+1))
        k('s_mov_b64 exec, -1')
        k.label(lab)
    def xloads():
        ln_addr(k)
        srd(k, 16, PX, 0x400000)
        for j in range(4): k('buffer_load_dwordx4 %s, v6, s[16:19], s44 offen offset:%d' % (vr(RAW + 4*j, 4), j*128))
    def s1addr():
        k('s_mov_b32 s6, s%d' % PDBG)
        k('s_mov_b32 s7, s%d' % (PDBG+1))
    def kvaddr():
        k('s_add_u32 s6, s%d, 4' % PDBG)
        k('s_addc_u32 s7, s%d, 0' % (PDBG+1))
    def wq_touch():
        lab = k.L('wq')
        k('s_cmp_eq_u32 s26, 0')
        k('s_cbranch_scc1 %s' % lab)
        srd(k, 16, PWQ, 1024*4096*2)
        k('v_lshrrev_b32 v15, 4, v0')
        k('v_and_b32 v12, 15, v0')
        k('v_lshlrev_b32 v15, 13, v15')
        k('v_lshl_add_u32 v15, v12, 7, v15')
        k('s_lshl_b32 s36, s21, 17')
        k('s_lshl_b32 s37, s22, 11')
        k('s_add_u32 s36, s36, s37')
        k('s_lshl_b32 s37, s23, 22')
        k('s_add_u32 s36, s36, s37')
        k('buffer_load_dword v13, v15, s[16:19], s36 offen')
        k('s_cmp_lg_u32 s26, 1')
        k('s_cbranch_scc1 %s' % lab)
        k('v_subrev_u32 v15, 0x8000, v15')
        k('buffer_load_dword v14, v15, s[16:19], s36 offen')
        k.label(lab)
    k('s_cmp_ge_u32 s2, 128')
    k('s_cbranch_scc1 %s_kv' % name)
    srd(k, 8, PWMOD, 1024*6144*2)
    srd(k, 12, PC_, 2048)
    k('s_and_b32 s38, s2, 31')
    k('s_lshr_b32 s39, s2, 5')
    k('s_lshl_b32 s47, s39, 8')
    k('s_lshl_b32 s48, s38, 7')
    k('s_lshl_b32 s49, s39, 13')
    k('s_lshl_b32 s38, s38, 8')
    k('s_add_u32 s49, s49, s38')
    gemv_load(k, 8, 47, 48)
    xloads()
    if OPT.get('p0st'): stamp(k, 1)
    if MEGA:
        lab = k.L('z')
        k('s_or_b32 s27, s2, s26')
        k('s_cmp_lg_u32 s27, 0')
        k('s_cbranch_scc1 %s' % lab)
        srd(k, 16, PWS, 192*128, WS_CNT)
        k('v_lshlrev_b32 v16, 7, v1')
        k('v_mov_b32 v17, 0')
        for z in range(3): k('buffer_store_dword v17, v16, s[16:19], 0 offen offset:0 %s' % ST) if z == 0 else (k('v_add_u32 v%d, %d, v16' % (18+z, 8192*z)), k('buffer_store_dword v17, v%d, s[16:19], 0 offen %s' % (18+z, ST)))
        k('s_waitcnt vmcnt(0)')
        k.label(lab)
    srd(k, 16, PWS, 0x8000, WS_MOD or None)
    gemv_compute(k, 8, 49, 16, LN_LDS, 4)
    if not OPT.get('p0st'): stamp(k, 1)
    arrive(k, s1addr, count=128, only_w0=True, flag_off=128)
    lab = k.L('w0'); k('s_cmp_eq_u32 s26, 0'); k('s_cbranch_scc1 %s' % lab); k('s_waitcnt vmcnt(0)'); k.label(lab)
    if OPT.get('p0st'): stamp(k, 4)
    k('s_branch %s_pf' % name)
    k.label(name + '_kv')
    kv_part(k, xloads, 4)
    if not MEGA:
        modb_addr(k, 128)
        gemv_load(k, 16, 47, 48)
        srd(k, 16, PWS, 0x8000, WS_MODB)
        gemv_compute(k, 16, 49, 16, LN_LDS, 0)
    stamp(k, 1)
    arrive(k, kvaddr)
    k.label(name + '_pf')
    if MEGA and OPT.get('ticket'): ticket_publish(k, name)
    tr8x8(k, RAW, 4, 240, 241)
    ln_unpack(k, RAW)
    ln_stats(k)
    if MEGA: k('s_mov_b32 s63, s24')
    wq_touch()
    if not OPT.get('p0st'): stamp(k, 2)

def modb_addr(k, first):
    srd(k, 8, PWMOD, 1024*6144*2)
    srd(k, 12, PC_, 2048)
    k('s_sub_u32 s38, s2, %d' % first)
    k('s_lshr_b32 s39, s38, 6')
    k('s_and_b32 s38, s38, 63')
    k('s_lshl_b32 s47, s39, 9')
    k('s_lshl_b32 s48, s38, 7')
    k('s_add_u32 s48, s48, 4096')
    k('s_lshl_b32 s49, s39, 14')
    k('s_lshl_b32 s38, s38, 8')
    k('s_add_u32 s49, s49, s38')

def phase_ln1b(k):
    def s1addr():
        k('s_mov_b32 s6, s%d' % PDBG)
        k('s_mov_b32 s7, s%d' % (PDBG+1))
    waitfor(k, s1addr, 1, off=128)
    if not OPT.get('p0st'): stamp(k, 3)
    vecs = [(0, False), (1, True)]
    mod_loads(k, vecs, 4, WS_MOD, 96, 8192)
    k('s_waitcnt vmcnt(0)')
    mod_to_lds(k, vecs, 4, 96, f2u(128**-0.5 * LOG2E))
    k('s_waitcnt lgkmcnt(0)')
    k('s_barrier')
    ln_apply_store(k, 0, 1, WS_H)
    def a():
        k('s_add_u32 s27, s63, %d' % C_S2); cnt_addr(k, 27)
    arrive(k, a, count=32, flag_off=128)
    if not OPT.get('p0st'): stamp(k, 4)
    stamp_flush(k, 'p0', 5)

def phase_ln2(k, mode):
    stamp_rt0(k, mode)
    stamp(k, 0)
    ln_addr(k)
    vecs = [(0, False), (1, False), (2, True)] if mode == 'ln2' else [(3, False)]
    MV = 144
    if MEGA and mode == 'ln2':
        def s1b():
            k('s_mov_b32 s6, s%d' % PDBG); k('s_mov_b32 s7, s%d' % (PDBG+1))
        waitfor(k, s1b, 256, off=8)
    NPB = 4 if MEGA else 2
    if NPB == 4: MV = 168
    mod_loads(k, vecs, NPB, WS_MODB, MV, 16384)
    if mode == 'ln2':
        srd(k, 12, PX, 0x400000)
        for j in range(4): k('buffer_load_dwordx4 %s, v6, s[12:15], s44 offen offset:%d' % (vr(RAW + 4*j, 4), j*128))
    k('s_waitcnt vmcnt(%d)' % (4 if mode == 'ln2' else 0))
    if mode == 'ln2': mod_to_lds(k, vecs, NPB, MV, None, mulsel={1: f2u(-LOG2E), 2: f2u(-LOG2E)})
    else: mod_to_lds(k, vecs, NPB, MV, f2u(1.0/(LOG2E*LOG2E)))
    def a():
        k('s_add_u32 s27, s24, %d' % (C_S4 if mode == 'ln2' else C_S7)); cnt_addr(k, 27)
    k('s_waitcnt lgkmcnt(0)')
    if MEGA: waitfor(k, a, 1, off=128, direct=32)
    else: k('s_barrier')
    stamp(k, 1)
    srd(k, 12, PWS, 0x1000000, WS_P1 if mode == 'ln2' else WS_P2)
    for j in range(4):
        for q in range(4):
            k('s_add_u32 s27, s%d, 0x%x' % (40+j, q*0x400000))
            k('buffer_load_dwordx4 %s, v5, s[12:15], s27 offen %s' % (vr(RAW + 16 + q*16 + 4*j, 4), LD()))
    if mode == 'final':
        srd(k, 8, PWS, 0x400000, WS_X1)
        for j in range(4): k('buffer_load_dwordx4 %s, v5, s[8:11], s%d offen %s' % (vr(RAW + 4*j, 4), 40+j, LD()))
        k('s_waitcnt vmcnt(0)')
        ln_unpack(k, RAW)
    else:
        k('s_waitcnt vmcnt(16)')
        tr8x8(k, RAW, 4, 240, 241)
        ln_unpack(k, RAW)
    for j in range(4):
        k('ds_read_b128 v[16:19], v8 offset:%d' % (j*256))
        k('ds_read_b128 v[20:23], v8 offset:%d' % (j*256 + 16))
        if mode == 'ln2': k('s_waitcnt vmcnt(%d)' % (12 - 4*j))
        for i in range(4):
            k('v_lshlrev_b32 v24, 16, v%d' % (RAW + 16 + 4*j + i))
            k('v_and_b32 v25, 0xffff0000, v%d' % (RAW + 16 + 4*j + i))
            for q in range(1, 4):
                k('v_lshlrev_b32 v26, 16, v%d' % (RAW + 16 + q*16 + 4*j + i))
                k('v_and_b32 v27, 0xffff0000, v%d' % (RAW + 16 + q*16 + 4*j + i))
                k('v_add_f32 v24, v24, v26')
                k('v_add_f32 v25, v25, v27')
            if i == 0: k('s_waitcnt lgkmcnt(0)')
            k('v_fmac_f32 v%d, v24, v%d' % (X_ + 8*j + 2*i, 16 + 2*i))
            k('v_fmac_f32 v%d, v25, v%d' % (X_ + 8*j + 2*i + 1, 17 + 2*i))
    for j in range(4):
        for i in range(4):
            k('v_cvt_pk_bf16_f32 v%d, v%d, v%d' % (RAW + 4*j + i, X_ + 8*j + 2*i, X_ + 8*j + 2*i + 1))
    if mode == 'final':
        srd(k, 12, POUT, 0x400000)
        tr8x8(k, RAW, 4, 240, 241)
        for j in range(4): k('buffer_store_dwordx4 %s, v6, s[12:15], s44 offen offset:%d' % (vr(RAW + 4*j, 4), j*128))
    else:
        srd(k, 16, PWS, 0x400000, WS_X1)
        for j in range(4): k('buffer_store_dwordx4 %s, v5, s[16:19], s%d offen %s' % (vr(RAW + 4*j, 4), 40+j, ST))
        ln_unpack(k, RAW)
        ln_stats(k)
        ln_apply_store(k, 1, 2, WS_H2)
        def a5():
            k('s_add_u32 s27, s24, %d' % C_S5); cnt_addr(k, 27)
        arrive(k, a5, count=32, flag_off=128)
    stamp(k, 2)
    stamp_flush(k, mode, 3)

def attn_setup(k):
    vL = [4, 5, 6, 7]; vX = [8, 9]; vW = [10, 11, 12, 13]
    ldw = 8192
    k('s_lshl_b32 s35, s22, 3')
    k('s_add_u32 s35, s35, s25')
    k('s_mov_b32 s62, s35')
    lds_addr_128(k, vL, tmp=40)
    k('v_lshlrev_b32 v8, 4, v1')
    k('v_add_u32 v9, 0x10000, v8')
    k('s_lshl_b32 s28, s62, 8')
    w128_voffsets(k, vW, ldw, 28, 40)
    srd(k, 8, PWS, 0x400000, WS_H)
    srd(k, 12, PWQ, 0x800000)
    k('s_lshl_b32 s27, s24, 3')
    k('s_lshl_b32 s28, s26, 1')
    k('s_add_u32 s34, s27, s28')
    k('s_lshl_b32 s30, s34, 16')
    k('s_sub_u32 s30, s30, 4096')
    k('s_mov_b32 s31, 0x%x' % ((-64*ldw) & 0xffffffff))
    k('s_lshl_b32 s32, s26, 12')
    return vL, vX, vW, ldw

def phase_attn(k, name, next_prefetch=None):
    stamp_rt0(k, 'attn')
    if not OPT.get('tailst'): stamp(k, 0)
    vL, vX, vW, ldw = attn_setup(k)
    KSLOT = [65536, 81920, 98304, 0, 16384]
    VSLOT = [114688, 131072, 147456, 32768, 49152]
    FLAG = 33792
    QF = lambda mb, ks: 64 + (mb*8 + ks)*4
    SB = lambda par, mb: 128 + (par*2 + mb)*16
    PB = lambda par, mb, kk: 192 + ((par*2 + mb)*2 + kk)*4
    CB = lambda mb: 224 + mb*16
    def OA(db, mb):
        i = db*2 + mb
        return i*16 if i < 6 else 192 + (i-6)*16
    KF = lambda ks: 128 + ks*4
    VF = lambda q: 160 + q*4
    LS = lambda mb, p: 33 + mb*2 + p
    MG = lambda mb: 37 + mb
    KT = (36, 37, 38, 39, 40); VT = (41, 42, 43, 29, 35)
    TT = (8, 9, 10, 12, 13, 14, 54, 55, 56, 57, 61, 63)
    kvflag = LD()
    def kdma(soff, pre0, tagid):
        return [(pre0 if i == 0 else [], 'buffer_load_dwordx4 v28, s[44:47], s%d offen offset:%d %s lds' % (soff, i*1024, kvflag), ('K', tagid, i)) for i in range(4)]
    def vdma(soff, pre0, tagid):
        return [(pre0 if i == 0 else [], 'buffer_load_dwordx4 v28, s[48:51], s%d offen offset:%d %s lds' % (soff, i*1024, kvflag), ('V', tagid, i)) for i in range(4)]
    def dma_list(lst):
        ops = []
        for (kind, s_) in lst:
            if kind == 'K': ops += kdma(52, ['s_mov_b32 s52, %d' % (s_*16384), 's_add_u32 m0, s32, %d' % KSLOT[s_ % 5]], s_)
            else: ops += vdma(53, ['s_mov_b32 s53, %d' % (s_*16384), 's_add_u32 m0, s32, %d' % VSLOT[s_ % 5]], s_)
        return ops
    def initial_dmas(): return dma_list([('K', 0), ('V', 0), ('K', 1), ('V', 1), ('K', 2), ('V', 2)])
    ini = initial_dmas()
    zero_list = ['v_accvgpr_write_b32 a%d, 0' % r for r in list(range(192, 224)) + list(range(0, 96))]
    def extra(t, j):
        out = []
        order = [(12, 3)] + [(tt, jj) for tt in (13, 14, 15) for jj in range(4)]
        if (t, j) in order:
            p = order.index((t, j))
            out += ini[(p*len(ini))//13:((p+1)*len(ini))//13]
        if t in (12, 13, 14, 15):
            z = zero_list[(t-12)*32:(t-11)*32]
            out += z[j*8:(j+1)*8]
        return out
    g = Gemm(k, 4, 16, acc=128, xr=0, wf=128, vX=vX, vW=vW, sXsrd=8, sWsrd=12, sXoff=30, sWoff=31, sM0=32, sCnt=33,
             stage_bytes=16384, ldw_step=64*ldw, nW=4,
             lds_imm=lambda buf, j, nb, sec: (vL[nb], buf*16384 + j*4096 + sec*1024), extra=extra, xflag=LD())
    if MEGA: g.prologue_w()
    k('s_lshl_b32 s27, s26, 12')
    k('v_add_u32 v28, s27, v8')
    k('v_add_u32 v16, %d, v8' % KSLOT[0])
    k('v_add_u32 v17, %d, v8' % VSLOT[0])
    k('v_lshlrev_b32 v18, 7, v1')
    k('s_lshl_b32 s27, s26, 13')
    k('v_add_u32 v18, s27, v18')
    k('s_lshl_b32 s27, s22, 17')
    k('s_add_u32 s28, s27, 0x%x' % WS_KF)
    srd_s(k, 44, PWS, 28, 0x20000)
    k('s_add_u32 s28, s27, 0x%x' % WS_VF)
    srd_s(k, 48, PWS, 28, 0x20000)
    k('v_mov_b32 v%d, 0xff800000' % MG(0))
    k('v_mov_b32 v%d, 0xff800000' % MG(1))
    k('s_mov_b32 s59, 0')
    if MEGA:
        def a():
            k('s_add_u32 s27, s24, %d' % C_S2); cnt_addr(k, 27)
        def kvw():
            k('s_mov_b32 s6, s%d' % PDBG); k('s_mov_b32 s7, s%d' % (PDBG+1))
        waitfor(k, kvw, 128, off=4)
        waitfor(k, a, 1, off=128, direct=32)
        g.prologue_x()
    if MEGA and OPT.get('local'):
        k('v_lshlrev_b32 v21, 7, v1')
        k('s_and_b32 s27, s24, 3')
        k('s_lshl_b32 s27, s27, 5')
        k('s_lshl_b32 s28, s20, 2')
        k('s_add_u32 s27, s27, s28')
        k('s_add_u32 s27, s27, 0x%x' % WS_XCC)
        k('v_add_u32 v21, s27, v21')
        k('s_mov_b64 exec, 0xff')
        k.vm('global_load_dword v22, v21, s[%d:%d] sc1' % (PWS, PWS+1), ('Z', 0, 0))
        k('s_mov_b64 exec, -1')
    if not MEGA:
        g.prologue_mixed()
    if not OPT.get('tailst'): stamp(k, 1)
    g.start()
    def epiQ(nb):
        out = []
        for mb in range(2):
            a = g.accr(nb, mb)
            for hh in range(2):
                for r in range(4):
                    out.append('v_cvt_pk_bf16_f32 v%d, v%d, v%d' % (QF(mb, 2*nb+hh) + r, a + hh*8 + 2*r, a + hh*8 + 2*r + 1))
        return out
    g.mainloop(epiQ, tail=1)
    if not OPT.get('tailst'): stamp(k, 2)
    if MEGA and OPT.get('local'):
        k('s_mov_b64 exec, 0xff')
        k('v_cmp_eq_u32 vcc, s3, v22')
        k('s_mov_b64 exec, -1')
        k('s_nop 1')
        k('s_cmp_eq_u32 vcc_lo, 0xff')
        k('s_cselect_b32 s3, 1, 0')
        if OPT.get('forceslow'): k('s_mov_b32 s3, 0')
    k('s_mul_i32 s27, s2, 28672')
    for n_, (lo, sz, add) in enumerate([(PWG, 1024*3584*2, 0), (PWG, 1024*3584*2, 4096), (PWU, 1024*3584*2, 0), (PWU, 1024*3584*2, 4096)]):
        k('s_add_u32 s28, s27, %d' % add)
        k('s_add_u32 s%d, s%d, s28' % (TT[3*n_], lo))
        k('s_addc_u32 s%d, s%d, 0' % (TT[3*n_+1], lo+1))
        k('s_sub_u32 s%d, 0x%x, s28' % (TT[3*n_+2], sz))
    n = k.vm_wait_n(lambda tg: tg[0] in 'KV' and tg[1] == 0)
    k('s_waitcnt vmcnt(%d)' % n)
    k.label(name + '_pro')
    k('s_barrier')
    for i_ in range(5):
        k('s_mov_b32 s%d, %d' % (KT[i_], KSLOT[i_]))
        k('s_mov_b32 s%d, %d' % (VT[i_], VSLOT[i_]))
    for ks in range(8): k('ds_read_b128 %s, v16 offset:%d' % (ar(KF(ks), 4), ks*1024))
    for mb in range(2):
        for p in range(2): k('v_mov_b32 v%d, 0' % LS(mb, p))
    k('s_waitcnt lgkmcnt(0)')
    for mb in range(2):
        for ks in range(8):
            d = vr(SB(0, mb), 16)
            k('%s %s, %s, %s, %s' % (MFMA, d, ar(KF(ks), 4), vr(QF(mb, ks), 4), '0' if ks == 0 else d))
    k('s_nop 3')
    k('s_nop 7')
    for mb in range(2):
        s0 = SB(0, mb); m = 40 + mb
        k('v_max3_f32 v%d, v%d, v%d, v%d' % (m, s0, s0+1, MG(mb)))
        for r in range(2, 16, 2): k('v_max3_f32 v%d, v%d, v%d, v%d' % (m, m, s0+r, s0+r+1))
    k('v_mov_b32 v42, v40')
    k('v_mov_b32 v43, v41')
    k('s_nop 1')
    k('v_permlane32_swap_b32 v40, v42')
    k('v_permlane32_swap_b32 v41, v43')
    k('s_nop 1')
    k('v_max_f32 v40, v40, v42')
    k('v_max_f32 v41, v41, v43')
    for mb in range(2):
        for r in range(16): k('v_sub_f32 v%d, 0, v%d' % (CB(mb) + r, 40+mb))
        for r in range(16): k('v_sub_f32 v%d, v%d, v%d' % (SB(0, mb) + r, SB(0, mb) + r, 40+mb))
    if not OPT.get('tailst'): stamp(k, 3)

    def pair_ops(par, p):
        mb, pp = p // 8, p % 8
        s0 = SB(par, mb); a, b = s0 + 2*pp, s0 + 2*pp + 1
        E = ['v_exp_f32 v%d, v%d' % (a, a), 'v_exp_f32 v%d, v%d' % (b, b)]
        A_ = ['v_add_f32 v%d, v%d, v%d' % (LS(mb, 0), LS(mb, 0), a), 'v_add_f32 v%d, v%d, v%d' % (LS(mb, 1), LS(mb, 1), b)]
        C_ = ['v_cvt_pk_bf16_f32 v%d, v%d, v%d' % (PB(par, mb, pp // 4) + pp % 4, a, b)]
        return E, A_, C_
    def iteration(par, do_pv, do_s, kread_kb, vread_kb, carry_in, gap_extra=None):
        gap_extra = gap_extra or {}
        mf = []
        if do_pv:
            for kk in range(2):
                for db in range(4):
                    for mb in range(2):
                        d = ar(OA(db, mb), 16)
                        mf.append('%s %s, %s, %s, %s' % (MFMA, d, ar(VF(kk*4+db), 4), vr(PB(1-par, mb, kk), 4), d))
        else: mf += [None]*16
        if do_s:
            for mb in range(2):
                for ks in range(8):
                    d = vr(SB(1-par, mb), 16)
                    mf.append('%s %s, %s, %s, %s' % (MFMA, d, ar(KF(ks), 4), vr(QF(mb, ks), 4), vr(CB(mb), 16) if ks == 0 else d))
        else: mf += [None]*16
        pre = {0: ['s_waitcnt lgkmcnt(2)'] if do_pv else []}
        nk = 8 if kread_kb is not None else 0
        if do_pv: pre[12] = ['s_waitcnt lgkmcnt(%d)' % (6 if nk else 0)]
        if do_s:
            pre[16] = ['s_waitcnt lgkmcnt(2)']
            pre[22] = ['s_waitcnt lgkmcnt(3)']
        for g_ in range(32):
            for x in pre.get(g_, []): k(x)
            if mf[g_]: k(mf[g_])
            p = g_ // 2
            if g_ % 2 == 0:
                for x in pair_ops(par, p)[0]: k(x)
                if p >= 1: k(pair_ops(par, p-1)[2][0])
                elif carry_in: k(pair_ops(1-par, 15)[2][0])
            else:
                if p >= 1:
                    for x in pair_ops(par, p-1)[1]: k(x)
                elif carry_in:
                    for x in pair_ops(1-par, 15)[1]: k(x)
                if g_ < 16:
                    if kread_kb is not None: k('ds_read_b128 %s, v16 offset:%d' % (ar(KF(p), 4), kread_kb*8192 + p*1024))
                else:
                    k('ds_read_b128 %s, v17 offset:%d' % (ar(VF(p-8), 4), vread_kb*8192 + (p-8)*1024))
            for x in gap_extra.get(g_, []):
                if isinstance(x, str): k(x)
                else:
                    pre_, ins, tag = x[0], x[1], x[2]
                    for p_ in pre_: k(p_)
                    if pre_ and 'm0' in pre_[-1]: k('s_nop 0')
                    k.vm(ins, tag)
                    if len(x) > 3:
                        for p_ in x[3]: k(p_)
    def touch(half):
        pre = ['s_mov_b32 s16, s%d' % TT[0], 's_mov_b32 s17, s%d' % TT[1], 's_mov_b32 s18, s%d' % TT[2], 's_mov_b32 s19, 0x20000']
        if half: pre += ['s_mov_b32 exec_hi, 0']
        return (pre, 'buffer_load_dword v19, v18, s[16:19], 0 offen', ('T', 0, 0), ['s_mov_b32 exec_hi, -1'] if half else [])
    sh = ['s_mov_b32 s%d, s%d' % (TT[n_], TT[n_+3]) for n_ in range(9)]
    g0 = {}
    for i_, op in enumerate(dma_list([('K', 3), ('V', 3), ('K', 4)])): g0.setdefault(1 + i_, []).append(op)
    g0.setdefault(20, []).extend(['s_mov_b32 s52, %d' % (5*16384), 's_mov_b32 s53, %d' % (4*16384)])
    iteration(0, False, True, 1, 0, False, g0)
    def rot(T): return ['s_mov_b32 s58, s%d' % T[0]] + ['s_mov_b32 s%d, s%d' % (T[i_], T[i_+1]) for i_ in range(4)] + ['s_mov_b32 s%d, s58' % T[4]]
    def trip(with_dma):
        ge = {0: ['v_add_u32 v16, s%d, v8' % KT[1]]}
        if with_dma:
            ge[0] += ['s_waitcnt vmcnt(20)', 's_barrier']
            dm = vdma(53, ['s_add_u32 m0, s32, s%d' % VT[4]], 'n') + kdma(52, ['s_add_u32 m0, s32, s%d' % KT[0]], 'n')
            for i_, op in enumerate(dm): ge.setdefault(2 + 2*i_, []).append(op)
            ge.setdefault(27, []).extend(['s_add_u32 s52, s52, 16384', 's_add_u32 s53, s53, 16384'])
            if not OPT.get('notouch'):
                ge.setdefault(19, []).append(touch(True))
                ge.setdefault(21, []).extend(sh[:5]); ge.setdefault(23, []).extend(sh[5:])
        elif not OPT.get('notouch'):
            ge.setdefault(2, []).append(touch(False))
            ge.setdefault(5, []).extend(sh[:5]); ge.setdefault(7, []).extend(sh[5:])
        ge.setdefault(29, []).extend(rot(KT))
        iteration(1, True, True, 0, 1, True, ge)
        ge2 = {2: ['v_add_u32 v17, s%d, v8' % VT[1]], 4: rot(VT), 31: ['s_sub_u32 s60, s60, 1', 's_cmp_lg_u32 s60, 0']}
        iteration(0, True, True, 1, 0, True, ge2)
    k('s_mov_b32 s60, 4')
    lab = k.L('aloop'); k.label(lab)
    trip(True)
    k('s_cbranch_scc1 %s' % lab)
    k('s_mul_i32 s27, s2, 28672')
    k('s_add_u32 s%d, s%d, s27' % (TT[0], PWD))
    k('s_addc_u32 s%d, s%d, 0' % (TT[1], PWD+1))
    k('s_sub_u32 s%d, 0x%x, s27' % (TT[2], 3584*1024*2))
    k('s_lshl_b32 s27, s20, 20')
    k('s_lshl_b32 s28, s21, 15')
    k('s_add_u32 s27, s27, s28')
    k('s_add_u32 s%d, s%d, s27' % (TT[3], PWO))
    k('s_addc_u32 s%d, s%d, 0' % (TT[4], PWO+1))
    k('s_mov_b32 s%d, 0x8000' % TT[5])
    for n_ in (2, 3):
        k('s_mov_b32 s%d, s%d' % (TT[3*n_], PWS))
        k('s_mov_b32 s%d, s%d' % (TT[3*n_+1], PWS+1))
        k('s_mov_b32 s%d, 0' % TT[3*n_+2])
    k('s_waitcnt vmcnt(%d)' % (0 if OPT.get('notouch') else 1))
    k('s_barrier')
    if MEGA: code_touch(k, name + '_L_oproj', name + '_L_gateup', 30)
    k('s_mov_b32 s60, 3')
    lab = k.L('bloop'); k.label(lab)
    trip(False)
    k('s_cbranch_scc1 %s' % lab)
    g15 = {}
    if MEGA:
        pre15 = ['s_mov_b32 s8, s%d' % PWMOD, 's_mov_b32 s9, s%d' % (PWMOD+1), 's_mov_b32 s10, 0x%x' % (1024*6144*2), 's_mov_b32 s11, 0x20000',
                 's_mov_b32 s12, s%d' % PC_, 's_mov_b32 s13, s%d' % (PC_+1), 's_mov_b32 s14, 2048', 's_mov_b32 s15, 0x20000',
                 's_lshr_b32 s52, s2, 6', 's_and_b32 s53, s2, 63', 's_lshl_b32 s54, s52, 14', 's_lshl_b32 s55, s53, 8', 's_add_u32 s54, s54, s55',
                 's_lshl_b32 s52, s52, 8', 's_lshl_b32 s53, s53, 7', 's_add_u32 s53, s53, 4096']
        gl = gemv_load(k, 8, 52, 53, AD=48, C=52, LDB=128, emit=False)
        items = pre15 + gl
        for i_, x in enumerate(items): g15.setdefault(2 + (i_ * 24) // len(items), []).append(x)
    iteration(1, True, False, None, 1, True, g15)
    for x in pair_ops(1, 15)[1] + pair_ops(1, 15)[2]: k(x)
    k('v_add_f32 v40, v%d, v%d' % (LS(0, 0), LS(0, 1)))
    k('v_add_f32 v41, v%d, v%d' % (LS(1, 0), LS(1, 1)))
    k('v_mov_b32 v42, v40')
    k('v_mov_b32 v43, v41')
    k('s_nop 1')
    k('v_permlane32_swap_b32 v40, v42')
    k('v_permlane32_swap_b32 v41, v43')
    k('s_nop 1')
    k('v_add_f32 v40, v40, v42')
    k('v_add_f32 v41, v41, v43')
    k('v_mov_b32 v43, 0x%x' % f2u(2.0**100))
    k('v_cmp_nlt_f32 vcc, v40, v43')
    k('v_cmp_nlt_f32 s[6:7], v41, v43')
    k('v_rcp_f32 v40, v40')
    k('v_rcp_f32 v41, v41')
    k('s_or_b64 vcc, vcc, s[6:7]')
    k('s_cmp_lg_u64 vcc, 0')
    k('s_cselect_b32 s58, 1, 0')
    k('v_mov_b32 v43, s58')
    k('s_lshl_b32 s58, s26, 2')
    k('s_add_u32 s58, s58, %d' % FLAG)
    k('v_mov_b32 v44, s58')
    k('ds_write_b32 v44, v43')
    srd(k, 16, PWS, 0x1000000, WS_O)
    k('s_lshl_b32 s27, s34, 8')
    k('s_lshl_b32 s28, s62, 3')
    k('s_add_u32 s27, s27, s28')
    k('s_lshl_b32 s60, s27, 10')
    k('s_add_u32 s61, s60, 0x40000')
    k('v_add_u32 v20, 4096, v8')
    k('s_waitcnt lgkmcnt(0)')
    set_local_vcc(k)
    stamp(k, 4 if not OPT.get('tailst') else 0)
    order = [(db, mb) for db in range(4) for mb in range(2)]
    def epiO(i):
        db, mb = order[i]; a = OA(db, mb); out = []
        for hh in range(2):
            t = (224, 240, 192)[(2*i + hh) % 3]
            out += ['v_accvgpr_read_b32 v%d, a%d' % (t+r, a + hh*8 + r) for r in range(8)]
            out += ['v_mul_f32 v%d, v%d, v%d' % (t+r, t+r, 40+mb) for r in range(8)]
            out += ['v_cvt_pk_bf16_f32 v%d, v%d, v%d' % (t+8+r, t+2*r, t+2*r+1) for r in range(4)]
            ks = 2*db + hh
            out += local_store(k, 'buffer_store_dwordx4 %s, v%d, s[16:19], s%d offen offset:%d' % (vr(t+8, 4), 8 if ks < 4 else 20, 60+mb, (ks % 4)*1024))
        return out
    M = []
    for i, (db, mb) in enumerate(order):
        d = ar(OA(db, mb), 16)
        for kk in range(2):
            M.append('%s %s, %s, %s, %s' % (MFMA, d, ar(VF(kk*4+db), 4), vr(PB(1, mb, kk), 4), d))
    for idx in range(6): k(M[idx])
    k('s_nop 7')
    for i in range(8):
        for x in epiO(i): k(x)
        for idx in (2*i+6, 2*i+7):
            if idx < 16: k(M[idx])
    if OPT.get('tailst'): stamp(k, 1)
    k('s_barrier')
    k('v_mov_b32 v44, %d' % FLAG)
    k('ds_read_b128 v[44:47], v44')
    k('s_waitcnt lgkmcnt(0)')
    k('v_or3_b32 v44, v44, v45, v46')
    k('v_or_b32 v44, v44, v47')
    k('s_nop 0')
    k('v_readfirstlane_b32 s58, v44')
    k('s_nop 3')
    k('s_cmp_lg_u32 s59, 0')
    k('s_cbranch_scc1 %s_fin' % name)
    k('s_cmp_lg_u32 s58, 0')
    k('s_cbranch_scc1 %s_slow' % name)
    k.label(name + '_fin')
    def post():
        srd(k, 16, PWS, 0x10000, WS_MODB)
        gemv_compute(k, 8, 54, 16, 65536, 24, B=192, C=52, LDB=128)
        lab = k.L('mb')
        k('s_cmp_lg_u32 s26, 0')
        k('s_cbranch_scc1 %s' % lab)
        k('s_waitcnt vmcnt(0)')
        k('v_mov_b32 v2, 8')
        k('v_mov_b32 v3, 1')
        k('s_mov_b64 exec, 1')
        k('global_atomic_add v2, v3, s[%d:%d] sc1' % (PDBG, PDBG+1))
        k('s_mov_b64 exec, -1')
        k.label(lab)
    def slow():
        k.label(name + '_slow')
        k('s_mov_b32 s59, 1')
        k('s_lshl_b32 s27, s22, 17')
        k('s_add_u32 s28, s27, 0x%x' % WS_KF)
        srd_s(k, 44, PWS, 28, 0x20000)
        k('s_mov_b32 s58, 0')
        lab2 = k.L('slow'); k.label(lab2)
        k('s_add_u32 s27, s58, 4096')
        for ks in range(8): k('buffer_load_dwordx4 %s, v8, s[44:47], s%d offen offset:%d %s' % (ar(KF(ks), 4), 58 if ks < 4 else 27, (ks % 4)*1024, kvflag))
        k('s_waitcnt vmcnt(0)')
        for mb in range(2):
            for ks in range(8):
                d = vr(SB(0, mb), 16)
                k('%s %s, %s, %s, %s' % (MFMA, d, ar(KF(ks), 4), vr(QF(mb, ks), 4), '0' if ks == 0 else d))
        k('s_nop 7')
        k('s_nop 7')
        for mb in range(2):
            s0 = SB(0, mb)
            for r in range(0, 16, 2): k('v_max3_f32 v%d, v%d, v%d, v%d' % (MG(mb), MG(mb), s0+r, s0+r+1))
        k('s_add_u32 s58, s58, 8192')
        k('s_cmp_lt_u32 s58, 0x20000')
        k('s_cbranch_scc1 %s' % lab2)
        k('v_add_u32 v16, %d, v8' % KSLOT[0])
        k('v_add_u32 v17, %d, v8' % VSLOT[0])
        for db in range(4):
            for mb in range(2):
                for r in range(16): k('v_accvgpr_write_b32 a%d, 0' % (OA(db, mb) + r))
        for n_ in range(4):
            k('s_mov_b32 s%d, s%d' % (TT[3*n_], PWS))
            k('s_mov_b32 s%d, s%d' % (TT[3*n_+1], PWS+1))
            k('s_mov_b32 s%d, 0' % TT[3*n_+2])
        k('s_barrier')
        for pre, ins, tag in initial_dmas():
            for p_ in pre: k(p_)
            if pre: k('s_nop 0')
            k(ins)
        k('s_waitcnt vmcnt(0)')
        k('s_branch %s_pro' % name)
    return slow, post

GU_STG = 28928; GU_UP = 14464
def gateup_setup(k, init_state=True):
    vL = [4, 5]; vX = [8, 9]; vW = [10, 11, 12, 13, 14, 15, 16]
    k('s_lshl_b32 s35, s22, 3')
    k('s_add_u32 s35, s35, s25')
    k('v_lshrrev_b32 v20, 5, v1')
    k('v_lshlrev_b32 v20, 3, v20')
    k('v_bfe_u32 v21, v1, 2, 2')
    k('v_add_u32 v20, v20, v21')
    k('v_mul_u32_u24 v20, 224, v20')
    k('v_bfe_u32 v21, v1, 4, 1')
    k('v_mul_u32_u24 v21, %d, v21' % GU_UP)
    k('v_add_u32 v20, v20, v21')
    k('v_and_b32 v21, 1, v1')
    k('v_lshl_add_u32 v20, v21, 4, v20')
    k('v_bfe_u32 v21, v1, 1, 1')
    k('v_lshl_add_u32 v4, v21, 3, v20')
    k('v_add_u32 v5, %d, v4' % (2*GU_STG))
    k('v_lshlrev_b32 v8, 4, v1')
    k('v_add_u32 v9, 0x10000, v8')
    k('s_and_b32 s27, s26, 1')
    k('s_mul_i32 s28, s27, 448')
    k('s_mul_i32 s29, s35, 224')
    for i in range(7):
        k('v_add_u32 v20, s28, v1')
        if i: k('v_add_u32 v20, %d, v20' % (64*i))
        k('v_mul_u32_u24 v21, 4682, v20')
        k('v_lshrrev_b32 v21, 16, v21')
        k('v_mul_u32_u24 v22, 14, v21')
        k('v_sub_u32 v22, v20, v22')
        k('v_mul_u32_u24 v21, 7168, v21')
        k('v_lshl_add_u32 v21, v22, 4, v21')
        k('v_add_u32 v21, s29, v21')
        k('v_subrev_u32 v%d, %d, v21' % (vW[i], (i % 4)*1024))
    srd(k, 8, PWS, 0x400000, WS_H2)
    k('s_cmp_ge_u32 s26, 2')
    k('s_cselect_b32 s12, s%d, s%d' % (PWU, PWG))
    k('s_cselect_b32 s13, s%d, s%d' % (PWU+1, PWG+1))
    k('s_mov_b32 s14, 0x%x' % (1024*7168))
    k('s_mov_b32 s15, 0x20000')
    k('s_lshl_b32 s27, s24, 3')
    k('s_lshl_b32 s28, s26, 1')
    k('s_add_u32 s34, s27, s28')
    if init_state:
        k('s_lshl_b32 s30, s34, 16')
        k('s_sub_u32 s30, s30, 4096')
        k('s_mov_b32 s31, 0x%x' % ((-64*7168) & 0xffffffff))
    k('s_lshr_b32 s27, s26, 1')
    k('s_mul_i32 s32, s27, %d' % GU_UP)
    k('s_and_b32 s27, s26, 1')
    k('s_mul_i32 s27, s27, 7168')
    k('s_add_u32 s32, s32, s27')
    return vL, vX, vW

def gateup_gemm(k, regs, extra=None):
    vL, vX, vW = regs
    return Gemm(k, 7, 16, acc=32, xr=0, wf=128, vX=vX, vW=vW, sXsrd=8, sWsrd=12, sXoff=30, sWoff=31, sM0=32, sCnt=33,
             stage_bytes=GU_STG, ldw_step=64*7168, nW=7,
             lds_imm=lambda buf, j, nb, sec: (vL[buf // 2], (buf % 2)*GU_STG + j*3584 + sec*896 + nb*32), extra=extra, xflag=LD())

def gateup_main(k, g, next_prefetch=None):
    srd(k, 16, PWS, 2048*3584*2, WS_ACT)
    k('s_mul_i32 s27, s34, 224')
    k('s_mul_i32 s28, s35, 7')
    k('s_add_u32 s27, s27, s28')
    k('s_lshl_b32 s36, s27, 10')
    k('s_add_u32 s37, s36, %d' % (224*1024))
    k('s_mov_b32 s40, 0x%x' % f2u(-LOG2E))
    k('s_mov_b32 s41, 0x%x' % f2u(-LOG2E))
    k('v_add_u32 v31, 4096, v8')
    k('v_mov_b32 v30, v8')
    k('v_mov_b32 v29, 0x%x' % f2u(-LOG2E))
    set_local_vcc(k)
    if not OPT.get('stepst'): stamp(k, 1)
    g.start()
    stamp(k, 2)
    def epi(b):
        out = []
        for mb in range(2):
            a = g.accr(b, mb)
            t = 17 + mb*4
            for h in range(2):
                e = a + 4*h
                out += ['v_exp_f32 v%d, v%d' % (t+i, e+i) for i in range(4)]
                out += ['v_mul_f32 v%d, v%d, v%d' % (e+i, e+i, e+8+i) for i in range(4)]
                out += ['v_add_f32 v%d, 1.0, v%d' % (t+i, t+i) for i in range(4)]
                out += ['v_rcp_f32 v%d, v%d' % (t+i, t+i) for i in range(4)]
                out += ['s_nop 0']
                out += ['v_mul_f32 v%d, v%d, v%d' % (e+i, e+i, t+i) for i in range(4)]
            out += ['v_cvt_pk_bf16_f32 v%d, v%d, v%d' % (a+8+i, a+2*i, a+2*i+1) for i in range(4)]
            out.append('\n'.join(local_store(k, 'buffer_store_dwordx4 %s, v%d, s[16:19], s%d offen offset:%d' % (vr(a+8, 4), 30 if b < 4 else 31, 36+mb, (b % 4)*1024))))
        return out
    g.mainloop(epi)
    stamp(k, 3)
    if next_prefetch: next_prefetch()

def resume_m0(k, g):
    k('s_add_u32 m0, s%d, 0x%x' % (g.sM0, 2*g.stage))

def build():
    kerns = []
    if MEGA:
        name = NAME + '_kernel'
        k = Kern(name, nvgpr=512, accum=256, nsgpr=102, lds=163840)
        def early():
            code_touch(k, name + '_c1', name + '_cend', 30)
            k.label(name + '_c1')
        header(k, name, early)
        phase_p0(k, name)
        phase_ln1b(k)
        slow, post = phase_attn(k, name)
        def a3():
            k('s_lshl_b32 s27, s24, 2'); k('s_add_u32 s27, s27, s22'); k('s_add_u32 s27, s27, %d' % C_S3); cnt_addr(k, 27)
        arrive(k, a3, count=8, flag_off=128)
        g = gemm128_setup(k, 'oproj'); g.prologue_w()
        post()
        stamp_flush(k, 'attn', 5)
        k.label(name + '_L_oproj')
        stamp_rt0(k, 'oproj'); stamp(k, 0) if not OPT.get('stepst') else None
        waitfor(k, a3, 1, off=128, direct=8)
        resume_m0(k, g)
        g.prologue_x()
        gemm128_main(k, 'oproj', g)
        def a4():
            k('s_add_u32 s27, s24, %d' % C_S4); cnt_addr(k, 27)
        arrive(k, a4, count=32, flag_off=128)
        regs = gateup_setup(k)
        gg = gateup_gemm(k, regs)
        gg.prologue_w()
        code_touch(k, name + '_L_gateup', name + '_L_down', 30)
        stamp_flush(k, 'oproj', 4)
        phase_ln2(k, 'ln2')
        k.label(name + '_L_gateup')
        stamp_rt0(k, 'gateup'); stamp(k, 0) if not OPT.get('stepst') else None
        gateup_setup(k, init_state=False)
        def a5():
            k('s_add_u32 s27, s24, %d' % C_S5); cnt_addr(k, 27)
        waitfor(k, a5, 1, off=128, direct=32)
        resume_m0(k, gg)
        gg.prologue_x()
        gateup_main(k, gg)
        def a6():
            k('s_lshl_b32 s27, s24, 2'); k('s_add_u32 s27, s27, s22'); k('s_add_u32 s27, s27, %d' % C_S6); cnt_addr(k, 27)
        arrive(k, a6, count=8, flag_off=128)
        g = gemm128_setup(k, 'down'); g.prologue_w()
        code_touch(k, name + '_L_down', name + '_cend', 60)
        stamp_flush(k, 'gateup', 4)
        k.label(name + '_L_down')
        stamp_rt0(k, 'down'); stamp(k, 0) if not OPT.get('stepst') else None
        waitfor(k, a6, 1, off=128, direct=8)
        resume_m0(k, g)
        g.prologue_x()
        gemm128_main(k, 'down', g)
        def a7():
            k('s_add_u32 s27, s24, %d' % C_S7); cnt_addr(k, 27)
        arrive(k, a7, count=32, flag_off=128)
        stamp_flush(k, 'down', 4)
        phase_ln2(k, 'final')
        if OPT.get('diagxcd'):
            lab = k.L('de')
            k('s_or_b32 s27, s2, s26')
            k('s_cmp_lg_u32 s27, 0')
            k('s_cbranch_scc1 %s' % lab)
            k('v_mov_b32 v2, 0')
            k('global_load_dwordx4 v[4:7], v2, s[%d:%d] offset:168 sc1' % (PDBG, PDBG+1))
            k('global_load_dwordx4 v[8:11], v2, s[%d:%d] offset:184 sc1' % (PDBG, PDBG+1))
            k('s_waitcnt vmcnt(0)')
            k('s_mov_b32 s29, 0')
            for i in range(8):
                k('v_readfirstlane_b32 s27, v%d' % (4+i))
                k('s_nop 3')
                k('s_bcnt1_i32_b32 s27, s27')
                k('s_add_u32 s29, s29, s27')
            k('s_sub_u32 s29, s29, 8')
            k('s_mul_i32 s29, s29, 2')
            k.label(lab + '_l')
            k('s_cmp_eq_u32 s29, 0')
            k('s_cbranch_scc1 %s' % lab)
            k('s_sleep 64')
            k('s_sub_u32 s29, s29, 1')
            k('s_branch %s_l' % lab)
            k.label(lab)
        k('s_endpgm')
        slow()
        k.label(name + '_cend')
        k.label(name + '_end')
        k('s_endpgm')
        kerns.append(k)
    else:
        def kern(nm, lds):
            k = Kern(nm, nvgpr=512, accum=256, nsgpr=102, lds=lds); header(k, nm); return k
        def fin(k):
            k.label(k.name + '_end'); k('s_endpgm'); kerns.append(k)
        k = kern('p0_kernel', 163840); phase_p0(k, k.name); stamp_flush(k, 'p0', 3); fin(k)
        k = kern('ln1_kernel', 163840)
        ln_addr(k); srd(k, 8, PX, 0x400000)
        for j in range(4): k('buffer_load_dwordx4 %s, v6, s[8:11], s44 offen offset:%d' % (vr(RAW + 4*j, 4), j*128))
        k('s_waitcnt vmcnt(0)'); tr8x8(k, RAW, 4, 240, 241); ln_unpack(k, RAW); ln_stats(k); phase_ln1b(k); fin(k)
        k = kern('attn_kernel', 163840); slow, post = phase_attn(k, k.name); stamp_flush(k, 'attn', 5); k('s_endpgm'); slow(); fin(k)
        k = kern('oproj_kernel', 65536); stamp_rt0(k, 'oproj'); stamp(k, 0); g = gemm128_setup(k, 'oproj'); g.prologue_mixed(); gemm128_main(k, 'oproj', g); stamp_flush(k, 'oproj', 4); fin(k)
        k = kern('ln2_kernel', 163840); phase_ln2(k, 'ln2'); fin(k)
        k = kern('gateup_kernel', 4*GU_STG); stamp_rt0(k, 'gateup'); stamp(k, 0); regs = gateup_setup(k); gg = gateup_gemm(k, regs); gg.prologue_mixed(); gateup_main(k, gg); stamp_flush(k, 'gateup', 4); fin(k)
        k = kern('down_kernel', 65536); stamp_rt0(k, 'down'); stamp(k, 0); g = gemm128_setup(k, 'down'); g.prologue_mixed(); gemm128_main(k, 'down', g); stamp_flush(k, 'down', 4); fin(k)
        k = kern('final_kernel', 163840); phase_ln2(k, 'final'); fin(k)
    return kerns

HEADER = open('cdna_kernels/%s.s.ref' % NAME).read().split('; Override launch')[0] if os.path.exists('cdna_kernels/%s.s.ref' % NAME) else ''

def assemble(kerns):
    out = [HEADER.rstrip()]
    if MEGA:
        kn = kerns[0]
        out.append('; @launch grid=(%d,1,1) block=(%d,1,1) lds=%d' % (kn.grid, kn.block, kn.lds))
    else:
        for kn in kerns:
            out.append('; @launch kernel=%s grid=(%d,1,1) block=(%d,1,1) lds=%d' % (kn.name, kn.grid, kn.block, kn.lds))
    out.append('.amdgcn_target "amdgcn-amd-amdhsa--gfx950"')
    for kn in kerns: out.append(kn.text())
    out.append('.section .rodata,"a"')
    for kn in kerns:
        out.append('.p2align 6'); out.append(kn.desc())
    return '\n'.join(out) + '\n'

if __name__ == '__main__':
    for a in sys.argv[2:]:
        if a == 'instr': INSTR = True
        elif a == 'mega': MEGA = True
        elif a.startswith('opt:'): OPT[a[4:].split('=')[0]] = (a.split('=')[1].replace('+', ' ') if '=' in a else True)
    ks = build()
    bad = 0
    for kn in ks: bad += len(check(kn))
    txt = assemble(ks)
    txt = '\n'.join(l[4:] if l.startswith('    ') else l for l in txt.split('\n'))
    open(sys.argv[1], 'w').write(txt)
    print('generated', len(txt), 'bytes; check errors:', bad)
```

```python
import sys, math, os, struct as _st
from asmlib import *

NAME = 'adaLN_cond__sliding_block_cached__swiglu_ffn__prompt'
KA = dict(x=0, k=8, v=16, wq=24, wo=32, bx=40, wg=48, wu=56, wd=64, c=72, wmod=80, out=88, dbg=96, ws=104)
PX, PK, PV, PWQ, PWO, PWG, PWU, PWD, PC_, PWMOD, POUT, PDBG, PWS = 64, 66, 68, 70, 72, 76, 78, 80, 82, 84, 86, 88, 90
WS_MOD  = 0x0
WS_MODB = 0x10000
WS_CNT  = 0x20000
WS_XCC  = 0x30000
WS_H   = 0x100000
WS_O   = 0x500000
WS_P1  = 0x1500000
WS_X1  = 0x3500000
WS_H2  = 0x3900000
WS_ACT = 0x3D00000
WS_P2  = 0x4B00000
WS_KF  = 0x5B00000
WS_VF  = 0x5B80000
WS_STAMP = 0x8000000
MFMA = 'v_mfma_f32_32x32x16_bf16'
LOG2E = 1.4426950408889634
def f2u(x): return _st.unpack('<I', _st.pack('<f', x))[0]
INSTR = False
MEGA = False
OPT = {}
PHASES = ['p0', 'attn', 'oproj', 'ln2', 'gateup', 'down', 'final']
PIDX = {p: i for i, p in enumerate(PHASES)}
ST = 'sc1'
def LD(): return 'sc1' if (MEGA and not OPT.get('plainld')) else ''
C_S2, C_S3, C_S4, C_S5, C_S6, C_S7 = 0, 8, 40, 48, 56, 88
LN_LDS = 147456

def srd(k, s, lo, size, add=None):
    if add:
        k('s_add_u32 s%d, s%d, 0x%x' % (s, lo, add))
        k('s_addc_u32 s%d, s%d, 0' % (s+1, lo+1))
    else:
        k('s_mov_b32 s%d, s%d' % (s, lo))
        k('s_mov_b32 s%d, s%d' % (s+1, lo+1))
    k('s_mov_b32 s%d, 0x%x' % (s+2, size))
    k('s_mov_b32 s%d, 0x20000' % (s+3))
def srd_s(k, s, lo, soff, size):
    k('s_add_u32 s%d, s%d, s%d' % (s, lo, soff))
    k('s_addc_u32 s%d, s%d, 0' % (s+1, lo+1))
    k('s_mov_b32 s%d, 0x%x' % (s+2, size))
    k('s_mov_b32 s%d, 0x20000' % (s+3))

def stamp(k, i):
    if INSTR:
        k('s_memtime s[%d:%d]' % (92+2*i, 93+2*i)) if i < 5 else None
def stamp_begin(k):
    if INSTR:
        k('s_memrealtime s[60:61]') if False else None
        k('s_memrealtime s[18:19]') if False else None
def stamp_flush(k, phase, n):
    if not INSTR: return
    k('s_waitcnt lgkmcnt(0)')
    k('s_memrealtime s[28:29]') if False else None
    srd(k, 16, PWS, 0x10000, WS_STAMP + PIDX[phase]*0x10000)
    k('s_lshl_b32 s27, s2, 6')
    k('v_cmp_eq_u32 vcc, 0, v0')
    k('s_and_saveexec_b64 s[28:29], vcc')
    lab = k.L('so')
    k('s_cbranch_execz %s' % lab)
    k('v_mov_b32 v2, s27')
    for i in range(n):
        k('v_mov_b32 v3, s%d' % (92+2*i))
        k('buffer_store_dword v3, v2, s[16:19], 0 offen offset:%d' % (4*i))
    k('s_memrealtime s[92:93]')
    k('s_memtime s[94:95]')
    k('s_waitcnt lgkmcnt(0)')
    k('v_mov_b32 v3, s92')
    k('buffer_store_dword v3, v2, s[16:19], 0 offen offset:56')
    k('v_mov_b32 v3, s94')
    k('buffer_store_dword v3, v2, s[16:19], 0 offen offset:60')
    k.label(lab)
    k('s_mov_b64 exec, s[28:29]')
def stamp_rt0(k, phase):
    if not INSTR: return
    k('s_memrealtime s[92:93]')
    k('s_memtime s[94:95]')
    srd(k, 16, PWS, 0x10000, WS_STAMP + PIDX[phase]*0x10000)
    k('s_lshl_b32 s27, s2, 6')
    k('s_waitcnt lgkmcnt(0)')
    k('v_cmp_eq_u32 vcc, 0, v0')
    k('s_and_saveexec_b64 s[28:29], vcc')
    lab = k.L('s0')
    k('s_cbranch_execz %s' % lab)
    k('v_mov_b32 v2, s27')
    k('v_mov_b32 v3, s92')
    k('buffer_store_dword v3, v2, s[16:19], 0 offen offset:48')
    k('v_mov_b32 v3, s94')
    k('buffer_store_dword v3, v2, s[16:19], 0 offen offset:52')
    k.label(lab)
    k('s_mov_b64 exec, s[28:29]')

def header(k, name, early=None):
    k('s_cmp_ge_u32 s2, 256')
    k('s_cbranch_scc1 %s_end' % name)
    if OPT.get('scramble'):
        k('s_and_b32 s3, s2, 31')
        k('s_lshl_b32 s3, s3, 3')
        k('s_lshr_b32 s2, s2, 5')
        k('s_or_b32 s2, s2, s3')
    k('s_load_dwordx8 s[80:87], s[0:1], 64')
    k('s_load_dwordx16 s[64:79], s[0:1], 0')
    k('s_load_dwordx4 s[88:91], s[0:1], 96')
    k('v_lshrrev_b32 v2, 6, v0')
    k('v_and_b32 v1, 63, v0')
    k('s_lshr_b32 s21, s2, 3')
    k('v_readfirstlane_b32 s26, v2')
    if early: early()
    k('s_and_b32 s20, s2, 7')
    k('s_lshr_b32 s22, s20, 1')
    k('s_and_b32 s23, s20, 1')
    k('s_and_b32 s24, s21, 3')
    k('s_lshl_b32 s27, s23, 2')
    k('s_add_u32 s24, s24, s27')
    k('s_lshr_b32 s25, s21, 2')
    k('s_waitcnt lgkmcnt(0)')

def cnt_addr(k, sreg, dst=6):
    k('s_lshl_b32 s%d, s%d, 8' % (dst, sreg))
    k('s_add_u32 s%d, s%d, 0x%x' % (dst, dst, WS_CNT))
    k('s_add_u32 s%d, s%d, s%d' % (dst, dst, PWS))
    k('s_addc_u32 s%d, s%d, 0' % (dst+1, PWS+1))
def arrive(k, setup, count=None, extra_dbg=None, only_w0=False, flag_off=None):
    if not MEGA: return
    if not OPT.get('flagsync') and count is not None and count <= 32: count = None
    if not only_w0:
        k('s_waitcnt vmcnt(0)')
        k('s_barrier')
    lab = k.L('arr')
    k('s_cmp_lg_u32 s26, 0')
    k('s_cbranch_scc1 %s' % lab)
    if only_w0: k('s_waitcnt vmcnt(0)')
    setup()
    k('v_mov_b32 v2, 0')
    k('v_mov_b32 v3, 1')
    k('s_mov_b64 exec, 1')
    if extra_dbg is not None:
        k('v_mov_b32 v29, %d' % extra_dbg)
        k('global_atomic_add v29, v3, s[%d:%d] sc1' % (PDBG, PDBG+1))
    if count is None:
        k('global_atomic_add v2, v3, s[6:7] sc1')
    else:
        k('global_atomic_add v29, v2, v3, s[6:7] sc0 sc1')
        k('s_waitcnt vmcnt(0)')
        k('v_readfirstlane_b32 s27, v29')
        k('s_nop 3')
        k('s_cmp_lg_u32 s27, %d' % (count - 1))
        k('s_cbranch_scc1 %s_n' % lab)
        k('global_store_dword v2, v3, s[6:7] offset:%d sc1' % flag_off)
        k.label(lab + '_n')
    k('s_mov_b64 exec, -1')
    k.label(lab)
def waitfor(k, setup, count, off=0, sleep=2, direct=None):
    if not MEGA: return
    if not OPT.get('flagsync') and direct is not None: count, off = direct, 0
    lab = k.L('wt'); done = k.L('wd'); skip = k.L('ws')
    k('s_cmp_lg_u32 s26, 0')
    k('s_cbranch_scc1 %s' % skip)
    setup()
    k('v_mov_b32 v2, 0')
    k('s_mov_b32 s27, 0')
    k('s_mov_b64 exec, 1')
    k.label(lab)
    k('global_load_dword v3, v2, s[6:7] offset:%d sc1' % off)
    k('s_waitcnt vmcnt(0)')
    k('v_readfirstlane_b32 s28, v3')
    k('s_add_u32 s27, s27, 1')
    k('s_cmp_ge_u32 s28, %d' % count)
    k('s_cbranch_scc1 %s' % done)
    k('s_cmp_ge_u32 s27, 0x40000')
    k('s_cbranch_scc1 %s' % done)
    k('s_sleep %d' % sleep)
    k('s_branch %s' % lab)
    k.label(done)
    k('s_mov_b64 exec, -1')
    k.label(skip)
    k('s_barrier')

def local_store(k, ins):
    if not MEGA or not OPT.get('local'): return [ins + ' ' + ST]
    a = k.L('ls'); b = k.L('lt')
    return ['s_cbranch_vccnz %s' % a, ins + ' ' + ST, a + ':', 's_cbranch_vccz %s' % b, ins, b + ':']
def set_local_vcc(k):
    if MEGA and OPT.get('local'):
        k('s_cmp_eq_u32 s3, 1')
        k('s_cselect_b64 vcc, -1, 0')

def code_touch(k, lab0, lab1, vtmp):
    if OPT.get('nocode'): return
    here = k.L('pc'); skip = k.L('ct')
    k('s_cmp_lg_u32 s26, 0')
    k('s_cbranch_scc1 %s' % skip)
    k('s_getpc_b64 s[6:7]')
    k.label(here)
    k('s_add_u32 s6, s6, %s-%s' % (lab0, here))
    k('s_addc_u32 s7, s7, %s' % ('0' if True else ''))
    k('v_lshlrev_b32 v%d, 5, v1' % vtmp)
    k('v_add_u32 v%d, s21, v%d' % (vtmp, vtmp))
    k('v_lshlrev_b32 v%d, 7, v%d' % (vtmp, vtmp))
    k('v_cmp_gt_u32 vcc, %s-%s, v%d' % (lab1, lab0, vtmp))
    k('s_and_saveexec_b64 s[4:5], vcc')
    k('s_cbranch_execz %s_r' % skip)
    k('global_load_dword v%d, v%d, s[6:7]' % (vtmp+1, vtmp))
    k.label(skip + '_r')
    k('s_mov_b64 exec, s[4:5]')
    k.label(skip)

class Gemm:
    def __init__(self, k, NB, nsteps, acc, xr, wf, vX, vW, sXsrd, sWsrd, sXoff, sWoff, sM0, sCnt,
                 stage_bytes, ldw_step, nW, lds_imm, extra=None, xflag=''):
        self.k = k; self.NB = NB; self.nsteps = nsteps; self.acc = acc; self.xr = xr; self.wf = wf
        self.vX = vX; self.vW = vW; self.sX = sXsrd; self.sW = sWsrd; self.sXoff = sXoff; self.sWoff = sWoff
        self.sM0 = sM0; self.sCnt = sCnt; self.stage = stage_bytes; self.ldw_step = ldw_step; self.nW = nW
        self.lds_imm = lds_imm; self.xflag = xflag
        self.extra = extra or (lambda t, j: [])
        if nW == 4: wsl = {3: [0], 0: [1], 1: [2], 2: [3]}
        else: wsl = {3: [0, 1], 0: [2, 3], 1: [4, 5], 2: [6]}
        Q = []
        for i in wsl[3]: Q.append((('W', 0, i), -13))
        for s_ in range(nsteps):
            for j in range(4):
                slot = 4*(s_-3) + j
                ws = [('W', s_, i) for i in wsl[j]] if j < 3 else ([('W', s_+1, i) for i in wsl[3]] if s_+1 < nsteps else [])
                for o in [('X', s_, j, 0)] + ws + [('X', s_, j, 1)]: Q.append((o, slot))
        self.Q = Q
        self.P = len([1 for o, sl in Q if sl < -4])
        self.sched = {}
        pos = self.P
        for t in range(nsteps):
            for j in range(4):
                slot = 4*t + j
                steady = len([1 for o, sl in Q if sl <= slot])
                per = len([1 for o, sl in Q if sl == 16 + j])
                n = min(steady, pos + per + 1)
                self.sched[(t, j)] = [o for o, sl in Q[pos:n]]
                pos = n
    def accr(self, nb, mb): return self.acc + (nb*2 + mb)*16
    def xreg(self, s, mb, j): return self.xr + (s % 4)*32 + (mb*4 + j)*4
    def wreg(self, par, nb): return self.wf + par*self.NB*4 + nb*4
    def mkop(self, o):
        if o[0] == 'X':
            _, s_, j, mb = o
            pre = ['s_add_u32 s%d, s%d, 4096' % (self.sXoff, self.sXoff)] if (j == 0 and mb == 0) else []
            return (pre, 'buffer_load_dwordx4 %s, v%d, s[%d:%d], s%d offen offset:%d %s' % (ar(self.xreg(s_, mb, j), 4), self.vX[mb], self.sX, self.sX+3, self.sXoff, j*1024, self.xflag), ('X', s_, j))
        _, s_, i = o
        pre = []
        if i == 0:
            pre.append('s_add_u32 s%d, s%d, 0x%x' % (self.sWoff, self.sWoff, self.ldw_step))
            pre.append('s_add_u32 m0, s%d, 0x%x' % (self.sM0, (s_ % 4)*self.stage))
        elif i == 4:
            pre.append('s_add_u32 m0, s%d, 0x%x' % (self.sM0, (s_ % 4)*self.stage + 4096))
        return (pre, 'buffer_load_dwordx4 v%d, s[%d:%d], s%d offen offset:%d lds' % (self.vW[i], self.sW, self.sW+3, self.sWoff, (i % 4)*1024), ('W', s_, i))
    def emit_vm(self, op):
        k = self.k
        pre, ins, tag = op[0], op[1], op[2]
        for p in pre: k(p)
        if pre and 'm0' in pre[-1]: k('s_nop 0')
        k.vm(ins, tag)
    def lds_reads(self, t, j):
        out = []
        for nb in range(self.NB):
            for sec in range(2):
                v, imm = self.lds_imm(t % 4, j, nb, sec)
                out.append('ds_read_b64_tr_b16 %s, v%d offset:%d' % (ar(self.wreg(j % 2, nb) + 2*sec, 2), v, imm))
        return out
    def blk_reads(self, t, nb):
        out = []
        for j in range(4):
            for sec in range(2):
                v, imm = self.lds_imm(t % 4, j, nb, sec)
                out.append('ds_read_b64_tr_b16 %s, v%d offset:%d' % (ar(self.wf + (nb % 2)*16 + j*4 + 2*sec, 2), v, imm))
        return out
    def prologue_w(self):
        for o, sl in self.Q[:self.P]:
            if o[0] == 'W': self.emit_vm(self.mkop(o))
    def prologue_x(self):
        for o, sl in self.Q[:self.P]:
            if o[0] == 'X': self.emit_vm(self.mkop(o))
    def prologue_mixed(self):
        for o, sl in self.Q[:self.P]: self.emit_vm(self.mkop(o))
    def start(self):
        k = self.k
        n = k.vm_wait_n(lambda tg: (tg[0] == 'W' and tg[1] == 0) or (tg[0] == 'X' and tg[1] == 0 and tg[2] <= 2))
        k('s_waitcnt vmcnt(%d)' % n)
        k('s_barrier')
        for r in self.lds_reads(0, 0): k(r)
    def emit_gaps(self, mfmas, gaps):
        k = self.k
        for m, mf in enumerate(mfmas):
            k(mf)
            for kind, x in gaps[m]:
                if kind == 'i': k(x)
                else: self.emit_vm(x)
    def frag_reads(self, t, j, nb, slot):
        out = []
        for sec in range(2):
            v, imm = self.lds_imm(t % 4, j, nb, sec)
            out.append('ds_read_b64_tr_b16 %s, v%d offset:%d' % (ar(self.wf + slot*4 + 2*sec, 2), v, imm))
        return out
    def step(self, t, tail=0):
        k = self.k; NB = self.NB; n = self.nsteps
        last = (t == n - 1)
        pre_tail = tail and t == n - tail - 1
        for j in range(4):
            if j == 3 and not last:
                if pre_tail:
                    nn = k.vm_wait_n(lambda tg: tg[0] in 'WX' and tg[1] <= (n-2 if tail >= 3 else n-1))
                else:
                    nn = k.vm_wait_n(lambda tg: (tg[0] == 'W' and tg[1] <= t+1) or (tg[0] == 'X' and (tg[1] <= t or (tg[1] == t+1 and tg[2] <= 2))))
                k('s_waitcnt vmcnt(%d) lgkmcnt(0)' % nn)
                k('s_barrier')
            elif j == 3:
                nn = k.vm_wait_n(lambda tg: tg[0] == 'X' and tg[1] <= t)
                k('s_waitcnt vmcnt(%d) lgkmcnt(0)' % nn)
            else:
                k('s_waitcnt lgkmcnt(0)')
            if j < 3: reads = self.lds_reads(t, j+1)
            elif last: reads = []
            elif pre_tail:
                reads = []
                for f in range(4): reads += self.frag_reads(n - tail, f, 0, f)
            else: reads = self.lds_reads(t+1, 0)
            vms = [self.mkop(o) for o in self.sched[(t, j)]]
            extra = list(self.extra(t, j))
            vms += [e for e in extra if not isinstance(e, str)]
            plain = [e for e in extra if isinstance(e, str)]
            nm = 2*NB
            gaps = [[] for _ in range(nm)]
            for i, r in enumerate(reads): gaps[i // 2].append(('i', r))
            for i, op in enumerate(vms): gaps[NB + (i * NB) // max(1, len(vms))].append(('vm', op))
            for i, e in enumerate(plain): gaps[(i * nm) // len(plain)].append(('i', e))
            mf = []
            for nb in range(NB):
                for mb in range(2):
                    d = vr(self.accr(nb, mb), 16)
                    mf.append('%s %s, %s, %s, %s' % (MFMA, d, ar(self.wreg(j % 2, nb), 4), ar(self.xreg(t, mb, j), 4), '0' if (t == 0 and j == 0) else d))
            self.emit_gaps(mf, gaps)
    def tail_blocks(self, tail, epi):
        k = self.k; NB = self.NB; n = self.nsteps
        frs = [(nb, t, j) for nb in range(NB) for t in range(n - tail, n) for j in range(4)]
        per = tail*4
        NS = 8
        pending = []
        for f, (nb, t, j) in enumerate(frs):
            fo = f % per
            if fo == 0:
                items = list(pending)
                if nb < tail:
                    for jj in range(4): items += list(self.extra(n - tail + nb, jj))
                ng = 2*per
                blockgaps = [[] for _ in range(ng)]
                for i, e in enumerate(items): blockgaps[4 + (i * (ng - 4)) // max(1, len(items))].append(e)
            if f == 4 and tail >= 3:
                nn = k.vm_wait_n(lambda tg: tg[0] in 'WX' and tg[1] <= n-1)
                k('s_waitcnt vmcnt(%d)' % nn)
                k('s_barrier')
            ahead = min(len(frs) - 1 - f, 3)
            k('s_waitcnt lgkmcnt(%d)' % (2*ahead))
            nxt = self.frag_reads(frs[f+4][1], frs[f+4][2], frs[f+4][0], (f+4) % NS) if f + 4 < len(frs) else []
            for mb in range(2):
                d = vr(self.accr(nb, mb), 16)
                k('%s %s, %s, %s, %s' % (MFMA, d, ar(self.wf + (f % NS)*4, 4), ar(self.xreg(t, mb, j), 4), d))
                if nxt: k(nxt[mb])
                for e in blockgaps[2*fo + mb]:
                    if isinstance(e, str): k(e)
                    else: self.emit_vm(e)
            if fo == per - 1: pending = epi(nb)
        k('s_nop 7')
        k('s_nop 3')
        for e in pending:
            if isinstance(e, str): k(e)
            else: self.emit_vm(e)
    def mainloop(self, epi=None, tail=3):
        k = self.k; n = self.nsteps
        tl = tail if epi is not None else 0
        for t in range(4): self.step(t, tl)
        if OPT.get('stepst'): stamp(k, 0)
        t = 4
        trips = 0
        while t + 4*trips + 3 + 4 <= n - 1: trips += 1
        if trips >= 2:
            lab = k.L('loop')
            k('s_mov_b32 s%d, %d' % (self.sCnt, trips))
            k.label(lab)
            q0 = len(k.vmq)
            for tt in range(t, t+4): self.step(tt, tl)
            k('s_sub_u32 s%d, s%d, 1' % (self.sCnt, self.sCnt))
            k('s_cmp_lg_u32 s%d, 0' % self.sCnt)
            k('s_cbranch_scc1 %s' % lab)
            body = k.vmq[q0:]
            for r in range(1, trips):
                for tg in body: k.vmq.append((tg[0], tg[1] + 4*r, tg[2]))
            t += 4*trips
        for tt in range(t, n - tl): self.step(tt, tl)
        if OPT.get('stepst'): stamp(k, 1)
        if tl: self.tail_blocks(tl, epi)

def lds_addr_128(k, vL, tmp):
    a, b, c = tmp, tmp+1, tmp+2
    k('v_lshrrev_b32 v%d, 5, v1' % a)
    k('v_lshlrev_b32 v%d, 11, v%d' % (a, a))
    k('v_bfe_u32 v%d, v1, 2, 2' % b)
    k('v_lshl_add_u32 v%d, v%d, 8, v%d' % (a, b, a))
    k('v_bfe_u32 v%d, v1, 4, 1' % c)
    k('v_lshl_add_u32 v%d, v%d, 5, v%d' % (a, c, a))
    k('v_and_b32 v%d, 1, v1' % c)
    k('v_lshl_add_u32 v%d, v%d, 4, v%d' % (a, c, a))
    k('v_bfe_u32 v%d, v1, 1, 1' % c)
    k('v_lshl_add_u32 v%d, v%d, 3, v%d' % (a, c, a))
    for nb in range(4):
        k('v_xor_b32 v%d, %d, v%d' % (c, nb, b))
        k('v_lshl_add_u32 v%d, v%d, 6, v%d' % (vL[nb], c, a))

def w128_voffsets(k, vW, ldw, s_colbytes, tmp):
    a, b, c = tmp, tmp+1, tmp+2
    k('v_lshrrev_b32 v%d, 4, v1' % a)
    k('v_bfe_u32 v%d, v1, 2, 2' % b)
    k('v_xor_b32 v%d, v%d, v%d' % (b, b, a))
    k('v_and_b32 v%d, 3, v1' % c)
    k('v_lshlrev_b32 v%d, 4, v%d' % (c, c))
    k('v_lshl_add_u32 v%d, v%d, 6, v%d' % (c, b, c))
    k('s_lshl_b32 s27, s26, 4')
    k('v_add_u32 v%d, s27, v%d' % (a, a))
    k('v_mul_u32_u24 v%d, %d, v%d' % (a, ldw, a))
    k('v_add3_u32 v%d, v%d, v%d, s%d' % (vW[0], a, c, s_colbytes))
    for i in range(1, 4): k('v_add_u32 v%d, 0x%x, v%d' % (vW[i], i*4*ldw - i*1024, vW[0]))

def gemm128_setup(k, which):
    if which == 'oproj': xoff, xsize, KS, ksq, wptr, ldw, nsteps = WS_O, 0x1000000, 256, 64, PWO, 2048, 16
    else: xoff, xsize, KS, ksq, wptr, ldw, nsteps = WS_ACT, 2048*3584*2, 224, 56, PWD, 2048, 14
    vL = [4, 5, 6, 7]; vX = [8, 9]; vW = [10, 11, 12, 13]
    lds_addr_128(k, vL, tmp=14)
    k('v_lshlrev_b32 v8, 4, v1')
    k('v_add_u32 v9, 0x%x, v8' % (KS*1024))
    k('s_lshl_b32 s28, s25, 8')
    w128_voffsets(k, vW, ldw, 28, 14)
    srd(k, 8, PWS, xsize, xoff)
    srd(k, 12, wptr, ksq*4*16*ldw)
    k('s_lshl_b32 s27, s24, 3')
    k('s_lshl_b32 s28, s26, 1')
    k('s_add_u32 s34, s27, s28')
    k('s_mul_i32 s30, s34, %d' % KS)
    k('s_mul_i32 s28, s22, %d' % ksq)
    k('s_add_u32 s30, s30, s28')
    k('s_lshl_b32 s30, s30, 10')
    k('s_sub_u32 s30, s30, 4096')
    k('s_mul_i32 s31, s22, 0x%x' % (ksq*16*ldw))
    k('s_sub_u32 s31, s31, 0x%x' % (64*ldw))
    k('s_lshl_b32 s32, s26, 12')
    return Gemm(k, 4, nsteps, acc=128, xr=0, wf=128, vX=vX, vW=vW, sXsrd=8, sWsrd=12, sXoff=30, sWoff=31, sM0=32, sCnt=33,
                stage_bytes=16384, ldw_step=64*ldw, nW=4,
                lds_imm=lambda buf, j, nb, sec: (vL[nb], buf*16384 + j*4096 + sec*1024), xflag=LD())

def gemm128_main(k, which, g):
    poff = WS_P1 if which == 'oproj' else WS_P2
    k('s_lshl_b32 s27, s22, 22')
    k('s_add_u32 s27, s27, 0x%x' % poff)
    srd_s(k, 16, PWS, 27, 0x400000)
    k('s_lshl_b32 s27, s34, 6')
    k('s_lshl_b32 s28, s25, 3')
    k('s_add_u32 s27, s27, s28')
    k('s_lshl_b32 s36, s27, 10')
    k('s_add_u32 s37, s36, 0x10000')
    k('v_add_u32 v14, 4096, v8')
    if not OPT.get('stepst'): stamp(k, 1)
    g.start()
    stamp(k, 2)
    cnt = [0]
    def epi(nb):
        out = []
        for mb in range(2):
            a = g.accr(nb, mb)
            for hh in range(2):
                t = 16 + (cnt[0] % 8)*4; cnt[0] += 1
                for r in range(4): out.append('v_cvt_pk_bf16_f32 v%d, v%d, v%d' % (t+r, a + hh*8 + 2*r, a + hh*8 + 2*r + 1))
                ks = 2*nb + hh
                out.append(([], 'buffer_store_dwordx4 %s, v%d, s[16:19], s%d offen offset:%d %s' % (vr(t, 4), 8 if ks < 4 else 14, 36+mb, (ks % 4)*1024, ST), ('S', 0, 0)))
        return out
    g.mainloop(epi)
    stamp(k, 3)

def reduce8(k, v, t):
    k('s_nop 1')
    k('v_add_f32_dpp v%d, v%d, v%d row_ror:8 row_mask:0xf bank_mask:0xf' % (v, v, v))
    k('v_mov_b32 v%d, v%d' % (t, v))
    k('s_nop 1')
    k('v_permlane16_swap_b32 v%d, v%d' % (v, t))
    k('s_nop 1')
    k('v_add_f32 v%d, v%d, v%d' % (v, v, t))
    k('v_mov_b32 v%d, v%d' % (t, v))
    k('s_nop 1')
    k('v_permlane32_swap_b32 v%d, v%d' % (v, t))
    k('s_nop 1')
    k('v_add_f32 v%d, v%d, v%d' % (v, v, t))

def gemv_load(k, nj, s_row0, s_col0bytes, AD=160, C=168, LDB=96, emit=True):
    o = []
    o.append('v_and_b32 v%d, 7, v0' % AD)
    o.append('v_lshrrev_b32 v%d, 3, v0' % (AD+1))
    o.append('v_mul_u32_u24 v%d, %d, v%d' % (AD+2, nj*12288, AD+1))
    o.append('v_lshl_add_u32 v%d, v%d, 4, v%d' % (AD+2, AD, AD+2))
    o.append('v_mul_u32_u24 v%d, %d, v%d' % (AD+3, nj*2, AD+1))
    o.append('s_mul_i32 s36, s%d, 12288' % s_row0)
    o.append('s_add_u32 s36, s36, s%d' % s_col0bytes)
    o.append('s_lshl_b32 s37, s%d, 1' % s_row0)
    for i in range(nj // 8): o.append('buffer_load_dwordx4 %s, v%d, s[12:15], s37 offen offset:%d' % (vr(C+4*i, 4), AD+3, 16*i))
    for j in range(nj):
        o.append('buffer_load_dwordx4 %s, v%d, s[8:11], s36 offen' % (vr(LDB+4*j, 4), AD+2))
        if j < nj-1: o.append('s_add_u32 s36, s36, 12288')
    if emit:
        for x in o: k(x)
    return o
def gemv_compute(k, nj, s_outoff, out_srd, L0, after, B=160, C=168, LDB=96):
    S = B+16; T = B+32; A = B+48
    k('v_and_b32 v%d, 7, v0' % B)
    k('v_lshrrev_b32 v%d, 3, v0' % (B+1))
    k('s_waitcnt vmcnt(%d)' % (nj + after))
    if OPT.get('p0st') and L0 == LN_LDS: stamp(k, 2)
    for i in range(nj//2):
        k('v_lshlrev_b32 v%d, 16, v%d' % (S+2*i, C+i))
        k('v_and_b32 v%d, 0xffff0000, v%d' % (S+1+2*i, C+i))
    for i in range(nj): k('v_mul_f32 v%d, 0x%x, v%d' % (T+i, f2u(-LOG2E), S+i))
    for i in range(nj): k('v_exp_f32 v%d, v%d' % (T+i, T+i))
    k('s_nop 0')
    for i in range(nj): k('v_add_f32 v%d, 1.0, v%d' % (T+i, T+i))
    for i in range(nj): k('v_rcp_f32 v%d, v%d' % (T+i, T+i))
    k('s_nop 0')
    for i in range(nj): k('v_mul_f32 v%d, v%d, v%d' % (S+i, S+i, T+i))
    for i in range(nj//2): k('v_cvt_pk_bf16_f32 v%d, v%d, v%d' % (T+i, S+2*i, S+1+2*i))
    for i in range(nj//2):
        k('v_lshlrev_b32 v%d, 16, v%d' % (S+2*i, T+i))
        k('v_and_b32 v%d, 0xffff0000, v%d' % (S+1+2*i, T+i))
    for i in range(8): k('v_mov_b32 v%d, 0' % (A+i))
    U = B+56
    for j in range(nj):
        k('s_waitcnt vmcnt(%d)' % (nj-1-j + after))
        for i in range(4):
            k('v_lshlrev_b32 v%d, 16, v%d' % (U+2*(i%2), LDB+4*j+i))
            k('v_and_b32 v%d, 0xffff0000, v%d' % (U+1+2*(i%2), LDB+4*j+i))
            k('v_fmac_f32 v%d, v%d, v%d' % (A+2*i, U+2*(i%2), S+j))
            k('v_fmac_f32 v%d, v%d, v%d' % (A+2*i+1, U+1+2*(i%2), S+j))
    if OPT.get('p0st') and L0 == LN_LDS: stamp(k, 3)
    k('v_lshlrev_b32 v%d, 8, v%d' % (B+4, B+1))
    k('v_lshl_add_u32 v%d, v%d, 5, v%d' % (B+4, B, B+4))
    k('v_add_u32 v%d, %d, v%d' % (B+4, L0, B+4))
    k('ds_write_b128 v%d, %s' % (B+4, vr(A, 4)))
    k('ds_write_b128 v%d, %s offset:16' % (B+4, vr(A+4, 4)))
    k('s_waitcnt lgkmcnt(0)')
    k('s_barrier')
    lab = k.L('skip')
    k('s_cmp_lg_u32 s26, 0')
    k('s_cbranch_scc1 %s' % lab)
    k('v_lshlrev_b32 v%d, 2, v1' % (B+6))
    k('v_add_u32 v%d, %d, v%d' % (B+4, L0, B+6))
    for h in range(4):
        for i in range(8): k('ds_read_b32 v%d, v%d offset:%d' % (LDB+8*h+i, B+4, (8*h+i)*256))
        if h in (1, 2): k('s_waitcnt lgkmcnt(7)')
    k('s_waitcnt lgkmcnt(0)')
    for i in range(16): k('v_add_f32 v%d, v%d, v%d' % (LDB+i, LDB+i, LDB+16+i))
    for st in (8, 4, 2, 1):
        for i in range(st): k('v_add_f32 v%d, v%d, v%d' % (LDB+i, LDB+i, LDB+st+i))
    k('buffer_store_dword v%d, v%d, s[%d:%d], s%d offen %s' % (LDB, B+6, out_srd, out_srd+3, s_outoff, ST))
    k.label(lab)

def kv_part(k, mid=None, nmid=1):
    B = 160
    k('s_sub_u32 s50, s2, 128')
    k('s_lshl_b32 s50, s50, 2')
    k('s_add_u32 s50, s50, s26')
    srd(k, 8, PK, 0x200000)
    srd(k, 12, PV, 0x200000)
    srd(k, 16, PWS, 0x100000, WS_KF)
    k('s_lshr_b32 s51, s50, 7')
    k('s_bfe_u32 s52, s50, 0x40003')
    k('s_lshl_b32 s54, s51, 19')
    k('s_lshl_b32 s55, s52, 13')
    k('s_add_u32 s54, s54, s55')
    k('s_add_u32 s54, s54, 0x60000')
    k('v_lshrrev_b32 v%d, 3, v1' % B)
    k('v_and_b32 v%d, 7, v1' % (B+1))
    k('v_lshlrev_b32 v%d, 8, v%d' % (B+2, B))
    k('v_lshl_add_u32 v%d, v%d, 4, v%d' % (B+2, B+1, B+2))
    k('s_bfe_u32 s53, s50, 0x20001')
    k('s_and_b32 s56, s50, 1')
    k('s_lshl_b32 s55, s53, 11')
    k('s_add_u32 s55, s55, s54')
    k('s_lshl_b32 s57, s56, 7')
    k('s_add_u32 s55, s55, s57')
    k('buffer_load_dwordx4 %s, v%d, s[8:11], s55 offen' % (vr(B+8, 4), B+2))
    k('v_lshrrev_b32 v%d, 2, v1' % (B+3))
    k('v_lshlrev_b32 v%d, 8, v%d' % (B+3, B+3))
    k('v_and_b32 v%d, 3, v1' % (B+4))
    k('v_lshl_add_u32 v%d, v%d, 4, v%d' % (B+3, B+4, B+3))
    k('s_bfe_u32 s55, s50, 0x10002')
    k('s_lshl_b32 s55, s55, 12')
    k('s_and_b32 s57, s50, 3')
    k('s_lshl_b32 s57, s57, 6')
    k('s_add_u32 s55, s55, s57')
    k('s_add_u32 s55, s55, s54')
    k('s_mul_i32 s57, s26, 4608')
    k('s_add_u32 s57, s57, %d' % (TR_LDS + 2304))
    k('s_mov_b32 m0, s57')
    k('s_nop 0')
    k('buffer_load_dwordx4 v%d, s[12:15], s55 offen lds' % (B+3))
    if mid:
        k('s_mov_b32 s58, s16'); k('s_mov_b32 s59, s17'); k('s_mov_b32 s60, s18')
        mid()
        k('s_mov_b32 s16, s58'); k('s_mov_b32 s17, s59'); k('s_mov_b32 s18, s60')
    k('v_lshrrev_b32 v%d, 5, v1' % (B+4))
    k('v_lshlrev_b32 v%d, 2, v%d' % (B+4, B+4))
    k('v_bfe_u32 v%d, v1, 2, 2' % (B+5))
    k('v_add_u32 v%d, v%d, v%d' % (B+4, B+4, B+5))
    k('v_lshlrev_b32 v%d, 6, v%d' % (B+4, B+4))
    k('v_bfe_u32 v%d, v1, 4, 1' % (B+5))
    k('v_lshl_add_u32 v%d, v%d, 5, v%d' % (B+4, B+5, B+4))
    k('v_and_b32 v%d, 1, v1' % (B+5))
    k('v_lshl_add_u32 v%d, v%d, 4, v%d' % (B+4, B+5, B+4))
    k('v_bfe_u32 v%d, v1, 1, 1' % (B+5))
    k('v_lshl_add_u32 v%d, v%d, 3, v%d' % (B+4, B+5, B+4))
    k('v_add_u32 v%d, s57, v%d' % (B+4, B+4))
    k('v_lshrrev_b32 v%d, 4, v1' % (B+6))
    k('v_lshlrev_b32 v%d, 10, v%d' % (B+6, B+6))
    k('v_bfe_u32 v%d, v1, 3, 1' % (B+5))
    k('v_lshl_add_u32 v%d, v%d, 9, v%d' % (B+6, B+5, B+6))
    k('v_lshl_add_u32 v%d, v%d, 4, v%d' % (B+6, B+1, B+6))
    k('s_lshr_b32 s55, s50, 3')
    k('s_lshl_b32 s55, s55, 13')
    k('s_lshl_b32 s57, s56, 12')
    k('s_add_u32 s55, s55, s57')
    k('s_lshl_b32 s57, s53, 7')
    k('s_add_u32 s55, s55, s57')
    k('s_waitcnt vmcnt(%d)' % (1 + nmid if mid else 1))
    tr8x8(k, B+8, 1, 240, 241)
    k('buffer_store_dwordx4 %s, v%d, s[16:19], s55 offen %s' % (vr(B+8, 4), B+6, ST))
    k('s_waitcnt vmcnt(%d)' % (1 + nmid if mid else 1))
    k('ds_read_b64_tr_b16 %s, v%d' % (vr(B+12, 2), B+4))
    k('ds_read_b64_tr_b16 %s, v%d offset:512' % (vr(B+14, 2), B+4))
    k('v_lshlrev_b32 v%d, 4, v1' % (B+5))
    k('s_lshl_b32 s55, s50, 10')
    k('s_add_u32 s55, s55, 0x%x' % (WS_VF - WS_KF))
    k('s_waitcnt lgkmcnt(0)')
    k('buffer_store_dwordx4 %s, v%d, s[16:19], s55 offen %s' % (vr(B+12, 4), B+5, ST))

def ln_addr(k):
    k('v_lshrrev_b32 v2, 6, v0')
    k('v_and_b32 v3, 7, v1')
    k('v_lshrrev_b32 v4, 3, v1')
    k('v_lshrrev_b32 v5, 1, v4')
    k('v_lshlrev_b32 v5, 10, v5')
    k('v_and_b32 v6, 1, v4')
    k('v_lshl_add_u32 v5, v6, 9, v5')
    k('v_lshl_add_u32 v5, v3, 4, v5')
    k('v_lshl_add_u32 v5, v2, 14, v5')
    k('v_lshlrev_b32 v6, 11, v4')
    k('v_lshl_add_u32 v6, v3, 4, v6')
    k('v_lshl_add_u32 v6, v2, 9, v6')
    tr_addr(k, 240, 241)
    k('v_lshlrev_b32 v7, 4, v0')
    k('v_lshlrev_b32 v8, 10, v2')
    k('v_lshl_add_u32 v8, v4, 5, v8')
    k('v_add_u32 v8, %d, v8' % LN_LDS)
    k('v_add_u32 v11, %d, v7' % LN_LDS)
    k('v_lshlrev_b32 v9, 5, v3')
    k('v_add_u32 v9, %d, v9' % (LN_LDS + 12288))
    k('v_lshl_add_u32 v10, v2, 3, v9')
    k('s_lshl_b32 s45, s24, 5')
    k('s_lshl_b32 s46, s22, 3')
    k('s_add_u32 s45, s45, s46')
    k('s_add_u32 s45, s45, s25')
    k('s_lshr_b32 s40, s45, 2')
    k('s_lshl_b32 s40, s40, 16')
    k('s_and_b32 s46, s45, 3')
    k('s_lshl_b32 s46, s46, 7')
    k('s_add_u32 s40, s40, s46')
    for j in range(1, 4): k('s_add_u32 s%d, s40, %d' % (40+j, j*4096))
    k('s_lshl_b32 s44, s45, 14')

TR_LDS = 126976
def tr_addr(k, vw, vrd):
    k('v_lshrrev_b32 v%d, 3, v1' % vw)
    k('v_mul_u32_u24 v%d, 144, v%d' % (vw, vw))
    k('v_and_b32 v%d, 7, v1' % vrd)
    k('v_lshl_add_u32 v%d, v%d, 4, v%d' % (vw, vrd, vw))
    k('v_mul_u32_u24 v%d, 144, v%d' % (vrd, vrd))
    k('v_lshrrev_b32 v29, 3, v1')
    k('v_lshl_add_u32 v%d, v29, 4, v%d' % (vrd, vrd))
    k('s_mul_i32 s27, s26, 4608')
    k('s_add_u32 s27, s27, %d' % TR_LDS)
    k('v_add_u32 v%d, s27, v%d' % (vw, vw))
    k('v_add_u32 v%d, s27, v%d' % (vrd, vrd))
def tr8x8(k, base, n, vw, vrd):
    for j in range(n): k('ds_write_b128 v%d, %s offset:%d' % (vw, vr(base + 4*j, 4), j*1152))
    k('s_waitcnt lgkmcnt(0)')
    for j in range(n): k('ds_read_b128 %s, v%d offset:%d' % (vr(base + 4*j, 4), vrd, j*1152))
    k('s_waitcnt lgkmcnt(0)')

X_ = 32
RAW = 64
def ln_unpack(k, src):
    for j in range(4):
        for i in range(4):
            k('v_lshlrev_b32 v%d, 16, v%d' % (X_ + 8*j + 2*i, src + 4*j + i))
            k('v_and_b32 v%d, 0xffff0000, v%d' % (X_ + 8*j + 2*i + 1, src + 4*j + i))
def pk(op, d, a, b, c=None, bc=None):
    n = 3 if c is not None else 2
    hi = ['0' if (bc and i in bc) else '1' for i in range(n)]
    ops = [vr(d, 2), vr(a, 2), vr(b, 2)] + ([vr(c, 2)] if c is not None else [])
    return '%s %s op_sel_hi:[%s]' % (op, ', '.join(ops), ','.join(hi))
def ln_stats(k):
    if True:
        k(pk('v_pk_add_f32', 16, X_, X_+2)); k(pk('v_pk_add_f32', 18, X_+4, X_+6))
        k(pk('v_pk_add_f32', 20, X_+8, X_+10)); k(pk('v_pk_add_f32', 22, X_+12, X_+14))
        for j in range(4): k(pk('v_pk_add_f32', 16 + 2*j, 16 + 2*j, X_ + 16 + 4*j))
        for j in range(4): k(pk('v_pk_add_f32', 16 + 2*j, 16 + 2*j, X_ + 18 + 4*j))
        k(pk('v_pk_add_f32', 16, 16, 18)); k(pk('v_pk_add_f32', 20, 20, 22)); k(pk('v_pk_add_f32', 16, 16, 20))
    k('v_add_f32 v16, v16, v17')
    k('v_mul_f32 v24, 0x%x, v16' % f2u(-1.0/32))
    for i in range(16): k(pk('v_pk_add_f32', X_ + 2*i, X_ + 2*i, 24, bc=[1]))
    k(pk('v_pk_mul_f32', 16, X_, X_)); k(pk('v_pk_mul_f32', 18, X_+2, X_+2))
    for i in range(2, 16): k(pk('v_pk_fma_f32', 16 + 2*(i % 2), X_ + 2*i, X_ + 2*i, 16 + 2*(i % 2)))
    k(pk('v_pk_add_f32', 16, 16, 18))
    k('v_add_f32 v27, v16, v17')
    k('v_sub_f32 v26, 0, v24')
    k('v_mov_b32 v30, v26')
    for step, n in ((0, 32), (1, 64), (2, 128)):
        if step == 0:
            k('s_nop 1')
            k('v_mov_b32_dpp v20, v26 row_ror:8 row_mask:0xf bank_mask:0xf')
            k('v_mov_b32_dpp v21, v27 row_ror:8 row_mask:0xf bank_mask:0xf')
            a_m, b_m, a_M, b_M = 26, 20, 27, 21
        else:
            sw = 'v_permlane16_swap_b32' if step == 1 else 'v_permlane32_swap_b32'
            k('v_mov_b32 v20, v26'); k('v_mov_b32 v21, v27')
            k('s_nop 1')
            k('%s v26, v20' % sw); k('%s v27, v21' % sw)
            k('s_nop 1')
        k('v_sub_f32 v22, v26, v20')
        k('v_add_f32 v26, v26, v20')
        k('v_add_f32 v27, v27, v21')
        k('v_mul_f32 v22, v22, v22')
        k('v_mul_f32 v26, 0.5, v26')
        k('v_fmac_f32 v27, 0x%x, v22' % f2u(n/2.0))
    k('ds_write_b64 v10, v[26:27]')
    k('s_waitcnt lgkmcnt(0)')
    k('s_barrier')
    k('ds_read_b128 v[16:19], v9')
    k('ds_read_b128 v[20:23], v9 offset:16')
    k('s_waitcnt lgkmcnt(0)')
    k('v_add_f32 v24, v16, v18'); k('v_add_f32 v25, v20, v22'); k('v_add_f32 v24, v24, v25')
    k('v_mul_f32 v24, 0.25, v24')
    k('v_add_f32 v25, v17, v19'); k('v_add_f32 v26, v21, v23'); k('v_add_f32 v25, v25, v26')
    for r in (16, 18, 20, 22): k('v_sub_f32 v%d, v%d, v24' % (r, r))
    k('v_mul_f32 v26, v16, v16')
    for r in (18, 20, 22): k('v_fmac_f32 v26, v%d, v%d' % (r, r))
    k('v_fmac_f32 v25, 0x%x, v26' % f2u(256.0))
    k('v_mov_b32 v26, 0x%x' % f2u(1e-5))
    k('v_fmac_f32 v26, 0x%x, v25' % f2u(1.0/1024))
    k('v_rsq_f32 v28, v26')
    k('v_sub_f32 v30, v30, v24')
def vec_reads(k, slot, dst):
    for j in range(4):
        k('ds_read_b128 %s, v8 offset:%d' % (vr(dst + 8*j, 4), slot*4096 + j*256))
        k('ds_read_b128 %s, v8 offset:%d' % (vr(dst + 8*j + 4, 4), slot*4096 + j*256 + 16))
def mod_loads(k, vecs, npart, base_off, MV, pstride):
    srd(k, 8, PWS, 0x10000, base_off or None)
    for n, (c, isscale) in enumerate(vecs):
        for p in range(npart):
            k('s_mov_b32 s27, %d' % (p*pstride + c*4096))
            k('buffer_load_dwordx4 %s, v7, s[8:11], s27 offen %s' % (vr(MV + (n*npart + p)*4, 4), LD()))
def mod_to_lds(k, vecs, npart, MV, mulc=None, mulsel=None):
    for n, (c, isscale) in enumerate(vecs):
        b = MV + n*npart*4
        for p in range(1, npart):
            for i in range(4): k('v_add_f32 v%d, v%d, v%d' % (b+i, b+i, b+4*p+i))
        def rnd():
            k('v_cvt_pk_bf16_f32 v%d, v%d, v%d' % (b+4, b, b+1))
            k('v_cvt_pk_bf16_f32 v%d, v%d, v%d' % (b+5, b+2, b+3))
            k('v_lshlrev_b32 v%d, 16, v%d' % (b, b+4))
            k('v_and_b32 v%d, 0xffff0000, v%d' % (b+1, b+4))
            k('v_lshlrev_b32 v%d, 16, v%d' % (b+2, b+5))
            k('v_and_b32 v%d, 0xffff0000, v%d' % (b+3, b+5))
        rnd()
        if isscale:
            for i in range(4): k('v_add_f32 v%d, 1.0, v%d' % (b+i, b+i))
            rnd()
        mc = mulc if mulc else (mulsel or {}).get(n)
        if mc:
            for i in range(4): k('v_mul_f32 v%d, 0x%x, v%d' % (b+i, mc, b+i))
        k('ds_write_b128 v11, %s offset:%d' % (vr(b, 4), n*4096))
def ln_apply_store(k, A, B, hoff):
    srd(k, 16, PWS, 0x400000, hoff)
    for j in range(4):
        for i in range(4): k(pk('v_pk_mul_f32', A + 8*j + 2*i, A + 8*j + 2*i, 28, bc=[1]))
        for i in range(4): k(pk('v_pk_fma_f32', B + 8*j + 2*i, A + 8*j + 2*i, 30, B + 8*j + 2*i, bc=[1]))
        for i in range(4): k(pk('v_pk_fma_f32', X_ + 8*j + 2*i, X_ + 8*j + 2*i, A + 8*j + 2*i, B + 8*j + 2*i))
        for i in range(4): k('v_cvt_pk_bf16_f32 v%d, v%d, v%d' % (104 + 4*j + i, X_ + 8*j + 2*i, X_ + 8*j + 2*i + 1))
        k('buffer_store_dwordx4 %s, v5, s[16:19], s%d offen %s' % (vr(104 + 4*j, 4), 40+j, ST))

TICKET_LDS = LN_LDS + 12288 + 512
def ticket_issue(k):
    lab = k.L('tk')
    k('s_getreg_b32 s3, hwreg(HW_REG_XCC_ID, 0, 4)')
    k('s_and_b32 s3, s3, 7')
    k('s_cmp_lg_u32 s26, 0')
    k('s_cbranch_scc1 %s' % lab)
    k('s_lshl_b32 s27, s3, 2')
    k('s_add_u32 s27, s27, 132')
    k('v_mov_b32 v2, s27')
    k('v_mov_b32 v3, 1')
    k('s_mov_b64 exec, 1')
    k('global_atomic_add v250, v2, v3, s[%d:%d] sc0 sc1' % (PDBG, PDBG+1))
    k('s_mov_b64 exec, -1')
    k.label(lab)
def ticket_publish(k, name):
    lab = k.L('tp'); ok = k.L('tok'); sp = k.L('tsp'); spd = k.L('tsd')
    k('s_cmp_lg_u32 s26, 0')
    k('s_cbranch_scc1 %s' % lab)
    k('s_waitcnt vmcnt(0)')
    k('v_readfirstlane_b32 s27, v250')
    k('s_mov_b32 s28, s3')
    k('s_cmp_lt_u32 s27, 32')
    k('s_cbranch_scc1 %s' % ok)
    k('s_mov_b64 exec, 1')
    k('v_mov_b32 v2, 0')
    k('s_mov_b32 s29, 0')
    k.label(sp)
    k('global_load_dwordx4 v[16:19], v2, s[%d:%d] offset:132 sc1' % (PDBG, PDBG+1))
    k('global_load_dwordx4 v[20:23], v2, s[%d:%d] offset:148 sc1' % (PDBG, PDBG+1))
    k('s_waitcnt vmcnt(0)')
    for i in range(8): k('v_readfirstlane_b32 s%d, v%d' % (50+i, 16+i))
    k('s_nop 3')
    k('s_mov_b32 s58, 0')
    for i in range(8): k('s_add_u32 s58, s58, s%d' % (50+i))
    k('s_add_u32 s29, s29, 1')
    k('s_cmp_ge_u32 s58, 256')
    k('s_cbranch_scc1 %s' % spd)
    k('s_cmp_ge_u32 s29, 0x40000')
    k('s_cbranch_scc1 %s' % spd)
    k('s_sleep 4')
    k('s_branch %s' % sp)
    k.label(spd)
    k('v_mov_b32 v2, 164')
    k('v_mov_b32 v3, 1')
    k('global_atomic_add v16, v2, v3, s[%d:%d] sc0 sc1' % (PDBG, PDBG+1))
    k('s_waitcnt vmcnt(0)')
    k('v_readfirstlane_b32 s29, v16')
    k('s_mov_b64 exec, -1')
    k('s_mov_b32 s28, 0')
    k('s_mov_b32 s27, 31')
    for i in range(8):
        nx = k.L('tn')
        k('s_min_u32 s58, s%d, 32' % (50+i))
        k('s_sub_u32 s59, 32, s58')
        k('s_cmp_lt_u32 s29, s59')
        k('s_cbranch_scc0 %s' % nx)
        k('s_mov_b32 s28, %d' % i)
        k('s_add_u32 s27, s58, s29')
        k('s_branch %s' % ok)
        k.label(nx)
        k('s_sub_u32 s29, s29, s59')
    k.label(ok)
    k('s_lshl_b32 s27, s27, 3')
    k('s_or_b32 s27, s27, s28')
    k('v_mov_b32 v2, %d' % TICKET_LDS)
    k('v_mov_b32 v3, s27')
    k('ds_write_b32 v2, v3')
    k('s_waitcnt lgkmcnt(0)')
    k.label(lab)
def ticket_fetch(k):
    k('v_mov_b32 v2, %d' % TICKET_LDS)
    k('ds_read_b32 v3, v2')
    k('s_mov_b32 s63, s24')
    k('s_waitcnt lgkmcnt(0)')
    k('v_readfirstlane_b32 s3, v3')
    k('s_nop 3')
    k('s_and_b32 s20, s3, 7')
    k('s_lshr_b32 s21, s3, 3')
    k('s_lshr_b32 s22, s20, 1')
    k('s_and_b32 s23, s20, 1')
    k('s_and_b32 s24, s21, 3')
    k('s_lshl_b32 s27, s23, 2')
    k('s_add_u32 s24, s24, s27')
    k('s_lshr_b32 s25, s21, 2')

def phase_p0(k, name):
    stamp_rt0(k, 'p0')
    stamp(k, 0)
    if MEGA and OPT.get('ticket'): ticket_issue(k)
    if MEGA and OPT.get('local'):
        lab = k.L('xp')
        k('s_getreg_b32 s3, hwreg(HW_REG_XCC_ID, 0, 4)')
        k('s_cmp_lg_u32 s26, 0')
        k('s_cbranch_scc1 %s' % lab)
        k('s_lshl_b32 s27, s2, 2')
        k('s_add_u32 s27, s27, 0x%x' % WS_XCC)
        k('v_mov_b32 v2, s27')
        k('v_mov_b32 v3, s3')
        k('s_mov_b64 exec, 1')
        k('global_store_dword v2, v3, s[%d:%d] sc1' % (PWS, PWS+1))
        k('s_mov_b64 exec, -1')
        k.label(lab)
    if OPT.get('diagxcd'):
        lab = k.L('dx')
        k('s_getreg_b32 s58, hwreg(HW_REG_XCC_ID, 0, 4)')
        k('s_and_b32 s58, s58, 7')
        k('s_cmp_lg_u32 s26, 0')
        k('s_cbranch_scc1 %s' % lab)
        k('s_lshl_b32 s27, s58, 2')
        k('s_add_u32 s27, s27, 168')
        k('v_mov_b32 v2, s27')
        k('s_and_b32 s27, s2, 7')
        k('s_lshl_b32 s27, 1, s27')
        k('v_mov_b32 v3, s27')
        k('s_mov_b64 exec, 1')
        k('global_atomic_or v2, v3, s[%d:%d] sc1' % (PDBG, PDBG+1))
        k('s_mov_b64 exec, -1')
        k.label(lab)
    def xloads():
        ln_addr(k)
        srd(k, 16, PX, 0x400000)
        for j in range(4): k('buffer_load_dwordx4 %s, v6, s[16:19], s44 offen offset:%d' % (vr(RAW + 4*j, 4), j*128))
    def s1addr():
        k('s_mov_b32 s6, s%d' % PDBG)
        k('s_mov_b32 s7, s%d' % (PDBG+1))
    def kvaddr():
        k('s_add_u32 s6, s%d, 4' % PDBG)
        k('s_addc_u32 s7, s%d, 0' % (PDBG+1))
    def wq_touch():
        lab = k.L('wq')
        k('s_cmp_eq_u32 s26, 0')
        k('s_cbranch_scc1 %s' % lab)
        srd(k, 16, PWQ, 1024*4096*2)
        k('v_lshrrev_b32 v15, 4, v0')
        k('v_and_b32 v12, 15, v0')
        k('v_lshlrev_b32 v15, 13, v15')
        k('v_lshl_add_u32 v15, v12, 7, v15')
        k('s_lshl_b32 s36, s21, 17')
        k('s_lshl_b32 s37, s22, 11')
        k('s_add_u32 s36, s36, s37')
        k('s_lshl_b32 s37, s23, 22')
        k('s_add_u32 s36, s36, s37')
        k('buffer_load_dword v13, v15, s[16:19], s36 offen')
        k('s_cmp_lg_u32 s26, 1')
        k('s_cbranch_scc1 %s' % lab)
        k('v_subrev_u32 v15, 0x8000, v15')
        k('buffer_load_dword v14, v15, s[16:19], s36 offen')
        k.label(lab)
    k('s_cmp_ge_u32 s2, 128')
    k('s_cbranch_scc1 %s_kv' % name)
    srd(k, 8, PWMOD, 1024*6144*2)
    srd(k, 12, PC_, 2048)
    k('s_and_b32 s38, s2, 31')
    k('s_lshr_b32 s39, s2, 5')
    k('s_lshl_b32 s47, s39, 8')
    k('s_lshl_b32 s48, s38, 7')
    k('s_lshl_b32 s49, s39, 13')
    k('s_lshl_b32 s38, s38, 8')
    k('s_add_u32 s49, s49, s38')
    gemv_load(k, 8, 47, 48)
    xloads()
    if OPT.get('p0st'): stamp(k, 1)
    if MEGA:
        lab = k.L('z')
        k('s_or_b32 s27, s2, s26')
        k('s_cmp_lg_u32 s27, 0')
        k('s_cbranch_scc1 %s' % lab)
        srd(k, 16, PWS, 192*128, WS_CNT)
        k('v_lshlrev_b32 v16, 7, v1')
        k('v_mov_b32 v17, 0')
        for z in range(3): k('buffer_store_dword v17, v16, s[16:19], 0 offen offset:0 %s' % ST) if z == 0 else (k('v_add_u32 v%d, %d, v16' % (18+z, 8192*z)), k('buffer_store_dword v17, v%d, s[16:19], 0 offen %s' % (18+z, ST)))
        k('s_waitcnt vmcnt(0)')
        k.label(lab)
    srd(k, 16, PWS, 0x8000, WS_MOD or None)
    gemv_compute(k, 8, 49, 16, LN_LDS, 4)
    if not OPT.get('p0st'): stamp(k, 1)
    arrive(k, s1addr, count=128, only_w0=True, flag_off=128)
    lab = k.L('w0'); k('s_cmp_eq_u32 s26, 0'); k('s_cbranch_scc1 %s' % lab); k('s_waitcnt vmcnt(0)'); k.label(lab)
    if OPT.get('p0st'): stamp(k, 4)
    k('s_branch %s_pf' % name)
    k.label(name + '_kv')
    kv_part(k, xloads, 4)
    if not MEGA:
        modb_addr(k, 128)
        gemv_load(k, 16, 47, 48)
        srd(k, 16, PWS, 0x8000, WS_MODB)
        gemv_compute(k, 16, 49, 16, LN_LDS, 0)
    stamp(k, 1)
    arrive(k, kvaddr)
    k.label(name + '_pf')
    if MEGA and OPT.get('ticket'): ticket_publish(k, name)
    tr8x8(k, RAW, 4, 240, 241)
    ln_unpack(k, RAW)
    ln_stats(k)
    if MEGA: k('s_mov_b32 s63, s24')
    wq_touch()
    if not OPT.get('p0st'): stamp(k, 2)

def modb_addr(k, first):
    srd(k, 8, PWMOD, 1024*6144*2)
    srd(k, 12, PC_, 2048)
    k('s_sub_u32 s38, s2, %d' % first)
    k('s_lshr_b32 s39, s38, 6')
    k('s_and_b32 s38, s38, 63')
    k('s_lshl_b32 s47, s39, 9')
    k('s_lshl_b32 s48, s38, 7')
    k('s_add_u32 s48, s48, 4096')
    k('s_lshl_b32 s49, s39, 14')
    k('s_lshl_b32 s38, s38, 8')
    k('s_add_u32 s49, s49, s38')

def phase_ln1b(k):
    def s1addr():
        k('s_mov_b32 s6, s%d' % PDBG)
        k('s_mov_b32 s7, s%d' % (PDBG+1))
    waitfor(k, s1addr, 1, off=128)
    if not OPT.get('p0st'): stamp(k, 3)
    vecs = [(0, False), (1, True)]
    mod_loads(k, vecs, 4, WS_MOD, 96, 8192)
    k('s_waitcnt vmcnt(0)')
    mod_to_lds(k, vecs, 4, 96, f2u(128**-0.5 * LOG2E))
    k('s_waitcnt lgkmcnt(0)')
    k('s_barrier')
    vec_reads(k, 1, 144)
    k('s_waitcnt lgkmcnt(0)')
    vec_reads(k, 0, 176)
    k('s_waitcnt lgkmcnt(0)')
    ln_apply_store(k, 144, 176, WS_H)
    def a():
        k('s_add_u32 s27, s63, %d' % C_S2); cnt_addr(k, 27)
    arrive(k, a, count=32, flag_off=128)
    if not OPT.get('p0st'): stamp(k, 4)
    stamp_flush(k, 'p0', 5)

def phase_ln2(k, mode):
    stamp_rt0(k, mode)
    stamp(k, 0)
    ln_addr(k)
    vecs = [(0, False), (1, False), (2, True)] if mode == 'ln2' else [(3, False)]
    if MEGA and mode == 'ln2':
        def s1b():
            k('s_mov_b32 s6, s%d' % PDBG); k('s_mov_b32 s7, s%d' % (PDBG+1))
        waitfor(k, s1b, 256, off=8)
    NPB = 4 if MEGA else 2
    MV = 168
    G, A, B = 144, 176, 208
    mod_loads(k, vecs, NPB, WS_MODB, MV, 16384)
    if mode == 'ln2':
        srd(k, 12, PX, 0x400000)
        for j in range(4): k('buffer_load_dwordx4 %s, v6, s[12:15], s44 offen offset:%d' % (vr(RAW + 4*j, 4), j*128))
    elif MEGA:
        srd(k, 12, PWS, 0x400000, WS_X1)
        for j in range(4): k('buffer_load_dwordx4 %s, v5, s[12:15], s%d offen %s' % (vr(RAW + 4*j, 4), 40+j, LD()))
    early_x = (mode == 'ln2') or MEGA
    k('s_waitcnt vmcnt(%d)' % (4 if early_x else 0))
    if mode == 'ln2': mod_to_lds(k, vecs, NPB, MV, None, mulsel={1: f2u(-LOG2E), 2: f2u(-LOG2E)})
    else: mod_to_lds(k, vecs, NPB, MV, f2u(1.0/(LOG2E*LOG2E)))
    k('s_waitcnt lgkmcnt(0)')
    k('s_barrier')
    vec_reads(k, 0, G)
    if mode == 'ln2':
        k('s_waitcnt lgkmcnt(0)')
        vec_reads(k, 2, A)
        k('s_waitcnt lgkmcnt(0)')
        vec_reads(k, 1, B)
    if early_x:
        k('s_waitcnt vmcnt(0) lgkmcnt(0)')
        if mode == 'ln2': tr8x8(k, RAW, 4, 240, 241)
        ln_unpack(k, RAW)
    k('s_mov_b32 s46, 0x00003f80')
    k('s_mov_b32 s47, 0x3f800000')
    def a():
        k('s_add_u32 s27, s24, %d' % (C_S4 if mode == 'ln2' else C_S7)); cnt_addr(k, 27)
    k('s_waitcnt lgkmcnt(0)')
    if MEGA: waitfor(k, a, 1, off=128, direct=32)
    stamp(k, 1)
    srd(k, 12, PWS, 0x1000000, WS_P1 if mode == 'ln2' else WS_P2)
    for j in range(4):
        for q in range(4):
            k('s_add_u32 s27, s%d, 0x%x' % (40+j, q*0x400000))
            k('buffer_load_dwordx4 %s, v5, s[12:15], s27 offen %s' % (vr(RAW + 16 + q*16 + 4*j, 4), LD()))
    if not early_x:
        srd(k, 8, PWS, 0x400000, WS_X1)
        for j in range(4): k('buffer_load_dwordx4 %s, v5, s[8:11], s%d offen %s' % (vr(RAW + 4*j, 4), 40+j, LD()))
        k('s_waitcnt vmcnt(0)')
        ln_unpack(k, RAW)
    pend = []
    for j in range(4):
        if early_x: k('s_waitcnt vmcnt(%d)' % (12 - 4*j + (j if mode == 'ln2' else 0)))
        for i in range(4):
            tb = 20 + 2*(i % 2)
            for q in range(4):
                for h in range(2):
                    k('v_dot2_f32_bf16 v%d, v%d, s%d, %s' % (tb + h, RAW + 16 + q*16 + 4*j + i, 46 + h, '0' if q == 0 else 'v%d' % (tb + h)))
            for x in pend: k(x)
            pend = ['v_fmac_f32 v%d, v%d, v%d' % (X_ + 8*j + 2*i, tb, G + 8*j + 2*i),
                    'v_fmac_f32 v%d, v%d, v%d' % (X_ + 8*j + 2*i + 1, tb + 1, G + 8*j + 2*i + 1)]
        k('s_nop 2')
        for x in pend: k(x)
        pend = []
        for i in range(4):
            k('v_cvt_pk_bf16_f32 v%d, v%d, v%d' % (RAW + 4*j + i, X_ + 8*j + 2*i, X_ + 8*j + 2*i + 1))
        if mode == 'ln2':
            if j == 0: srd(k, 16, PWS, 0x400000, WS_X1)
            k('buffer_store_dwordx4 %s, v5, s[16:19], s%d offen %s' % (vr(RAW + 4*j, 4), 40+j, ST))
    if mode == 'final':
        srd(k, 12, POUT, 0x400000)
        tr8x8(k, RAW, 4, 240, 241)
        for j in range(4): k('buffer_store_dwordx4 %s, v6, s[12:15], s44 offen offset:%d' % (vr(RAW + 4*j, 4), j*128))
    else:
        ln_stats(k)
        ln_apply_store(k, A, B, WS_H2)
        def a5():
            k('s_add_u32 s27, s24, %d' % C_S5); cnt_addr(k, 27)
        arrive(k, a5, count=32, flag_off=128)
    stamp(k, 2)
    stamp_flush(k, mode, 3)

def attn_setup(k):
    vL = [4, 5, 6, 7]; vX = [8, 9]; vW = [10, 11, 12, 13]
    ldw = 8192
    k('s_lshl_b32 s35, s22, 3')
    k('s_add_u32 s35, s35, s25')
    k('s_mov_b32 s62, s35')
    lds_addr_128(k, vL, tmp=40)
    k('v_lshlrev_b32 v8, 4, v1')
    k('v_add_u32 v9, 0x10000, v8')
    k('s_lshl_b32 s28, s62, 8')
    w128_voffsets(k, vW, ldw, 28, 40)
    srd(k, 8, PWS, 0x400000, WS_H)
    srd(k, 12, PWQ, 0x800000)
    k('s_lshl_b32 s27, s24, 3')
    k('s_lshl_b32 s28, s26, 1')
    k('s_add_u32 s34, s27, s28')
    k('s_lshl_b32 s30, s34, 16')
    k('s_sub_u32 s30, s30, 4096')
    k('s_mov_b32 s31, 0x%x' % ((-64*ldw) & 0xffffffff))
    k('s_lshl_b32 s32, s26, 12')
    return vL, vX, vW, ldw

def phase_attn(k, name, next_prefetch=None):
    stamp_rt0(k, 'attn')
    if not OPT.get('tailst'): stamp(k, 0)
    vL, vX, vW, ldw = attn_setup(k)
    KSLOT = [65536, 81920, 98304, 0, 16384]
    VSLOT = [114688, 131072, 147456, 32768, 49152]
    FLAG = 33792
    QF = lambda mb, ks: 64 + (mb*8 + ks)*4
    SB = lambda par, mb: 128 + (par*2 + mb)*16
    PB = lambda par, mb, kk: 192 + ((par*2 + mb)*2 + kk)*4
    CB = lambda mb: 224 + mb*16
    def OA(db, mb):
        i = db*2 + mb
        return i*16 if i < 6 else 192 + (i-6)*16
    KF = lambda ks: 128 + ks*4
    VF = lambda q: 160 + q*4
    LS = lambda mb, p: 33 + mb*2 + p
    MG = lambda mb: 37 + mb
    KT = (36, 37, 38, 39, 40); VT = (41, 42, 43, 29, 35)
    TT = (8, 9, 10, 12, 13, 14, 54, 55, 56, 57, 61, 63)
    kvflag = LD()
    def kdma(soff, pre0, tagid):
        return [(pre0 if i == 0 else [], 'buffer_load_dwordx4 v28, s[44:47], s%d offen offset:%d %s lds' % (soff, i*1024, kvflag), ('K', tagid, i)) for i in range(4)]
    def vdma(soff, pre0, tagid):
        return [(pre0 if i == 0 else [], 'buffer_load_dwordx4 v28, s[48:51], s%d offen offset:%d %s lds' % (soff, i*1024, kvflag), ('V', tagid, i)) for i in range(4)]
    def dma_list(lst):
        ops = []
        for (kind, s_) in lst:
            if kind == 'K': ops += kdma(52, ['s_mov_b32 s52, %d' % (s_*16384), 's_add_u32 m0, s32, %d' % KSLOT[s_ % 5]], s_)
            else: ops += vdma(53, ['s_mov_b32 s53, %d' % (s_*16384), 's_add_u32 m0, s32, %d' % VSLOT[s_ % 5]], s_)
        return ops
    def initial_dmas(): return dma_list([('K', 0), ('V', 0), ('K', 1), ('V', 1), ('K', 2), ('V', 2)])
    ini = initial_dmas()
    zero_list = ['v_accvgpr_write_b32 a%d, 0' % r for r in list(range(192, 224)) + list(range(0, 96))]
    def extra(t, j):
        out = []
        order = [(12, 3)] + [(tt, jj) for tt in (13, 14, 15) for jj in range(4)]
        if (t, j) in order:
            p = order.index((t, j))
            out += ini[(p*len(ini))//13:((p+1)*len(ini))//13]
        if t in (12, 13, 14, 15):
            z = zero_list[(t-12)*32:(t-11)*32]
            out += z[j*8:(j+1)*8]
        return out
    g = Gemm(k, 4, 16, acc=128, xr=0, wf=128, vX=vX, vW=vW, sXsrd=8, sWsrd=12, sXoff=30, sWoff=31, sM0=32, sCnt=33,
             stage_bytes=16384, ldw_step=64*ldw, nW=4,
             lds_imm=lambda buf, j, nb, sec: (vL[nb], buf*16384 + j*4096 + sec*1024), extra=extra, xflag=LD())
    if MEGA: g.prologue_w()
    k('s_lshl_b32 s27, s26, 12')
    k('v_add_u32 v28, s27, v8')
    k('v_add_u32 v16, %d, v8' % KSLOT[0])
    k('v_add_u32 v17, %d, v8' % VSLOT[0])
    k('v_lshlrev_b32 v18, 7, v1')
    k('s_lshl_b32 s27, s26, 13')
    k('v_add_u32 v18, s27, v18')
    k('s_lshl_b32 s27, s22, 17')
    k('s_add_u32 s28, s27, 0x%x' % WS_KF)
    srd_s(k, 44, PWS, 28, 0x20000)
    k('s_add_u32 s28, s27, 0x%x' % WS_VF)
    srd_s(k, 48, PWS, 28, 0x20000)
    k('v_mov_b32 v%d, 0xff800000' % MG(0))
    k('v_mov_b32 v%d, 0xff800000' % MG(1))
    k('s_mov_b32 s59, 0')
    if MEGA:
        def a():
            k('s_add_u32 s27, s24, %d' % C_S2); cnt_addr(k, 27)
        def kvw():
            k('s_mov_b32 s6, s%d' % PDBG); k('s_mov_b32 s7, s%d' % (PDBG+1))
        waitfor(k, kvw, 128, off=4)
        waitfor(k, a, 1, off=128, direct=32)
        g.prologue_x()
    if MEGA and OPT.get('local'):
        k('v_lshlrev_b32 v21, 7, v1')
        k('s_and_b32 s27, s24, 3')
        k('s_lshl_b32 s27, s27, 5')
        k('s_lshl_b32 s28, s20, 2')
        k('s_add_u32 s27, s27, s28')
        k('s_add_u32 s27, s27, 0x%x' % WS_XCC)
        k('v_add_u32 v21, s27, v21')
        k('s_mov_b64 exec, 0xff')
        k.vm('global_load_dword v22, v21, s[%d:%d] sc1' % (PWS, PWS+1), ('Z', 0, 0))
        k('s_mov_b64 exec, -1')
    if not MEGA:
        g.prologue_mixed()
    if not OPT.get('tailst'): stamp(k, 1)
    g.start()
    def epiQ(nb):
        out = []
        for mb in range(2):
            a = g.accr(nb, mb)
            for hh in range(2):
                for r in range(4):
                    out.append('v_cvt_pk_bf16_f32 v%d, v%d, v%d' % (QF(mb, 2*nb+hh) + r, a + hh*8 + 2*r, a + hh*8 + 2*r + 1))
        return out
    g.mainloop(epiQ, tail=1)
    if not OPT.get('tailst'): stamp(k, 2)
    if MEGA and OPT.get('local'):
        k('s_mov_b64 exec, 0xff')
        k('v_cmp_eq_u32 vcc, s3, v22')
        k('s_mov_b64 exec, -1')
        k('s_nop 1')
        k('s_cmp_eq_u32 vcc_lo, 0xff')
        k('s_cselect_b32 s3, 1, 0')
        if OPT.get('forceslow'): k('s_mov_b32 s3, 0')
    k('s_mul_i32 s27, s2, 28672')
    for n_, (lo, sz, add) in enumerate([(PWG, 1024*3584*2, 0), (PWG, 1024*3584*2, 4096), (PWU, 1024*3584*2, 0), (PWU, 1024*3584*2, 4096)]):
        k('s_add_u32 s28, s27, %d' % add)
        k('s_add_u32 s%d, s%d, s28' % (TT[3*n_], lo))
        k('s_addc_u32 s%d, s%d, 0' % (TT[3*n_+1], lo+1))
        k('s_sub_u32 s%d, 0x%x, s28' % (TT[3*n_+2], sz))
    n = k.vm_wait_n(lambda tg: tg[0] in 'KV' and tg[1] == 0)
    k('s_waitcnt vmcnt(%d)' % n)
    k.label(name + '_pro')
    k('s_barrier')
    for i_ in range(5):
        k('s_mov_b32 s%d, %d' % (KT[i_], KSLOT[i_]))
        k('s_mov_b32 s%d, %d' % (VT[i_], VSLOT[i_]))
    for ks in range(8): k('ds_read_b128 %s, v16 offset:%d' % (ar(KF(ks), 4), ks*1024))
    for mb in range(2):
        for p in range(2): k('v_mov_b32 v%d, 0' % LS(mb, p))
    k('s_waitcnt lgkmcnt(0)')
    for mb in range(2):
        for ks in range(8):
            d = vr(SB(0, mb), 16)
            k('%s %s, %s, %s, %s' % (MFMA, d, ar(KF(ks), 4), vr(QF(mb, ks), 4), '0' if ks == 0 else d))
    k('s_nop 3')
    k('s_nop 7')
    for mb in range(2):
        s0 = SB(0, mb); m = 40 + mb
        k('v_max3_f32 v%d, v%d, v%d, v%d' % (m, s0, s0+1, MG(mb)))
        for r in range(2, 16, 2): k('v_max3_f32 v%d, v%d, v%d, v%d' % (m, m, s0+r, s0+r+1))
    k('v_mov_b32 v42, v40')
    k('v_mov_b32 v43, v41')
    k('s_nop 1')
    k('v_permlane32_swap_b32 v40, v42')
    k('v_permlane32_swap_b32 v41, v43')
    k('s_nop 1')
    k('v_max_f32 v40, v40, v42')
    k('v_max_f32 v41, v41, v43')
    for mb in range(2):
        for r in range(16): k('v_sub_f32 v%d, 0, v%d' % (CB(mb) + r, 40+mb))
        for r in range(16): k('v_sub_f32 v%d, v%d, v%d' % (SB(0, mb) + r, SB(0, mb) + r, 40+mb))
    if not OPT.get('tailst'): stamp(k, 3)

    def pair_ops(par, p):
        mb, pp = p // 8, p % 8
        s0 = SB(par, mb); a, b = s0 + 2*pp, s0 + 2*pp + 1
        E = ['v_exp_f32 v%d, v%d' % (a, a), 'v_exp_f32 v%d, v%d' % (b, b)]
        A_ = ['v_add_f32 v%d, v%d, v%d' % (LS(mb, 0), LS(mb, 0), a), 'v_add_f32 v%d, v%d, v%d' % (LS(mb, 1), LS(mb, 1), b)]
        C_ = ['v_cvt_pk_bf16_f32 v%d, v%d, v%d' % (PB(par, mb, pp // 4) + pp % 4, a, b)]
        return E, A_, C_
    def iteration(par, do_pv, do_s, kread_kb, vread_kb, carry_in, gap_extra=None):
        gap_extra = gap_extra or {}
        mf = []
        if do_pv:
            for kk in range(2):
                for db in range(4):
                    for mb in range(2):
                        d = ar(OA(db, mb), 16)
                        mf.append('%s %s, %s, %s, %s' % (MFMA, d, ar(VF(kk*4+db), 4), vr(PB(1-par, mb, kk), 4), d))
        else: mf += [None]*16
        if do_s:
            for mb in range(2):
                for ks in range(8):
                    d = vr(SB(1-par, mb), 16)
                    mf.append('%s %s, %s, %s, %s' % (MFMA, d, ar(KF(ks), 4), vr(QF(mb, ks), 4), vr(CB(mb), 16) if ks == 0 else d))
        else: mf += [None]*16
        pre = {0: ['s_waitcnt lgkmcnt(2)'] if do_pv else []}
        nk = 8 if kread_kb is not None else 0
        if do_pv: pre[12] = ['s_waitcnt lgkmcnt(%d)' % (6 if nk else 0)]
        if do_s:
            pre[16] = ['s_waitcnt lgkmcnt(2)']
            pre[22] = ['s_waitcnt lgkmcnt(3)']
        for g_ in range(32):
            for x in pre.get(g_, []): k(x)
            if mf[g_]: k(mf[g_])
            p = g_ // 2
            if g_ % 2 == 0:
                for x in pair_ops(par, p)[0]: k(x)
                if p >= 1: k(pair_ops(par, p-1)[2][0])
                elif carry_in: k(pair_ops(1-par, 15)[2][0])
            else:
                if p >= 1:
                    for x in pair_ops(par, p-1)[1]: k(x)
                elif carry_in:
                    for x in pair_ops(1-par, 15)[1]: k(x)
                if g_ < 16:
                    if kread_kb is not None: k('ds_read_b128 %s, v16 offset:%d' % (ar(KF(p), 4), kread_kb*8192 + p*1024))
                else:
                    k('ds_read_b128 %s, v17 offset:%d' % (ar(VF(p-8), 4), vread_kb*8192 + (p-8)*1024))
            for x in gap_extra.get(g_, []):
                if isinstance(x, str): k(x)
                else:
                    pre_, ins, tag = x[0], x[1], x[2]
                    for p_ in pre_: k(p_)
                    if pre_ and 'm0' in pre_[-1]: k('s_nop 0')
                    k.vm(ins, tag)
                    if len(x) > 3:
                        for p_ in x[3]: k(p_)
    def touch(half):
        pre = ['s_mov_b32 s16, s%d' % TT[0], 's_mov_b32 s17, s%d' % TT[1], 's_mov_b32 s18, s%d' % TT[2], 's_mov_b32 s19, 0x20000']
        if half: pre += ['s_mov_b32 exec_hi, 0']
        return (pre, 'buffer_load_dword v19, v18, s[16:19], 0 offen', ('T', 0, 0), ['s_mov_b32 exec_hi, -1'] if half else [])
    sh = ['s_mov_b32 s%d, s%d' % (TT[n_], TT[n_+3]) for n_ in range(9)]
    g0 = {}
    for i_, op in enumerate(dma_list([('K', 3), ('V', 3), ('K', 4)])): g0.setdefault(1 + i_, []).append(op)
    g0.setdefault(20, []).extend(['s_mov_b32 s52, %d' % (5*16384), 's_mov_b32 s53, %d' % (4*16384)])
    iteration(0, False, True, 1, 0, False, g0)
    def rot(T): return ['s_mov_b32 s58, s%d' % T[0]] + ['s_mov_b32 s%d, s%d' % (T[i_], T[i_+1]) for i_ in range(4)] + ['s_mov_b32 s%d, s58' % T[4]]
    def trip(with_dma):
        ge = {0: ['v_add_u32 v16, s%d, v8' % KT[1]]}
        if with_dma:
            ge[0] += ['s_waitcnt vmcnt(20)', 's_barrier']
            dm = vdma(53, ['s_add_u32 m0, s32, s%d' % VT[4]], 'n') + kdma(52, ['s_add_u32 m0, s32, s%d' % KT[0]], 'n')
            for i_, op in enumerate(dm): ge.setdefault(2 + 2*i_, []).append(op)
            ge.setdefault(27, []).extend(['s_add_u32 s52, s52, 16384', 's_add_u32 s53, s53, 16384'])
            if not OPT.get('notouch'):
                ge.setdefault(19, []).append(touch(True))
                ge.setdefault(21, []).extend(sh[:5]); ge.setdefault(23, []).extend(sh[5:])
        elif not OPT.get('notouch'):
            ge.setdefault(2, []).append(touch(False))
            ge.setdefault(5, []).extend(sh[:5]); ge.setdefault(7, []).extend(sh[5:])
        ge.setdefault(29, []).extend(rot(KT))
        iteration(1, True, True, 0, 1, True, ge)
        ge2 = {2: ['v_add_u32 v17, s%d, v8' % VT[1]], 4: rot(VT), 31: ['s_sub_u32 s60, s60, 1', 's_cmp_lg_u32 s60, 0']}
        iteration(0, True, True, 1, 0, True, ge2)
    k('s_mov_b32 s60, 4')
    lab = k.L('aloop'); k.label(lab)
    trip(True)
    k('s_cbranch_scc1 %s' % lab)
    k('s_mul_i32 s27, s2, 28672')
    k('s_add_u32 s%d, s%d, s27' % (TT[0], PWD))
    k('s_addc_u32 s%d, s%d, 0' % (TT[1], PWD+1))
    k('s_sub_u32 s%d, 0x%x, s27' % (TT[2], 3584*1024*2))
    k('s_lshl_b32 s27, s20, 20')
    k('s_lshl_b32 s28, s21, 15')
    k('s_add_u32 s27, s27, s28')
    k('s_add_u32 s%d, s%d, s27' % (TT[3], PWO))
    k('s_addc_u32 s%d, s%d, 0' % (TT[4], PWO+1))
    k('s_mov_b32 s%d, 0x8000' % TT[5])
    for n_ in (2, 3):
        k('s_mov_b32 s%d, s%d' % (TT[3*n_], PWS))
        k('s_mov_b32 s%d, s%d' % (TT[3*n_+1], PWS+1))
        k('s_mov_b32 s%d, 0' % TT[3*n_+2])
    k('s_waitcnt vmcnt(%d)' % (0 if OPT.get('notouch') else 1))
    k('s_barrier')
    if MEGA: code_touch(k, name + '_L_oproj', name + '_L_gateup', 30)
    k('s_mov_b32 s60, 3')
    lab = k.L('bloop'); k.label(lab)
    trip(False)
    k('s_cbranch_scc1 %s' % lab)
    g15 = {}
    if MEGA:
        pre15 = ['s_mov_b32 s8, s%d' % PWMOD, 's_mov_b32 s9, s%d' % (PWMOD+1), 's_mov_b32 s10, 0x%x' % (1024*6144*2), 's_mov_b32 s11, 0x20000',
                 's_mov_b32 s12, s%d' % PC_, 's_mov_b32 s13, s%d' % (PC_+1), 's_mov_b32 s14, 2048', 's_mov_b32 s15, 0x20000',
                 's_lshr_b32 s52, s2, 6', 's_and_b32 s53, s2, 63', 's_lshl_b32 s54, s52, 14', 's_lshl_b32 s55, s53, 8', 's_add_u32 s54, s54, s55',
                 's_lshl_b32 s52, s52, 8', 's_lshl_b32 s53, s53, 7', 's_add_u32 s53, s53, 4096']
        gl = gemv_load(k, 8, 52, 53, AD=48, C=52, LDB=128, emit=False)
        items = pre15 + gl
        for i_, x in enumerate(items): g15.setdefault(2 + (i_ * 24) // len(items), []).append(x)
    iteration(1, True, False, None, 1, True, g15)
    for x in pair_ops(1, 15)[1] + pair_ops(1, 15)[2]: k(x)
    k('v_add_f32 v40, v%d, v%d' % (LS(0, 0), LS(0, 1)))
    k('v_add_f32 v41, v%d, v%d' % (LS(1, 0), LS(1, 1)))
    k('v_mov_b32 v42, v40')
    k('v_mov_b32 v43, v41')
    k('s_nop 1')
    k('v_permlane32_swap_b32 v40, v42')
    k('v_permlane32_swap_b32 v41, v43')
    k('s_nop 1')
    k('v_add_f32 v40, v40, v42')
    k('v_add_f32 v41, v41, v43')
    k('v_mov_b32 v43, 0x%x' % f2u(2.0**100))
    k('v_cmp_nlt_f32 vcc, v40, v43')
    k('v_cmp_nlt_f32 s[6:7], v41, v43')
    k('v_rcp_f32 v40, v40')
    k('v_rcp_f32 v41, v41')
    k('s_or_b64 vcc, vcc, s[6:7]')
    k('s_cmp_lg_u64 vcc, 0')
    k('s_cselect_b32 s58, 1, 0')
    k('v_mov_b32 v43, s58')
    k('s_lshl_b32 s58, s26, 2')
    k('s_add_u32 s58, s58, %d' % FLAG)
    k('v_mov_b32 v44, s58')
    k('ds_write_b32 v44, v43')
    srd(k, 16, PWS, 0x1000000, WS_O)
    k('s_lshl_b32 s27, s34, 8')
    k('s_lshl_b32 s28, s62, 3')
    k('s_add_u32 s27, s27, s28')
    k('s_lshl_b32 s60, s27, 10')
    k('s_add_u32 s61, s60, 0x40000')
    k('v_add_u32 v20, 4096, v8')
    k('s_waitcnt lgkmcnt(0)')
    set_local_vcc(k)
    stamp(k, 4 if not OPT.get('tailst') else 0)
    order = [(db, mb) for db in range(4) for mb in range(2)]
    def epiO(i):
        db, mb = order[i]; a = OA(db, mb); out = []
        for hh in range(2):
            t = (224, 240, 192)[(2*i + hh) % 3]
            out += ['v_accvgpr_read_b32 v%d, a%d' % (t+r, a + hh*8 + r) for r in range(8)]
            out += ['v_mul_f32 v%d, v%d, v%d' % (t+r, t+r, 40+mb) for r in range(8)]
            out += ['v_cvt_pk_bf16_f32 v%d, v%d, v%d' % (t+8+r, t+2*r, t+2*r+1) for r in range(4)]
            ks = 2*db + hh
            out += local_store(k, 'buffer_store_dwordx4 %s, v%d, s[16:19], s%d offen offset:%d' % (vr(t+8, 4), 8 if ks < 4 else 20, 60+mb, (ks % 4)*1024))
        return out
    M = []
    for i, (db, mb) in enumerate(order):
        d = ar(OA(db, mb), 16)
        for kk in range(2):
            M.append('%s %s, %s, %s, %s' % (MFMA, d, ar(VF(kk*4+db), 4), vr(PB(1, mb, kk), 4), d))
    for idx in range(6): k(M[idx])
    k('s_nop 7')
    for i in range(8):
        for x in epiO(i): k(x)
        for idx in (2*i+6, 2*i+7):
            if idx < 16: k(M[idx])
    if OPT.get('tailst'): stamp(k, 1)
    k('s_barrier')
    k('v_mov_b32 v44, %d' % FLAG)
    k('ds_read_b128 v[44:47], v44')
    k('s_waitcnt lgkmcnt(0)')
    k('v_or3_b32 v44, v44, v45, v46')
    k('v_or_b32 v44, v44, v47')
    k('s_nop 0')
    k('v_readfirstlane_b32 s58, v44')
    k('s_nop 3')
    k('s_cmp_lg_u32 s59, 0')
    k('s_cbranch_scc1 %s_fin' % name)
    k('s_cmp_lg_u32 s58, 0')
    k('s_cbranch_scc1 %s_slow' % name)
    k.label(name + '_fin')
    def post():
        srd(k, 16, PWS, 0x10000, WS_MODB)
        gemv_compute(k, 8, 54, 16, 65536, 24, B=192, C=52, LDB=128)
        lab = k.L('mb')
        k('s_cmp_lg_u32 s26, 0')
        k('s_cbranch_scc1 %s' % lab)
        k('s_waitcnt vmcnt(0)')
        k('v_mov_b32 v2, 8')
        k('v_mov_b32 v3, 1')
        k('s_mov_b64 exec, 1')
        k('global_atomic_add v2, v3, s[%d:%d] sc1' % (PDBG, PDBG+1))
        k('s_mov_b64 exec, -1')
        k.label(lab)
    def slow():
        k.label(name + '_slow')
        k('s_mov_b32 s59, 1')
        k('s_lshl_b32 s27, s22, 17')
        k('s_add_u32 s28, s27, 0x%x' % WS_KF)
        srd_s(k, 44, PWS, 28, 0x20000)
        k('s_mov_b32 s58, 0')
        lab2 = k.L('slow'); k.label(lab2)
        k('s_add_u32 s27, s58, 4096')
        for ks in range(8): k('buffer_load_dwordx4 %s, v8, s[44:47], s%d offen offset:%d %s' % (ar(KF(ks), 4), 58 if ks < 4 else 27, (ks % 4)*1024, kvflag))
        k('s_waitcnt vmcnt(0)')
        for mb in range(2):
            for ks in range(8):
                d = vr(SB(0, mb), 16)
                k('%s %s, %s, %s, %s' % (MFMA, d, ar(KF(ks), 4), vr(QF(mb, ks), 4), '0' if ks == 0 else d))
        k('s_nop 7')
        k('s_nop 7')
        for mb in range(2):
            s0 = SB(0, mb)
            for r in range(0, 16, 2): k('v_max3_f32 v%d, v%d, v%d, v%d' % (MG(mb), MG(mb), s0+r, s0+r+1))
        k('s_add_u32 s58, s58, 8192')
        k('s_cmp_lt_u32 s58, 0x20000')
        k('s_cbranch_scc1 %s' % lab2)
        k('v_add_u32 v16, %d, v8' % KSLOT[0])
        k('v_add_u32 v17, %d, v8' % VSLOT[0])
        for db in range(4):
            for mb in range(2):
                for r in range(16): k('v_accvgpr_write_b32 a%d, 0' % (OA(db, mb) + r))
        for n_ in range(4):
            k('s_mov_b32 s%d, s%d' % (TT[3*n_], PWS))
            k('s_mov_b32 s%d, s%d' % (TT[3*n_+1], PWS+1))
            k('s_mov_b32 s%d, 0' % TT[3*n_+2])
        k('s_barrier')
        for pre, ins, tag in initial_dmas():
            for p_ in pre: k(p_)
            if pre: k('s_nop 0')
            k(ins)
        k('s_waitcnt vmcnt(0)')
        k('s_branch %s_pro' % name)
    return slow, post

GU_STG = 28928; GU_UP = 14464
def gateup_setup(k, init_state=True):
    vL = [4, 5]; vX = [8, 9]; vW = [10, 11, 12, 13, 14, 15, 16]
    k('s_lshl_b32 s35, s22, 3')
    k('s_add_u32 s35, s35, s25')
    k('v_lshrrev_b32 v20, 5, v1')
    k('v_lshlrev_b32 v20, 3, v20')
    k('v_bfe_u32 v21, v1, 2, 2')
    k('v_add_u32 v20, v20, v21')
    k('v_mul_u32_u24 v20, 224, v20')
    k('v_bfe_u32 v21, v1, 4, 1')
    k('v_mul_u32_u24 v21, %d, v21' % GU_UP)
    k('v_add_u32 v20, v20, v21')
    k('v_and_b32 v21, 1, v1')
    k('v_lshl_add_u32 v20, v21, 4, v20')
    k('v_bfe_u32 v21, v1, 1, 1')
    k('v_lshl_add_u32 v4, v21, 3, v20')
    k('v_add_u32 v5, %d, v4' % (2*GU_STG))
    k('v_lshlrev_b32 v8, 4, v1')
    k('v_add_u32 v9, 0x10000, v8')
    k('s_and_b32 s27, s26, 1')
    k('s_mul_i32 s28, s27, 448')
    k('s_mul_i32 s29, s35, 224')
    for i in range(7):
        k('v_add_u32 v20, s28, v1')
        if i: k('v_add_u32 v20, %d, v20' % (64*i))
        k('v_mul_u32_u24 v21, 4682, v20')
        k('v_lshrrev_b32 v21, 16, v21')
        k('v_mul_u32_u24 v22, 14, v21')
        k('v_sub_u32 v22, v20, v22')
        k('v_mul_u32_u24 v21, 7168, v21')
        k('v_lshl_add_u32 v21, v22, 4, v21')
        k('v_add_u32 v21, s29, v21')
        k('v_subrev_u32 v%d, %d, v21' % (vW[i], (i % 4)*1024))
    srd(k, 8, PWS, 0x400000, WS_H2)
    k('s_cmp_ge_u32 s26, 2')
    k('s_cselect_b32 s12, s%d, s%d' % (PWU, PWG))
    k('s_cselect_b32 s13, s%d, s%d' % (PWU+1, PWG+1))
    k('s_mov_b32 s14, 0x%x' % (1024*7168))
    k('s_mov_b32 s15, 0x20000')
    k('s_lshl_b32 s27, s24, 3')
    k('s_lshl_b32 s28, s26, 1')
    k('s_add_u32 s34, s27, s28')
    if init_state:
        k('s_lshl_b32 s30, s34, 16')
        k('s_sub_u32 s30, s30, 4096')
        k('s_mov_b32 s31, 0x%x' % ((-64*7168) & 0xffffffff))
    k('s_lshr_b32 s27, s26, 1')
    k('s_mul_i32 s32, s27, %d' % GU_UP)
    k('s_and_b32 s27, s26, 1')
    k('s_mul_i32 s27, s27, 7168')
    k('s_add_u32 s32, s32, s27')
    return vL, vX, vW

def gateup_gemm(k, regs, extra=None):
    vL, vX, vW = regs
    return Gemm(k, 7, 16, acc=32, xr=0, wf=128, vX=vX, vW=vW, sXsrd=8, sWsrd=12, sXoff=30, sWoff=31, sM0=32, sCnt=33,
             stage_bytes=GU_STG, ldw_step=64*7168, nW=7,
             lds_imm=lambda buf, j, nb, sec: (vL[buf // 2], (buf % 2)*GU_STG + j*3584 + sec*896 + nb*32), extra=extra, xflag=LD())

def gateup_main(k, g, next_prefetch=None):
    srd(k, 16, PWS, 2048*3584*2, WS_ACT)
    k('s_mul_i32 s27, s34, 224')
    k('s_mul_i32 s28, s35, 7')
    k('s_add_u32 s27, s27, s28')
    k('s_lshl_b32 s36, s27, 10')
    k('s_add_u32 s37, s36, %d' % (224*1024))
    k('s_mov_b32 s40, 0x%x' % f2u(-LOG2E))
    k('s_mov_b32 s41, 0x%x' % f2u(-LOG2E))
    k('v_add_u32 v31, 4096, v8')
    k('v_mov_b32 v30, v8')
    k('v_mov_b32 v29, 0x%x' % f2u(-LOG2E))
    set_local_vcc(k)
    if not OPT.get('stepst'): stamp(k, 1)
    g.start()
    stamp(k, 2)
    def epi(b):
        out = []
        for mb in range(2):
            a = g.accr(b, mb)
            t = 17 + mb*4
            for h in range(2):
                e = a + 4*h
                out += ['v_exp_f32 v%d, v%d' % (t+i, e+i) for i in range(4)]
                out += ['v_mul_f32 v%d, v%d, v%d' % (e+i, e+i, e+8+i) for i in range(4)]
                out += ['v_add_f32 v%d, 1.0, v%d' % (t+i, t+i) for i in range(4)]
                out += ['v_rcp_f32 v%d, v%d' % (t+i, t+i) for i in range(4)]
                out += ['s_nop 0']
                out += ['v_mul_f32 v%d, v%d, v%d' % (e+i, e+i, t+i) for i in range(4)]
            out += ['v_cvt_pk_bf16_f32 v%d, v%d, v%d' % (a+8+i, a+2*i, a+2*i+1) for i in range(4)]
            ins = 'buffer_store_dwordx4 %s, v%d, s[16:19], s%d offen offset:%d' % (vr(a+8, 4), 30 if b < 4 else 31, 36+mb, (b % 4)*1024)
            out.append('\n'.join(local_store(k, ins)) if OPT.get('localact') else ins + ' ' + ST)
        return out
    g.mainloop(epi)
    stamp(k, 3)
    if next_prefetch: next_prefetch()

def resume_m0(k, g):
    k('s_add_u32 m0, s%d, 0x%x' % (g.sM0, 2*g.stage))

def build():
    kerns = []
    if MEGA:
        name = NAME + '_kernel'
        k = Kern(name, nvgpr=512, accum=256, nsgpr=102, lds=163840)
        def early():
            code_touch(k, name + '_c1', name + '_cend', 30)
            k.label(name + '_c1')
        header(k, name, early)
        phase_p0(k, name)
        phase_ln1b(k)
        slow, post = phase_attn(k, name)
        def a3():
            k('s_lshl_b32 s27, s24, 2'); k('s_add_u32 s27, s27, s22'); k('s_add_u32 s27, s27, %d' % C_S3); cnt_addr(k, 27)
        arrive(k, a3, count=8, flag_off=128)
        g = gemm128_setup(k, 'oproj'); g.prologue_w()
        post()
        stamp_flush(k, 'attn', 5)
        k.label(name + '_L_oproj')
        stamp_rt0(k, 'oproj'); stamp(k, 0) if not OPT.get('stepst') else None
        waitfor(k, a3, 1, off=128, direct=8)
        resume_m0(k, g)
        g.prologue_x()
        gemm128_main(k, 'oproj', g)
        def a4():
            k('s_add_u32 s27, s24, %d' % C_S4); cnt_addr(k, 27)
        arrive(k, a4, count=32, flag_off=128)
        regs = gateup_setup(k)
        gg = gateup_gemm(k, regs)
        gg.prologue_w()
        code_touch(k, name + '_L_gateup', name + '_L_down', 30)
        stamp_flush(k, 'oproj', 4)
        phase_ln2(k, 'ln2')
        k.label(name + '_L_gateup')
        stamp_rt0(k, 'gateup'); stamp(k, 0) if not OPT.get('stepst') else None
        gateup_setup(k, init_state=False)
        def a5():
            k('s_add_u32 s27, s24, %d' % C_S5); cnt_addr(k, 27)
        waitfor(k, a5, 1, off=128, direct=32)
        resume_m0(k, gg)
        gg.prologue_x()
        gateup_main(k, gg)
        def a6():
            k('s_lshl_b32 s27, s24, 2'); k('s_add_u32 s27, s27, s22'); k('s_add_u32 s27, s27, %d' % C_S6); cnt_addr(k, 27)
        arrive(k, a6, count=8, flag_off=128)
        g = gemm128_setup(k, 'down'); g.prologue_w()
        code_touch(k, name + '_L_down', name + '_cend', 60)
        stamp_flush(k, 'gateup', 4)
        k.label(name + '_L_down')
        stamp_rt0(k, 'down'); stamp(k, 0) if not OPT.get('stepst') else None
        waitfor(k, a6, 1, off=128, direct=8)
        resume_m0(k, g)
        g.prologue_x()
        gemm128_main(k, 'down', g)
        def a7():
            k('s_add_u32 s27, s24, %d' % C_S7); cnt_addr(k, 27)
        arrive(k, a7, count=32, flag_off=128)
        stamp_flush(k, 'down', 4)
        phase_ln2(k, 'final')
        if OPT.get('diagxcd'):
            lab = k.L('de')
            k('s_or_b32 s27, s2, s26')
            k('s_cmp_lg_u32 s27, 0')
            k('s_cbranch_scc1 %s' % lab)
            k('v_mov_b32 v2, 0')
            k('global_load_dwordx4 v[4:7], v2, s[%d:%d] offset:168 sc1' % (PDBG, PDBG+1))
            k('global_load_dwordx4 v[8:11], v2, s[%d:%d] offset:184 sc1' % (PDBG, PDBG+1))
            k('s_waitcnt vmcnt(0)')
            k('s_mov_b32 s29, 0')
            for i in range(8):
                k('v_readfirstlane_b32 s27, v%d' % (4+i))
                k('s_nop 3')
                k('s_bcnt1_i32_b32 s27, s27')
                k('s_add_u32 s29, s29, s27')
            k('s_sub_u32 s29, s29, 8')
            k('s_mul_i32 s29, s29, 2')
            k.label(lab + '_l')
            k('s_cmp_eq_u32 s29, 0')
            k('s_cbranch_scc1 %s' % lab)
            k('s_sleep 64')
            k('s_sub_u32 s29, s29, 1')
            k('s_branch %s_l' % lab)
            k.label(lab)
        k('s_endpgm')
        slow()
        k.label(name + '_cend')
        k.label(name + '_end')
        k('s_endpgm')
        kerns.append(k)
    else:
        def kern(nm, lds):
            k = Kern(nm, nvgpr=512, accum=256, nsgpr=102, lds=lds); header(k, nm); return k
        def fin(k):
            k.label(k.name + '_end'); k('s_endpgm'); kerns.append(k)
        k = kern('p0_kernel', 163840); phase_p0(k, k.name); stamp_flush(k, 'p0', 3); fin(k)
        k = kern('ln1_kernel', 163840)
        ln_addr(k); srd(k, 8, PX, 0x400000)
        for j in range(4): k('buffer_load_dwordx4 %s, v6, s[8:11], s44 offen offset:%d' % (vr(RAW + 4*j, 4), j*128))
        k('s_waitcnt vmcnt(0)'); tr8x8(k, RAW, 4, 240, 241); ln_unpack(k, RAW); ln_stats(k); phase_ln1b(k); fin(k)
        k = kern('attn_kernel', 163840); slow, post = phase_attn(k, k.name); stamp_flush(k, 'attn', 5); k('s_endpgm'); slow(); fin(k)
        k = kern('oproj_kernel', 65536); stamp_rt0(k, 'oproj'); stamp(k, 0); g = gemm128_setup(k, 'oproj'); g.prologue_mixed(); gemm128_main(k, 'oproj', g); stamp_flush(k, 'oproj', 4); fin(k)
        k = kern('ln2_kernel', 163840); phase_ln2(k, 'ln2'); fin(k)
        k = kern('gateup_kernel', 4*GU_STG); stamp_rt0(k, 'gateup'); stamp(k, 0); regs = gateup_setup(k); gg = gateup_gemm(k, regs); gg.prologue_mixed(); gateup_main(k, gg); stamp_flush(k, 'gateup', 4); fin(k)
        k = kern('down_kernel', 65536); stamp_rt0(k, 'down'); stamp(k, 0); g = gemm128_setup(k, 'down'); g.prologue_mixed(); gemm128_main(k, 'down', g); stamp_flush(k, 'down', 4); fin(k)
        k = kern('final_kernel', 163840); phase_ln2(k, 'final'); fin(k)
    return kerns

HEADER = open('cdna_kernels/%s.s.ref' % NAME).read().split('; Override launch')[0] if os.path.exists('cdna_kernels/%s.s.ref' % NAME) else ''

def assemble(kerns):
    out = [HEADER.rstrip()]
    if MEGA:
        kn = kerns[0]
        out.append('; @launch grid=(%d,1,1) block=(%d,1,1) lds=%d' % (kn.grid, kn.block, kn.lds))
    else:
        for kn in kerns:
            out.append('; @launch kernel=%s grid=(%d,1,1) block=(%d,1,1) lds=%d' % (kn.name, kn.grid, kn.block, kn.lds))
    out.append('.amdgcn_target "amdgcn-amd-amdhsa--gfx950"')
    for kn in kerns: out.append(kn.text())
    out.append('.section .rodata,"a"')
    for kn in kerns:
        out.append('.p2align 6'); out.append(kn.desc())
    return '\n'.join(out) + '\n'

if __name__ == '__main__':
    for a in sys.argv[2:]:
        if a == 'instr': INSTR = True
        elif a == 'mega': MEGA = True
        elif a.startswith('opt:'): OPT[a[4:].split('=')[0]] = (a.split('=')[1].replace('+', ' ') if '=' in a else True)
    ks = build()
    bad = 0
    for kn in ks: bad += len(check(kn))
    txt = assemble(ks)
    txt = '\n'.join(l[4:] if l.startswith('    ') else l for l in txt.split('\n'))
    open(sys.argv[1], 'w').write(txt)
    print('generated', len(txt), 'bytes; check errors:', bad)
```

```python
import sys, math, os, struct as _st
from asmlib import *

NAME = 'adaLN_cond__sliding_block_cached__swiglu_ffn__prompt'
KA = dict(x=0, k=8, v=16, wq=24, wo=32, bx=40, wg=48, wu=56, wd=64, c=72, wmod=80, out=88, dbg=96, ws=104)
PX, PK, PV, PWQ, PWO, PWG, PWU, PWD, PC_, PWMOD, POUT, PDBG, PWS = 64, 66, 68, 70, 72, 76, 78, 80, 82, 84, 86, 88, 90
WS_MOD  = 0x0
WS_MODB = 0x10000
WS_CNT  = 0x20000
WS_XCC  = 0x30000
WS_H   = 0x100000
WS_O   = 0x500000
WS_P1  = 0x1500000
WS_X1  = 0x3500000
WS_H2  = 0x3900000
WS_ACT = 0x3D00000
WS_P2  = 0x4B00000
WS_KF  = 0x5B00000
WS_VF  = 0x5B80000
WS_STAMP = 0x8000000
MFMA = 'v_mfma_f32_32x32x16_bf16'
LOG2E = 1.4426950408889634
def f2u(x): return _st.unpack('<I', _st.pack('<f', x))[0]
INSTR = False
MEGA = False
OPT = {}
PHASES = ['p0', 'attn', 'oproj', 'ln2', 'gateup', 'down', 'final']
PIDX = {p: i for i, p in enumerate(PHASES)}
ST = 'sc1'
def LD(): return 'sc1' if (MEGA and not OPT.get('plainld')) else ''
C_S2, C_S3, C_S4, C_S5, C_S6, C_S7 = 0, 8, 40, 48, 56, 88
LN_LDS = 147456

def srd(k, s, lo, size, add=None):
    if add:
        k('s_add_u32 s%d, s%d, 0x%x' % (s, lo, add))
        k('s_addc_u32 s%d, s%d, 0' % (s+1, lo+1))
    else:
        k('s_mov_b32 s%d, s%d' % (s, lo))
        k('s_mov_b32 s%d, s%d' % (s+1, lo+1))
    k('s_mov_b32 s%d, 0x%x' % (s+2, size))
    k('s_mov_b32 s%d, 0x20000' % (s+3))
def srd_s(k, s, lo, soff, size):
    k('s_add_u32 s%d, s%d, s%d' % (s, lo, soff))
    k('s_addc_u32 s%d, s%d, 0' % (s+1, lo+1))
    k('s_mov_b32 s%d, 0x%x' % (s+2, size))
    k('s_mov_b32 s%d, 0x20000' % (s+3))

def stamp(k, i):
    if INSTR:
        k('s_memtime s[%d:%d]' % (92+2*i, 93+2*i)) if i < 5 else None
def stamp_begin(k):
    if INSTR:
        k('s_memrealtime s[60:61]') if False else None
        k('s_memrealtime s[18:19]') if False else None
def stamp_flush(k, phase, n):
    if not INSTR: return
    k('s_waitcnt lgkmcnt(0)')
    k('s_memrealtime s[28:29]') if False else None
    srd(k, 16, PWS, 0x10000, WS_STAMP + PIDX[phase]*0x10000)
    k('s_lshl_b32 s27, s2, 6')
    k('v_cmp_eq_u32 vcc, 0, v0')
    k('s_and_saveexec_b64 s[28:29], vcc')
    lab = k.L('so')
    k('s_cbranch_execz %s' % lab)
    k('v_mov_b32 v2, s27')
    for i in range(n):
        k('v_mov_b32 v3, s%d' % (92+2*i))
        k('buffer_store_dword v3, v2, s[16:19], 0 offen offset:%d' % (4*i))
    k('s_memrealtime s[92:93]')
    k('s_memtime s[94:95]')
    k('s_waitcnt lgkmcnt(0)')
    k('v_mov_b32 v3, s92')
    k('buffer_store_dword v3, v2, s[16:19], 0 offen offset:56')
    k('v_mov_b32 v3, s94')
    k('buffer_store_dword v3, v2, s[16:19], 0 offen offset:60')
    k.label(lab)
    k('s_mov_b64 exec, s[28:29]')
def stamp_rt0(k, phase):
    if not INSTR: return
    k('s_memrealtime s[92:93]')
    k('s_memtime s[94:95]')
    srd(k, 16, PWS, 0x10000, WS_STAMP + PIDX[phase]*0x10000)
    k('s_lshl_b32 s27, s2, 6')
    k('s_waitcnt lgkmcnt(0)')
    k('v_cmp_eq_u32 vcc, 0, v0')
    k('s_and_saveexec_b64 s[28:29], vcc')
    lab = k.L('s0')
    k('s_cbranch_execz %s' % lab)
    k('v_mov_b32 v2, s27')
    k('v_mov_b32 v3, s92')
    k('buffer_store_dword v3, v2, s[16:19], 0 offen offset:48')
    k('v_mov_b32 v3, s94')
    k('buffer_store_dword v3, v2, s[16:19], 0 offen offset:52')
    k.label(lab)
    k('s_mov_b64 exec, s[28:29]')

def rt_mark(k, i):
    if not OPT.get('rtdbg'): return
    k('s_memrealtime s[100:101]')
    k('s_waitcnt lgkmcnt(0)')
    k('s_mov_b32 s%d, s100' % (92+i))
def rt_dump(k):
    if not OPT.get('rtdbg'): return
    lab = k.L('rd')
    k('s_memrealtime s[100:101]')
    k('s_waitcnt lgkmcnt(0)')
    k('s_cmp_lg_u32 s2, %d' % int(OPT.get('rtdbg') if OPT.get('rtdbg') is not True else 0))
    k('s_cbranch_scc1 %s' % lab)
    k('s_cmp_lg_u32 s26, 0')
    k('s_cbranch_scc1 %s' % lab)
    k('s_mov_b64 exec, 1')
    for i in range(1, 8):
        k('s_sub_u32 s27, s%d, s92' % (92+i))
        k('v_mov_b32 v2, %d' % (4*(3+i)))
        k('v_mov_b32 v3, s27')
        k('global_store_dword v2, v3, s[%d:%d]' % (PDBG, PDBG+1))
    k('s_sub_u32 s27, s100, s92')
    k('v_mov_b32 v2, %d' % (4*11))
    k('v_mov_b32 v3, s27')
    k('global_store_dword v2, v3, s[%d:%d]' % (PDBG, PDBG+1))
    k('s_mov_b64 exec, -1')
    k.label(lab)

def header(k, name, early=None):
    k('s_cmp_ge_u32 s2, 256')
    k('s_cbranch_scc1 %s_end' % name)
    if OPT.get('scramble'):
        k('s_and_b32 s3, s2, 31')
        k('s_lshl_b32 s3, s3, 3')
        k('s_lshr_b32 s2, s2, 5')
        k('s_or_b32 s2, s2, s3')
    k('s_load_dwordx8 s[80:87], s[0:1], 64')
    k('s_load_dwordx16 s[64:79], s[0:1], 0')
    k('s_load_dwordx4 s[88:91], s[0:1], 96')
    k('v_lshrrev_b32 v2, 6, v0')
    k('v_and_b32 v1, 63, v0')
    k('s_lshr_b32 s21, s2, 3')
    k('v_readfirstlane_b32 s26, v2')
    if early: early()
    k('s_and_b32 s20, s2, 7')
    k('s_lshr_b32 s22, s20, 1')
    k('s_and_b32 s23, s20, 1')
    k('s_and_b32 s24, s21, 3')
    k('s_lshl_b32 s27, s23, 2')
    k('s_add_u32 s24, s24, s27')
    k('s_lshr_b32 s25, s21, 2')
    k('s_waitcnt lgkmcnt(0)')

def cnt_addr(k, sreg, dst=6):
    k('s_lshl_b32 s%d, s%d, 8' % (dst, sreg))
    k('s_add_u32 s%d, s%d, 0x%x' % (dst, dst, WS_CNT))
    k('s_add_u32 s%d, s%d, s%d' % (dst, dst, PWS))
    k('s_addc_u32 s%d, s%d, 0' % (dst+1, PWS+1))
def arrive(k, setup, count=None, extra_dbg=None, only_w0=False, flag_off=None):
    if not MEGA: return
    if not OPT.get('flagsync') and count is not None and count <= 32: count = None
    if not only_w0:
        k('s_waitcnt vmcnt(0)')
        k('s_barrier')
    lab = k.L('arr')
    k('s_cmp_lg_u32 s26, 0')
    k('s_cbranch_scc1 %s' % lab)
    if only_w0: k('s_waitcnt vmcnt(0)')
    setup()
    k('v_mov_b32 v2, 0')
    k('v_mov_b32 v3, 1')
    k('s_mov_b64 exec, 1')
    if extra_dbg is not None:
        k('v_mov_b32 v29, %d' % extra_dbg)
        k('global_atomic_add v29, v3, s[%d:%d] sc1' % (PDBG, PDBG+1))
    if count is None:
        k('global_atomic_add v2, v3, s[6:7] sc1')
    else:
        k('global_atomic_add v29, v2, v3, s[6:7] sc0 sc1')
        k('s_waitcnt vmcnt(0)')
        k('v_readfirstlane_b32 s27, v29')
        k('s_nop 3')
        k('s_cmp_lg_u32 s27, %d' % (count - 1))
        k('s_cbranch_scc1 %s_n' % lab)
        k('global_store_dword v2, v3, s[6:7] offset:%d sc1' % flag_off)
        k.label(lab + '_n')
    k('s_mov_b64 exec, -1')
    k.label(lab)
def waitfor(k, setup, count, off=0, sleep=2, direct=None):
    if not MEGA: return
    if not OPT.get('flagsync') and direct is not None: count, off = direct, 0
    lab = k.L('wt'); done = k.L('wd'); skip = k.L('ws')
    k('s_cmp_lg_u32 s26, 0')
    k('s_cbranch_scc1 %s' % skip)
    setup()
    k('v_mov_b32 v2, 0')
    k('s_mov_b32 s27, 0')
    k('s_mov_b64 exec, 1')
    k.label(lab)
    k('global_load_dword v3, v2, s[6:7] offset:%d sc1' % off)
    k('s_waitcnt vmcnt(0)')
    k('v_readfirstlane_b32 s28, v3')
    k('s_add_u32 s27, s27, 1')
    k('s_cmp_ge_u32 s28, %d' % count)
    k('s_cbranch_scc1 %s' % done)
    k('s_cmp_ge_u32 s27, 0x40000')
    k('s_cbranch_scc1 %s' % done)
    k('s_sleep %d' % sleep)
    k('s_branch %s' % lab)
    k.label(done)
    k('s_mov_b64 exec, -1')
    k.label(skip)
    k('s_barrier')

def local_store(k, ins):
    if not MEGA or not OPT.get('local'): return [ins + ' ' + ST]
    a = k.L('ls'); b = k.L('lt')
    return ['s_cbranch_vccnz %s' % a, ins + ' ' + ST, a + ':', 's_cbranch_vccz %s' % b, ins, b + ':']
def set_local_vcc(k):
    if MEGA and OPT.get('local'):
        k('s_cmp_eq_u32 s3, 1')
        k('s_cselect_b64 vcc, -1, 0')

def code_touch(k, lab0, lab1, vtmp):
    if OPT.get('nocode'): return
    here = k.L('pc'); skip = k.L('ct')
    k('s_cmp_lg_u32 s26, 0')
    k('s_cbranch_scc1 %s' % skip)
    k('s_getpc_b64 s[6:7]')
    k.label(here)
    k('s_add_u32 s6, s6, %s-%s' % (lab0, here))
    k('s_addc_u32 s7, s7, %s' % ('0' if True else ''))
    k('v_lshlrev_b32 v%d, 5, v1' % vtmp)
    k('v_add_u32 v%d, s21, v%d' % (vtmp, vtmp))
    k('v_lshlrev_b32 v%d, 7, v%d' % (vtmp, vtmp))
    k('v_cmp_gt_u32 vcc, %s-%s, v%d' % (lab1, lab0, vtmp))
    k('s_and_saveexec_b64 s[4:5], vcc')
    k('s_cbranch_execz %s_r' % skip)
    k('global_load_dword v%d, v%d, s[6:7]' % (vtmp+1, vtmp))
    k.label(skip + '_r')
    k('s_mov_b64 exec, s[4:5]')
    k.label(skip)

class Gemm:
    def __init__(self, k, NB, nsteps, acc, xr, wf, vX, vW, sXsrd, sWsrd, sXoff, sWoff, sM0, sCnt,
                 stage_bytes, ldw_step, nW, lds_imm, extra=None, xflag=''):
        self.k = k; self.NB = NB; self.nsteps = nsteps; self.acc = acc; self.xr = xr; self.wf = wf
        self.vX = vX; self.vW = vW; self.sX = sXsrd; self.sW = sWsrd; self.sXoff = sXoff; self.sWoff = sWoff
        self.sM0 = sM0; self.sCnt = sCnt; self.stage = stage_bytes; self.ldw_step = ldw_step; self.nW = nW
        self.lds_imm = lds_imm; self.xflag = xflag
        self.extra = extra or (lambda t, j: [])
        if nW == 4: wsl = {3: [0], 0: [1], 1: [2], 2: [3]}
        else: wsl = {3: [0, 1], 0: [2, 3], 1: [4, 5], 2: [6]}
        Q = []
        for i in wsl[3]: Q.append((('W', 0, i), -13))
        for s_ in range(nsteps):
            for j in range(4):
                slot = 4*(s_-3) + j
                ws = [('W', s_, i) for i in wsl[j]] if j < 3 else ([('W', s_+1, i) for i in wsl[3]] if s_+1 < nsteps else [])
                for o in [('X', s_, j, 0)] + ws + [('X', s_, j, 1)]: Q.append((o, slot))
        self.Q = Q
        self.P = len([1 for o, sl in Q if sl < -4])
        self.sched = {}
        pos = self.P
        for t in range(nsteps):
            for j in range(4):
                slot = 4*t + j
                steady = len([1 for o, sl in Q if sl <= slot])
                per = len([1 for o, sl in Q if sl == 16 + j])
                n = min(steady, pos + per + 1)
                self.sched[(t, j)] = [o for o, sl in Q[pos:n]]
                pos = n
    def accr(self, nb, mb): return self.acc + (nb*2 + mb)*16
    def xreg(self, s, mb, j): return self.xr + (s % 4)*32 + (mb*4 + j)*4
    def wreg(self, par, nb): return self.wf + par*self.NB*4 + nb*4
    def mkop(self, o):
        if o[0] == 'X':
            _, s_, j, mb = o
            pre = ['s_add_u32 s%d, s%d, 4096' % (self.sXoff, self.sXoff)] if (j == 0 and mb == 0) else []
            return (pre, 'buffer_load_dwordx4 %s, v%d, s[%d:%d], s%d offen offset:%d %s' % (ar(self.xreg(s_, mb, j), 4), self.vX[mb], self.sX, self.sX+3, self.sXoff, j*1024, self.xflag), ('X', s_, j))
        _, s_, i = o
        pre = []
        if i == 0:
            pre.append('s_add_u32 s%d, s%d, 0x%x' % (self.sWoff, self.sWoff, self.ldw_step))
            pre.append('s_add_u32 m0, s%d, 0x%x' % (self.sM0, (s_ % 4)*self.stage))
        elif i == 4:
            pre.append('s_add_u32 m0, s%d, 0x%x' % (self.sM0, (s_ % 4)*self.stage + 4096))
        return (pre, 'buffer_load_dwordx4 v%d, s[%d:%d], s%d offen offset:%d lds' % (self.vW[i], self.sW, self.sW+3, self.sWoff, (i % 4)*1024), ('W', s_, i))
    def emit_vm(self, op):
        k = self.k
        pre, ins, tag = op[0], op[1], op[2]
        for p in pre: k(p)
        if pre and 'm0' in pre[-1]: k('s_nop 0')
        k.vm(ins, tag)
    def lds_reads(self, t, j):
        out = []
        for nb in range(self.NB):
            for sec in range(2):
                v, imm = self.lds_imm(t % 4, j, nb, sec)
                out.append('ds_read_b64_tr_b16 %s, v%d offset:%d' % (ar(self.wreg(j % 2, nb) + 2*sec, 2), v, imm))
        return out
    def blk_reads(self, t, nb):
        out = []
        for j in range(4):
            for sec in range(2):
                v, imm = self.lds_imm(t % 4, j, nb, sec)
                out.append('ds_read_b64_tr_b16 %s, v%d offset:%d' % (ar(self.wf + (nb % 2)*16 + j*4 + 2*sec, 2), v, imm))
        return out
    def prologue_w(self):
        for o, sl in self.Q[:self.P]:
            if o[0] == 'W': self.emit_vm(self.mkop(o))
    def prologue_x(self):
        for o, sl in self.Q[:self.P]:
            if o[0] == 'X': self.emit_vm(self.mkop(o))
    def prologue_mixed(self):
        for o, sl in self.Q[:self.P]: self.emit_vm(self.mkop(o))
    def start(self):
        k = self.k
        n = k.vm_wait_n(lambda tg: (tg[0] == 'W' and tg[1] == 0) or (tg[0] == 'X' and tg[1] == 0 and tg[2] <= 2))
        k('s_waitcnt vmcnt(%d)' % n)
        k('s_barrier')
        for r in self.lds_reads(0, 0): k(r)
    def hack(self, mf, par):
        if not OPT.get('hack16'): return mf
        import re as _re
        m = _re.match(r'\S+ v\[(\d+):\d+\], (\S+?), (\S+?), (\S+)', mf)
        d0 = int(m.group(1)) + 8*(par % 2)
        return '\n'.join('v_mfma_f32_16x16x32_bf16 v[%d:%d], %s, %s, v[%d:%d]' % (d0+4*h, d0+4*h+3, m.group(2), m.group(3), d0+4*h, d0+4*h+3) for h in range(2))
    def emit_gaps(self, mfmas, gaps):
        k = self.k
        self.hp = getattr(self, 'hp', 0) + 1
        for m, mf in enumerate(mfmas):
            k(self.hack(mf, self.hp))
            for kind, x in gaps[m]:
                if kind == 'i': k(x)
                else: self.emit_vm(x)
    def frag_reads(self, t, j, nb, slot):
        out = []
        for sec in range(2):
            v, imm = self.lds_imm(t % 4, j, nb, sec)
            out.append('ds_read_b64_tr_b16 %s, v%d offset:%d' % (ar(self.wf + slot*4 + 2*sec, 2), v, imm))
        return out
    def step(self, t, tail=0):
        k = self.k; NB = self.NB; n = self.nsteps
        last = (t == n - 1)
        pre_tail = tail and t == n - tail - 1
        for j in range(4):
            if j == 3 and not last:
                if pre_tail:
                    nn = k.vm_wait_n(lambda tg: tg[0] in 'WX' and tg[1] <= (n-2 if tail >= 3 else n-1))
                else:
                    nn = k.vm_wait_n(lambda tg: (tg[0] == 'W' and tg[1] <= t+1) or (tg[0] == 'X' and (tg[1] <= t or (tg[1] == t+1 and tg[2] <= 2))))
                k('s_waitcnt vmcnt(%d) lgkmcnt(0)' % nn)
                k('s_barrier')
            elif j == 3:
                nn = k.vm_wait_n(lambda tg: tg[0] == 'X' and tg[1] <= t)
                k('s_waitcnt vmcnt(%d) lgkmcnt(0)' % nn)
            else:
                k('s_waitcnt lgkmcnt(0)')
            if j < 3: reads = self.lds_reads(t, j+1)
            elif last: reads = []
            elif pre_tail:
                reads = []
                for f in range(4): reads += self.frag_reads(n - tail, f, 0, f)
            else: reads = self.lds_reads(t+1, 0)
            vms = [self.mkop(o) for o in self.sched[(t, j)]]
            extra = list(self.extra(t, j))
            vms += [e for e in extra if not isinstance(e, str)]
            plain = [e for e in extra if isinstance(e, str)]
            nm = 2*NB
            gaps = [[] for _ in range(nm)]
            for i, r in enumerate(reads): gaps[i // 2].append(('i', r))
            for i, op in enumerate(vms): gaps[NB + (i * NB) // max(1, len(vms))].append(('vm', op))
            for i, e in enumerate(plain): gaps[(i * nm) // len(plain)].append(('i', e))
            mf = []
            for nb in range(NB):
                for mb in range(2):
                    d = vr(self.accr(nb, mb), 16)
                    mf.append('%s %s, %s, %s, %s' % (MFMA, d, ar(self.wreg(j % 2, nb), 4), ar(self.xreg(t, mb, j), 4), '0' if (t == 0 and j == 0) else d))
            self.emit_gaps(mf, gaps)
    def tail_blocks(self, tail, epi):
        k = self.k; NB = self.NB; n = self.nsteps
        frs = [(nb, t, j) for nb in range(NB) for t in range(n - tail, n) for j in range(4)]
        per = tail*4
        NS = 8
        pending = []
        for f, (nb, t, j) in enumerate(frs):
            fo = f % per
            if fo == 0:
                items = list(pending)
                if nb < tail:
                    for jj in range(4): items += list(self.extra(n - tail + nb, jj))
                ng = 2*per
                blockgaps = [[] for _ in range(ng)]
                for i, e in enumerate(items): blockgaps[4 + (i * (ng - 4)) // max(1, len(items))].append(e)
            if f == 4 and tail >= 3:
                nn = k.vm_wait_n(lambda tg: tg[0] in 'WX' and tg[1] <= n-1)
                k('s_waitcnt vmcnt(%d)' % nn)
                k('s_barrier')
            ahead = min(len(frs) - 1 - f, 3)
            k('s_waitcnt lgkmcnt(%d)' % (2*ahead))
            nxt = self.frag_reads(frs[f+4][1], frs[f+4][2], frs[f+4][0], (f+4) % NS) if f + 4 < len(frs) else []
            for mb in range(2):
                d = vr(self.accr(nb, mb), 16)
                k(self.hack('%s %s, %s, %s, %s' % (MFMA, d, ar(self.wf + (f % NS)*4, 4), ar(self.xreg(t, mb, j), 4), d), f))
                if nxt: k(nxt[mb])
                for e in blockgaps[2*fo + mb]:
                    if isinstance(e, str): k(e)
                    else: self.emit_vm(e)
            if fo == per - 1: pending = epi(nb)
        k('s_nop 7')
        k('s_nop 3')
        for e in pending:
            if isinstance(e, str): k(e)
            else: self.emit_vm(e)
    def mainloop(self, epi=None, tail=3):
        k = self.k; n = self.nsteps
        tl = tail if epi is not None else 0
        for t in range(4): self.step(t, tl)
        if OPT.get('stepst'): stamp(k, 0)
        t = 4
        trips = 0
        while t + 4*trips + 3 + 4 <= n - 1: trips += 1
        if trips >= 2:
            lab = k.L('loop')
            k('s_mov_b32 s%d, %d' % (self.sCnt, trips))
            k.label(lab)
            q0 = len(k.vmq)
            for tt in range(t, t+4): self.step(tt, tl)
            k('s_sub_u32 s%d, s%d, 1' % (self.sCnt, self.sCnt))
            k('s_cmp_lg_u32 s%d, 0' % self.sCnt)
            k('s_cbranch_scc1 %s' % lab)
            body = k.vmq[q0:]
            for r in range(1, trips):
                for tg in body: k.vmq.append((tg[0], tg[1] + 4*r, tg[2]))
            t += 4*trips
        for tt in range(t, n - tl): self.step(tt, tl)
        if OPT.get('stepst'): stamp(k, 1)
        if tl: self.tail_blocks(tl, epi)

def lds_addr_128(k, vL, tmp):
    a, b, c = tmp, tmp+1, tmp+2
    k('v_lshrrev_b32 v%d, 5, v1' % a)
    k('v_lshlrev_b32 v%d, 11, v%d' % (a, a))
    k('v_bfe_u32 v%d, v1, 2, 2' % b)
    k('v_lshl_add_u32 v%d, v%d, 8, v%d' % (a, b, a))
    k('v_bfe_u32 v%d, v1, 4, 1' % c)
    k('v_lshl_add_u32 v%d, v%d, 5, v%d' % (a, c, a))
    k('v_and_b32 v%d, 1, v1' % c)
    k('v_lshl_add_u32 v%d, v%d, 4, v%d' % (a, c, a))
    k('v_bfe_u32 v%d, v1, 1, 1' % c)
    k('v_lshl_add_u32 v%d, v%d, 3, v%d' % (a, c, a))
    for nb in range(4):
        k('v_xor_b32 v%d, %d, v%d' % (c, nb, b))
        k('v_lshl_add_u32 v%d, v%d, 6, v%d' % (vL[nb], c, a))

def w128_voffsets(k, vW, ldw, s_colbytes, tmp):
    a, b, c = tmp, tmp+1, tmp+2
    k('v_lshrrev_b32 v%d, 4, v1' % a)
    k('v_bfe_u32 v%d, v1, 2, 2' % b)
    k('v_xor_b32 v%d, v%d, v%d' % (b, b, a))
    k('v_and_b32 v%d, 3, v1' % c)
    k('v_lshlrev_b32 v%d, 4, v%d' % (c, c))
    k('v_lshl_add_u32 v%d, v%d, 6, v%d' % (c, b, c))
    k('s_lshl_b32 s27, s26, 4')
    k('v_add_u32 v%d, s27, v%d' % (a, a))
    k('v_mul_u32_u24 v%d, %d, v%d' % (a, ldw, a))
    k('v_add3_u32 v%d, v%d, v%d, s%d' % (vW[0], a, c, s_colbytes))
    for i in range(1, 4): k('v_add_u32 v%d, 0x%x, v%d' % (vW[i], i*4*ldw - i*1024, vW[0]))

def gemm128_setup(k, which):
    if which == 'oproj': xoff, xsize, KS, ksq, wptr, ldw, nsteps = WS_O, 0x1000000, 256, 64, PWO, 2048, 16
    else: xoff, xsize, KS, ksq, wptr, ldw, nsteps = WS_ACT, 2048*3584*2, 224, 56, PWD, 2048, 14
    vL = [4, 5, 6, 7]; vX = [8, 9]; vW = [10, 11, 12, 13]
    lds_addr_128(k, vL, tmp=14)
    k('v_lshlrev_b32 v8, 4, v1')
    k('v_add_u32 v9, 0x%x, v8' % (KS*1024))
    k('s_lshl_b32 s28, s25, 8')
    w128_voffsets(k, vW, ldw, 28, 14)
    srd(k, 8, PWS, xsize, xoff)
    srd(k, 12, wptr, ksq*4*16*ldw)
    k('s_lshl_b32 s27, s24, 3')
    k('s_lshl_b32 s28, s26, 1')
    k('s_add_u32 s34, s27, s28')
    k('s_mul_i32 s30, s34, %d' % KS)
    k('s_mul_i32 s28, s22, %d' % ksq)
    k('s_add_u32 s30, s30, s28')
    k('s_lshl_b32 s30, s30, 10')
    k('s_sub_u32 s30, s30, 4096')
    k('s_mul_i32 s31, s22, 0x%x' % (ksq*16*ldw))
    k('s_sub_u32 s31, s31, 0x%x' % (64*ldw))
    k('s_lshl_b32 s32, s26, 12')
    return Gemm(k, 4, nsteps, acc=128, xr=0, wf=128, vX=vX, vW=vW, sXsrd=8, sWsrd=12, sXoff=30, sWoff=31, sM0=32, sCnt=33,
                stage_bytes=16384, ldw_step=64*ldw, nW=4,
                lds_imm=lambda buf, j, nb, sec: (vL[nb], buf*16384 + j*4096 + sec*1024), xflag=LD())

def gemm128_main(k, which, g):
    poff = WS_P1 if which == 'oproj' else WS_P2
    k('s_lshl_b32 s27, s22, 22')
    k('s_add_u32 s27, s27, 0x%x' % poff)
    srd_s(k, 16, PWS, 27, 0x400000)
    k('s_lshl_b32 s27, s34, 6')
    k('s_lshl_b32 s28, s25, 3')
    k('s_add_u32 s27, s27, s28')
    k('s_lshl_b32 s36, s27, 10')
    k('s_add_u32 s37, s36, 0x10000')
    k('v_add_u32 v14, 4096, v8')
    if not OPT.get('stepst'): stamp(k, 1)
    g.start()
    stamp(k, 2)
    cnt = [0]
    def epi(nb):
        out = []
        for mb in range(2):
            a = g.accr(nb, mb)
            for hh in range(2):
                t = 16 + (cnt[0] % 8)*4; cnt[0] += 1
                for r in range(4): out.append('v_cvt_pk_bf16_f32 v%d, v%d, v%d' % (t+r, a + hh*8 + 2*r, a + hh*8 + 2*r + 1))
                ks = 2*nb + hh
                out.append(([], 'buffer_store_dwordx4 %s, v%d, s[16:19], s%d offen offset:%d %s' % (vr(t, 4), 8 if ks < 4 else 14, 36+mb, (ks % 4)*1024, ST), ('S', 0, 0)))
        return out
    g.mainloop(epi)
    stamp(k, 3)

def reduce8(k, v, t):
    k('s_nop 1')
    k('v_add_f32_dpp v%d, v%d, v%d row_ror:8 row_mask:0xf bank_mask:0xf' % (v, v, v))
    k('v_mov_b32 v%d, v%d' % (t, v))
    k('s_nop 1')
    k('v_permlane16_swap_b32 v%d, v%d' % (v, t))
    k('s_nop 1')
    k('v_add_f32 v%d, v%d, v%d' % (v, v, t))
    k('v_mov_b32 v%d, v%d' % (t, v))
    k('s_nop 1')
    k('v_permlane32_swap_b32 v%d, v%d' % (v, t))
    k('s_nop 1')
    k('v_add_f32 v%d, v%d, v%d' % (v, v, t))

def gemv_load(k, nj, s_row0, s_col0bytes, AD=160, C=168, LDB=96, emit=True):
    o = []
    o.append('v_and_b32 v%d, 7, v0' % AD)
    o.append('v_lshrrev_b32 v%d, 3, v0' % (AD+1))
    o.append('v_mul_u32_u24 v%d, %d, v%d' % (AD+2, nj*12288, AD+1))
    o.append('v_lshl_add_u32 v%d, v%d, 4, v%d' % (AD+2, AD, AD+2))
    o.append('v_mul_u32_u24 v%d, %d, v%d' % (AD+3, nj*2, AD+1))
    o.append('s_mul_i32 s36, s%d, 12288' % s_row0)
    o.append('s_add_u32 s36, s36, s%d' % s_col0bytes)
    o.append('s_lshl_b32 s37, s%d, 1' % s_row0)
    for i in range(nj // 8): o.append('buffer_load_dwordx4 %s, v%d, s[12:15], s37 offen offset:%d' % (vr(C+4*i, 4), AD+3, 16*i))
    for j in range(nj):
        o.append('buffer_load_dwordx4 %s, v%d, s[8:11], s36 offen' % (vr(LDB+4*j, 4), AD+2))
        if j < nj-1: o.append('s_add_u32 s36, s36, 12288')
    if emit:
        for x in o: k(x)
    return o
def gemv_compute(k, nj, s_outoff, out_srd, L0, after, B=160, C=168, LDB=96):
    S = B+16; T = B+32; A = B+48
    k('v_and_b32 v%d, 7, v0' % B)
    k('v_lshrrev_b32 v%d, 3, v0' % (B+1))
    k('s_waitcnt vmcnt(%d)' % (nj + after))
    if OPT.get('p0st') and L0 == LN_LDS: stamp(k, 2)
    for i in range(nj//2):
        k('v_lshlrev_b32 v%d, 16, v%d' % (S+2*i, C+i))
        k('v_and_b32 v%d, 0xffff0000, v%d' % (S+1+2*i, C+i))
    for i in range(nj): k('v_mul_f32 v%d, 0x%x, v%d' % (T+i, f2u(-LOG2E), S+i))
    for i in range(nj): k('v_exp_f32 v%d, v%d' % (T+i, T+i))
    k('s_nop 0')
    for i in range(nj): k('v_add_f32 v%d, 1.0, v%d' % (T+i, T+i))
    for i in range(nj): k('v_rcp_f32 v%d, v%d' % (T+i, T+i))
    k('s_nop 0')
    for i in range(nj): k('v_mul_f32 v%d, v%d, v%d' % (S+i, S+i, T+i))
    for i in range(nj//2): k('v_cvt_pk_bf16_f32 v%d, v%d, v%d' % (T+i, S+2*i, S+1+2*i))
    for i in range(nj//2):
        k('v_lshlrev_b32 v%d, 16, v%d' % (S+2*i, T+i))
        k('v_and_b32 v%d, 0xffff0000, v%d' % (S+1+2*i, T+i))
    for i in range(8): k('v_mov_b32 v%d, 0' % (A+i))
    U = B+56
    for j in range(nj):
        k('s_waitcnt vmcnt(%d)' % (nj-1-j + after))
        for i in range(4):
            k('v_lshlrev_b32 v%d, 16, v%d' % (U+2*(i%2), LDB+4*j+i))
            k('v_and_b32 v%d, 0xffff0000, v%d' % (U+1+2*(i%2), LDB+4*j+i))
            k('v_fmac_f32 v%d, v%d, v%d' % (A+2*i, U+2*(i%2), S+j))
            k('v_fmac_f32 v%d, v%d, v%d' % (A+2*i+1, U+1+2*(i%2), S+j))
    if OPT.get('p0st') and L0 == LN_LDS: stamp(k, 3)
    k('v_lshlrev_b32 v%d, 8, v%d' % (B+4, B+1))
    k('v_lshl_add_u32 v%d, v%d, 5, v%d' % (B+4, B, B+4))
    k('v_add_u32 v%d, %d, v%d' % (B+4, L0, B+4))
    k('ds_write_b128 v%d, %s' % (B+4, vr(A, 4)))
    k('ds_write_b128 v%d, %s offset:16' % (B+4, vr(A+4, 4)))
    k('s_waitcnt lgkmcnt(0)')
    k('s_barrier')
    lab = k.L('skip')
    k('s_cmp_lg_u32 s26, 0')
    k('s_cbranch_scc1 %s' % lab)
    k('v_lshlrev_b32 v%d, 2, v1' % (B+6))
    k('v_add_u32 v%d, %d, v%d' % (B+4, L0, B+6))
    for h in range(4):
        for i in range(8): k('ds_read_b32 v%d, v%d offset:%d' % (LDB+8*h+i, B+4, (8*h+i)*256))
        if h in (1, 2): k('s_waitcnt lgkmcnt(7)')
    k('s_waitcnt lgkmcnt(0)')
    for i in range(16): k('v_add_f32 v%d, v%d, v%d' % (LDB+i, LDB+i, LDB+16+i))
    for st in (8, 4, 2, 1):
        for i in range(st): k('v_add_f32 v%d, v%d, v%d' % (LDB+i, LDB+i, LDB+st+i))
    k('buffer_store_dword v%d, v%d, s[%d:%d], s%d offen %s' % (LDB, B+6, out_srd, out_srd+3, s_outoff, ST))
    k.label(lab)

def kv_part(k, mid=None, nmid=1):
    B = 160
    k('s_sub_u32 s50, s2, 128')
    k('s_lshl_b32 s50, s50, 2')
    k('s_add_u32 s50, s50, s26')
    srd(k, 8, PK, 0x200000)
    srd(k, 12, PV, 0x200000)
    srd(k, 16, PWS, 0x100000, WS_KF)
    k('s_lshr_b32 s51, s50, 7')
    k('s_bfe_u32 s52, s50, 0x40003')
    k('s_lshl_b32 s54, s51, 19')
    k('s_lshl_b32 s55, s52, 13')
    k('s_add_u32 s54, s54, s55')
    k('s_add_u32 s54, s54, 0x60000')
    k('v_lshrrev_b32 v%d, 3, v1' % B)
    k('v_and_b32 v%d, 7, v1' % (B+1))
    k('v_lshlrev_b32 v%d, 8, v%d' % (B+2, B))
    k('v_lshl_add_u32 v%d, v%d, 4, v%d' % (B+2, B+1, B+2))
    k('s_bfe_u32 s53, s50, 0x20001')
    k('s_and_b32 s56, s50, 1')
    k('s_lshl_b32 s55, s53, 11')
    k('s_add_u32 s55, s55, s54')
    k('s_lshl_b32 s57, s56, 7')
    k('s_add_u32 s55, s55, s57')
    k('buffer_load_dwordx4 %s, v%d, s[8:11], s55 offen' % (vr(B+8, 4), B+2))
    k('v_lshrrev_b32 v%d, 2, v1' % (B+3))
    k('v_lshlrev_b32 v%d, 8, v%d' % (B+3, B+3))
    k('v_and_b32 v%d, 3, v1' % (B+4))
    k('v_lshl_add_u32 v%d, v%d, 4, v%d' % (B+3, B+4, B+3))
    k('s_bfe_u32 s55, s50, 0x10002')
    k('s_lshl_b32 s55, s55, 12')
    k('s_and_b32 s57, s50, 3')
    k('s_lshl_b32 s57, s57, 6')
    k('s_add_u32 s55, s55, s57')
    k('s_add_u32 s55, s55, s54')
    k('s_mul_i32 s57, s26, 4608')
    k('s_add_u32 s57, s57, %d' % (TR_LDS + 2304))
    k('s_mov_b32 m0, s57')
    k('s_nop 0')
    k('buffer_load_dwordx4 v%d, s[12:15], s55 offen lds' % (B+3))
    if mid:
        k('s_mov_b32 s58, s16'); k('s_mov_b32 s59, s17'); k('s_mov_b32 s60, s18')
        mid()
        k('s_mov_b32 s16, s58'); k('s_mov_b32 s17, s59'); k('s_mov_b32 s18, s60')
    k('v_lshrrev_b32 v%d, 5, v1' % (B+4))
    k('v_lshlrev_b32 v%d, 2, v%d' % (B+4, B+4))
    k('v_bfe_u32 v%d, v1, 2, 2' % (B+5))
    k('v_add_u32 v%d, v%d, v%d' % (B+4, B+4, B+5))
    k('v_lshlrev_b32 v%d, 6, v%d' % (B+4, B+4))
    k('v_bfe_u32 v%d, v1, 4, 1' % (B+5))
    k('v_lshl_add_u32 v%d, v%d, 5, v%d' % (B+4, B+5, B+4))
    k('v_and_b32 v%d, 1, v1' % (B+5))
    k('v_lshl_add_u32 v%d, v%d, 4, v%d' % (B+4, B+5, B+4))
    k('v_bfe_u32 v%d, v1, 1, 1' % (B+5))
    k('v_lshl_add_u32 v%d, v%d, 3, v%d' % (B+4, B+5, B+4))
    k('v_add_u32 v%d, s57, v%d' % (B+4, B+4))
    k('v_lshrrev_b32 v%d, 4, v1' % (B+6))
    k('v_lshlrev_b32 v%d, 10, v%d' % (B+6, B+6))
    k('v_bfe_u32 v%d, v1, 3, 1' % (B+5))
    k('v_lshl_add_u32 v%d, v%d, 9, v%d' % (B+6, B+5, B+6))
    k('v_lshl_add_u32 v%d, v%d, 4, v%d' % (B+6, B+1, B+6))
    k('s_lshr_b32 s55, s50, 3')
    k('s_lshl_b32 s55, s55, 13')
    k('s_lshl_b32 s57, s56, 12')
    k('s_add_u32 s55, s55, s57')
    k('s_lshl_b32 s57, s53, 7')
    k('s_add_u32 s55, s55, s57')
    k('s_waitcnt vmcnt(%d)' % (1 + nmid if mid else 1))
    tr8x8(k, B+8, 1, 240, 241)
    k('buffer_store_dwordx4 %s, v%d, s[16:19], s55 offen %s' % (vr(B+8, 4), B+6, ST))
    k('s_waitcnt vmcnt(%d)' % (1 + nmid if mid else 1))
    k('ds_read_b64_tr_b16 %s, v%d' % (vr(B+12, 2), B+4))
    k('ds_read_b64_tr_b16 %s, v%d offset:512' % (vr(B+14, 2), B+4))
    k('v_lshlrev_b32 v%d, 4, v1' % (B+5))
    k('s_lshl_b32 s55, s50, 10')
    k('s_add_u32 s55, s55, 0x%x' % (WS_VF - WS_KF))
    k('s_waitcnt lgkmcnt(0)')
    k('buffer_store_dwordx4 %s, v%d, s[16:19], s55 offen %s' % (vr(B+12, 4), B+5, ST))

def ln_addr(k):
    k('v_lshrrev_b32 v2, 6, v0')
    k('v_and_b32 v3, 7, v1')
    k('v_lshrrev_b32 v4, 3, v1')
    k('v_lshrrev_b32 v5, 1, v4')
    k('v_lshlrev_b32 v5, 10, v5')
    k('v_and_b32 v6, 1, v4')
    k('v_lshl_add_u32 v5, v6, 9, v5')
    k('v_lshl_add_u32 v5, v3, 4, v5')
    k('v_lshl_add_u32 v5, v2, 14, v5')
    k('v_lshlrev_b32 v6, 11, v4')
    k('v_lshl_add_u32 v6, v3, 4, v6')
    k('v_lshl_add_u32 v6, v2, 9, v6')
    tr_addr(k, 240, 241)
    k('v_lshlrev_b32 v7, 4, v0')
    k('v_lshlrev_b32 v8, 10, v2')
    k('v_lshl_add_u32 v8, v4, 5, v8')
    k('v_add_u32 v8, %d, v8' % LN_LDS)
    k('v_add_u32 v11, %d, v7' % LN_LDS)
    k('v_lshlrev_b32 v9, 5, v3')
    k('v_add_u32 v9, %d, v9' % (LN_LDS + 12288))
    k('v_lshl_add_u32 v10, v2, 3, v9')
    k('s_lshl_b32 s45, s24, 5')
    k('s_lshl_b32 s46, s22, 3')
    k('s_add_u32 s45, s45, s46')
    k('s_add_u32 s45, s45, s25')
    k('s_lshr_b32 s40, s45, 2')
    k('s_lshl_b32 s40, s40, 16')
    k('s_and_b32 s46, s45, 3')
    k('s_lshl_b32 s46, s46, 7')
    k('s_add_u32 s40, s40, s46')
    for j in range(1, 4): k('s_add_u32 s%d, s40, %d' % (40+j, j*4096))
    k('s_lshl_b32 s44, s45, 14')

TR_LDS = 126976
def tr_addr(k, vw, vrd):
    k('v_lshrrev_b32 v%d, 3, v1' % vw)
    k('v_mul_u32_u24 v%d, 144, v%d' % (vw, vw))
    k('v_and_b32 v%d, 7, v1' % vrd)
    k('v_lshl_add_u32 v%d, v%d, 4, v%d' % (vw, vrd, vw))
    k('v_mul_u32_u24 v%d, 144, v%d' % (vrd, vrd))
    k('v_lshrrev_b32 v29, 3, v1')
    k('v_lshl_add_u32 v%d, v29, 4, v%d' % (vrd, vrd))
    k('s_mul_i32 s27, s26, 4608')
    k('s_add_u32 s27, s27, %d' % TR_LDS)
    k('v_add_u32 v%d, s27, v%d' % (vw, vw))
    k('v_add_u32 v%d, s27, v%d' % (vrd, vrd))
def tr8x8(k, base, n, vw, vrd):
    for j in range(n): k('ds_write_b128 v%d, %s offset:%d' % (vw, vr(base + 4*j, 4), j*1152))
    k('s_waitcnt lgkmcnt(0)')
    for j in range(n): k('ds_read_b128 %s, v%d offset:%d' % (vr(base + 4*j, 4), vrd, j*1152))
    k('s_waitcnt lgkmcnt(0)')

X_ = 32
RAW = 64
def ln_unpack(k, src):
    for j in range(4):
        for i in range(4):
            k('v_lshlrev_b32 v%d, 16, v%d' % (X_ + 8*j + 2*i, src + 4*j + i))
            k('v_and_b32 v%d, 0xffff0000, v%d' % (X_ + 8*j + 2*i + 1, src + 4*j + i))
def pk(op, d, a, b, c=None, bc=None):
    n = 3 if c is not None else 2
    hi = ['0' if (bc and i in bc) else '1' for i in range(n)]
    ops = [vr(d, 2), vr(a, 2), vr(b, 2)] + ([vr(c, 2)] if c is not None else [])
    return '%s %s op_sel_hi:[%s]' % (op, ', '.join(ops), ','.join(hi))
def ln_stats(k):
    if True:
        k(pk('v_pk_add_f32', 16, X_, X_+2)); k(pk('v_pk_add_f32', 18, X_+4, X_+6))
        k(pk('v_pk_add_f32', 20, X_+8, X_+10)); k(pk('v_pk_add_f32', 22, X_+12, X_+14))
        for j in range(4): k(pk('v_pk_add_f32', 16 + 2*j, 16 + 2*j, X_ + 16 + 4*j))
        for j in range(4): k(pk('v_pk_add_f32', 16 + 2*j, 16 + 2*j, X_ + 18 + 4*j))
        k(pk('v_pk_add_f32', 16, 16, 18)); k(pk('v_pk_add_f32', 20, 20, 22)); k(pk('v_pk_add_f32', 16, 16, 20))
    k('v_add_f32 v16, v16, v17')
    k('v_mul_f32 v24, 0x%x, v16' % f2u(-1.0/32))
    for i in range(16): k(pk('v_pk_add_f32', X_ + 2*i, X_ + 2*i, 24, bc=[1]))
    k(pk('v_pk_mul_f32', 16, X_, X_)); k(pk('v_pk_mul_f32', 18, X_+2, X_+2))
    for i in range(2, 16): k(pk('v_pk_fma_f32', 16 + 2*(i % 2), X_ + 2*i, X_ + 2*i, 16 + 2*(i % 2)))
    k(pk('v_pk_add_f32', 16, 16, 18))
    k('v_add_f32 v27, v16, v17')
    k('v_sub_f32 v26, 0, v24')
    k('v_mov_b32 v30, v26')
    for step, n in ((0, 32), (1, 64), (2, 128)):
        if step == 0:
            k('s_nop 1')
            k('v_mov_b32_dpp v20, v26 row_ror:8 row_mask:0xf bank_mask:0xf')
            k('v_mov_b32_dpp v21, v27 row_ror:8 row_mask:0xf bank_mask:0xf')
            a_m, b_m, a_M, b_M = 26, 20, 27, 21
        else:
            sw = 'v_permlane16_swap_b32' if step == 1 else 'v_permlane32_swap_b32'
            k('v_mov_b32 v20, v26'); k('v_mov_b32 v21, v27')
            k('s_nop 1')
            k('%s v26, v20' % sw); k('%s v27, v21' % sw)
            k('s_nop 1')
        k('v_sub_f32 v22, v26, v20')
        k('v_add_f32 v26, v26, v20')
        k('v_add_f32 v27, v27, v21')
        k('v_mul_f32 v22, v22, v22')
        k('v_mul_f32 v26, 0.5, v26')
        k('v_fmac_f32 v27, 0x%x, v22' % f2u(n/2.0))
    k('ds_write_b64 v10, v[26:27]')
    k('s_waitcnt lgkmcnt(0)')
    k('s_barrier')
    k('ds_read_b128 v[16:19], v9')
    k('ds_read_b128 v[20:23], v9 offset:16')
    k('s_waitcnt lgkmcnt(0)')
    k('v_add_f32 v24, v16, v18'); k('v_add_f32 v25, v20, v22'); k('v_add_f32 v24, v24, v25')
    k('v_mul_f32 v24, 0.25, v24')
    k('v_add_f32 v25, v17, v19'); k('v_add_f32 v26, v21, v23'); k('v_add_f32 v25, v25, v26')
    for r in (16, 18, 20, 22): k('v_sub_f32 v%d, v%d, v24' % (r, r))
    k('v_mul_f32 v26, v16, v16')
    for r in (18, 20, 22): k('v_fmac_f32 v26, v%d, v%d' % (r, r))
    k('v_fmac_f32 v25, 0x%x, v26' % f2u(256.0))
    k('v_mov_b32 v26, 0x%x' % f2u(1e-5))
    k('v_fmac_f32 v26, 0x%x, v25' % f2u(1.0/1024))
    k('v_rsq_f32 v28, v26')
    k('v_sub_f32 v30, v30, v24')
def vec_reads(k, slot, dst):
    for j in range(4):
        k('ds_read_b128 %s, v8 offset:%d' % (vr(dst + 8*j, 4), slot*4096 + j*256))
        k('ds_read_b128 %s, v8 offset:%d' % (vr(dst + 8*j + 4, 4), slot*4096 + j*256 + 16))
def mod_loads(k, vecs, npart, base_off, MV, pstride):
    srd(k, 8, PWS, 0x10000, base_off or None)
    for n, (c, isscale) in enumerate(vecs):
        for p in range(npart):
            k('s_mov_b32 s27, %d' % (p*pstride + c*4096))
            k('buffer_load_dwordx4 %s, v7, s[8:11], s27 offen %s' % (vr(MV + (n*npart + p)*4, 4), LD()))
def mod_to_lds(k, vecs, npart, MV, mulc=None, mulsel=None):
    for n, (c, isscale) in enumerate(vecs):
        b = MV + n*npart*4
        for p in range(1, npart):
            for i in range(4): k('v_add_f32 v%d, v%d, v%d' % (b+i, b+i, b+4*p+i))
        def rnd():
            k('v_cvt_pk_bf16_f32 v%d, v%d, v%d' % (b+4, b, b+1))
            k('v_cvt_pk_bf16_f32 v%d, v%d, v%d' % (b+5, b+2, b+3))
            k('v_lshlrev_b32 v%d, 16, v%d' % (b, b+4))
            k('v_and_b32 v%d, 0xffff0000, v%d' % (b+1, b+4))
            k('v_lshlrev_b32 v%d, 16, v%d' % (b+2, b+5))
            k('v_and_b32 v%d, 0xffff0000, v%d' % (b+3, b+5))
        rnd()
        if isscale:
            for i in range(4): k('v_add_f32 v%d, 1.0, v%d' % (b+i, b+i))
            rnd()
        mc = mulc if mulc else (mulsel or {}).get(n)
        if mc:
            for i in range(4): k('v_mul_f32 v%d, 0x%x, v%d' % (b+i, mc, b+i))
        k('ds_write_b128 v11, %s offset:%d' % (vr(b, 4), n*4096))
def ln_apply_store(k, A, B, hoff):
    srd(k, 16, PWS, 0x400000, hoff)
    for j in range(4):
        for i in range(4): k(pk('v_pk_mul_f32', A + 8*j + 2*i, A + 8*j + 2*i, 28, bc=[1]))
        for i in range(4): k(pk('v_pk_fma_f32', B + 8*j + 2*i, A + 8*j + 2*i, 30, B + 8*j + 2*i, bc=[1]))
        for i in range(4): k(pk('v_pk_fma_f32', X_ + 8*j + 2*i, X_ + 8*j + 2*i, A + 8*j + 2*i, B + 8*j + 2*i))
        for i in range(4): k('v_cvt_pk_bf16_f32 v%d, v%d, v%d' % (104 + 4*j + i, X_ + 8*j + 2*i, X_ + 8*j + 2*i + 1))
        k('buffer_store_dwordx4 %s, v5, s[16:19], s%d offen %s' % (vr(104 + 4*j, 4), 40+j, ST))

TICKET_LDS = LN_LDS + 12288 + 512
def ticket_issue(k):
    lab = k.L('tk')
    k('s_getreg_b32 s3, hwreg(HW_REG_XCC_ID, 0, 4)')
    k('s_and_b32 s3, s3, 7')
    k('s_cmp_lg_u32 s26, 0')
    k('s_cbranch_scc1 %s' % lab)
    k('s_lshl_b32 s27, s3, 2')
    k('s_add_u32 s27, s27, 132')
    k('v_mov_b32 v2, s27')
    k('v_mov_b32 v3, 1')
    k('s_mov_b64 exec, 1')
    k('global_atomic_add v250, v2, v3, s[%d:%d] sc0 sc1' % (PDBG, PDBG+1))
    k('s_mov_b64 exec, -1')
    k.label(lab)
def ticket_publish(k, name):
    lab = k.L('tp'); ok = k.L('tok'); sp = k.L('tsp'); spd = k.L('tsd')
    k('s_cmp_lg_u32 s26, 0')
    k('s_cbranch_scc1 %s' % lab)
    k('s_waitcnt vmcnt(0)')
    k('v_readfirstlane_b32 s27, v250')
    k('s_mov_b32 s28, s3')
    k('s_cmp_lt_u32 s27, 32')
    k('s_cbranch_scc1 %s' % ok)
    k('s_mov_b64 exec, 1')
    k('v_mov_b32 v2, 0')
    k('s_mov_b32 s29, 0')
    k.label(sp)
    k('global_load_dwordx4 v[16:19], v2, s[%d:%d] offset:132 sc1' % (PDBG, PDBG+1))
    k('global_load_dwordx4 v[20:23], v2, s[%d:%d] offset:148 sc1' % (PDBG, PDBG+1))
    k('s_waitcnt vmcnt(0)')
    for i in range(8): k('v_readfirstlane_b32 s%d, v%d' % (50+i, 16+i))
    k('s_nop 3')
    k('s_mov_b32 s58, 0')
    for i in range(8): k('s_add_u32 s58, s58, s%d' % (50+i))
    k('s_add_u32 s29, s29, 1')
    k('s_cmp_ge_u32 s58, 256')
    k('s_cbranch_scc1 %s' % spd)
    k('s_cmp_ge_u32 s29, 0x40000')
    k('s_cbranch_scc1 %s' % spd)
    k('s_sleep 4')
    k('s_branch %s' % sp)
    k.label(spd)
    k('v_mov_b32 v2, 164')
    k('v_mov_b32 v3, 1')
    k('global_atomic_add v16, v2, v3, s[%d:%d] sc0 sc1' % (PDBG, PDBG+1))
    k('s_waitcnt vmcnt(0)')
    k('v_readfirstlane_b32 s29, v16')
    k('s_mov_b64 exec, -1')
    k('s_mov_b32 s28, 0')
    k('s_mov_b32 s27, 31')
    for i in range(8):
        nx = k.L('tn')
        k('s_min_u32 s58, s%d, 32' % (50+i))
        k('s_sub_u32 s59, 32, s58')
        k('s_cmp_lt_u32 s29, s59')
        k('s_cbranch_scc0 %s' % nx)
        k('s_mov_b32 s28, %d' % i)
        k('s_add_u32 s27, s58, s29')
        k('s_branch %s' % ok)
        k.label(nx)
        k('s_sub_u32 s29, s29, s59')
    k.label(ok)
    k('s_lshl_b32 s27, s27, 3')
    k('s_or_b32 s27, s27, s28')
    k('v_mov_b32 v2, %d' % TICKET_LDS)
    k('v_mov_b32 v3, s27')
    k('ds_write_b32 v2, v3')
    k('s_waitcnt lgkmcnt(0)')
    k.label(lab)
def ticket_fetch(k):
    k('v_mov_b32 v2, %d' % TICKET_LDS)
    k('ds_read_b32 v3, v2')
    k('s_mov_b32 s63, s24')
    k('s_waitcnt lgkmcnt(0)')
    k('v_readfirstlane_b32 s3, v3')
    k('s_nop 3')
    k('s_and_b32 s20, s3, 7')
    k('s_lshr_b32 s21, s3, 3')
    k('s_lshr_b32 s22, s20, 1')
    k('s_and_b32 s23, s20, 1')
    k('s_and_b32 s24, s21, 3')
    k('s_lshl_b32 s27, s23, 2')
    k('s_add_u32 s24, s24, s27')
    k('s_lshr_b32 s25, s21, 2')

def phase_p0(k, name):
    stamp_rt0(k, 'p0')
    stamp(k, 0)
    if MEGA and OPT.get('ticket'): ticket_issue(k)
    if MEGA and OPT.get('local'):
        lab = k.L('xp')
        k('s_getreg_b32 s3, hwreg(HW_REG_XCC_ID, 0, 4)')
        k('s_cmp_lg_u32 s26, 0')
        k('s_cbranch_scc1 %s' % lab)
        k('s_lshl_b32 s27, s2, 2')
        k('s_add_u32 s27, s27, 0x%x' % WS_XCC)
        k('v_mov_b32 v2, s27')
        k('v_mov_b32 v3, s3')
        k('s_mov_b64 exec, 1')
        k('global_store_dword v2, v3, s[%d:%d] sc1' % (PWS, PWS+1))
        k('s_mov_b64 exec, -1')
        k.label(lab)
    if OPT.get('diagxcd'):
        lab = k.L('dx')
        k('s_getreg_b32 s58, hwreg(HW_REG_XCC_ID, 0, 4)')
        k('s_and_b32 s58, s58, 7')
        k('s_cmp_lg_u32 s26, 0')
        k('s_cbranch_scc1 %s' % lab)
        k('s_lshl_b32 s27, s58, 2')
        k('s_add_u32 s27, s27, 168')
        k('v_mov_b32 v2, s27')
        k('s_and_b32 s27, s2, 7')
        k('s_lshl_b32 s27, 1, s27')
        k('v_mov_b32 v3, s27')
        k('s_mov_b64 exec, 1')
        k('global_atomic_or v2, v3, s[%d:%d] sc1' % (PDBG, PDBG+1))
        k('s_mov_b64 exec, -1')
        k.label(lab)
    def xloads():
        ln_addr(k)
        srd(k, 16, PX, 0x400000)
        for j in range(4): k('buffer_load_dwordx4 %s, v6, s[16:19], s44 offen offset:%d' % (vr(RAW + 4*j, 4), j*128))
    def s1addr():
        k('s_mov_b32 s6, s%d' % PDBG)
        k('s_mov_b32 s7, s%d' % (PDBG+1))
    def kvaddr():
        k('s_add_u32 s6, s%d, 4' % PDBG)
        k('s_addc_u32 s7, s%d, 0' % (PDBG+1))
    def wq_touch():
        lab = k.L('wq')
        k('s_cmp_eq_u32 s26, 0')
        k('s_cbranch_scc1 %s' % lab)
        srd(k, 16, PWQ, 1024*4096*2)
        k('v_lshrrev_b32 v15, 4, v0')
        k('v_and_b32 v12, 15, v0')
        k('v_lshlrev_b32 v15, 13, v15')
        k('v_lshl_add_u32 v15, v12, 7, v15')
        k('s_lshl_b32 s36, s21, 17')
        k('s_lshl_b32 s37, s22, 11')
        k('s_add_u32 s36, s36, s37')
        k('s_lshl_b32 s37, s23, 22')
        k('s_add_u32 s36, s36, s37')
        k('buffer_load_dword v13, v15, s[16:19], s36 offen')
        k('s_cmp_lg_u32 s26, 1')
        k('s_cbranch_scc1 %s' % lab)
        k('v_subrev_u32 v15, 0x8000, v15')
        k('buffer_load_dword v14, v15, s[16:19], s36 offen')
        k.label(lab)
    k('s_cmp_ge_u32 s2, 128')
    k('s_cbranch_scc1 %s_kv' % name)
    srd(k, 8, PWMOD, 1024*6144*2)
    srd(k, 12, PC_, 2048)
    k('s_and_b32 s38, s2, 31')
    k('s_lshr_b32 s39, s2, 5')
    k('s_lshl_b32 s47, s39, 8')
    k('s_lshl_b32 s48, s38, 7')
    k('s_lshl_b32 s49, s39, 13')
    k('s_lshl_b32 s38, s38, 8')
    k('s_add_u32 s49, s49, s38')
    gemv_load(k, 8, 47, 48)
    xloads()
    if OPT.get('p0st'): stamp(k, 1)
    if MEGA:
        lab = k.L('z')
        k('s_or_b32 s27, s2, s26')
        k('s_cmp_lg_u32 s27, 0')
        k('s_cbranch_scc1 %s' % lab)
        srd(k, 16, PWS, 192*128, WS_CNT)
        k('v_lshlrev_b32 v16, 7, v1')
        k('v_mov_b32 v17, 0')
        for z in range(3): k('buffer_store_dword v17, v16, s[16:19], 0 offen offset:0 %s' % ST) if z == 0 else (k('v_add_u32 v%d, %d, v16' % (18+z, 8192*z)), k('buffer_store_dword v17, v%d, s[16:19], 0 offen %s' % (18+z, ST)))
        k('s_waitcnt vmcnt(0)')
        k.label(lab)
    srd(k, 16, PWS, 0x8000, WS_MOD or None)
    gemv_compute(k, 8, 49, 16, LN_LDS, 4)
    if not OPT.get('p0st'): stamp(k, 1)
    arrive(k, s1addr, count=128, only_w0=True, flag_off=128)
    lab = k.L('w0'); k('s_cmp_eq_u32 s26, 0'); k('s_cbranch_scc1 %s' % lab); k('s_waitcnt vmcnt(0)'); k.label(lab)
    if OPT.get('p0st'): stamp(k, 4)
    k('s_branch %s_pf' % name)
    k.label(name + '_kv')
    kv_part(k, xloads, 4)
    if not MEGA:
        modb_addr(k, 128)
        gemv_load(k, 16, 47, 48)
        srd(k, 16, PWS, 0x8000, WS_MODB)
        gemv_compute(k, 16, 49, 16, LN_LDS, 0)
    stamp(k, 1)
    arrive(k, kvaddr)
    k.label(name + '_pf')
    if MEGA and OPT.get('ticket'): ticket_publish(k, name)
    tr8x8(k, RAW, 4, 240, 241)
    ln_unpack(k, RAW)
    ln_stats(k)
    if MEGA: k('s_mov_b32 s63, s24')
    wq_touch()
    if not OPT.get('p0st'): stamp(k, 2)

def modb_addr(k, first):
    srd(k, 8, PWMOD, 1024*6144*2)
    srd(k, 12, PC_, 2048)
    k('s_sub_u32 s38, s2, %d' % first)
    k('s_lshr_b32 s39, s38, 6')
    k('s_and_b32 s38, s38, 63')
    k('s_lshl_b32 s47, s39, 9')
    k('s_lshl_b32 s48, s38, 7')
    k('s_add_u32 s48, s48, 4096')
    k('s_lshl_b32 s49, s39, 14')
    k('s_lshl_b32 s38, s38, 8')
    k('s_add_u32 s49, s49, s38')

def phase_ln1b(k):
    def s1addr():
        k('s_mov_b32 s6, s%d' % PDBG)
        k('s_mov_b32 s7, s%d' % (PDBG+1))
    waitfor(k, s1addr, 1, off=128)
    if not OPT.get('p0st'): stamp(k, 3)
    vecs = [(0, False), (1, True)]
    mod_loads(k, vecs, 4, WS_MOD, 96, 8192)
    k('s_waitcnt vmcnt(0)')
    mod_to_lds(k, vecs, 4, 96, f2u(128**-0.5 * LOG2E))
    k('s_waitcnt lgkmcnt(0)')
    k('s_barrier')
    vec_reads(k, 1, 144)
    k('s_waitcnt lgkmcnt(0)')
    vec_reads(k, 0, 176)
    k('s_waitcnt lgkmcnt(0)')
    ln_apply_store(k, 144, 176, WS_H)
    def a():
        k('s_add_u32 s27, s63, %d' % C_S2); cnt_addr(k, 27)
    arrive(k, a, count=32, flag_off=128)
    if not OPT.get('p0st'): stamp(k, 4)
    stamp_flush(k, 'p0', 5)

def phase_ln2(k, mode):
    stamp_rt0(k, mode)
    stamp(k, 0)
    if OPT.get('idle') and mode == 'ln2':
        for _ in range(int(OPT['idle'])): k('s_sleep 37')
    ln_addr(k)
    vecs = [(0, False), (1, False), (2, True)] if mode == 'ln2' else [(3, False)]
    if MEGA and mode == 'ln2':
        def s1b():
            k('s_mov_b32 s6, s%d' % PDBG); k('s_mov_b32 s7, s%d' % (PDBG+1))
        waitfor(k, s1b, 256, off=8)
    NPB = 4 if MEGA else 2
    MV = 168
    G, A, B = 144, 176, 208
    mod_loads(k, vecs, NPB, WS_MODB, MV, 16384)
    if mode == 'ln2':
        srd(k, 12, PX, 0x400000)
        for j in range(4): k('buffer_load_dwordx4 %s, v6, s[12:15], s44 offen offset:%d' % (vr(RAW + 4*j, 4), j*128))
    elif MEGA:
        srd(k, 12, PWS, 0x400000, WS_X1)
        for j in range(4): k('buffer_load_dwordx4 %s, v5, s[12:15], s%d offen %s' % (vr(RAW + 4*j, 4), 40+j, LD()))
    early_x = (mode == 'ln2') or MEGA
    k('s_waitcnt vmcnt(%d)' % (4 if early_x else 0))
    if mode == 'ln2': mod_to_lds(k, vecs, NPB, MV, None, mulsel={1: f2u(-LOG2E), 2: f2u(-LOG2E)})
    else: mod_to_lds(k, vecs, NPB, MV, f2u(1.0/(LOG2E*LOG2E)))
    k('s_waitcnt lgkmcnt(0)')
    k('s_barrier')
    vec_reads(k, 0, G)
    if mode == 'ln2':
        k('s_waitcnt lgkmcnt(0)')
        vec_reads(k, 2, A)
        k('s_waitcnt lgkmcnt(0)')
        vec_reads(k, 1, B)
    if early_x:
        k('s_waitcnt vmcnt(0) lgkmcnt(0)')
        if mode == 'ln2': tr8x8(k, RAW, 4, 240, 241)
        ln_unpack(k, RAW)
    k('s_mov_b32 s46, 0x00003f80')
    k('s_mov_b32 s47, 0x3f800000')
    def a():
        k('s_add_u32 s27, s24, %d' % (C_S4 if mode == 'ln2' else C_S7)); cnt_addr(k, 27)
    k('s_waitcnt lgkmcnt(0)')
    if MEGA: waitfor(k, a, 1, off=128, direct=32)
    stamp(k, 1)
    srd(k, 12, PWS, 0x1000000, WS_P1 if mode == 'ln2' else WS_P2)
    for j in range(4):
        for q in range(4):
            k('s_add_u32 s27, s%d, 0x%x' % (40+j, q*0x400000))
            k('buffer_load_dwordx4 %s, v5, s[12:15], s27 offen %s' % (vr(RAW + 16 + q*16 + 4*j, 4), LD()))
    if not early_x:
        srd(k, 8, PWS, 0x400000, WS_X1)
        for j in range(4): k('buffer_load_dwordx4 %s, v5, s[8:11], s%d offen %s' % (vr(RAW + 4*j, 4), 40+j, LD()))
        k('s_waitcnt vmcnt(0)')
        ln_unpack(k, RAW)
    pend = []
    for j in range(4):
        if early_x: k('s_waitcnt vmcnt(%d)' % (12 - 4*j + (j if mode == 'ln2' else 0)))
        for i in range(4):
            tb = 20 + 2*(i % 2)
            for q in range(4):
                for h in range(2):
                    k('v_dot2_f32_bf16 v%d, v%d, s%d, %s' % (tb + h, RAW + 16 + q*16 + 4*j + i, 46 + h, '0' if q == 0 else 'v%d' % (tb + h)))
            for x in pend: k(x)
            pend = ['v_fmac_f32 v%d, v%d, v%d' % (X_ + 8*j + 2*i, tb, G + 8*j + 2*i),
                    'v_fmac_f32 v%d, v%d, v%d' % (X_ + 8*j + 2*i + 1, tb + 1, G + 8*j + 2*i + 1)]
        k('s_nop 2')
        for x in pend: k(x)
        pend = []
        for i in range(4):
            k('v_cvt_pk_bf16_f32 v%d, v%d, v%d' % (RAW + 4*j + i, X_ + 8*j + 2*i, X_ + 8*j + 2*i + 1))
        if mode == 'ln2':
            if j == 0: srd(k, 16, PWS, 0x400000, WS_X1)
            k('buffer_store_dwordx4 %s, v5, s[16:19], s%d offen %s' % (vr(RAW + 4*j, 4), 40+j, ST))
    if mode == 'final':
        srd(k, 12, POUT, 0x400000)
        tr8x8(k, RAW, 4, 240, 241)
        for j in range(4): k('buffer_store_dwordx4 %s, v6, s[12:15], s44 offen offset:%d %s' % (vr(RAW + 4*j, 4), j*128, 'sc1' if OPT.get('outsc1') else ''))
    else:
        ln_stats(k)
        ln_apply_store(k, A, B, WS_H2)
        def a5():
            k('s_add_u32 s27, s24, %d' % C_S5); cnt_addr(k, 27)
        arrive(k, a5, count=32, flag_off=128)
    stamp(k, 2)
    stamp_flush(k, mode, 3)

def attn_setup(k):
    vL = [4, 5, 6, 7]; vX = [8, 9]; vW = [10, 11, 12, 13]
    ldw = 8192
    k('s_lshl_b32 s35, s22, 3')
    k('s_add_u32 s35, s35, s25')
    k('s_mov_b32 s62, s35')
    lds_addr_128(k, vL, tmp=40)
    k('v_lshlrev_b32 v8, 4, v1')
    k('v_add_u32 v9, 0x10000, v8')
    k('s_lshl_b32 s28, s62, 8')
    w128_voffsets(k, vW, ldw, 28, 40)
    srd(k, 8, PWS, 0x400000, WS_H)
    srd(k, 12, PWQ, 0x800000)
    k('s_lshl_b32 s27, s24, 3')
    k('s_lshl_b32 s28, s26, 1')
    k('s_add_u32 s34, s27, s28')
    k('s_lshl_b32 s30, s34, 16')
    k('s_sub_u32 s30, s30, 4096')
    k('s_mov_b32 s31, 0x%x' % ((-64*ldw) & 0xffffffff))
    k('s_lshl_b32 s32, s26, 12')
    return vL, vX, vW, ldw

def phase_attn(k, name, next_prefetch=None):
    stamp_rt0(k, 'attn')
    if not OPT.get('tailst'): stamp(k, 0)
    vL, vX, vW, ldw = attn_setup(k)
    KSLOT = [65536, 81920, 98304, 0, 16384]
    VSLOT = [114688, 131072, 147456, 32768, 49152]
    FLAG = 33792
    QF = lambda mb, ks: 64 + (mb*8 + ks)*4
    SB = lambda par, mb: 128 + (par*2 + mb)*16
    PB = lambda par, mb, kk: 192 + ((par*2 + mb)*2 + kk)*4
    CB = lambda mb: 224 + mb*16
    def OA(db, mb):
        i = db*2 + mb
        return i*16 if i < 6 else 192 + (i-6)*16
    KF = lambda ks: 128 + ks*4
    VF = lambda q: 160 + q*4
    LS = lambda mb, p: 33 + mb*2 + p
    MG = lambda mb: 37 + mb
    KT = (36, 37, 38, 39, 40); VT = (41, 42, 43, 29, 35)
    TT = (8, 9, 10, 12, 13, 14, 54, 55, 56, 57, 61, 63)
    kvflag = LD()
    def kdma(soff, pre0, tagid):
        return [(pre0 if i == 0 else [], 'buffer_load_dwordx4 v28, s[44:47], s%d offen offset:%d %s lds' % (soff, i*1024, kvflag), ('K', tagid, i)) for i in range(4)]
    def vdma(soff, pre0, tagid):
        return [(pre0 if i == 0 else [], 'buffer_load_dwordx4 v28, s[48:51], s%d offen offset:%d %s lds' % (soff, i*1024, kvflag), ('V', tagid, i)) for i in range(4)]
    def dma_list(lst):
        ops = []
        for (kind, s_) in lst:
            if kind == 'K': ops += kdma(52, ['s_mov_b32 s52, %d' % (s_*16384), 's_add_u32 m0, s32, %d' % KSLOT[s_ % 5]], s_)
            else: ops += vdma(53, ['s_mov_b32 s53, %d' % (s_*16384), 's_add_u32 m0, s32, %d' % VSLOT[s_ % 5]], s_)
        return ops
    def initial_dmas(): return dma_list([('K', 0), ('V', 0), ('K', 1), ('V', 1), ('K', 2), ('V', 2)])
    ini = initial_dmas()
    zero_list = ['v_accvgpr_write_b32 a%d, 0' % r for r in list(range(192, 224)) + list(range(0, 96))]
    def extra(t, j):
        out = []
        order = [(12, 3)] + [(tt, jj) for tt in (13, 14, 15) for jj in range(4)]
        if (t, j) in order:
            p = order.index((t, j))
            out += ini[(p*len(ini))//13:((p+1)*len(ini))//13]
        if t in (12, 13, 14, 15):
            z = zero_list[(t-12)*32:(t-11)*32]
            out += z[j*8:(j+1)*8]
        return out
    g = Gemm(k, 4, 16, acc=128, xr=0, wf=128, vX=vX, vW=vW, sXsrd=8, sWsrd=12, sXoff=30, sWoff=31, sM0=32, sCnt=33,
             stage_bytes=16384, ldw_step=64*ldw, nW=4,
             lds_imm=lambda buf, j, nb, sec: (vL[nb], buf*16384 + j*4096 + sec*1024), extra=extra, xflag=LD())
    if MEGA: g.prologue_w()
    k('s_lshl_b32 s27, s26, 12')
    k('v_add_u32 v28, s27, v8')
    k('v_add_u32 v16, %d, v8' % KSLOT[0])
    k('v_add_u32 v17, %d, v8' % VSLOT[0])
    k('v_lshlrev_b32 v18, 7, v1')
    k('s_lshl_b32 s27, s26, 13')
    k('v_add_u32 v18, s27, v18')
    k('s_lshl_b32 s27, s22, 17')
    k('s_add_u32 s28, s27, 0x%x' % WS_KF)
    srd_s(k, 44, PWS, 28, 0x20000)
    k('s_add_u32 s28, s27, 0x%x' % WS_VF)
    srd_s(k, 48, PWS, 28, 0x20000)
    k('v_mov_b32 v%d, 0xff800000' % MG(0))
    k('v_mov_b32 v%d, 0xff800000' % MG(1))
    k('s_mov_b32 s59, 0')
    if MEGA:
        def a():
            k('s_add_u32 s27, s24, %d' % C_S2); cnt_addr(k, 27)
        def kvw():
            k('s_mov_b32 s6, s%d' % PDBG); k('s_mov_b32 s7, s%d' % (PDBG+1))
        waitfor(k, kvw, 128, off=4)
        waitfor(k, a, 1, off=128, direct=32)
        g.prologue_x()
    if MEGA and OPT.get('local'):
        k('v_lshlrev_b32 v21, 7, v1')
        k('s_and_b32 s27, s24, 3')
        k('s_lshl_b32 s27, s27, 5')
        k('s_lshl_b32 s28, s20, 2')
        k('s_add_u32 s27, s27, s28')
        k('s_add_u32 s27, s27, 0x%x' % WS_XCC)
        k('v_add_u32 v21, s27, v21')
        k('s_mov_b64 exec, 0xff')
        k.vm('global_load_dword v22, v21, s[%d:%d] sc1' % (PWS, PWS+1), ('Z', 0, 0))
        k('s_mov_b64 exec, -1')
    if not MEGA:
        g.prologue_mixed()
    if not OPT.get('tailst'): stamp(k, 1)
    g.start()
    def epiQ(nb):
        out = []
        for mb in range(2):
            a = g.accr(nb, mb)
            for hh in range(2):
                for r in range(4):
                    out.append('v_cvt_pk_bf16_f32 v%d, v%d, v%d' % (QF(mb, 2*nb+hh) + r, a + hh*8 + 2*r, a + hh*8 + 2*r + 1))
        return out
    g.mainloop(epiQ, tail=1)
    if not OPT.get('tailst'): stamp(k, 2)
    if MEGA and OPT.get('local'):
        k('s_mov_b64 exec, 0xff')
        k('v_cmp_eq_u32 vcc, s3, v22')
        k('s_mov_b64 exec, -1')
        k('s_nop 1')
        k('s_cmp_eq_u32 vcc_lo, 0xff')
        k('s_cselect_b32 s3, 1, 0')
        if OPT.get('forceslow'): k('s_mov_b32 s3, 0')
    k('s_mul_i32 s27, s2, 28672')
    for n_, (lo, sz, add) in enumerate([(PWG, 1024*3584*2, 0), (PWG, 1024*3584*2, 4096), (PWU, 1024*3584*2, 0), (PWU, 1024*3584*2, 4096)]):
        k('s_add_u32 s28, s27, %d' % add)
        k('s_add_u32 s%d, s%d, s28' % (TT[3*n_], lo))
        k('s_addc_u32 s%d, s%d, 0' % (TT[3*n_+1], lo+1))
        k('s_sub_u32 s%d, 0x%x, s28' % (TT[3*n_+2], sz))
    n = k.vm_wait_n(lambda tg: tg[0] in 'KV' and tg[1] == 0)
    k('s_waitcnt vmcnt(%d)' % n)
    k.label(name + '_pro')
    k('s_barrier')
    for i_ in range(5):
        k('s_mov_b32 s%d, %d' % (KT[i_], KSLOT[i_]))
        k('s_mov_b32 s%d, %d' % (VT[i_], VSLOT[i_]))
    for ks in range(8): k('ds_read_b128 %s, v16 offset:%d' % (ar(KF(ks), 4), ks*1024))
    for mb in range(2):
        for p in range(2): k('v_mov_b32 v%d, 0' % LS(mb, p))
    k('s_waitcnt lgkmcnt(0)')
    for mb in range(2):
        for ks in range(8):
            d = vr(SB(0, mb), 16)
            k('%s %s, %s, %s, %s' % (MFMA, d, ar(KF(ks), 4), vr(QF(mb, ks), 4), '0' if ks == 0 else d))
    k('s_nop 3')
    k('s_nop 7')
    for mb in range(2):
        s0 = SB(0, mb); m = 40 + mb
        k('v_max3_f32 v%d, v%d, v%d, v%d' % (m, s0, s0+1, MG(mb)))
        for r in range(2, 16, 2): k('v_max3_f32 v%d, v%d, v%d, v%d' % (m, m, s0+r, s0+r+1))
    k('v_mov_b32 v42, v40')
    k('v_mov_b32 v43, v41')
    k('s_nop 1')
    k('v_permlane32_swap_b32 v40, v42')
    k('v_permlane32_swap_b32 v41, v43')
    k('s_nop 1')
    k('v_max_f32 v40, v40, v42')
    k('v_max_f32 v41, v41, v43')
    for mb in range(2):
        for r in range(16): k('v_sub_f32 v%d, 0, v%d' % (CB(mb) + r, 40+mb))
        for r in range(16): k('v_sub_f32 v%d, v%d, v%d' % (SB(0, mb) + r, SB(0, mb) + r, 40+mb))
    if not OPT.get('tailst'): stamp(k, 3)

    def pair_ops(par, p):
        mb, pp = p // 8, p % 8
        s0 = SB(par, mb); a, b = s0 + 2*pp, s0 + 2*pp + 1
        E = ['v_exp_f32 v%d, v%d' % (a, a), 'v_exp_f32 v%d, v%d' % (b, b)]
        A_ = ['v_add_f32 v%d, v%d, v%d' % (LS(mb, 0), LS(mb, 0), a), 'v_add_f32 v%d, v%d, v%d' % (LS(mb, 1), LS(mb, 1), b)]
        C_ = ['v_cvt_pk_bf16_f32 v%d, v%d, v%d' % (PB(par, mb, pp // 4) + pp % 4, a, b)]
        return E, A_, C_
    def iteration(par, do_pv, do_s, kread_kb, vread_kb, carry_in, gap_extra=None):
        gap_extra = gap_extra or {}
        mf = []
        if do_pv:
            for kk in range(2):
                for db in range(4):
                    for mb in range(2):
                        d = ar(OA(db, mb), 16)
                        mf.append('%s %s, %s, %s, %s' % (MFMA, d, ar(VF(kk*4+db), 4), vr(PB(1-par, mb, kk), 4), d))
        else: mf += [None]*16
        if do_s:
            for mb in range(2):
                for ks in range(8):
                    d = vr(SB(1-par, mb), 16)
                    mf.append('%s %s, %s, %s, %s' % (MFMA, d, ar(KF(ks), 4), vr(QF(mb, ks), 4), vr(CB(mb), 16) if ks == 0 else d))
        else: mf += [None]*16
        pre = {0: ['s_waitcnt lgkmcnt(2)'] if do_pv else []}
        nk = 8 if kread_kb is not None else 0
        if do_pv: pre[12] = ['s_waitcnt lgkmcnt(%d)' % (6 if nk else 0)]
        if do_s:
            pre[16] = ['s_waitcnt lgkmcnt(2)']
            pre[22] = ['s_waitcnt lgkmcnt(3)']
        for g_ in range(32):
            for x in pre.get(g_, []): k(x)
            if mf[g_]: k(mf[g_])
            p = g_ // 2
            if g_ % 2 == 0:
                for x in pair_ops(par, p)[0]: k(x)
                if p >= 1: k(pair_ops(par, p-1)[2][0])
                elif carry_in: k(pair_ops(1-par, 15)[2][0])
            else:
                if p >= 1:
                    for x in pair_ops(par, p-1)[1]: k(x)
                elif carry_in:
                    for x in pair_ops(1-par, 15)[1]: k(x)
                if g_ < 16:
                    if kread_kb is not None: k('ds_read_b128 %s, v16 offset:%d' % (ar(KF(p), 4), kread_kb*8192 + p*1024))
                else:
                    k('ds_read_b128 %s, v17 offset:%d' % (ar(VF(p-8), 4), vread_kb*8192 + (p-8)*1024))
            for x in gap_extra.get(g_, []):
                if isinstance(x, str): k(x)
                else:
                    pre_, ins, tag = x[0], x[1], x[2]
                    for p_ in pre_: k(p_)
                    if pre_ and 'm0' in pre_[-1]: k('s_nop 0')
                    k.vm(ins, tag)
                    if len(x) > 3:
                        for p_ in x[3]: k(p_)
    def touch(half):
        pre = ['s_mov_b32 s16, s%d' % TT[0], 's_mov_b32 s17, s%d' % TT[1], 's_mov_b32 s18, s%d' % TT[2], 's_mov_b32 s19, 0x20000']
        if half: pre += ['s_mov_b32 exec_hi, 0']
        return (pre, 'buffer_load_dword v19, v18, s[16:19], 0 offen', ('T', 0, 0), ['s_mov_b32 exec_hi, -1'] if half else [])
    sh = ['s_mov_b32 s%d, s%d' % (TT[n_], TT[n_+3]) for n_ in range(9)]
    g0 = {}
    for i_, op in enumerate(dma_list([('K', 3), ('V', 3), ('K', 4)])): g0.setdefault(1 + i_, []).append(op)
    g0.setdefault(20, []).extend(['s_mov_b32 s52, %d' % (5*16384), 's_mov_b32 s53, %d' % (4*16384)])
    iteration(0, False, True, 1, 0, False, g0)
    def rot(T): return ['s_mov_b32 s58, s%d' % T[0]] + ['s_mov_b32 s%d, s%d' % (T[i_], T[i_+1]) for i_ in range(4)] + ['s_mov_b32 s%d, s58' % T[4]]
    def trip(with_dma):
        ge = {0: ['v_add_u32 v16, s%d, v8' % KT[1]]}
        if with_dma:
            ge[0] += ['s_waitcnt vmcnt(20)', 's_barrier']
            dm = vdma(53, ['s_add_u32 m0, s32, s%d' % VT[4]], 'n') + kdma(52, ['s_add_u32 m0, s32, s%d' % KT[0]], 'n')
            for i_, op in enumerate(dm): ge.setdefault(2 + 2*i_, []).append(op)
            ge.setdefault(27, []).extend(['s_add_u32 s52, s52, 16384', 's_add_u32 s53, s53, 16384'])
            if not OPT.get('notouch'):
                ge.setdefault(19, []).append(touch(True))
                ge.setdefault(21, []).extend(sh[:5]); ge.setdefault(23, []).extend(sh[5:])
        elif not OPT.get('notouch'):
            ge.setdefault(2, []).append(touch(False))
            ge.setdefault(5, []).extend(sh[:5]); ge.setdefault(7, []).extend(sh[5:])
        ge.setdefault(29, []).extend(rot(KT))
        iteration(1, True, True, 0, 1, True, ge)
        ge2 = {2: ['v_add_u32 v17, s%d, v8' % VT[1]], 4: rot(VT), 31: ['s_sub_u32 s60, s60, 1', 's_cmp_lg_u32 s60, 0']}
        iteration(0, True, True, 1, 0, True, ge2)
    k('s_mov_b32 s60, 4')
    lab = k.L('aloop'); k.label(lab)
    trip(True)
    k('s_cbranch_scc1 %s' % lab)
    k('s_mul_i32 s27, s2, 28672')
    k('s_add_u32 s%d, s%d, s27' % (TT[0], PWD))
    k('s_addc_u32 s%d, s%d, 0' % (TT[1], PWD+1))
    k('s_sub_u32 s%d, 0x%x, s27' % (TT[2], 3584*1024*2))
    k('s_lshl_b32 s27, s20, 20')
    k('s_lshl_b32 s28, s21, 15')
    k('s_add_u32 s27, s27, s28')
    k('s_add_u32 s%d, s%d, s27' % (TT[3], PWO))
    k('s_addc_u32 s%d, s%d, 0' % (TT[4], PWO+1))
    k('s_mov_b32 s%d, 0x8000' % TT[5])
    for n_ in (2, 3):
        k('s_mov_b32 s%d, s%d' % (TT[3*n_], PWS))
        k('s_mov_b32 s%d, s%d' % (TT[3*n_+1], PWS+1))
        k('s_mov_b32 s%d, 0' % TT[3*n_+2])
    k('s_waitcnt vmcnt(%d)' % (0 if OPT.get('notouch') else 1))
    k('s_barrier')
    if MEGA: code_touch(k, name + '_L_oproj', name + '_L_gateup', 30)
    k('s_mov_b32 s60, 3')
    lab = k.L('bloop'); k.label(lab)
    trip(False)
    k('s_cbranch_scc1 %s' % lab)
    g15 = {}
    if MEGA:
        pre15 = ['s_mov_b32 s8, s%d' % PWMOD, 's_mov_b32 s9, s%d' % (PWMOD+1), 's_mov_b32 s10, 0x%x' % (1024*6144*2), 's_mov_b32 s11, 0x20000',
                 's_mov_b32 s12, s%d' % PC_, 's_mov_b32 s13, s%d' % (PC_+1), 's_mov_b32 s14, 2048', 's_mov_b32 s15, 0x20000',
                 's_lshr_b32 s52, s2, 6', 's_and_b32 s53, s2, 63', 's_lshl_b32 s54, s52, 14', 's_lshl_b32 s55, s53, 8', 's_add_u32 s54, s54, s55',
                 's_lshl_b32 s52, s52, 8', 's_lshl_b32 s53, s53, 7', 's_add_u32 s53, s53, 4096']
        gl = gemv_load(k, 8, 52, 53, AD=48, C=52, LDB=128, emit=False)
        items = pre15 + gl
        for i_, x in enumerate(items): g15.setdefault(2 + (i_ * 24) // len(items), []).append(x)
    iteration(1, True, False, None, 1, True, g15)
    for x in pair_ops(1, 15)[1] + pair_ops(1, 15)[2]: k(x)
    k('v_add_f32 v40, v%d, v%d' % (LS(0, 0), LS(0, 1)))
    k('v_add_f32 v41, v%d, v%d' % (LS(1, 0), LS(1, 1)))
    k('v_mov_b32 v42, v40')
    k('v_mov_b32 v43, v41')
    k('s_nop 1')
    k('v_permlane32_swap_b32 v40, v42')
    k('v_permlane32_swap_b32 v41, v43')
    k('s_nop 1')
    k('v_add_f32 v40, v40, v42')
    k('v_add_f32 v41, v41, v43')
    k('v_mov_b32 v43, 0x%x' % f2u(2.0**100))
    k('v_cmp_nlt_f32 vcc, v40, v43')
    k('v_cmp_nlt_f32 s[6:7], v41, v43')
    k('v_rcp_f32 v40, v40')
    k('v_rcp_f32 v41, v41')
    k('s_or_b64 vcc, vcc, s[6:7]')
    k('s_cmp_lg_u64 vcc, 0')
    k('s_cselect_b32 s58, 1, 0')
    k('v_mov_b32 v43, s58')
    k('s_lshl_b32 s58, s26, 2')
    k('s_add_u32 s58, s58, %d' % FLAG)
    k('v_mov_b32 v44, s58')
    k('ds_write_b32 v44, v43')
    srd(k, 16, PWS, 0x1000000, WS_O)
    k('s_lshl_b32 s27, s34, 8')
    k('s_lshl_b32 s28, s62, 3')
    k('s_add_u32 s27, s27, s28')
    k('s_lshl_b32 s60, s27, 10')
    k('s_add_u32 s61, s60, 0x40000')
    k('v_add_u32 v20, 4096, v8')
    k('s_waitcnt lgkmcnt(0)')
    set_local_vcc(k)
    stamp(k, 4 if not OPT.get('tailst') else 0)
    order = [(db, mb) for db in range(4) for mb in range(2)]
    def epiO(i):
        db, mb = order[i]; a = OA(db, mb); out = []
        for hh in range(2):
            t = (224, 240, 192)[(2*i + hh) % 3]
            out += ['v_accvgpr_read_b32 v%d, a%d' % (t+r, a + hh*8 + r) for r in range(8)]
            out += ['v_mul_f32 v%d, v%d, v%d' % (t+r, t+r, 40+mb) for r in range(8)]
            out += ['v_cvt_pk_bf16_f32 v%d, v%d, v%d' % (t+8+r, t+2*r, t+2*r+1) for r in range(4)]
            ks = 2*db + hh
            out += local_store(k, 'buffer_store_dwordx4 %s, v%d, s[16:19], s%d offen offset:%d' % (vr(t+8, 4), 8 if ks < 4 else 20, 60+mb, (ks % 4)*1024))
        return out
    M = []
    for i, (db, mb) in enumerate(order):
        d = ar(OA(db, mb), 16)
        for kk in range(2):
            M.append('%s %s, %s, %s, %s' % (MFMA, d, ar(VF(kk*4+db), 4), vr(PB(1, mb, kk), 4), d))
    for idx in range(6): k(M[idx])
    k('s_nop 7')
    for i in range(8):
        for x in epiO(i): k(x)
        for idx in (2*i+6, 2*i+7):
            if idx < 16: k(M[idx])
    if OPT.get('tailst'): stamp(k, 1)
    k('s_barrier')
    k('v_mov_b32 v44, %d' % FLAG)
    k('ds_read_b128 v[44:47], v44')
    k('s_waitcnt lgkmcnt(0)')
    k('v_or3_b32 v44, v44, v45, v46')
    k('v_or_b32 v44, v44, v47')
    k('s_nop 0')
    k('v_readfirstlane_b32 s58, v44')
    k('s_nop 3')
    k('s_cmp_lg_u32 s59, 0')
    k('s_cbranch_scc1 %s_fin' % name)
    k('s_cmp_lg_u32 s58, 0')
    k('s_cbranch_scc1 %s_slow' % name)
    k.label(name + '_fin')
    def post():
        srd(k, 16, PWS, 0x10000, WS_MODB)
        gemv_compute(k, 8, 54, 16, 65536, 24, B=192, C=52, LDB=128)
        lab = k.L('mb')
        k('s_cmp_lg_u32 s26, 0')
        k('s_cbranch_scc1 %s' % lab)
        k('s_waitcnt vmcnt(0)')
        k('v_mov_b32 v2, 8')
        k('v_mov_b32 v3, 1')
        k('s_mov_b64 exec, 1')
        k('global_atomic_add v2, v3, s[%d:%d] sc1' % (PDBG, PDBG+1))
        k('s_mov_b64 exec, -1')
        k.label(lab)
    def slow():
        k.label(name + '_slow')
        k('s_mov_b32 s59, 1')
        k('s_lshl_b32 s27, s22, 17')
        k('s_add_u32 s28, s27, 0x%x' % WS_KF)
        srd_s(k, 44, PWS, 28, 0x20000)
        k('s_mov_b32 s58, 0')
        lab2 = k.L('slow'); k.label(lab2)
        k('s_add_u32 s27, s58, 4096')
        for ks in range(8): k('buffer_load_dwordx4 %s, v8, s[44:47], s%d offen offset:%d %s' % (ar(KF(ks), 4), 58 if ks < 4 else 27, (ks % 4)*1024, kvflag))
        k('s_waitcnt vmcnt(0)')
        for mb in range(2):
            for ks in range(8):
                d = vr(SB(0, mb), 16)
                k('%s %s, %s, %s, %s' % (MFMA, d, ar(KF(ks), 4), vr(QF(mb, ks), 4), '0' if ks == 0 else d))
        k('s_nop 7')
        k('s_nop 7')
        for mb in range(2):
            s0 = SB(0, mb)
            for r in range(0, 16, 2): k('v_max3_f32 v%d, v%d, v%d, v%d' % (MG(mb), MG(mb), s0+r, s0+r+1))
        k('s_add_u32 s58, s58, 8192')
        k('s_cmp_lt_u32 s58, 0x20000')
        k('s_cbranch_scc1 %s' % lab2)
        k('v_add_u32 v16, %d, v8' % KSLOT[0])
        k('v_add_u32 v17, %d, v8' % VSLOT[0])
        for db in range(4):
            for mb in range(2):
                for r in range(16): k('v_accvgpr_write_b32 a%d, 0' % (OA(db, mb) + r))
        for n_ in range(4):
            k('s_mov_b32 s%d, s%d' % (TT[3*n_], PWS))
            k('s_mov_b32 s%d, s%d' % (TT[3*n_+1], PWS+1))
            k('s_mov_b32 s%d, 0' % TT[3*n_+2])
        k('s_barrier')
        for pre, ins, tag in initial_dmas():
            for p_ in pre: k(p_)
            if pre: k('s_nop 0')
            k(ins)
        k('s_waitcnt vmcnt(0)')
        k('s_branch %s_pro' % name)
    return slow, post

GU_STG = 28928; GU_UP = 14464
def gateup_setup(k, init_state=True):
    vL = [4, 5]; vX = [8, 9]; vW = [10, 11, 12, 13, 14, 15, 16]
    k('s_lshl_b32 s35, s22, 3')
    k('s_add_u32 s35, s35, s25')
    k('v_lshrrev_b32 v20, 5, v1')
    k('v_lshlrev_b32 v20, 3, v20')
    k('v_bfe_u32 v21, v1, 2, 2')
    k('v_add_u32 v20, v20, v21')
    k('v_mul_u32_u24 v20, 224, v20')
    k('v_bfe_u32 v21, v1, 4, 1')
    k('v_mul_u32_u24 v21, %d, v21' % GU_UP)
    k('v_add_u32 v20, v20, v21')
    k('v_and_b32 v21, 1, v1')
    k('v_lshl_add_u32 v20, v21, 4, v20')
    k('v_bfe_u32 v21, v1, 1, 1')
    k('v_lshl_add_u32 v4, v21, 3, v20')
    k('v_add_u32 v5, %d, v4' % (2*GU_STG))
    k('v_lshlrev_b32 v8, 4, v1')
    k('v_add_u32 v9, 0x10000, v8')
    k('s_and_b32 s27, s26, 1')
    k('s_mul_i32 s28, s27, 448')
    k('s_mul_i32 s29, s35, 224')
    for i in range(7):
        k('v_add_u32 v20, s28, v1')
        if i: k('v_add_u32 v20, %d, v20' % (64*i))
        k('v_mul_u32_u24 v21, 4682, v20')
        k('v_lshrrev_b32 v21, 16, v21')
        k('v_mul_u32_u24 v22, 14, v21')
        k('v_sub_u32 v22, v20, v22')
        k('v_mul_u32_u24 v21, 7168, v21')
        k('v_lshl_add_u32 v21, v22, 4, v21')
        k('v_add_u32 v21, s29, v21')
        k('v_subrev_u32 v%d, %d, v21' % (vW[i], (i % 4)*1024))
    srd(k, 8, PWS, 0x400000, WS_H2)
    k('s_cmp_ge_u32 s26, 2')
    k('s_cselect_b32 s12, s%d, s%d' % (PWU, PWG))
    k('s_cselect_b32 s13, s%d, s%d' % (PWU+1, PWG+1))
    k('s_mov_b32 s14, 0x%x' % (1024*7168))
    k('s_mov_b32 s15, 0x20000')
    k('s_lshl_b32 s27, s24, 3')
    k('s_lshl_b32 s28, s26, 1')
    k('s_add_u32 s34, s27, s28')
    if init_state:
        k('s_lshl_b32 s30, s34, 16')
        k('s_sub_u32 s30, s30, 4096')
        k('s_mov_b32 s31, 0x%x' % ((-64*7168) & 0xffffffff))
    k('s_lshr_b32 s27, s26, 1')
    k('s_mul_i32 s32, s27, %d' % GU_UP)
    k('s_and_b32 s27, s26, 1')
    k('s_mul_i32 s27, s27, 7168')
    k('s_add_u32 s32, s32, s27')
    return vL, vX, vW

def gateup_gemm(k, regs, extra=None):
    vL, vX, vW = regs
    return Gemm(k, 7, 16, acc=32, xr=0, wf=128, vX=vX, vW=vW, sXsrd=8, sWsrd=12, sXoff=30, sWoff=31, sM0=32, sCnt=33,
             stage_bytes=GU_STG, ldw_step=64*7168, nW=7,
             lds_imm=lambda buf, j, nb, sec: (vL[buf // 2], (buf % 2)*GU_STG + j*3584 + sec*896 + nb*32), extra=extra, xflag=LD())

def gateup_main(k, g, next_prefetch=None):
    srd(k, 16, PWS, 2048*3584*2, WS_ACT)
    k('s_mul_i32 s27, s34, 224')
    k('s_mul_i32 s28, s35, 7')
    k('s_add_u32 s27, s27, s28')
    k('s_lshl_b32 s36, s27, 10')
    k('s_add_u32 s37, s36, %d' % (224*1024))
    k('s_mov_b32 s40, 0x%x' % f2u(-LOG2E))
    k('s_mov_b32 s41, 0x%x' % f2u(-LOG2E))
    k('v_add_u32 v31, 4096, v8')
    k('v_mov_b32 v30, v8')
    k('v_mov_b32 v29, 0x%x' % f2u(-LOG2E))
    set_local_vcc(k)
    if not OPT.get('stepst'): stamp(k, 1)
    g.start()
    stamp(k, 2)
    def epi(b):
        out = []
        for mb in range(2):
            a = g.accr(b, mb)
            t = 17 + mb*4
            for h in range(2):
                e = a + 4*h
                out += ['v_exp_f32 v%d, v%d' % (t+i, e+i) for i in range(4)]
                out += ['v_mul_f32 v%d, v%d, v%d' % (e+i, e+i, e+8+i) for i in range(4)]
                out += ['v_add_f32 v%d, 1.0, v%d' % (t+i, t+i) for i in range(4)]
                out += ['v_rcp_f32 v%d, v%d' % (t+i, t+i) for i in range(4)]
                out += ['s_nop 0']
                out += ['v_mul_f32 v%d, v%d, v%d' % (e+i, e+i, t+i) for i in range(4)]
            out += ['v_cvt_pk_bf16_f32 v%d, v%d, v%d' % (a+8+i, a+2*i, a+2*i+1) for i in range(4)]
            ins = 'buffer_store_dwordx4 %s, v%d, s[16:19], s%d offen offset:%d' % (vr(a+8, 4), 30 if b < 4 else 31, 36+mb, (b % 4)*1024)
            out.append('\n'.join(local_store(k, ins)) if OPT.get('localact') else ins + ' ' + ST)
        return out
    g.mainloop(epi)
    stamp(k, 3)
    if next_prefetch: next_prefetch()

def resume_m0(k, g):
    k('s_add_u32 m0, s%d, 0x%x' % (g.sM0, 2*g.stage))

def build():
    kerns = []
    if MEGA:
        name = NAME + '_kernel'
        k = Kern(name, nvgpr=512, accum=256, nsgpr=102, lds=163840)
        def early():
            code_touch(k, name + '_c1', name + '_cend', 30)
            k.label(name + '_c1')
        header(k, name, early)
        rt_mark(k, 0)
        phase_p0(k, name)
        rt_mark(k, 1)
        phase_ln1b(k)
        rt_mark(k, 2)
        slow, post = phase_attn(k, name)
        def a3():
            k('s_lshl_b32 s27, s24, 2'); k('s_add_u32 s27, s27, s22'); k('s_add_u32 s27, s27, %d' % C_S3); cnt_addr(k, 27)
        arrive(k, a3, count=8, flag_off=128)
        g = gemm128_setup(k, 'oproj'); g.prologue_w()
        post()
        stamp_flush(k, 'attn', 5)
        k.label(name + '_L_oproj')
        rt_mark(k, 3)
        stamp_rt0(k, 'oproj'); stamp(k, 0) if not OPT.get('stepst') else None
        waitfor(k, a3, 1, off=128, direct=8)
        resume_m0(k, g)
        g.prologue_x()
        gemm128_main(k, 'oproj', g)
        def a4():
            k('s_add_u32 s27, s24, %d' % C_S4); cnt_addr(k, 27)
        arrive(k, a4, count=32, flag_off=128)
        regs = gateup_setup(k)
        gg = gateup_gemm(k, regs)
        gg.prologue_w()
        code_touch(k, name + '_L_gateup', name + '_L_down', 30)
        stamp_flush(k, 'oproj', 4)
        rt_mark(k, 4)
        phase_ln2(k, 'ln2')
        k.label(name + '_L_gateup')
        rt_mark(k, 5)
        stamp_rt0(k, 'gateup'); stamp(k, 0) if not OPT.get('stepst') else None
        gateup_setup(k, init_state=False)
        def a5():
            k('s_add_u32 s27, s24, %d' % C_S5); cnt_addr(k, 27)
        waitfor(k, a5, 1, off=128, direct=32)
        resume_m0(k, gg)
        gg.prologue_x()
        gateup_main(k, gg)
        def a6():
            k('s_lshl_b32 s27, s24, 2'); k('s_add_u32 s27, s27, s22'); k('s_add_u32 s27, s27, %d' % C_S6); cnt_addr(k, 27)
        arrive(k, a6, count=8, flag_off=128)
        g = gemm128_setup(k, 'down'); g.prologue_w()
        code_touch(k, name + '_L_down', name + '_cend', 60)
        stamp_flush(k, 'gateup', 4)
        k.label(name + '_L_down')
        rt_mark(k, 6)
        stamp_rt0(k, 'down'); stamp(k, 0) if not OPT.get('stepst') else None
        waitfor(k, a6, 1, off=128, direct=8)
        resume_m0(k, g)
        g.prologue_x()
        gemm128_main(k, 'down', g)
        def a7():
            k('s_add_u32 s27, s24, %d' % C_S7); cnt_addr(k, 27)
        arrive(k, a7, count=32, flag_off=128)
        stamp_flush(k, 'down', 4)
        rt_mark(k, 7)
        phase_ln2(k, 'final')
        rt_dump(k)
        if OPT.get('padto'):
            lab = k.L('pad')
            k.label(lab)
            k('s_memrealtime s[100:101]')
            k('s_waitcnt lgkmcnt(0)')
            k('s_sub_u32 s27, s100, s92')
            k('s_cmp_lt_u32 s27, %d' % (int(OPT['padto'])*100))
            k('s_cbranch_scc1 %s' % lab)
        if OPT.get('diagxcd'):
            lab = k.L('de')
            k('s_or_b32 s27, s2, s26')
            k('s_cmp_lg_u32 s27, 0')
            k('s_cbranch_scc1 %s' % lab)
            k('v_mov_b32 v2, 0')
            k('global_load_dwordx4 v[4:7], v2, s[%d:%d] offset:168 sc1' % (PDBG, PDBG+1))
            k('global_load_dwordx4 v[8:11], v2, s[%d:%d] offset:184 sc1' % (PDBG, PDBG+1))
            k('s_waitcnt vmcnt(0)')
            k('s_mov_b32 s29, 0')
            for i in range(8):
                k('v_readfirstlane_b32 s27, v%d' % (4+i))
                k('s_nop 3')
                k('s_bcnt1_i32_b32 s27, s27')
                k('s_add_u32 s29, s29, s27')
            k('s_sub_u32 s29, s29, 8')
            k('s_mul_i32 s29, s29, 2')
            k.label(lab + '_l')
            k('s_cmp_eq_u32 s29, 0')
            k('s_cbranch_scc1 %s' % lab)
            k('s_sleep 64')
            k('s_sub_u32 s29, s29, 1')
            k('s_branch %s_l' % lab)
            k.label(lab)
        k('s_endpgm')
        slow()
        k.label(name + '_cend')
        k.label(name + '_end')
        k('s_endpgm')
        kerns.append(k)
    else:
        def kern(nm, lds):
            k = Kern(nm, nvgpr=512, accum=256, nsgpr=102, lds=lds); header(k, nm); return k
        def fin(k):
            k.label(k.name + '_end'); k('s_endpgm'); kerns.append(k)
        k = kern('p0_kernel', 163840); phase_p0(k, k.name); stamp_flush(k, 'p0', 3); fin(k)
        k = kern('ln1_kernel', 163840)
        ln_addr(k); srd(k, 8, PX, 0x400000)
        for j in range(4): k('buffer_load_dwordx4 %s, v6, s[8:11], s44 offen offset:%d' % (vr(RAW + 4*j, 4), j*128))
        k('s_waitcnt vmcnt(0)'); tr8x8(k, RAW, 4, 240, 241); ln_unpack(k, RAW); ln_stats(k); phase_ln1b(k); fin(k)
        k = kern('attn_kernel', 163840); slow, post = phase_attn(k, k.name); stamp_flush(k, 'attn', 5); k('s_endpgm'); slow(); fin(k)
        k = kern('oproj_kernel', 65536); stamp_rt0(k, 'oproj'); stamp(k, 0); g = gemm128_setup(k, 'oproj'); g.prologue_mixed(); gemm128_main(k, 'oproj', g); stamp_flush(k, 'oproj', 4); fin(k)
        k = kern('ln2_kernel', 163840); phase_ln2(k, 'ln2'); fin(k)
        k = kern('gateup_kernel', 4*GU_STG); stamp_rt0(k, 'gateup'); stamp(k, 0); regs = gateup_setup(k); gg = gateup_gemm(k, regs); gg.prologue_mixed(); gateup_main(k, gg); stamp_flush(k, 'gateup', 4); fin(k)
        k = kern('down_kernel', 65536); stamp_rt0(k, 'down'); stamp(k, 0); g = gemm128_setup(k, 'down'); g.prologue_mixed(); gemm128_main(k, 'down', g); stamp_flush(k, 'down', 4); fin(k)
        k = kern('final_kernel', 163840); phase_ln2(k, 'final'); fin(k)
    return kerns

HEADER = open('cdna_kernels/%s.s.ref' % NAME).read().split('; Override launch')[0] if os.path.exists('cdna_kernels/%s.s.ref' % NAME) else ''

def assemble(kerns):
    out = [HEADER.rstrip()]
    if MEGA:
        kn = kerns[0]
        out.append('; @launch grid=(%d,1,1) block=(%d,1,1) lds=%d' % (kn.grid, kn.block, kn.lds))
    else:
        for kn in kerns:
            out.append('; @launch kernel=%s grid=(%d,1,1) block=(%d,1,1) lds=%d' % (kn.name, kn.grid, kn.block, kn.lds))
    out.append('.amdgcn_target "amdgcn-amd-amdhsa--gfx950"')
    for kn in kerns: out.append(kn.text())
    out.append('.section .rodata,"a"')
    for kn in kerns:
        out.append('.p2align 6'); out.append(kn.desc())
    return '\n'.join(out) + '\n'

if __name__ == '__main__':
    for a in sys.argv[2:]:
        if a == 'instr': INSTR = True
        elif a == 'mega': MEGA = True
        elif a.startswith('opt:'): OPT[a[4:].split('=')[0]] = (a.split('=')[1].replace('+', ' ') if '=' in a else True)
    ks = build()
    bad = 0
    for kn in ks: bad += len(check(kn))
    txt = assemble(ks)
    txt = '\n'.join(l[4:] if l.startswith('    ') else l for l in txt.split('\n'))
    open(sys.argv[1], 'w').write(txt)
    print('generated', len(txt), 'bytes; check errors:', bad)
```

```python
import sys, math, os, struct as _st
from asmlib import *

NAME = 'adaLN_cond__sliding_block_cached__swiglu_ffn__prompt'
KA = dict(x=0, k=8, v=16, wq=24, wo=32, bx=40, wg=48, wu=56, wd=64, c=72, wmod=80, out=88, dbg=96, ws=104)
PX, PK, PV, PWQ, PWO, PWG, PWU, PWD, PC_, PWMOD, POUT, PDBG, PWS = 64, 66, 68, 70, 72, 76, 78, 80, 82, 84, 86, 88, 90
WS_MOD  = 0x0
WS_MODB = 0x10000
WS_CNT  = 0x20000
WS_XCC  = 0x30000
WS_H   = 0x100000
WS_O   = 0x500000
WS_P1  = 0x1500000
WS_X1  = 0x3500000
WS_H2  = 0x3900000
WS_ACT = 0x3D00000
WS_P2  = 0x4B00000
WS_KF  = 0x5B00000
WS_VF  = 0x5B80000
WS_STAMP = 0x8000000
MFMA = 'v_mfma_f32_32x32x16_bf16'
LOG2E = 1.4426950408889634
def f2u(x): return _st.unpack('<I', _st.pack('<f', x))[0]
INSTR = False
MEGA = False
OPT = {}
PHASES = ['p0', 'attn', 'oproj', 'ln2', 'gateup', 'down', 'final']
PIDX = {p: i for i, p in enumerate(PHASES)}
ST = 'sc1'
def LD(): return 'sc1' if (MEGA and not OPT.get('plainld')) else ''
C_S2, C_S3, C_S4, C_S5, C_S6, C_S7 = 0, 8, 40, 48, 56, 88
LN_LDS = 147456

def TAIL128(): return int(OPT.get('t128', 3))
def TAILGU(): return int(OPT.get('tgu', 3))
def srd(k, s, lo, size, add=None):
    if add:
        k('s_add_u32 s%d, s%d, 0x%x' % (s, lo, add))
        k('s_addc_u32 s%d, s%d, 0' % (s+1, lo+1))
    else:
        k('s_mov_b32 s%d, s%d' % (s, lo))
        k('s_mov_b32 s%d, s%d' % (s+1, lo+1))
    k('s_mov_b32 s%d, 0x%x' % (s+2, size))
    k('s_mov_b32 s%d, 0x20000' % (s+3))
def srd_s(k, s, lo, soff, size):
    k('s_add_u32 s%d, s%d, s%d' % (s, lo, soff))
    k('s_addc_u32 s%d, s%d, 0' % (s+1, lo+1))
    k('s_mov_b32 s%d, 0x%x' % (s+2, size))
    k('s_mov_b32 s%d, 0x20000' % (s+3))

def stamp(k, i):
    if INSTR:
        k('s_memtime s[%d:%d]' % (92+2*i, 93+2*i)) if i < 5 else None
def stamp_begin(k):
    if INSTR:
        k('s_memrealtime s[60:61]') if False else None
        k('s_memrealtime s[18:19]') if False else None
def stamp_flush(k, phase, n):
    if not INSTR: return
    k('s_waitcnt lgkmcnt(0)')
    k('s_memrealtime s[28:29]') if False else None
    srd(k, 16, PWS, 0x10000, WS_STAMP + PIDX[phase]*0x10000)
    k('s_lshl_b32 s27, s2, 6')
    k('v_cmp_eq_u32 vcc, 0, v0')
    k('s_and_saveexec_b64 s[28:29], vcc')
    lab = k.L('so')
    k('s_cbranch_execz %s' % lab)
    k('v_mov_b32 v2, s27')
    for i in range(n):
        k('v_mov_b32 v3, s%d' % (92+2*i))
        k('buffer_store_dword v3, v2, s[16:19], 0 offen offset:%d' % (4*i))
    k('s_memrealtime s[92:93]')
    k('s_memtime s[94:95]')
    k('s_waitcnt lgkmcnt(0)')
    k('v_mov_b32 v3, s92')
    k('buffer_store_dword v3, v2, s[16:19], 0 offen offset:56')
    k('v_mov_b32 v3, s94')
    k('buffer_store_dword v3, v2, s[16:19], 0 offen offset:60')
    k.label(lab)
    k('s_mov_b64 exec, s[28:29]')
def stamp_rt0(k, phase):
    if not INSTR: return
    k('s_memrealtime s[92:93]')
    k('s_memtime s[94:95]')
    srd(k, 16, PWS, 0x10000, WS_STAMP + PIDX[phase]*0x10000)
    k('s_lshl_b32 s27, s2, 6')
    k('s_waitcnt lgkmcnt(0)')
    k('v_cmp_eq_u32 vcc, 0, v0')
    k('s_and_saveexec_b64 s[28:29], vcc')
    lab = k.L('s0')
    k('s_cbranch_execz %s' % lab)
    k('v_mov_b32 v2, s27')
    k('v_mov_b32 v3, s92')
    k('buffer_store_dword v3, v2, s[16:19], 0 offen offset:48')
    k('v_mov_b32 v3, s94')
    k('buffer_store_dword v3, v2, s[16:19], 0 offen offset:52')
    k.label(lab)
    k('s_mov_b64 exec, s[28:29]')

def rt_mark(k, i):
    if not OPT.get('rtdbg'): return
    k('s_memrealtime s[100:101]')
    k('s_waitcnt lgkmcnt(0)')
    k('s_mov_b32 s%d, s100' % (92+i))
def rt_dump(k):
    if not OPT.get('rtdbg'): return
    lab = k.L('rd')
    k('s_memrealtime s[100:101]')
    k('s_waitcnt lgkmcnt(0)')
    k('s_cmp_lg_u32 s2, %d' % int(OPT.get('rtdbg') if OPT.get('rtdbg') is not True else 0))
    k('s_cbranch_scc1 %s' % lab)
    k('s_cmp_lg_u32 s26, 0')
    k('s_cbranch_scc1 %s' % lab)
    k('s_mov_b64 exec, 1')
    for i in range(1, 8):
        k('s_sub_u32 s27, s%d, s92' % (92+i))
        k('v_mov_b32 v2, %d' % (4*(3+i)))
        k('v_mov_b32 v3, s27')
        k('global_store_dword v2, v3, s[%d:%d]' % (PDBG, PDBG+1))
    k('s_sub_u32 s27, s100, s92')
    k('v_mov_b32 v2, %d' % (4*11))
    k('v_mov_b32 v3, s27')
    k('global_store_dword v2, v3, s[%d:%d]' % (PDBG, PDBG+1))
    k('s_mov_b64 exec, -1')
    k.label(lab)

def header(k, name, early=None):
    k('s_cmp_ge_u32 s2, 256')
    k('s_cbranch_scc1 %s_end' % name)
    if OPT.get('scramble'):
        k('s_and_b32 s3, s2, 31')
        k('s_lshl_b32 s3, s3, 3')
        k('s_lshr_b32 s2, s2, 5')
        k('s_or_b32 s2, s2, s3')
    k('s_load_dwordx8 s[80:87], s[0:1], 64')
    k('s_load_dwordx16 s[64:79], s[0:1], 0')
    k('s_load_dwordx4 s[88:91], s[0:1], 96')
    k('v_lshrrev_b32 v2, 6, v0')
    k('v_and_b32 v1, 63, v0')
    k('s_lshr_b32 s21, s2, 3')
    k('v_readfirstlane_b32 s26, v2')
    if early: early()
    k('s_and_b32 s20, s2, 7')
    k('s_lshr_b32 s22, s20, 1')
    k('s_and_b32 s23, s20, 1')
    k('s_and_b32 s24, s21, 3')
    k('s_lshl_b32 s27, s23, 2')
    k('s_add_u32 s24, s24, s27')
    k('s_lshr_b32 s25, s21, 2')
    k('s_waitcnt lgkmcnt(0)')

def cnt_addr(k, sreg, dst=6):
    k('s_lshl_b32 s%d, s%d, 8' % (dst, sreg))
    k('s_add_u32 s%d, s%d, 0x%x' % (dst, dst, WS_CNT))
    k('s_add_u32 s%d, s%d, s%d' % (dst, dst, PWS))
    k('s_addc_u32 s%d, s%d, 0' % (dst+1, PWS+1))
def arrive(k, setup, count=None, extra_dbg=None, only_w0=False, flag_off=None):
    if not MEGA: return
    if not OPT.get('flagsync') and count is not None and count <= 32: count = None
    if not only_w0:
        k('s_waitcnt vmcnt(0)')
        k('s_barrier')
    lab = k.L('arr')
    k('s_cmp_lg_u32 s26, 0')
    k('s_cbranch_scc1 %s' % lab)
    if only_w0: k('s_waitcnt vmcnt(0)')
    setup()
    k('v_mov_b32 v2, 0')
    k('v_mov_b32 v3, 1')
    k('s_mov_b64 exec, 1')
    if extra_dbg is not None:
        k('v_mov_b32 v29, %d' % extra_dbg)
        k('global_atomic_add v29, v3, s[%d:%d] sc1' % (PDBG, PDBG+1))
    if count is None:
        k('global_atomic_add v2, v3, s[6:7] sc1')
    else:
        k('global_atomic_add v29, v2, v3, s[6:7] sc0 sc1')
        k('s_waitcnt vmcnt(0)')
        k('v_readfirstlane_b32 s27, v29')
        k('s_nop 3')
        k('s_cmp_lg_u32 s27, %d' % (count - 1))
        k('s_cbranch_scc1 %s_n' % lab)
        k('global_store_dword v2, v3, s[6:7] offset:%d sc1' % flag_off)
        k.label(lab + '_n')
    k('s_mov_b64 exec, -1')
    k.label(lab)
def waitfor(k, setup, count, off=0, sleep=2, direct=None):
    if not MEGA: return
    if not OPT.get('flagsync') and direct is not None: count, off = direct, 0
    lab = k.L('wt'); done = k.L('wd'); skip = k.L('ws')
    k('s_cmp_lg_u32 s26, 0')
    k('s_cbranch_scc1 %s' % skip)
    setup()
    k('v_mov_b32 v2, 0')
    k('s_mov_b32 s27, 0')
    k('s_mov_b64 exec, 1')
    k.label(lab)
    k('global_load_dword v3, v2, s[6:7] offset:%d sc1' % off)
    k('s_waitcnt vmcnt(0)')
    k('v_readfirstlane_b32 s28, v3')
    k('s_add_u32 s27, s27, 1')
    k('s_cmp_ge_u32 s28, %d' % count)
    k('s_cbranch_scc1 %s' % done)
    k('s_cmp_ge_u32 s27, 0x40000')
    k('s_cbranch_scc1 %s' % done)
    k('s_sleep %d' % sleep)
    k('s_branch %s' % lab)
    k.label(done)
    k('s_mov_b64 exec, -1')
    k.label(skip)
    k('s_barrier')

def local_store(k, ins):
    if not MEGA or not OPT.get('local'): return [ins + ' ' + ST]
    a = k.L('ls'); b = k.L('lt')
    return ['s_cbranch_vccnz %s' % a, ins + ' ' + ST, a + ':', 's_cbranch_vccz %s' % b, ins, b + ':']
def set_local_vcc(k):
    if MEGA and OPT.get('local'):
        k('s_cmp_eq_u32 s3, 1')
        k('s_cselect_b64 vcc, -1, 0')

def code_touch(k, lab0, lab1, vtmp):
    if OPT.get('nocode'): return
    here = k.L('pc'); skip = k.L('ct')
    k('s_cmp_lg_u32 s26, 0')
    k('s_cbranch_scc1 %s' % skip)
    k('s_getpc_b64 s[6:7]')
    k.label(here)
    k('s_add_u32 s6, s6, %s-%s' % (lab0, here))
    k('s_addc_u32 s7, s7, %s' % ('0' if True else ''))
    k('v_lshlrev_b32 v%d, 5, v1' % vtmp)
    k('v_add_u32 v%d, s21, v%d' % (vtmp, vtmp))
    k('v_lshlrev_b32 v%d, 7, v%d' % (vtmp, vtmp))
    k('v_cmp_gt_u32 vcc, %s-%s, v%d' % (lab1, lab0, vtmp))
    k('s_and_saveexec_b64 s[4:5], vcc')
    k('s_cbranch_execz %s_r' % skip)
    k('global_load_dword v%d, v%d, s[6:7]' % (vtmp+1, vtmp))
    k.label(skip + '_r')
    k('s_mov_b64 exec, s[4:5]')
    k.label(skip)

class Gemm:
    def __init__(self, k, NB, nsteps, acc, xr, wf, vX, vW, sXsrd, sWsrd, sXoff, sWoff, sM0, sCnt,
                 stage_bytes, ldw_step, nW, lds_imm, extra=None, xflag='', tail4=False, sXlast=38):
        self.k = k; self.NB = NB; self.nsteps = nsteps; self.acc = acc; self.xr = xr; self.wf = wf
        self.vX = vX; self.vW = vW; self.sX = sXsrd; self.sW = sWsrd; self.sXoff = sXoff; self.sWoff = sWoff
        self.sM0 = sM0; self.sCnt = sCnt; self.stage = stage_bytes; self.ldw_step = ldw_step; self.nW = nW
        self.lds_imm = lds_imm; self.xflag = xflag
        self.extra = extra or (lambda t, j: [])
        if nW == 4: wsl = {3: [0], 0: [1], 1: [2], 2: [3]}
        else: wsl = {3: [0, 1], 0: [2, 3], 1: [4, 5], 2: [6]}
        Q = []
        for i in wsl[3]: Q.append((('W', 0, i), -13))
        for s_ in range(nsteps):
            for j in range(4):
                slot = 4*(s_-3) + j
                ws = [('W', s_, i) for i in wsl[j]] if j < 3 else ([('W', s_+1, i) for i in wsl[3]] if s_+1 < nsteps else [])
                for o in [('X', s_, j, 0)] + ws + [('X', s_, j, 1)]: Q.append((o, slot))
        self.Q = Q
        self.P = len([1 for o, sl in Q if sl < -4])
        self.sched = {}
        pos = self.P
        for t in range(nsteps):
            for j in range(4):
                slot = 4*t + j
                steady = len([1 for o, sl in Q if sl <= slot])
                per = len([1 for o, sl in Q if sl == 16 + j])
                n = min(steady, pos + per + 1)
                self.sched[(t, j)] = [o for o, sl in Q[pos:n]]
                pos = n
        self.tail4 = tail4; self.sXlast = sXlast; self.tail_ops = []
        if tail4:
            n = nsteps
            moved = []
            for j in range(4):
                moved += self.sched[(n-4, j)]; self.sched[(n-4, j)] = []
            for o in moved:
                assert o[1] == n-1, o
                if o[0] == 'W': self.sched[(n-5, 3)].append(o)
                elif o[2] < 3: self.sched[(n-5, o[2]+1)].append(('XL',) + o[1:])
                else: self.tail_ops.append(('XL',) + o[1:])
    def accr(self, nb, mb): return self.acc + (nb*2 + mb)*16
    def xreg(self, s, mb, j): return self.xr + (s % 4)*32 + (mb*4 + j)*4
    def wreg(self, par, nb): return self.wf + par*self.NB*4 + nb*4
    def mkop(self, o):
        if o[0] == 'XL':
            _, s_, j, mb = o
            return ([], 'buffer_load_dwordx4 %s, v%d, s[%d:%d], s%d offen offset:%d %s' % (ar(self.xreg(s_, mb, j), 4), self.vX[mb], self.sX, self.sX+3, self.sXlast, j*1024, self.xflag), ('X', s_, j))
        if o[0] == 'X':
            _, s_, j, mb = o
            pre = ['s_add_u32 s%d, s%d, 4096' % (self.sXoff, self.sXoff)] if (j == 0 and mb == 0) else []
            return (pre, 'buffer_load_dwordx4 %s, v%d, s[%d:%d], s%d offen offset:%d %s' % (ar(self.xreg(s_, mb, j), 4), self.vX[mb], self.sX, self.sX+3, self.sXoff, j*1024, self.xflag), ('X', s_, j))
        _, s_, i = o
        pre = []
        if i == 0:
            pre.append('s_add_u32 s%d, s%d, 0x%x' % (self.sWoff, self.sWoff, self.ldw_step))
            pre.append('s_add_u32 m0, s%d, 0x%x' % (self.sM0, (s_ % 4)*self.stage))
        elif i == 4:
            pre.append('s_add_u32 m0, s%d, 0x%x' % (self.sM0, (s_ % 4)*self.stage + 4096))
        return (pre, 'buffer_load_dwordx4 v%d, s[%d:%d], s%d offen offset:%d lds' % (self.vW[i], self.sW, self.sW+3, self.sWoff, (i % 4)*1024), ('W', s_, i))
    def emit_vm(self, op):
        k = self.k
        pre, ins, tag = op[0], op[1], op[2]
        for p in pre: k(p)
        if pre and 'm0' in pre[-1]: k('s_nop 0')
        k.vm(ins, tag)
    def lds_reads(self, t, j):
        out = []
        for nb in range(self.NB):
            for sec in range(2):
                v, imm = self.lds_imm(t % 4, j, nb, sec)
                out.append('ds_read_b64_tr_b16 %s, v%d offset:%d' % (ar(self.wreg(j % 2, nb) + 2*sec, 2), v, imm))
        return out
    def blk_reads(self, t, nb):
        out = []
        for j in range(4):
            for sec in range(2):
                v, imm = self.lds_imm(t % 4, j, nb, sec)
                out.append('ds_read_b64_tr_b16 %s, v%d offset:%d' % (ar(self.wf + (nb % 2)*16 + j*4 + 2*sec, 2), v, imm))
        return out
    def prologue_w(self):
        for o, sl in self.Q[:self.P]:
            if o[0] == 'W': self.emit_vm(self.mkop(o))
    def prologue_x(self):
        for o, sl in self.Q[:self.P]:
            if o[0] == 'X': self.emit_vm(self.mkop(o))
    def prologue_mixed(self):
        for o, sl in self.Q[:self.P]: self.emit_vm(self.mkop(o))
    def start(self):
        k = self.k
        n = k.vm_wait_n(lambda tg: (tg[0] == 'W' and tg[1] == 0) or (tg[0] == 'X' and tg[1] == 0 and tg[2] <= 2))
        k('s_waitcnt vmcnt(%d)' % n)
        k('s_barrier')
        for r in self.lds_reads(0, 0): k(r)
    def hack(self, mf, par):
        if not OPT.get('hack16'): return mf
        import re as _re
        m = _re.match(r'\S+ v\[(\d+):\d+\], (\S+?), (\S+?), (\S+)', mf)
        d0 = int(m.group(1)) + 8*(par % 2)
        return '\n'.join('v_mfma_f32_16x16x32_bf16 v[%d:%d], %s, %s, v[%d:%d]' % (d0+4*h, d0+4*h+3, m.group(2), m.group(3), d0+4*h, d0+4*h+3) for h in range(2))
    def emit_gaps(self, mfmas, gaps):
        k = self.k
        self.hp = getattr(self, 'hp', 0) + 1
        for m, mf in enumerate(mfmas):
            k(self.hack(mf, self.hp))
            for kind, x in gaps[m]:
                if kind == 'i': k(x)
                else: self.emit_vm(x)
    def frag_reads(self, t, j, nb, slot):
        out = []
        for sec in range(2):
            v, imm = self.lds_imm(t % 4, j, nb, sec)
            out.append('ds_read_b64_tr_b16 %s, v%d offset:%d' % (ar(self.wf + slot*4 + 2*sec, 2), v, imm))
        return out
    def step(self, t, tail=0):
        k = self.k; NB = self.NB; n = self.nsteps
        last = (t == n - 1)
        pre_tail = tail and t == n - tail - 1
        for j in range(4):
            if j == 3 and not last:
                if pre_tail:
                    nn = k.vm_wait_n(lambda tg: tg[0] in 'WX' and tg[1] <= (n-3 if tail == 4 else n-2 if tail == 3 else n-1))
                else:
                    nn = k.vm_wait_n(lambda tg: (tg[0] == 'W' and tg[1] <= t+1) or (tg[0] == 'X' and (tg[1] <= t or (tg[1] == t+1 and tg[2] <= 2))))
                k('s_waitcnt vmcnt(%d) lgkmcnt(0)' % nn)
                k('s_barrier')
            elif j == 3:
                nn = k.vm_wait_n(lambda tg: tg[0] == 'X' and tg[1] <= t)
                k('s_waitcnt vmcnt(%d) lgkmcnt(0)' % nn)
            else:
                k('s_waitcnt lgkmcnt(0)')
            if j < 3: reads = self.lds_reads(t, j+1)
            elif last: reads = []
            elif pre_tail:
                reads = []
                for f in range(4): reads += self.frag_reads(n - tail, f, 0, f)
            else: reads = self.lds_reads(t+1, 0)
            vms = [self.mkop(o) for o in self.sched[(t, j)]]
            extra = list(self.extra(t, j))
            vms += [e for e in extra if not isinstance(e, str)]
            plain = [e for e in extra if isinstance(e, str)]
            nm = 2*NB
            gaps = [[] for _ in range(nm)]
            for i, r in enumerate(reads): gaps[i // 2].append(('i', r))
            for i, op in enumerate(vms): gaps[NB + (i * NB) // max(1, len(vms))].append(('vm', op))
            for i, e in enumerate(plain): gaps[(i * nm) // len(plain)].append(('i', e))
            mf = []
            for nb in range(NB):
                for mb in range(2):
                    d = vr(self.accr(nb, mb), 16)
                    mf.append('%s %s, %s, %s, %s' % (MFMA, d, ar(self.wreg(j % 2, nb), 4), ar(self.xreg(t, mb, j), 4), '0' if (t == 0 and j == 0) else d))
            self.emit_gaps(mf, gaps)
    def tail_blocks(self, tail, epi):
        k = self.k; NB = self.NB; n = self.nsteps
        frs = [(nb, t, j) for nb in range(NB) for t in range(n - tail, n) for j in range(4)]
        per = tail*4
        NS = 8
        pending = []
        for f, (nb, t, j) in enumerate(frs):
            fo = f % per
            if fo == 0:
                items = list(pending)
                if nb == 0: items = [self.mkop(o) for o in self.tail_ops] + items
                if nb < tail:
                    for jj in range(4): items += list(self.extra(n - tail + nb, jj))
                ng = 2*per
                blockgaps = [[] for _ in range(ng)]
                g0_ = 0 if nb == 0 else 4
                for i, e in enumerate(items): blockgaps[g0_ + (i * (ng - g0_)) // max(1, len(items))].append(e)
            if tail == 3 and f == 4:
                nn = k.vm_wait_n(lambda tg: tg[0] in 'WX' and tg[1] <= n-1)
                k('s_waitcnt vmcnt(%d)' % nn)
                k('s_barrier')
            if tail == 4 and f in (4, 8):
                lim = n-2 if f == 4 else n-1
                nn = k.vm_wait_n(lambda tg: (tg[0] == 'W' and tg[1] <= lim) or (tg[0] == 'X' and tg[1] <= lim - 1))
                k('s_waitcnt vmcnt(%d)' % nn)
                k('s_barrier')
            if tail == 4 and f == 12:
                nn = k.vm_wait_n(lambda tg: tg[0] == 'X' and tg[1] <= n-1)
                k('s_waitcnt vmcnt(%d)' % nn)
            ahead = min(len(frs) - 1 - f, 3)
            k('s_waitcnt lgkmcnt(%d)' % (2*ahead))
            nxt = self.frag_reads(frs[f+4][1], frs[f+4][2], frs[f+4][0], (f+4) % NS) if f + 4 < len(frs) else []
            for mb in range(2):
                d = vr(self.accr(nb, mb), 16)
                k(self.hack('%s %s, %s, %s, %s' % (MFMA, d, ar(self.wf + (f % NS)*4, 4), ar(self.xreg(t, mb, j), 4), d), f))
                if nxt: k(nxt[mb])
                for e in blockgaps[2*fo + mb]:
                    if isinstance(e, str): k(e)
                    else: self.emit_vm(e)
            if fo == per - 1: pending = epi(nb)
        k('s_nop 7')
        k('s_nop 3')
        for e in pending:
            if isinstance(e, str): k(e)
            else: self.emit_vm(e)
    def mainloop(self, epi=None, tail=3):
        k = self.k; n = self.nsteps
        tl = tail if epi is not None else 0
        for t in range(4): self.step(t, tl)
        if MEGA and tl >= 3 and OPT.get('tailtouch'):
            self.tl0 = k.L('tl0'); self.tl1 = k.L('tl1')
            code_touch(k, self.tl0, self.tl1, 26)
        if OPT.get('stepst'): stamp(k, 0)
        t = 4
        trips = 0
        while t + 4*trips + 3 + 4 <= n - 1 and t + 4*trips + 3 <= n - tl - 2: trips += 1
        if trips >= 2:
            lab = k.L('loop')
            k('s_mov_b32 s%d, %d' % (self.sCnt, trips))
            k.label(lab)
            q0 = len(k.vmq)
            for tt in range(t, t+4): self.step(tt, tl)
            k('s_sub_u32 s%d, s%d, 1' % (self.sCnt, self.sCnt))
            k('s_cmp_lg_u32 s%d, 0' % self.sCnt)
            k('s_cbranch_scc1 %s' % lab)
            body = k.vmq[q0:]
            for r in range(1, trips):
                for tg in body: k.vmq.append((tg[0], tg[1] + 4*r, tg[2]))
            t += 4*trips
        for tt in range(t, n - tl): self.step(tt, tl)
        if OPT.get('stepst'): stamp(k, 1)
        if hasattr(self, 'tl0'): k.label(self.tl0)
        if tl: self.tail_blocks(tl, epi)
        if hasattr(self, 'tl0'): k.label(self.tl1)

def lds_addr_128(k, vL, tmp):
    a, b, c = tmp, tmp+1, tmp+2
    k('v_lshrrev_b32 v%d, 5, v1' % a)
    k('v_lshlrev_b32 v%d, 11, v%d' % (a, a))
    k('v_bfe_u32 v%d, v1, 2, 2' % b)
    k('v_lshl_add_u32 v%d, v%d, 8, v%d' % (a, b, a))
    k('v_bfe_u32 v%d, v1, 4, 1' % c)
    k('v_lshl_add_u32 v%d, v%d, 5, v%d' % (a, c, a))
    k('v_and_b32 v%d, 1, v1' % c)
    k('v_lshl_add_u32 v%d, v%d, 4, v%d' % (a, c, a))
    k('v_bfe_u32 v%d, v1, 1, 1' % c)
    k('v_lshl_add_u32 v%d, v%d, 3, v%d' % (a, c, a))
    for nb in range(4):
        k('v_xor_b32 v%d, %d, v%d' % (c, nb, b))
        k('v_lshl_add_u32 v%d, v%d, 6, v%d' % (vL[nb], c, a))

def w128_voffsets(k, vW, ldw, s_colbytes, tmp):
    a, b, c = tmp, tmp+1, tmp+2
    k('v_lshrrev_b32 v%d, 4, v1' % a)
    k('v_bfe_u32 v%d, v1, 2, 2' % b)
    k('v_xor_b32 v%d, v%d, v%d' % (b, b, a))
    k('v_and_b32 v%d, 3, v1' % c)
    k('v_lshlrev_b32 v%d, 4, v%d' % (c, c))
    k('v_lshl_add_u32 v%d, v%d, 6, v%d' % (c, b, c))
    k('s_lshl_b32 s27, s26, 4')
    k('v_add_u32 v%d, s27, v%d' % (a, a))
    k('v_mul_u32_u24 v%d, %d, v%d' % (a, ldw, a))
    k('v_add3_u32 v%d, v%d, v%d, s%d' % (vW[0], a, c, s_colbytes))
    for i in range(1, 4): k('v_add_u32 v%d, 0x%x, v%d' % (vW[i], i*4*ldw - i*1024, vW[0]))

def gemm128_setup(k, which):
    if which == 'oproj': xoff, xsize, KS, ksq, wptr, ldw, nsteps = WS_O, 0x1000000, 256, 64, PWO, 2048, 16
    else: xoff, xsize, KS, ksq, wptr, ldw, nsteps = WS_ACT, 2048*3584*2, 224, 56, PWD, 2048, 14
    vL = [4, 5, 6, 7]; vX = [8, 9]; vW = [10, 11, 12, 13]
    lds_addr_128(k, vL, tmp=14)
    k('v_lshlrev_b32 v8, 4, v1')
    k('v_add_u32 v9, 0x%x, v8' % (KS*1024))
    k('s_lshl_b32 s28, s25, 8')
    w128_voffsets(k, vW, ldw, 28, 14)
    srd(k, 8, PWS, xsize, xoff)
    srd(k, 12, wptr, ksq*4*16*ldw)
    k('s_lshl_b32 s27, s24, 3')
    k('s_lshl_b32 s28, s26, 1')
    k('s_add_u32 s34, s27, s28')
    k('s_mul_i32 s30, s34, %d' % KS)
    k('s_mul_i32 s28, s22, %d' % ksq)
    k('s_add_u32 s30, s30, s28')
    k('s_lshl_b32 s30, s30, 10')
    k('s_sub_u32 s30, s30, 4096')
    k('s_add_u32 s38, s30, %d' % (nsteps*4096))
    k('s_mul_i32 s31, s22, 0x%x' % (ksq*16*ldw))
    k('s_sub_u32 s31, s31, 0x%x' % (64*ldw))
    k('s_lshl_b32 s32, s26, 12')
    return Gemm(k, 4, nsteps, acc=128, xr=0, wf=128, vX=vX, vW=vW, sXsrd=8, sWsrd=12, sXoff=30, sWoff=31, sM0=32, sCnt=33,
                stage_bytes=16384, ldw_step=64*ldw, nW=4,
                lds_imm=lambda buf, j, nb, sec: (vL[nb], buf*16384 + j*4096 + sec*1024), xflag=LD(), tail4=(TAIL128() == 4))

def gemm128_main(k, which, g):
    poff = WS_P1 if which == 'oproj' else WS_P2
    k('s_lshl_b32 s27, s22, 22')
    k('s_add_u32 s27, s27, 0x%x' % poff)
    srd_s(k, 16, PWS, 27, 0x400000)
    k('s_lshl_b32 s27, s34, 6')
    k('s_lshl_b32 s28, s25, 3')
    k('s_add_u32 s27, s27, s28')
    k('s_lshl_b32 s36, s27, 10')
    k('s_add_u32 s37, s36, 0x10000')
    k('v_add_u32 v14, 4096, v8')
    if not OPT.get('stepst'): stamp(k, 1)
    g.start()
    stamp(k, 2)
    cnt = [0]
    def epi(nb):
        out = []
        for mb in range(2):
            a = g.accr(nb, mb)
            for hh in range(2):
                t = 16 + (cnt[0] % 8)*4; cnt[0] += 1
                for r in range(4): out.append('v_cvt_pk_bf16_f32 v%d, v%d, v%d' % (t+r, a + hh*8 + 2*r, a + hh*8 + 2*r + 1))
                ks = 2*nb + hh
                out.append(([], 'buffer_store_dwordx4 %s, v%d, s[16:19], s%d offen offset:%d %s' % (vr(t, 4), 8 if ks < 4 else 14, 36+mb, (ks % 4)*1024, ST), ('S', 0, 0)))
        return out
    g.mainloop(epi, tail=TAIL128())
    stamp(k, 3)

def reduce8(k, v, t):
    k('s_nop 1')
    k('v_add_f32_dpp v%d, v%d, v%d row_ror:8 row_mask:0xf bank_mask:0xf' % (v, v, v))
    k('v_mov_b32 v%d, v%d' % (t, v))
    k('s_nop 1')
    k('v_permlane16_swap_b32 v%d, v%d' % (v, t))
    k('s_nop 1')
    k('v_add_f32 v%d, v%d, v%d' % (v, v, t))
    k('v_mov_b32 v%d, v%d' % (t, v))
    k('s_nop 1')
    k('v_permlane32_swap_b32 v%d, v%d' % (v, t))
    k('s_nop 1')
    k('v_add_f32 v%d, v%d, v%d' % (v, v, t))

def gemv_load(k, nj, s_row0, s_col0bytes, AD=160, C=168, LDB=96, emit=True):
    o = []
    o.append('v_and_b32 v%d, 7, v0' % AD)
    o.append('v_lshrrev_b32 v%d, 3, v0' % (AD+1))
    o.append('v_mul_u32_u24 v%d, %d, v%d' % (AD+2, nj*12288, AD+1))
    o.append('v_lshl_add_u32 v%d, v%d, 4, v%d' % (AD+2, AD, AD+2))
    o.append('v_mul_u32_u24 v%d, %d, v%d' % (AD+3, nj*2, AD+1))
    o.append('s_mul_i32 s36, s%d, 12288' % s_row0)
    o.append('s_add_u32 s36, s36, s%d' % s_col0bytes)
    o.append('s_lshl_b32 s37, s%d, 1' % s_row0)
    for i in range(nj // 8): o.append('buffer_load_dwordx4 %s, v%d, s[12:15], s37 offen offset:%d' % (vr(C+4*i, 4), AD+3, 16*i))
    for j in range(nj):
        o.append('buffer_load_dwordx4 %s, v%d, s[8:11], s36 offen' % (vr(LDB+4*j, 4), AD+2))
        if j < nj-1: o.append('s_add_u32 s36, s36, 12288')
    if emit:
        for x in o: k(x)
    return o
def gemv_compute(k, nj, s_outoff, out_srd, L0, after, B=160, C=168, LDB=96):
    S = B+16; T = B+32; A = B+48
    k('v_and_b32 v%d, 7, v0' % B)
    k('v_lshrrev_b32 v%d, 3, v0' % (B+1))
    k('s_waitcnt vmcnt(%d)' % (nj + after))
    if OPT.get('p0st') and L0 == LN_LDS: stamp(k, 2)
    for i in range(nj//2):
        k('v_lshlrev_b32 v%d, 16, v%d' % (S+2*i, C+i))
        k('v_and_b32 v%d, 0xffff0000, v%d' % (S+1+2*i, C+i))
    for i in range(nj): k('v_mul_f32 v%d, 0x%x, v%d' % (T+i, f2u(-LOG2E), S+i))
    for i in range(nj): k('v_exp_f32 v%d, v%d' % (T+i, T+i))
    k('s_nop 0')
    for i in range(nj): k('v_add_f32 v%d, 1.0, v%d' % (T+i, T+i))
    for i in range(nj): k('v_rcp_f32 v%d, v%d' % (T+i, T+i))
    k('s_nop 0')
    for i in range(nj): k('v_mul_f32 v%d, v%d, v%d' % (S+i, S+i, T+i))
    for i in range(nj//2): k('v_cvt_pk_bf16_f32 v%d, v%d, v%d' % (T+i, S+2*i, S+1+2*i))
    for i in range(nj//2):
        k('v_lshlrev_b32 v%d, 16, v%d' % (S+2*i, T+i))
        k('v_and_b32 v%d, 0xffff0000, v%d' % (S+1+2*i, T+i))
    for i in range(8): k('v_mov_b32 v%d, 0' % (A+i))
    U = B+56
    for j in range(nj):
        k('s_waitcnt vmcnt(%d)' % (nj-1-j + after))
        for i in range(4):
            k('v_lshlrev_b32 v%d, 16, v%d' % (U+2*(i%2), LDB+4*j+i))
            k('v_and_b32 v%d, 0xffff0000, v%d' % (U+1+2*(i%2), LDB+4*j+i))
            k('v_fmac_f32 v%d, v%d, v%d' % (A+2*i, U+2*(i%2), S+j))
            k('v_fmac_f32 v%d, v%d, v%d' % (A+2*i+1, U+1+2*(i%2), S+j))
    if OPT.get('p0st') and L0 == LN_LDS: stamp(k, 3)
    k('v_lshlrev_b32 v%d, 8, v%d' % (B+4, B+1))
    k('v_lshl_add_u32 v%d, v%d, 5, v%d' % (B+4, B, B+4))
    k('v_add_u32 v%d, %d, v%d' % (B+4, L0, B+4))
    k('ds_write_b128 v%d, %s' % (B+4, vr(A, 4)))
    k('ds_write_b128 v%d, %s offset:16' % (B+4, vr(A+4, 4)))
    k('s_waitcnt lgkmcnt(0)')
    k('s_barrier')
    lab = k.L('skip')
    k('s_cmp_lg_u32 s26, 0')
    k('s_cbranch_scc1 %s' % lab)
    k('v_lshlrev_b32 v%d, 2, v1' % (B+6))
    k('v_add_u32 v%d, %d, v%d' % (B+4, L0, B+6))
    for h in range(4):
        for i in range(8): k('ds_read_b32 v%d, v%d offset:%d' % (LDB+8*h+i, B+4, (8*h+i)*256))
        if h in (1, 2): k('s_waitcnt lgkmcnt(7)')
    k('s_waitcnt lgkmcnt(0)')
    for i in range(16): k('v_add_f32 v%d, v%d, v%d' % (LDB+i, LDB+i, LDB+16+i))
    for st in (8, 4, 2, 1):
        for i in range(st): k('v_add_f32 v%d, v%d, v%d' % (LDB+i, LDB+i, LDB+st+i))
    k('buffer_store_dword v%d, v%d, s[%d:%d], s%d offen %s' % (LDB, B+6, out_srd, out_srd+3, s_outoff, ST))
    k.label(lab)

def kv_part(k, mid=None, nmid=1):
    B = 160
    k('s_sub_u32 s50, s2, 128')
    k('s_lshl_b32 s50, s50, 2')
    k('s_add_u32 s50, s50, s26')
    srd(k, 8, PK, 0x200000)
    srd(k, 12, PV, 0x200000)
    srd(k, 16, PWS, 0x100000, WS_KF)
    k('s_lshr_b32 s51, s50, 7')
    k('s_bfe_u32 s52, s50, 0x40003')
    k('s_lshl_b32 s54, s51, 19')
    k('s_lshl_b32 s55, s52, 13')
    k('s_add_u32 s54, s54, s55')
    k('s_add_u32 s54, s54, 0x60000')
    k('v_lshrrev_b32 v%d, 3, v1' % B)
    k('v_and_b32 v%d, 7, v1' % (B+1))
    k('v_lshlrev_b32 v%d, 8, v%d' % (B+2, B))
    k('v_lshl_add_u32 v%d, v%d, 4, v%d' % (B+2, B+1, B+2))
    k('s_bfe_u32 s53, s50, 0x20001')
    k('s_and_b32 s56, s50, 1')
    k('s_lshl_b32 s55, s53, 11')
    k('s_add_u32 s55, s55, s54')
    k('s_lshl_b32 s57, s56, 7')
    k('s_add_u32 s55, s55, s57')
    k('buffer_load_dwordx4 %s, v%d, s[8:11], s55 offen' % (vr(B+8, 4), B+2))
    k('v_lshrrev_b32 v%d, 2, v1' % (B+3))
    k('v_lshlrev_b32 v%d, 8, v%d' % (B+3, B+3))
    k('v_and_b32 v%d, 3, v1' % (B+4))
    k('v_lshl_add_u32 v%d, v%d, 4, v%d' % (B+3, B+4, B+3))
    k('s_bfe_u32 s55, s50, 0x10002')
    k('s_lshl_b32 s55, s55, 12')
    k('s_and_b32 s57, s50, 3')
    k('s_lshl_b32 s57, s57, 6')
    k('s_add_u32 s55, s55, s57')
    k('s_add_u32 s55, s55, s54')
    k('s_mul_i32 s57, s26, 4608')
    k('s_add_u32 s57, s57, %d' % (TR_LDS + 2304))
    k('s_mov_b32 m0, s57')
    k('s_nop 0')
    k('buffer_load_dwordx4 v%d, s[12:15], s55 offen lds' % (B+3))
    if mid:
        k('s_mov_b32 s58, s16'); k('s_mov_b32 s59, s17'); k('s_mov_b32 s60, s18')
        mid()
        k('s_mov_b32 s16, s58'); k('s_mov_b32 s17, s59'); k('s_mov_b32 s18, s60')
    k('v_lshrrev_b32 v%d, 5, v1' % (B+4))
    k('v_lshlrev_b32 v%d, 2, v%d' % (B+4, B+4))
    k('v_bfe_u32 v%d, v1, 2, 2' % (B+5))
    k('v_add_u32 v%d, v%d, v%d' % (B+4, B+4, B+5))
    k('v_lshlrev_b32 v%d, 6, v%d' % (B+4, B+4))
    k('v_bfe_u32 v%d, v1, 4, 1' % (B+5))
    k('v_lshl_add_u32 v%d, v%d, 5, v%d' % (B+4, B+5, B+4))
    k('v_and_b32 v%d, 1, v1' % (B+5))
    k('v_lshl_add_u32 v%d, v%d, 4, v%d' % (B+4, B+5, B+4))
    k('v_bfe_u32 v%d, v1, 1, 1' % (B+5))
    k('v_lshl_add_u32 v%d, v%d, 3, v%d' % (B+4, B+5, B+4))
    k('v_add_u32 v%d, s57, v%d' % (B+4, B+4))
    k('v_lshrrev_b32 v%d, 4, v1' % (B+6))
    k('v_lshlrev_b32 v%d, 10, v%d' % (B+6, B+6))
    k('v_bfe_u32 v%d, v1, 3, 1' % (B+5))
    k('v_lshl_add_u32 v%d, v%d, 9, v%d' % (B+6, B+5, B+6))
    k('v_lshl_add_u32 v%d, v%d, 4, v%d' % (B+6, B+1, B+6))
    k('s_lshr_b32 s55, s50, 3')
    k('s_lshl_b32 s55, s55, 13')
    k('s_lshl_b32 s57, s56, 12')
    k('s_add_u32 s55, s55, s57')
    k('s_lshl_b32 s57, s53, 7')
    k('s_add_u32 s55, s55, s57')
    k('s_waitcnt vmcnt(%d)' % (1 + nmid if mid else 1))
    tr8x8(k, B+8, 1, 240, 241)
    k('buffer_store_dwordx4 %s, v%d, s[16:19], s55 offen %s' % (vr(B+8, 4), B+6, ST))
    k('s_waitcnt vmcnt(%d)' % (1 + nmid if mid else 1))
    k('ds_read_b64_tr_b16 %s, v%d' % (vr(B+12, 2), B+4))
    k('ds_read_b64_tr_b16 %s, v%d offset:512' % (vr(B+14, 2), B+4))
    k('v_lshlrev_b32 v%d, 4, v1' % (B+5))
    k('s_lshl_b32 s55, s50, 10')
    k('s_add_u32 s55, s55, 0x%x' % (WS_VF - WS_KF))
    k('s_waitcnt lgkmcnt(0)')
    k('buffer_store_dwordx4 %s, v%d, s[16:19], s55 offen %s' % (vr(B+12, 4), B+5, ST))

def ln_addr(k):
    k('v_lshrrev_b32 v2, 6, v0')
    k('v_and_b32 v3, 7, v1')
    k('v_lshrrev_b32 v4, 3, v1')
    k('v_lshrrev_b32 v5, 1, v4')
    k('v_lshlrev_b32 v5, 10, v5')
    k('v_and_b32 v6, 1, v4')
    k('v_lshl_add_u32 v5, v6, 9, v5')
    k('v_lshl_add_u32 v5, v3, 4, v5')
    k('v_lshl_add_u32 v5, v2, 14, v5')
    k('v_lshlrev_b32 v6, 11, v4')
    k('v_lshl_add_u32 v6, v3, 4, v6')
    k('v_lshl_add_u32 v6, v2, 9, v6')
    tr_addr(k, 240, 241)
    k('v_lshlrev_b32 v7, 4, v0')
    k('v_lshlrev_b32 v8, 10, v2')
    k('v_lshl_add_u32 v8, v4, 5, v8')
    k('v_add_u32 v8, %d, v8' % LN_LDS)
    k('v_add_u32 v11, %d, v7' % LN_LDS)
    k('v_lshlrev_b32 v9, 5, v3')
    k('v_add_u32 v9, %d, v9' % (LN_LDS + 12288))
    k('v_lshl_add_u32 v10, v2, 3, v9')
    k('s_lshl_b32 s45, s24, 5')
    k('s_lshl_b32 s46, s22, 3')
    k('s_add_u32 s45, s45, s46')
    k('s_add_u32 s45, s45, s25')
    k('s_lshr_b32 s40, s45, 2')
    k('s_lshl_b32 s40, s40, 16')
    k('s_and_b32 s46, s45, 3')
    k('s_lshl_b32 s46, s46, 7')
    k('s_add_u32 s40, s40, s46')
    for j in range(1, 4): k('s_add_u32 s%d, s40, %d' % (40+j, j*4096))
    k('s_lshl_b32 s44, s45, 14')

TR_LDS = 126976
def tr_addr(k, vw, vrd):
    k('v_lshrrev_b32 v%d, 3, v1' % vw)
    k('v_mul_u32_u24 v%d, 144, v%d' % (vw, vw))
    k('v_and_b32 v%d, 7, v1' % vrd)
    k('v_lshl_add_u32 v%d, v%d, 4, v%d' % (vw, vrd, vw))
    k('v_mul_u32_u24 v%d, 144, v%d' % (vrd, vrd))
    k('v_lshrrev_b32 v29, 3, v1')
    k('v_lshl_add_u32 v%d, v29, 4, v%d' % (vrd, vrd))
    k('s_mul_i32 s27, s26, 4608')
    k('s_add_u32 s27, s27, %d' % TR_LDS)
    k('v_add_u32 v%d, s27, v%d' % (vw, vw))
    k('v_add_u32 v%d, s27, v%d' % (vrd, vrd))
def tr8x8(k, base, n, vw, vrd):
    for j in range(n): k('ds_write_b128 v%d, %s offset:%d' % (vw, vr(base + 4*j, 4), j*1152))
    k('s_waitcnt lgkmcnt(0)')
    for j in range(n): k('ds_read_b128 %s, v%d offset:%d' % (vr(base + 4*j, 4), vrd, j*1152))
    k('s_waitcnt lgkmcnt(0)')

X_ = 32
RAW = 64
def ln_unpack(k, src):
    for j in range(4):
        for i in range(4):
            k('v_lshlrev_b32 v%d, 16, v%d' % (X_ + 8*j + 2*i, src + 4*j + i))
            k('v_and_b32 v%d, 0xffff0000, v%d' % (X_ + 8*j + 2*i + 1, src + 4*j + i))
def pk(op, d, a, b, c=None, bc=None):
    n = 3 if c is not None else 2
    hi = ['0' if (bc and i in bc) else '1' for i in range(n)]
    ops = [vr(d, 2), vr(a, 2), vr(b, 2)] + ([vr(c, 2)] if c is not None else [])
    return '%s %s op_sel_hi:[%s]' % (op, ', '.join(ops), ','.join(hi))
def ln_stats(k):
    if True:
        k(pk('v_pk_add_f32', 16, X_, X_+2)); k(pk('v_pk_add_f32', 18, X_+4, X_+6))
        k(pk('v_pk_add_f32', 20, X_+8, X_+10)); k(pk('v_pk_add_f32', 22, X_+12, X_+14))
        for j in range(4): k(pk('v_pk_add_f32', 16 + 2*j, 16 + 2*j, X_ + 16 + 4*j))
        for j in range(4): k(pk('v_pk_add_f32', 16 + 2*j, 16 + 2*j, X_ + 18 + 4*j))
        k(pk('v_pk_add_f32', 16, 16, 18)); k(pk('v_pk_add_f32', 20, 20, 22)); k(pk('v_pk_add_f32', 16, 16, 20))
    k('v_add_f32 v16, v16, v17')
    k('v_mul_f32 v24, 0x%x, v16' % f2u(-1.0/32))
    for i in range(16): k(pk('v_pk_add_f32', X_ + 2*i, X_ + 2*i, 24, bc=[1]))
    k(pk('v_pk_mul_f32', 16, X_, X_)); k(pk('v_pk_mul_f32', 18, X_+2, X_+2))
    for i in range(2, 16): k(pk('v_pk_fma_f32', 16 + 2*(i % 2), X_ + 2*i, X_ + 2*i, 16 + 2*(i % 2)))
    k(pk('v_pk_add_f32', 16, 16, 18))
    k('v_add_f32 v27, v16, v17')
    k('v_sub_f32 v26, 0, v24')
    k('v_mov_b32 v30, v26')
    for step, n in ((0, 32), (1, 64), (2, 128)):
        if step == 0:
            k('s_nop 1')
            k('v_mov_b32_dpp v20, v26 row_ror:8 row_mask:0xf bank_mask:0xf')
            k('v_mov_b32_dpp v21, v27 row_ror:8 row_mask:0xf bank_mask:0xf')
            a_m, b_m, a_M, b_M = 26, 20, 27, 21
        else:
            sw = 'v_permlane16_swap_b32' if step == 1 else 'v_permlane32_swap_b32'
            k('v_mov_b32 v20, v26'); k('v_mov_b32 v21, v27')
            k('s_nop 1')
            k('%s v26, v20' % sw); k('%s v27, v21' % sw)
            k('s_nop 1')
        k('v_sub_f32 v22, v26, v20')
        k('v_add_f32 v26, v26, v20')
        k('v_add_f32 v27, v27, v21')
        k('v_mul_f32 v22, v22, v22')
        k('v_mul_f32 v26, 0.5, v26')
        k('v_fmac_f32 v27, 0x%x, v22' % f2u(n/2.0))
    k('ds_write_b64 v10, v[26:27]')
    k('s_waitcnt lgkmcnt(0)')
    k('s_barrier')
    k('ds_read_b128 v[16:19], v9')
    k('ds_read_b128 v[20:23], v9 offset:16')
    k('s_waitcnt lgkmcnt(0)')
    k('v_add_f32 v24, v16, v18'); k('v_add_f32 v25, v20, v22'); k('v_add_f32 v24, v24, v25')
    k('v_mul_f32 v24, 0.25, v24')
    k('v_add_f32 v25, v17, v19'); k('v_add_f32 v26, v21, v23'); k('v_add_f32 v25, v25, v26')
    for r in (16, 18, 20, 22): k('v_sub_f32 v%d, v%d, v24' % (r, r))
    k('v_mul_f32 v26, v16, v16')
    for r in (18, 20, 22): k('v_fmac_f32 v26, v%d, v%d' % (r, r))
    k('v_fmac_f32 v25, 0x%x, v26' % f2u(256.0))
    k('v_mov_b32 v26, 0x%x' % f2u(1e-5))
    k('v_fmac_f32 v26, 0x%x, v25' % f2u(1.0/1024))
    k('v_rsq_f32 v28, v26')
    k('v_sub_f32 v30, v30, v24')
def vec_reads(k, slot, dst):
    for j in range(4):
        k('ds_read_b128 %s, v8 offset:%d' % (vr(dst + 8*j, 4), slot*4096 + j*256))
        k('ds_read_b128 %s, v8 offset:%d' % (vr(dst + 8*j + 4, 4), slot*4096 + j*256 + 16))
def mod_loads(k, vecs, npart, base_off, MV, pstride):
    srd(k, 8, PWS, 0x10000, base_off or None)
    for n, (c, isscale) in enumerate(vecs):
        for p in range(npart):
            k('s_mov_b32 s27, %d' % (p*pstride + c*4096))
            k('buffer_load_dwordx4 %s, v7, s[8:11], s27 offen %s' % (vr(MV + (n*npart + p)*4, 4), LD()))
def mod_to_lds(k, vecs, npart, MV, mulc=None, mulsel=None):
    for n, (c, isscale) in enumerate(vecs):
        b = MV + n*npart*4
        for p in range(1, npart):
            for i in range(4): k('v_add_f32 v%d, v%d, v%d' % (b+i, b+i, b+4*p+i))
        def rnd():
            k('v_cvt_pk_bf16_f32 v%d, v%d, v%d' % (b+4, b, b+1))
            k('v_cvt_pk_bf16_f32 v%d, v%d, v%d' % (b+5, b+2, b+3))
            k('v_lshlrev_b32 v%d, 16, v%d' % (b, b+4))
            k('v_and_b32 v%d, 0xffff0000, v%d' % (b+1, b+4))
            k('v_lshlrev_b32 v%d, 16, v%d' % (b+2, b+5))
            k('v_and_b32 v%d, 0xffff0000, v%d' % (b+3, b+5))
        rnd()
        if isscale:
            for i in range(4): k('v_add_f32 v%d, 1.0, v%d' % (b+i, b+i))
            rnd()
        mc = mulc if mulc else (mulsel or {}).get(n)
        if mc:
            for i in range(4): k('v_mul_f32 v%d, 0x%x, v%d' % (b+i, mc, b+i))
        k('ds_write_b128 v11, %s offset:%d' % (vr(b, 4), n*4096))
def ln_apply_store(k, A, B, hoff):
    srd(k, 16, PWS, 0x400000, hoff)
    for j in range(4):
        for i in range(4): k(pk('v_pk_mul_f32', A + 8*j + 2*i, A + 8*j + 2*i, 28, bc=[1]))
        for i in range(4): k(pk('v_pk_fma_f32', B + 8*j + 2*i, A + 8*j + 2*i, 30, B + 8*j + 2*i, bc=[1]))
        for i in range(4): k(pk('v_pk_fma_f32', X_ + 8*j + 2*i, X_ + 8*j + 2*i, A + 8*j + 2*i, B + 8*j + 2*i))
        for i in range(4): k('v_cvt_pk_bf16_f32 v%d, v%d, v%d' % (104 + 4*j + i, X_ + 8*j + 2*i, X_ + 8*j + 2*i + 1))
        k('buffer_store_dwordx4 %s, v5, s[16:19], s%d offen %s' % (vr(104 + 4*j, 4), 40+j, ST))

TICKET_LDS = LN_LDS + 12288 + 512
def ticket_issue(k):
    lab = k.L('tk')
    k('s_getreg_b32 s3, hwreg(HW_REG_XCC_ID, 0, 4)')
    k('s_and_b32 s3, s3, 7')
    k('s_cmp_lg_u32 s26, 0')
    k('s_cbranch_scc1 %s' % lab)
    k('s_lshl_b32 s27, s3, 2')
    k('s_add_u32 s27, s27, 132')
    k('v_mov_b32 v2, s27')
    k('v_mov_b32 v3, 1')
    k('s_mov_b64 exec, 1')
    k('global_atomic_add v250, v2, v3, s[%d:%d] sc0 sc1' % (PDBG, PDBG+1))
    k('s_mov_b64 exec, -1')
    k.label(lab)
def ticket_publish(k, name):
    lab = k.L('tp'); ok = k.L('tok'); sp = k.L('tsp'); spd = k.L('tsd')
    k('s_cmp_lg_u32 s26, 0')
    k('s_cbranch_scc1 %s' % lab)
    k('s_waitcnt vmcnt(0)')
    k('v_readfirstlane_b32 s27, v250')
    k('s_mov_b32 s28, s3')
    k('s_cmp_lt_u32 s27, 32')
    k('s_cbranch_scc1 %s' % ok)
    k('s_mov_b64 exec, 1')
    k('v_mov_b32 v2, 0')
    k('s_mov_b32 s29, 0')
    k.label(sp)
    k('global_load_dwordx4 v[16:19], v2, s[%d:%d] offset:132 sc1' % (PDBG, PDBG+1))
    k('global_load_dwordx4 v[20:23], v2, s[%d:%d] offset:148 sc1' % (PDBG, PDBG+1))
    k('s_waitcnt vmcnt(0)')
    for i in range(8): k('v_readfirstlane_b32 s%d, v%d' % (50+i, 16+i))
    k('s_nop 3')
    k('s_mov_b32 s58, 0')
    for i in range(8): k('s_add_u32 s58, s58, s%d' % (50+i))
    k('s_add_u32 s29, s29, 1')
    k('s_cmp_ge_u32 s58, 256')
    k('s_cbranch_scc1 %s' % spd)
    k('s_cmp_ge_u32 s29, 0x40000')
    k('s_cbranch_scc1 %s' % spd)
    k('s_sleep 4')
    k('s_branch %s' % sp)
    k.label(spd)
    k('v_mov_b32 v2, 164')
    k('v_mov_b32 v3, 1')
    k('global_atomic_add v16, v2, v3, s[%d:%d] sc0 sc1' % (PDBG, PDBG+1))
    k('s_waitcnt vmcnt(0)')
    k('v_readfirstlane_b32 s29, v16')
    k('s_mov_b64 exec, -1')
    k('s_mov_b32 s28, 0')
    k('s_mov_b32 s27, 31')
    for i in range(8):
        nx = k.L('tn')
        k('s_min_u32 s58, s%d, 32' % (50+i))
        k('s_sub_u32 s59, 32, s58')
        k('s_cmp_lt_u32 s29, s59')
        k('s_cbranch_scc0 %s' % nx)
        k('s_mov_b32 s28, %d' % i)
        k('s_add_u32 s27, s58, s29')
        k('s_branch %s' % ok)
        k.label(nx)
        k('s_sub_u32 s29, s29, s59')
    k.label(ok)
    k('s_lshl_b32 s27, s27, 3')
    k('s_or_b32 s27, s27, s28')
    k('v_mov_b32 v2, %d' % TICKET_LDS)
    k('v_mov_b32 v3, s27')
    k('ds_write_b32 v2, v3')
    k('s_waitcnt lgkmcnt(0)')
    k.label(lab)
def ticket_fetch(k):
    k('v_mov_b32 v2, %d' % TICKET_LDS)
    k('ds_read_b32 v3, v2')
    k('s_mov_b32 s63, s24')
    k('s_waitcnt lgkmcnt(0)')
    k('v_readfirstlane_b32 s3, v3')
    k('s_nop 3')
    k('s_and_b32 s20, s3, 7')
    k('s_lshr_b32 s21, s3, 3')
    k('s_lshr_b32 s22, s20, 1')
    k('s_and_b32 s23, s20, 1')
    k('s_and_b32 s24, s21, 3')
    k('s_lshl_b32 s27, s23, 2')
    k('s_add_u32 s24, s24, s27')
    k('s_lshr_b32 s25, s21, 2')

def phase_p0(k, name):
    stamp_rt0(k, 'p0')
    stamp(k, 0)
    if MEGA and OPT.get('ticket'): ticket_issue(k)
    if MEGA and OPT.get('local'):
        lab = k.L('xp')
        k('s_getreg_b32 s3, hwreg(HW_REG_XCC_ID, 0, 4)')
        k('s_cmp_lg_u32 s26, 0')
        k('s_cbranch_scc1 %s' % lab)
        k('s_lshl_b32 s27, s2, 2')
        k('s_add_u32 s27, s27, 0x%x' % WS_XCC)
        k('v_mov_b32 v2, s27')
        k('v_mov_b32 v3, s3')
        k('s_mov_b64 exec, 1')
        k('global_store_dword v2, v3, s[%d:%d] sc1' % (PWS, PWS+1))
        k('s_mov_b64 exec, -1')
        k.label(lab)
    if OPT.get('diagxcd'):
        lab = k.L('dx')
        k('s_getreg_b32 s58, hwreg(HW_REG_XCC_ID, 0, 4)')
        k('s_and_b32 s58, s58, 7')
        k('s_cmp_lg_u32 s26, 0')
        k('s_cbranch_scc1 %s' % lab)
        k('s_lshl_b32 s27, s58, 2')
        k('s_add_u32 s27, s27, 168')
        k('v_mov_b32 v2, s27')
        k('s_and_b32 s27, s2, 7')
        k('s_lshl_b32 s27, 1, s27')
        k('v_mov_b32 v3, s27')
        k('s_mov_b64 exec, 1')
        k('global_atomic_or v2, v3, s[%d:%d] sc1' % (PDBG, PDBG+1))
        k('s_mov_b64 exec, -1')
        k.label(lab)
    def xloads():
        ln_addr(k)
        srd(k, 16, PX, 0x400000)
        for j in range(4): k('buffer_load_dwordx4 %s, v6, s[16:19], s44 offen offset:%d' % (vr(RAW + 4*j, 4), j*128))
    def s1addr():
        k('s_mov_b32 s6, s%d' % PDBG)
        k('s_mov_b32 s7, s%d' % (PDBG+1))
    def kvaddr():
        k('s_add_u32 s6, s%d, 4' % PDBG)
        k('s_addc_u32 s7, s%d, 0' % (PDBG+1))
    def wq_touch():
        lab = k.L('wq')
        k('s_cmp_eq_u32 s26, 0')
        k('s_cbranch_scc1 %s' % lab)
        srd(k, 16, PWQ, 1024*4096*2)
        k('v_lshrrev_b32 v15, 4, v0')
        k('v_and_b32 v12, 15, v0')
        k('v_lshlrev_b32 v15, 13, v15')
        k('v_lshl_add_u32 v15, v12, 7, v15')
        k('s_lshl_b32 s36, s21, 17')
        k('s_lshl_b32 s37, s22, 11')
        k('s_add_u32 s36, s36, s37')
        k('s_lshl_b32 s37, s23, 22')
        k('s_add_u32 s36, s36, s37')
        k('buffer_load_dword v13, v15, s[16:19], s36 offen')
        k('s_cmp_lg_u32 s26, 1')
        k('s_cbranch_scc1 %s' % lab)
        k('v_subrev_u32 v15, 0x8000, v15')
        k('buffer_load_dword v14, v15, s[16:19], s36 offen')
        k.label(lab)
    k('s_cmp_ge_u32 s2, 128')
    k('s_cbranch_scc1 %s_kv' % name)
    srd(k, 8, PWMOD, 1024*6144*2)
    srd(k, 12, PC_, 2048)
    k('s_and_b32 s38, s2, 31')
    k('s_lshr_b32 s39, s2, 5')
    k('s_lshl_b32 s47, s39, 8')
    k('s_lshl_b32 s48, s38, 7')
    k('s_lshl_b32 s49, s39, 13')
    k('s_lshl_b32 s38, s38, 8')
    k('s_add_u32 s49, s49, s38')
    gemv_load(k, 8, 47, 48)
    xloads()
    if OPT.get('p0st'): stamp(k, 1)
    if MEGA:
        lab = k.L('z')
        k('s_or_b32 s27, s2, s26')
        k('s_cmp_lg_u32 s27, 0')
        k('s_cbranch_scc1 %s' % lab)
        srd(k, 16, PWS, 192*128, WS_CNT)
        k('v_lshlrev_b32 v16, 7, v1')
        k('v_mov_b32 v17, 0')
        for z in range(3): k('buffer_store_dword v17, v16, s[16:19], 0 offen offset:0 %s' % ST) if z == 0 else (k('v_add_u32 v%d, %d, v16' % (18+z, 8192*z)), k('buffer_store_dword v17, v%d, s[16:19], 0 offen %s' % (18+z, ST)))
        k('s_waitcnt vmcnt(0)')
        k.label(lab)
    srd(k, 16, PWS, 0x8000, WS_MOD or None)
    gemv_compute(k, 8, 49, 16, LN_LDS, 4)
    if not OPT.get('p0st'): stamp(k, 1)
    arrive(k, s1addr, count=128, only_w0=True, flag_off=128)
    lab = k.L('w0'); k('s_cmp_eq_u32 s26, 0'); k('s_cbranch_scc1 %s' % lab); k('s_waitcnt vmcnt(0)'); k.label(lab)
    if OPT.get('p0st'): stamp(k, 4)
    k('s_branch %s_pf' % name)
    k.label(name + '_kv')
    kv_part(k, xloads, 4)
    if not MEGA:
        modb_addr(k, 128)
        gemv_load(k, 16, 47, 48)
        srd(k, 16, PWS, 0x8000, WS_MODB)
        gemv_compute(k, 16, 49, 16, LN_LDS, 0)
    stamp(k, 1)
    arrive(k, kvaddr)
    k.label(name + '_pf')
    if MEGA and OPT.get('ticket'): ticket_publish(k, name)
    tr8x8(k, RAW, 4, 240, 241)
    ln_unpack(k, RAW)
    ln_stats(k)
    if MEGA: k('s_mov_b32 s63, s24')
    wq_touch()
    if not OPT.get('p0st'): stamp(k, 2)

def modb_addr(k, first):
    srd(k, 8, PWMOD, 1024*6144*2)
    srd(k, 12, PC_, 2048)
    k('s_sub_u32 s38, s2, %d' % first)
    k('s_lshr_b32 s39, s38, 6')
    k('s_and_b32 s38, s38, 63')
    k('s_lshl_b32 s47, s39, 9')
    k('s_lshl_b32 s48, s38, 7')
    k('s_add_u32 s48, s48, 4096')
    k('s_lshl_b32 s49, s39, 14')
    k('s_lshl_b32 s38, s38, 8')
    k('s_add_u32 s49, s49, s38')

def phase_ln1b(k):
    def s1addr():
        k('s_mov_b32 s6, s%d' % PDBG)
        k('s_mov_b32 s7, s%d' % (PDBG+1))
    waitfor(k, s1addr, 1, off=128)
    if not OPT.get('p0st'): stamp(k, 3)
    vecs = [(0, False), (1, True)]
    mod_loads(k, vecs, 4, WS_MOD, 96, 8192)
    k('s_waitcnt vmcnt(0)')
    mod_to_lds(k, vecs, 4, 96, f2u(128**-0.5 * LOG2E))
    k('s_waitcnt lgkmcnt(0)')
    k('s_barrier')
    vec_reads(k, 1, 144)
    k('s_waitcnt lgkmcnt(0)')
    vec_reads(k, 0, 176)
    k('s_waitcnt lgkmcnt(0)')
    ln_apply_store(k, 144, 176, WS_H)
    def a():
        k('s_add_u32 s27, s63, %d' % C_S2); cnt_addr(k, 27)
    arrive(k, a, count=32, flag_off=128)
    if not OPT.get('p0st'): stamp(k, 4)
    stamp_flush(k, 'p0', 5)

def phase_ln2(k, mode):
    stamp_rt0(k, mode)
    stamp(k, 0)
    if OPT.get('idle') and mode == 'ln2':
        for _ in range(int(OPT['idle'])): k('s_sleep 37')
    ln_addr(k)
    vecs = [(0, False), (1, False), (2, True)] if mode == 'ln2' else [(3, False)]
    if MEGA and mode == 'ln2':
        def s1b():
            k('s_mov_b32 s6, s%d' % PDBG); k('s_mov_b32 s7, s%d' % (PDBG+1))
        waitfor(k, s1b, 256, off=8)
    NPB = 4 if MEGA else 2
    MV = 168
    G, A, B = 144, 176, 208
    mod_loads(k, vecs, NPB, WS_MODB, MV, 16384)
    if mode == 'ln2':
        srd(k, 12, PX, 0x400000)
        for j in range(4): k('buffer_load_dwordx4 %s, v6, s[12:15], s44 offen offset:%d' % (vr(RAW + 4*j, 4), j*128))
    elif MEGA:
        srd(k, 12, PWS, 0x400000, WS_X1)
        for j in range(4): k('buffer_load_dwordx4 %s, v5, s[12:15], s%d offen %s' % (vr(RAW + 4*j, 4), 40+j, LD()))
    early_x = (mode == 'ln2') or MEGA
    k('s_waitcnt vmcnt(%d)' % (4 if early_x else 0))
    if mode == 'ln2': mod_to_lds(k, vecs, NPB, MV, None, mulsel={1: f2u(-LOG2E), 2: f2u(-LOG2E)})
    else: mod_to_lds(k, vecs, NPB, MV, f2u(1.0/(LOG2E*LOG2E)))
    k('s_waitcnt lgkmcnt(0)')
    k('s_barrier')
    vec_reads(k, 0, G)
    if mode == 'ln2':
        k('s_waitcnt lgkmcnt(0)')
        vec_reads(k, 2, A)
        k('s_waitcnt lgkmcnt(0)')
        vec_reads(k, 1, B)
    if early_x:
        k('s_waitcnt vmcnt(0) lgkmcnt(0)')
        if mode == 'ln2': tr8x8(k, RAW, 4, 240, 241)
        ln_unpack(k, RAW)
    k('s_mov_b32 s46, 0x00003f80')
    k('s_mov_b32 s47, 0x3f800000')
    def a():
        k('s_add_u32 s27, s24, %d' % (C_S4 if mode == 'ln2' else C_S7)); cnt_addr(k, 27)
    k('s_waitcnt lgkmcnt(0)')
    if MEGA: waitfor(k, a, 1, off=128, direct=32)
    stamp(k, 1)
    srd(k, 12, PWS, 0x1000000, WS_P1 if mode == 'ln2' else WS_P2)
    for j in range(4):
        for q in range(4):
            k('s_add_u32 s27, s%d, 0x%x' % (40+j, q*0x400000))
            k('buffer_load_dwordx4 %s, v5, s[12:15], s27 offen %s' % (vr(RAW + 16 + q*16 + 4*j, 4), LD()))
    if not early_x:
        srd(k, 8, PWS, 0x400000, WS_X1)
        for j in range(4): k('buffer_load_dwordx4 %s, v5, s[8:11], s%d offen %s' % (vr(RAW + 4*j, 4), 40+j, LD()))
        k('s_waitcnt vmcnt(0)')
        ln_unpack(k, RAW)
    pend = []
    for j in range(4):
        if early_x: k('s_waitcnt vmcnt(%d)' % (12 - 4*j))
        for i in range(4):
            tb = 20 + 2*(i % 2)
            for q in range(4):
                for h in range(2):
                    k('v_dot2_f32_bf16 v%d, v%d, s%d, %s' % (tb + h, RAW + 16 + q*16 + 4*j + i, 46 + h, '0' if q == 0 else 'v%d' % (tb + h)))
            for x in pend: k(x)
            pend = ['v_fmac_f32 v%d, v%d, v%d' % (X_ + 8*j + 2*i, tb, G + 8*j + 2*i),
                    'v_fmac_f32 v%d, v%d, v%d' % (X_ + 8*j + 2*i + 1, tb + 1, G + 8*j + 2*i + 1)]
        k('s_nop 2')
        for x in pend: k(x)
        pend = []
        for i in range(4):
            k('v_cvt_pk_bf16_f32 v%d, v%d, v%d' % (RAW + 4*j + i, X_ + 8*j + 2*i, X_ + 8*j + 2*i + 1))
    if mode == 'final':
        srd(k, 12, POUT, 0x400000)
        tr8x8(k, RAW, 4, 240, 241)
        for j in range(4): k('buffer_store_dwordx4 %s, v6, s[12:15], s44 offen offset:%d %s' % (vr(RAW + 4*j, 4), j*128, 'sc1'))
    else:
        ln_stats(k)
        ln_apply_store(k, A, B, WS_H2)
        def a5():
            k('s_add_u32 s27, s24, %d' % C_S5); cnt_addr(k, 27)
        arrive(k, a5, count=32, flag_off=128)
        srd(k, 16, PWS, 0x400000, WS_X1)
        for j in range(4): k('buffer_store_dwordx4 %s, v5, s[16:19], s%d offen %s' % (vr(RAW + 4*j, 4), 40+j, ST))
    stamp(k, 2)
    stamp_flush(k, mode, 3)

def attn_setup(k):
    vL = [4, 5, 6, 7]; vX = [8, 9]; vW = [10, 11, 12, 13]
    ldw = 8192
    k('s_lshl_b32 s35, s22, 3')
    k('s_add_u32 s35, s35, s25')
    k('s_mov_b32 s62, s35')
    lds_addr_128(k, vL, tmp=40)
    k('v_lshlrev_b32 v8, 4, v1')
    k('v_add_u32 v9, 0x10000, v8')
    k('s_lshl_b32 s28, s62, 8')
    w128_voffsets(k, vW, ldw, 28, 40)
    srd(k, 8, PWS, 0x400000, WS_H)
    srd(k, 12, PWQ, 0x800000)
    k('s_lshl_b32 s27, s24, 3')
    k('s_lshl_b32 s28, s26, 1')
    k('s_add_u32 s34, s27, s28')
    k('s_lshl_b32 s30, s34, 16')
    k('s_sub_u32 s30, s30, 4096')
    k('s_mov_b32 s31, 0x%x' % ((-64*ldw) & 0xffffffff))
    k('s_lshl_b32 s32, s26, 12')
    return vL, vX, vW, ldw

def phase_attn(k, name, next_prefetch=None):
    stamp_rt0(k, 'attn')
    if not OPT.get('tailst'): stamp(k, 0)
    vL, vX, vW, ldw = attn_setup(k)
    KSLOT = [65536, 81920, 98304, 0, 16384]
    VSLOT = [114688, 131072, 147456, 32768, 49152]
    FLAG = 33792
    QF = lambda mb, ks: 64 + (mb*8 + ks)*4
    SB = lambda par, mb: 128 + (par*2 + mb)*16
    PB = lambda par, mb, kk: 192 + ((par*2 + mb)*2 + kk)*4
    CB = lambda mb: 224 + mb*16
    def OA(db, mb):
        i = db*2 + mb
        return i*16 if i < 6 else 192 + (i-6)*16
    KF = lambda ks: 128 + ks*4
    VF = lambda q: 160 + q*4
    LS = lambda mb, p: 33 + mb*2 + p
    MG = lambda mb: 37 + mb
    KT = (36, 37, 38, 39, 40); VT = (41, 42, 43, 29, 35)
    TT = (8, 9, 10, 12, 13, 14, 54, 55, 56, 57, 61, 63)
    kvflag = LD()
    def kdma(soff, pre0, tagid):
        return [(pre0 if i == 0 else [], 'buffer_load_dwordx4 v28, s[44:47], s%d offen offset:%d %s lds' % (soff, i*1024, kvflag), ('K', tagid, i)) for i in range(4)]
    def vdma(soff, pre0, tagid):
        return [(pre0 if i == 0 else [], 'buffer_load_dwordx4 v28, s[48:51], s%d offen offset:%d %s lds' % (soff, i*1024, kvflag), ('V', tagid, i)) for i in range(4)]
    def dma_list(lst):
        ops = []
        for (kind, s_) in lst:
            if kind == 'K': ops += kdma(52, ['s_mov_b32 s52, %d' % (s_*16384), 's_add_u32 m0, s32, %d' % KSLOT[s_ % 5]], s_)
            else: ops += vdma(53, ['s_mov_b32 s53, %d' % (s_*16384), 's_add_u32 m0, s32, %d' % VSLOT[s_ % 5]], s_)
        return ops
    def initial_dmas(): return dma_list([('K', 0), ('V', 0), ('K', 1), ('V', 1), ('K', 2), ('V', 2)])
    ini = initial_dmas()
    zero_list = ['v_accvgpr_write_b32 a%d, 0' % r for r in list(range(192, 224)) + list(range(0, 96))]
    def extra(t, j):
        out = []
        order = [(12, 3)] + [(tt, jj) for tt in (13, 14, 15) for jj in range(4)]
        if (t, j) in order:
            p = order.index((t, j))
            out += ini[(p*len(ini))//13:((p+1)*len(ini))//13]
        if t in (12, 13, 14, 15):
            z = zero_list[(t-12)*32:(t-11)*32]
            out += z[j*8:(j+1)*8]
        return out
    g = Gemm(k, 4, 16, acc=128, xr=0, wf=128, vX=vX, vW=vW, sXsrd=8, sWsrd=12, sXoff=30, sWoff=31, sM0=32, sCnt=33,
             stage_bytes=16384, ldw_step=64*ldw, nW=4,
             lds_imm=lambda buf, j, nb, sec: (vL[nb], buf*16384 + j*4096 + sec*1024), extra=extra, xflag=LD())
    if MEGA: g.prologue_w()
    k('s_lshl_b32 s27, s26, 12')
    k('v_add_u32 v28, s27, v8')
    k('v_add_u32 v16, %d, v8' % KSLOT[0])
    k('v_add_u32 v17, %d, v8' % VSLOT[0])
    k('v_lshlrev_b32 v18, 7, v1')
    k('s_lshl_b32 s27, s26, 13')
    k('v_add_u32 v18, s27, v18')
    k('s_lshl_b32 s27, s22, 17')
    k('s_add_u32 s28, s27, 0x%x' % WS_KF)
    srd_s(k, 44, PWS, 28, 0x20000)
    k('s_add_u32 s28, s27, 0x%x' % WS_VF)
    srd_s(k, 48, PWS, 28, 0x20000)
    k('v_mov_b32 v%d, 0xff800000' % MG(0))
    k('v_mov_b32 v%d, 0xff800000' % MG(1))
    k('s_mov_b32 s59, 0')
    if MEGA:
        def a():
            k('s_add_u32 s27, s24, %d' % C_S2); cnt_addr(k, 27)
        def kvw():
            k('s_mov_b32 s6, s%d' % PDBG); k('s_mov_b32 s7, s%d' % (PDBG+1))
        waitfor(k, kvw, 128, off=4)
        waitfor(k, a, 1, off=128, direct=32)
        g.prologue_x()
    if MEGA and OPT.get('local'):
        k('v_lshlrev_b32 v21, 7, v1')
        k('s_and_b32 s27, s24, 3')
        k('s_lshl_b32 s27, s27, 5')
        k('s_lshl_b32 s28, s20, 2')
        k('s_add_u32 s27, s27, s28')
        k('s_add_u32 s27, s27, 0x%x' % WS_XCC)
        k('v_add_u32 v21, s27, v21')
        k('s_mov_b64 exec, 0xff')
        k.vm('global_load_dword v22, v21, s[%d:%d] sc1' % (PWS, PWS+1), ('Z', 0, 0))
        k('s_mov_b64 exec, -1')
    if not MEGA:
        g.prologue_mixed()
    if not OPT.get('tailst'): stamp(k, 1)
    g.start()
    def epiQ(nb):
        out = []
        for mb in range(2):
            a = g.accr(nb, mb)
            for hh in range(2):
                for r in range(4):
                    out.append('v_cvt_pk_bf16_f32 v%d, v%d, v%d' % (QF(mb, 2*nb+hh) + r, a + hh*8 + 2*r, a + hh*8 + 2*r + 1))
        return out
    g.mainloop(epiQ, tail=1)
    if not OPT.get('tailst'): stamp(k, 2)
    if MEGA and OPT.get('local'):
        k('s_mov_b64 exec, 0xff')
        k('v_cmp_eq_u32 vcc, s3, v22')
        k('s_mov_b64 exec, -1')
        k('s_nop 1')
        k('s_cmp_eq_u32 vcc_lo, 0xff')
        k('s_cselect_b32 s3, 1, 0')
        if OPT.get('forceslow'): k('s_mov_b32 s3, 0')
    k('s_mul_i32 s27, s2, 28672')
    for n_, (lo, sz, add) in enumerate([(PWG, 1024*3584*2, 0), (PWG, 1024*3584*2, 4096), (PWU, 1024*3584*2, 0), (PWU, 1024*3584*2, 4096)]):
        k('s_add_u32 s28, s27, %d' % add)
        k('s_add_u32 s%d, s%d, s28' % (TT[3*n_], lo))
        k('s_addc_u32 s%d, s%d, 0' % (TT[3*n_+1], lo+1))
        k('s_sub_u32 s%d, 0x%x, s28' % (TT[3*n_+2], sz))
    n = k.vm_wait_n(lambda tg: tg[0] in 'KV' and tg[1] == 0)
    k('s_waitcnt vmcnt(%d)' % n)
    k.label(name + '_pro')
    k('s_barrier')
    for i_ in range(5):
        k('s_mov_b32 s%d, %d' % (KT[i_], KSLOT[i_]))
        k('s_mov_b32 s%d, %d' % (VT[i_], VSLOT[i_]))
    for ks in range(8): k('ds_read_b128 %s, v16 offset:%d' % (ar(KF(ks), 4), ks*1024))
    for mb in range(2):
        for p in range(2): k('v_mov_b32 v%d, 0' % LS(mb, p))
    k('s_waitcnt lgkmcnt(0)')
    for mb in range(2):
        for ks in range(8):
            d = vr(SB(0, mb), 16)
            k('%s %s, %s, %s, %s' % (MFMA, d, ar(KF(ks), 4), vr(QF(mb, ks), 4), '0' if ks == 0 else d))
    k('s_nop 3')
    k('s_nop 7')
    for mb in range(2):
        s0 = SB(0, mb); m = 40 + mb
        k('v_max3_f32 v%d, v%d, v%d, v%d' % (m, s0, s0+1, MG(mb)))
        for r in range(2, 16, 2): k('v_max3_f32 v%d, v%d, v%d, v%d' % (m, m, s0+r, s0+r+1))
    k('v_mov_b32 v42, v40')
    k('v_mov_b32 v43, v41')
    k('s_nop 1')
    k('v_permlane32_swap_b32 v40, v42')
    k('v_permlane32_swap_b32 v41, v43')
    k('s_nop 1')
    k('v_max_f32 v40, v40, v42')
    k('v_max_f32 v41, v41, v43')
    for mb in range(2):
        for r in range(16): k('v_sub_f32 v%d, 0, v%d' % (CB(mb) + r, 40+mb))
        for r in range(16): k('v_sub_f32 v%d, v%d, v%d' % (SB(0, mb) + r, SB(0, mb) + r, 40+mb))
    if not OPT.get('tailst'): stamp(k, 3)

    def pair_ops(par, p):
        mb, pp = p // 8, p % 8
        s0 = SB(par, mb); a, b = s0 + 2*pp, s0 + 2*pp + 1
        E = ['v_exp_f32 v%d, v%d' % (a, a), 'v_exp_f32 v%d, v%d' % (b, b)]
        A_ = ['v_add_f32 v%d, v%d, v%d' % (LS(mb, 0), LS(mb, 0), a), 'v_add_f32 v%d, v%d, v%d' % (LS(mb, 1), LS(mb, 1), b)]
        C_ = ['v_cvt_pk_bf16_f32 v%d, v%d, v%d' % (PB(par, mb, pp // 4) + pp % 4, a, b)]
        return E, A_, C_
    def iteration(par, do_pv, do_s, kread_kb, vread_kb, carry_in, gap_extra=None):
        gap_extra = gap_extra or {}
        mf = []
        if do_pv:
            for kk in range(2):
                for db in range(4):
                    for mb in range(2):
                        d = ar(OA(db, mb), 16)
                        mf.append('%s %s, %s, %s, %s' % (MFMA, d, ar(VF(kk*4+db), 4), vr(PB(1-par, mb, kk), 4), d))
        else: mf += [None]*16
        if do_s:
            for mb in range(2):
                for ks in range(8):
                    d = vr(SB(1-par, mb), 16)
                    mf.append('%s %s, %s, %s, %s' % (MFMA, d, ar(KF(ks), 4), vr(QF(mb, ks), 4), vr(CB(mb), 16) if ks == 0 else d))
        else: mf += [None]*16
        pre = {0: ['s_waitcnt lgkmcnt(2)'] if do_pv else []}
        nk = 8 if kread_kb is not None else 0
        if do_pv: pre[12] = ['s_waitcnt lgkmcnt(%d)' % (6 if nk else 0)]
        if do_s:
            pre[16] = ['s_waitcnt lgkmcnt(2)']
            pre[22] = ['s_waitcnt lgkmcnt(3)']
        for g_ in range(32):
            for x in pre.get(g_, []): k(x)
            if mf[g_]: k(mf[g_])
            p = g_ // 2
            if g_ % 2 == 0:
                for x in pair_ops(par, p)[0]: k(x)
                if p >= 1: k(pair_ops(par, p-1)[2][0])
                elif carry_in: k(pair_ops(1-par, 15)[2][0])
            else:
                if p >= 1:
                    for x in pair_ops(par, p-1)[1]: k(x)
                elif carry_in:
                    for x in pair_ops(1-par, 15)[1]: k(x)
                if g_ < 16:
                    if kread_kb is not None: k('ds_read_b128 %s, v16 offset:%d' % (ar(KF(p), 4), kread_kb*8192 + p*1024))
                else:
                    k('ds_read_b128 %s, v17 offset:%d' % (ar(VF(p-8), 4), vread_kb*8192 + (p-8)*1024))
            for x in gap_extra.get(g_, []):
                if isinstance(x, str): k(x)
                else:
                    pre_, ins, tag = x[0], x[1], x[2]
                    for p_ in pre_: k(p_)
                    if pre_ and 'm0' in pre_[-1]: k('s_nop 0')
                    k.vm(ins, tag)
                    if len(x) > 3:
                        for p_ in x[3]: k(p_)
    def touch(half):
        pre = ['s_mov_b32 s16, s%d' % TT[0], 's_mov_b32 s17, s%d' % TT[1], 's_mov_b32 s18, s%d' % TT[2], 's_mov_b32 s19, 0x20000']
        if half: pre += ['s_mov_b32 exec_hi, 0']
        return (pre, 'buffer_load_dword v19, v18, s[16:19], 0 offen', ('T', 0, 0), ['s_mov_b32 exec_hi, -1'] if half else [])
    sh = ['s_mov_b32 s%d, s%d' % (TT[n_], TT[n_+3]) for n_ in range(9)]
    g0 = {}
    for i_, op in enumerate(dma_list([('K', 3), ('V', 3), ('K', 4)])): g0.setdefault(1 + i_, []).append(op)
    g0.setdefault(20, []).extend(['s_mov_b32 s52, %d' % (5*16384), 's_mov_b32 s53, %d' % (4*16384)])
    iteration(0, False, True, 1, 0, False, g0)
    def rot(T): return ['s_mov_b32 s58, s%d' % T[0]] + ['s_mov_b32 s%d, s%d' % (T[i_], T[i_+1]) for i_ in range(4)] + ['s_mov_b32 s%d, s58' % T[4]]
    def trip(with_dma):
        ge = {0: ['v_add_u32 v16, s%d, v8' % KT[1]]}
        if with_dma:
            ge[0] += ['s_waitcnt vmcnt(20)', 's_barrier']
            dm = vdma(53, ['s_add_u32 m0, s32, s%d' % VT[4]], 'n') + kdma(52, ['s_add_u32 m0, s32, s%d' % KT[0]], 'n')
            for i_, op in enumerate(dm): ge.setdefault(2 + 2*i_, []).append(op)
            ge.setdefault(27, []).extend(['s_add_u32 s52, s52, 16384', 's_add_u32 s53, s53, 16384'])
            if not OPT.get('notouch'):
                ge.setdefault(19, []).append(touch(True))
                ge.setdefault(21, []).extend(sh[:5]); ge.setdefault(23, []).extend(sh[5:])
        elif not OPT.get('notouch'):
            ge.setdefault(2, []).append(touch(False))
            ge.setdefault(5, []).extend(sh[:5]); ge.setdefault(7, []).extend(sh[5:])
        ge.setdefault(29, []).extend(rot(KT))
        iteration(1, True, True, 0, 1, True, ge)
        ge2 = {2: ['v_add_u32 v17, s%d, v8' % VT[1]], 4: rot(VT), 31: ['s_sub_u32 s60, s60, 1', 's_cmp_lg_u32 s60, 0']}
        iteration(0, True, True, 1, 0, True, ge2)
    k('s_mov_b32 s60, 4')
    lab = k.L('aloop'); k.label(lab)
    trip(True)
    k('s_cbranch_scc1 %s' % lab)
    k('s_mul_i32 s27, s2, 28672')
    k('s_add_u32 s%d, s%d, s27' % (TT[0], PWD))
    k('s_addc_u32 s%d, s%d, 0' % (TT[1], PWD+1))
    k('s_sub_u32 s%d, 0x%x, s27' % (TT[2], 3584*1024*2))
    k('s_lshl_b32 s27, s20, 20')
    k('s_lshl_b32 s28, s21, 15')
    k('s_add_u32 s27, s27, s28')
    k('s_add_u32 s%d, s%d, s27' % (TT[3], PWO))
    k('s_addc_u32 s%d, s%d, 0' % (TT[4], PWO+1))
    k('s_mov_b32 s%d, 0x8000' % TT[5])
    for n_ in (2, 3):
        k('s_mov_b32 s%d, s%d' % (TT[3*n_], PWS))
        k('s_mov_b32 s%d, s%d' % (TT[3*n_+1], PWS+1))
        k('s_mov_b32 s%d, 0' % TT[3*n_+2])
    k('s_waitcnt vmcnt(%d)' % (0 if OPT.get('notouch') else 1))
    k('s_barrier')
    if MEGA: code_touch(k, name + '_L_oproj', name + '_L_gateup', 30)
    k('s_mov_b32 s60, 3')
    lab = k.L('bloop'); k.label(lab)
    trip(False)
    k('s_cbranch_scc1 %s' % lab)
    g15 = {}
    if MEGA:
        pre15 = ['s_mov_b32 s8, s%d' % PWMOD, 's_mov_b32 s9, s%d' % (PWMOD+1), 's_mov_b32 s10, 0x%x' % (1024*6144*2), 's_mov_b32 s11, 0x20000',
                 's_mov_b32 s12, s%d' % PC_, 's_mov_b32 s13, s%d' % (PC_+1), 's_mov_b32 s14, 2048', 's_mov_b32 s15, 0x20000',
                 's_lshr_b32 s52, s2, 6', 's_and_b32 s53, s2, 63', 's_lshl_b32 s54, s52, 14', 's_lshl_b32 s55, s53, 8', 's_add_u32 s54, s54, s55',
                 's_lshl_b32 s52, s52, 8', 's_lshl_b32 s53, s53, 7', 's_add_u32 s53, s53, 4096']
        gl = gemv_load(k, 8, 52, 53, AD=48, C=52, LDB=128, emit=False)
        items = pre15 + gl
        for i_, x in enumerate(items): g15.setdefault(2 + (i_ * 24) // len(items), []).append(x)
    iteration(1, True, False, None, 1, True, g15)
    for x in pair_ops(1, 15)[1] + pair_ops(1, 15)[2]: k(x)
    k('v_add_f32 v40, v%d, v%d' % (LS(0, 0), LS(0, 1)))
    k('v_add_f32 v41, v%d, v%d' % (LS(1, 0), LS(1, 1)))
    k('v_mov_b32 v42, v40')
    k('v_mov_b32 v43, v41')
    k('s_nop 1')
    k('v_permlane32_swap_b32 v40, v42')
    k('v_permlane32_swap_b32 v41, v43')
    k('s_nop 1')
    k('v_add_f32 v40, v40, v42')
    k('v_add_f32 v41, v41, v43')
    k('v_mov_b32 v43, 0x%x' % f2u(2.0**100))
    k('v_cmp_nlt_f32 vcc, v40, v43')
    k('v_cmp_nlt_f32 s[6:7], v41, v43')
    k('v_rcp_f32 v40, v40')
    k('v_rcp_f32 v41, v41')
    k('s_or_b64 vcc, vcc, s[6:7]')
    k('s_cmp_lg_u64 vcc, 0')
    k('s_cselect_b32 s58, 1, 0')
    k('v_mov_b32 v43, s58')
    k('s_lshl_b32 s58, s26, 2')
    k('s_add_u32 s58, s58, %d' % FLAG)
    k('v_mov_b32 v44, s58')
    k('ds_write_b32 v44, v43')
    srd(k, 16, PWS, 0x1000000, WS_O)
    k('s_lshl_b32 s27, s34, 8')
    k('s_lshl_b32 s28, s62, 3')
    k('s_add_u32 s27, s27, s28')
    k('s_lshl_b32 s60, s27, 10')
    k('s_add_u32 s61, s60, 0x40000')
    k('v_add_u32 v20, 4096, v8')
    k('s_waitcnt lgkmcnt(0)')
    set_local_vcc(k)
    stamp(k, 4 if not OPT.get('tailst') else 0)
    order = [(db, mb) for db in range(4) for mb in range(2)]
    def epiO(i):
        db, mb = order[i]; a = OA(db, mb); out = []
        for hh in range(2):
            t = (224, 240, 192)[(2*i + hh) % 3]
            out += ['v_accvgpr_read_b32 v%d, a%d' % (t+r, a + hh*8 + r) for r in range(8)]
            out += ['v_mul_f32 v%d, v%d, v%d' % (t+r, t+r, 40+mb) for r in range(8)]
            out += ['v_cvt_pk_bf16_f32 v%d, v%d, v%d' % (t+8+r, t+2*r, t+2*r+1) for r in range(4)]
            ks = 2*db + hh
            out += local_store(k, 'buffer_store_dwordx4 %s, v%d, s[16:19], s%d offen offset:%d' % (vr(t+8, 4), 8 if ks < 4 else 20, 60+mb, (ks % 4)*1024))
        return out
    M = []
    for i, (db, mb) in enumerate(order):
        d = ar(OA(db, mb), 16)
        for kk in range(2):
            M.append('%s %s, %s, %s, %s' % (MFMA, d, ar(VF(kk*4+db), 4), vr(PB(1, mb, kk), 4), d))
    for idx in range(6): k(M[idx])
    k('s_nop 7')
    for i in range(8):
        for x in epiO(i): k(x)
        for idx in (2*i+6, 2*i+7):
            if idx < 16: k(M[idx])
    if OPT.get('tailst'): stamp(k, 1)
    k('s_barrier')
    k('v_mov_b32 v44, %d' % FLAG)
    k('ds_read_b128 v[44:47], v44')
    k('s_waitcnt lgkmcnt(0)')
    k('v_or3_b32 v44, v44, v45, v46')
    k('v_or_b32 v44, v44, v47')
    k('s_nop 0')
    k('v_readfirstlane_b32 s58, v44')
    k('s_nop 3')
    k('s_cmp_lg_u32 s59, 0')
    k('s_cbranch_scc1 %s_fin' % name)
    k('s_cmp_lg_u32 s58, 0')
    k('s_cbranch_scc1 %s_slow' % name)
    k.label(name + '_fin')
    def post():
        srd(k, 16, PWS, 0x10000, WS_MODB)
        gemv_compute(k, 8, 54, 16, 65536, 24, B=192, C=52, LDB=128)
        lab = k.L('mb')
        k('s_cmp_lg_u32 s26, 0')
        k('s_cbranch_scc1 %s' % lab)
        k('s_waitcnt vmcnt(0)')
        k('v_mov_b32 v2, 8')
        k('v_mov_b32 v3, 1')
        k('s_mov_b64 exec, 1')
        k('global_atomic_add v2, v3, s[%d:%d] sc1' % (PDBG, PDBG+1))
        k('s_mov_b64 exec, -1')
        k.label(lab)
    def slow():
        k.label(name + '_slow')
        k('s_mov_b32 s59, 1')
        k('s_lshl_b32 s27, s22, 17')
        k('s_add_u32 s28, s27, 0x%x' % WS_KF)
        srd_s(k, 44, PWS, 28, 0x20000)
        k('s_mov_b32 s58, 0')
        lab2 = k.L('slow'); k.label(lab2)
        k('s_add_u32 s27, s58, 4096')
        for ks in range(8): k('buffer_load_dwordx4 %s, v8, s[44:47], s%d offen offset:%d %s' % (ar(KF(ks), 4), 58 if ks < 4 else 27, (ks % 4)*1024, kvflag))
        k('s_waitcnt vmcnt(0)')
        for mb in range(2):
            for ks in range(8):
                d = vr(SB(0, mb), 16)
                k('%s %s, %s, %s, %s' % (MFMA, d, ar(KF(ks), 4), vr(QF(mb, ks), 4), '0' if ks == 0 else d))
        k('s_nop 7')
        k('s_nop 7')
        for mb in range(2):
            s0 = SB(0, mb)
            for r in range(0, 16, 2): k('v_max3_f32 v%d, v%d, v%d, v%d' % (MG(mb), MG(mb), s0+r, s0+r+1))
        k('s_add_u32 s58, s58, 8192')
        k('s_cmp_lt_u32 s58, 0x20000')
        k('s_cbranch_scc1 %s' % lab2)
        k('v_add_u32 v16, %d, v8' % KSLOT[0])
        k('v_add_u32 v17, %d, v8' % VSLOT[0])
        for db in range(4):
            for mb in range(2):
                for r in range(16): k('v_accvgpr_write_b32 a%d, 0' % (OA(db, mb) + r))
        for n_ in range(4):
            k('s_mov_b32 s%d, s%d' % (TT[3*n_], PWS))
            k('s_mov_b32 s%d, s%d' % (TT[3*n_+1], PWS+1))
            k('s_mov_b32 s%d, 0' % TT[3*n_+2])
        k('s_barrier')
        for pre, ins, tag in initial_dmas():
            for p_ in pre: k(p_)
            if pre: k('s_nop 0')
            k(ins)
        k('s_waitcnt vmcnt(0)')
        k('s_branch %s_pro' % name)
    return slow, post

GU_STG = 28928; GU_UP = 14464
def gateup_setup(k, init_state=True):
    vL = [4, 5]; vX = [8, 9]; vW = [10, 11, 12, 13, 14, 15, 16]
    k('s_lshl_b32 s35, s22, 3')
    k('s_add_u32 s35, s35, s25')
    k('v_lshrrev_b32 v20, 5, v1')
    k('v_lshlrev_b32 v20, 3, v20')
    k('v_bfe_u32 v21, v1, 2, 2')
    k('v_add_u32 v20, v20, v21')
    k('v_mul_u32_u24 v20, 224, v20')
    k('v_bfe_u32 v21, v1, 4, 1')
    k('v_mul_u32_u24 v21, %d, v21' % GU_UP)
    k('v_add_u32 v20, v20, v21')
    k('v_and_b32 v21, 1, v1')
    k('v_lshl_add_u32 v20, v21, 4, v20')
    k('v_bfe_u32 v21, v1, 1, 1')
    k('v_lshl_add_u32 v4, v21, 3, v20')
    k('v_add_u32 v5, %d, v4' % (2*GU_STG))
    k('v_lshlrev_b32 v8, 4, v1')
    k('v_add_u32 v9, 0x10000, v8')
    k('s_and_b32 s27, s26, 1')
    k('s_mul_i32 s28, s27, 448')
    k('s_mul_i32 s29, s35, 224')
    for i in range(7):
        k('v_add_u32 v20, s28, v1')
        if i: k('v_add_u32 v20, %d, v20' % (64*i))
        k('v_mul_u32_u24 v21, 4682, v20')
        k('v_lshrrev_b32 v21, 16, v21')
        k('v_mul_u32_u24 v22, 14, v21')
        k('v_sub_u32 v22, v20, v22')
        k('v_mul_u32_u24 v21, 7168, v21')
        k('v_lshl_add_u32 v21, v22, 4, v21')
        k('v_add_u32 v21, s29, v21')
        k('v_subrev_u32 v%d, %d, v21' % (vW[i], (i % 4)*1024))
    srd(k, 8, PWS, 0x400000, WS_H2)
    k('s_cmp_ge_u32 s26, 2')
    k('s_cselect_b32 s12, s%d, s%d' % (PWU, PWG))
    k('s_cselect_b32 s13, s%d, s%d' % (PWU+1, PWG+1))
    k('s_mov_b32 s14, 0x%x' % (1024*7168))
    k('s_mov_b32 s15, 0x20000')
    k('s_lshl_b32 s27, s24, 3')
    k('s_lshl_b32 s28, s26, 1')
    k('s_add_u32 s34, s27, s28')
    k('s_lshl_b32 s38, s34, 16')
    k('s_add_u32 s38, s38, %d' % (15*4096))
    if init_state:
        k('s_lshl_b32 s30, s34, 16')
        k('s_sub_u32 s30, s30, 4096')
        k('s_mov_b32 s31, 0x%x' % ((-64*7168) & 0xffffffff))
    k('s_lshr_b32 s27, s26, 1')
    k('s_mul_i32 s32, s27, %d' % GU_UP)
    k('s_and_b32 s27, s26, 1')
    k('s_mul_i32 s27, s27, 7168')
    k('s_add_u32 s32, s32, s27')
    return vL, vX, vW

def gateup_gemm(k, regs, extra=None):
    vL, vX, vW = regs
    return Gemm(k, 7, 16, acc=32, xr=0, wf=128, vX=vX, vW=vW, sXsrd=8, sWsrd=12, sXoff=30, sWoff=31, sM0=32, sCnt=33,
             stage_bytes=GU_STG, ldw_step=64*7168, nW=7,
             lds_imm=lambda buf, j, nb, sec: (vL[buf // 2], (buf % 2)*GU_STG + j*3584 + sec*896 + nb*32), extra=extra, xflag=LD(), tail4=(TAILGU() == 4))

def gateup_main(k, g, next_prefetch=None):
    srd(k, 16, PWS, 2048*3584*2, WS_ACT)
    k('s_mul_i32 s27, s34, 224')
    k('s_mul_i32 s28, s35, 7')
    k('s_add_u32 s27, s27, s28')
    k('s_lshl_b32 s36, s27, 10')
    k('s_add_u32 s37, s36, %d' % (224*1024))
    k('s_mov_b32 s40, 0x%x' % f2u(-LOG2E))
    k('s_mov_b32 s41, 0x%x' % f2u(-LOG2E))
    k('v_add_u32 v31, 4096, v8')
    k('v_mov_b32 v30, v8')
    k('v_mov_b32 v29, 0x%x' % f2u(-LOG2E))
    set_local_vcc(k)
    if not OPT.get('stepst'): stamp(k, 1)
    g.start()
    stamp(k, 2)
    def epi(b):
        out = []
        for mb in range(2):
            a = g.accr(b, mb)
            t = 17 + mb*4
            for h in range(2):
                e = a + 4*h
                out += ['v_exp_f32 v%d, v%d' % (t+i, e+i) for i in range(4)]
                out += ['v_mul_f32 v%d, v%d, v%d' % (e+i, e+i, e+8+i) for i in range(4)]
                out += ['v_add_f32 v%d, 1.0, v%d' % (t+i, t+i) for i in range(4)]
                out += ['v_rcp_f32 v%d, v%d' % (t+i, t+i) for i in range(4)]
                out += ['s_nop 0']
                out += ['v_mul_f32 v%d, v%d, v%d' % (e+i, e+i, t+i) for i in range(4)]
            out += ['v_cvt_pk_bf16_f32 v%d, v%d, v%d' % (a+8+i, a+2*i, a+2*i+1) for i in range(4)]
            ins = 'buffer_store_dwordx4 %s, v%d, s[16:19], s%d offen offset:%d' % (vr(a+8, 4), 30 if b < 4 else 31, 36+mb, (b % 4)*1024)
            out.append('\n'.join(local_store(k, ins)) if OPT.get('localact') else ins + ' ' + ST)
        return out
    g.mainloop(epi, tail=TAILGU())
    stamp(k, 3)
    if next_prefetch: next_prefetch()

def resume_m0(k, g):
    k('s_add_u32 m0, s%d, 0x%x' % (g.sM0, 2*g.stage))

def build():
    kerns = []
    if MEGA:
        name = NAME + '_kernel'
        k = Kern(name, nvgpr=512, accum=256, nsgpr=102, lds=163840)
        def early():
            code_touch(k, name + '_c1', name + '_cend', 30)
            k.label(name + '_c1')
        header(k, name, early)
        rt_mark(k, 0)
        phase_p0(k, name)
        rt_mark(k, 1)
        phase_ln1b(k)
        rt_mark(k, 2)
        slow, post = phase_attn(k, name)
        def a3():
            k('s_lshl_b32 s27, s24, 2'); k('s_add_u32 s27, s27, s22'); k('s_add_u32 s27, s27, %d' % C_S3); cnt_addr(k, 27)
        arrive(k, a3, count=8, flag_off=128)
        g = gemm128_setup(k, 'oproj'); g.prologue_w()
        post()
        stamp_flush(k, 'attn', 5)
        k.label(name + '_L_oproj')
        rt_mark(k, 3)
        stamp_rt0(k, 'oproj'); stamp(k, 0) if not OPT.get('stepst') else None
        waitfor(k, a3, 1, off=128, direct=8)
        resume_m0(k, g)
        g.prologue_x()
        gemm128_main(k, 'oproj', g)
        def a4():
            k('s_add_u32 s27, s24, %d' % C_S4); cnt_addr(k, 27)
        arrive(k, a4, count=32, flag_off=128)
        regs = gateup_setup(k)
        gg = gateup_gemm(k, regs)
        gg.prologue_w()
        code_touch(k, name + '_L_gateup', name + '_L_down', 30)
        stamp_flush(k, 'oproj', 4)
        rt_mark(k, 4)
        phase_ln2(k, 'ln2')
        k.label(name + '_L_gateup')
        rt_mark(k, 5)
        stamp_rt0(k, 'gateup'); stamp(k, 0) if not OPT.get('stepst') else None
        gateup_setup(k, init_state=False)
        def a5():
            k('s_add_u32 s27, s24, %d' % C_S5); cnt_addr(k, 27)
        waitfor(k, a5, 1, off=128, direct=32)
        resume_m0(k, gg)
        gg.prologue_x()
        gateup_main(k, gg)
        def a6():
            k('s_lshl_b32 s27, s24, 2'); k('s_add_u32 s27, s27, s22'); k('s_add_u32 s27, s27, %d' % C_S6); cnt_addr(k, 27)
        arrive(k, a6, count=8, flag_off=128)
        g = gemm128_setup(k, 'down'); g.prologue_w()
        code_touch(k, name + '_L_down', name + '_cend', 60)
        stamp_flush(k, 'gateup', 4)
        k.label(name + '_L_down')
        rt_mark(k, 6)
        stamp_rt0(k, 'down'); stamp(k, 0) if not OPT.get('stepst') else None
        waitfor(k, a6, 1, off=128, direct=8)
        resume_m0(k, g)
        g.prologue_x()
        gemm128_main(k, 'down', g)
        def a7():
            k('s_add_u32 s27, s24, %d' % C_S7); cnt_addr(k, 27)
        arrive(k, a7, count=32, flag_off=128)
        stamp_flush(k, 'down', 4)
        rt_mark(k, 7)
        phase_ln2(k, 'final')
        rt_dump(k)
        if OPT.get('padto'):
            lab = k.L('pad')
            k.label(lab)
            k('s_memrealtime s[100:101]')
            k('s_waitcnt lgkmcnt(0)')
            k('s_sub_u32 s27, s100, s92')
            k('s_cmp_lt_u32 s27, %d' % (int(OPT['padto'])*100))
            k('s_cbranch_scc1 %s' % lab)
        if OPT.get('diagxcd'):
            lab = k.L('de')
            k('s_or_b32 s27, s2, s26')
            k('s_cmp_lg_u32 s27, 0')
            k('s_cbranch_scc1 %s' % lab)
            k('v_mov_b32 v2, 0')
            k('global_load_dwordx4 v[4:7], v2, s[%d:%d] offset:168 sc1' % (PDBG, PDBG+1))
            k('global_load_dwordx4 v[8:11], v2, s[%d:%d] offset:184 sc1' % (PDBG, PDBG+1))
            k('s_waitcnt vmcnt(0)')
            k('s_mov_b32 s29, 0')
            for i in range(8):
                k('v_readfirstlane_b32 s27, v%d' % (4+i))
                k('s_nop 3')
                k('s_bcnt1_i32_b32 s27, s27')
                k('s_add_u32 s29, s29, s27')
            k('s_sub_u32 s29, s29, 8')
            k('s_mul_i32 s29, s29, 2')
            k.label(lab + '_l')
            k('s_cmp_eq_u32 s29, 0')
            k('s_cbranch_scc1 %s' % lab)
            k('s_sleep 64')
            k('s_sub_u32 s29, s29, 1')
            k('s_branch %s_l' % lab)
            k.label(lab)
        k('s_endpgm')
        slow()
        k.label(name + '_cend')
        k.label(name + '_end')
        k('s_endpgm')
        kerns.append(k)
    else:
        def kern(nm, lds):
            k = Kern(nm, nvgpr=512, accum=256, nsgpr=102, lds=lds); header(k, nm); return k
        def fin(k):
            k.label(k.name + '_end'); k('s_endpgm'); kerns.append(k)
        k = kern('p0_kernel', 163840); phase_p0(k, k.name); stamp_flush(k, 'p0', 3); fin(k)
        k = kern('ln1_kernel', 163840)
        ln_addr(k); srd(k, 8, PX, 0x400000)
        for j in range(4): k('buffer_load_dwordx4 %s, v6, s[8:11], s44 offen offset:%d' % (vr(RAW + 4*j, 4), j*128))
        k('s_waitcnt vmcnt(0)'); tr8x8(k, RAW, 4, 240, 241); ln_unpack(k, RAW); ln_stats(k); phase_ln1b(k); fin(k)
        k = kern('attn_kernel', 163840); slow, post = phase_attn(k, k.name); stamp_flush(k, 'attn', 5); k('s_endpgm'); slow(); fin(k)
        k = kern('oproj_kernel', 65536); stamp_rt0(k, 'oproj'); stamp(k, 0); g = gemm128_setup(k, 'oproj'); g.prologue_mixed(); gemm128_main(k, 'oproj', g); stamp_flush(k, 'oproj', 4); fin(k)
        k = kern('ln2_kernel', 163840); phase_ln2(k, 'ln2'); fin(k)
        k = kern('gateup_kernel', 4*GU_STG); stamp_rt0(k, 'gateup'); stamp(k, 0); regs = gateup_setup(k); gg = gateup_gemm(k, regs); gg.prologue_mixed(); gateup_main(k, gg); stamp_flush(k, 'gateup', 4); fin(k)
        k = kern('down_kernel', 65536); stamp_rt0(k, 'down'); stamp(k, 0); g = gemm128_setup(k, 'down'); g.prologue_mixed(); gemm128_main(k, 'down', g); stamp_flush(k, 'down', 4); fin(k)
        k = kern('final_kernel', 163840); phase_ln2(k, 'final'); fin(k)
    return kerns

HEADER = open('cdna_kernels/%s.s.ref' % NAME).read().split('; Override launch')[0] if os.path.exists('cdna_kernels/%s.s.ref' % NAME) else ''

def assemble(kerns):
    out = [HEADER.rstrip()]
    if MEGA:
        kn = kerns[0]
        out.append('; @launch grid=(%d,1,1) block=(%d,1,1) lds=%d' % (kn.grid, kn.block, kn.lds))
    else:
        for kn in kerns:
            out.append('; @launch kernel=%s grid=(%d,1,1) block=(%d,1,1) lds=%d' % (kn.name, kn.grid, kn.block, kn.lds))
    out.append('.amdgcn_target "amdgcn-amd-amdhsa--gfx950"')
    for kn in kerns: out.append(kn.text())
    out.append('.section .rodata,"a"')
    for kn in kerns:
        out.append('.p2align 6'); out.append(kn.desc())
    return '\n'.join(out) + '\n'

if __name__ == '__main__':
    for a in sys.argv[2:]:
        if a == 'instr': INSTR = True
        elif a == 'mega': MEGA = True
        elif a.startswith('opt:'): OPT[a[4:].split('=')[0]] = (a.split('=')[1].replace('+', ' ') if '=' in a else True)
    ks = build()
    bad = 0
    for kn in ks: bad += len(check(kn))
    txt = assemble(ks)
    txt = '\n'.join(l[4:] if l.startswith('    ') else l for l in txt.split('\n'))
    open(sys.argv[1], 'w').write(txt)
    print('generated', len(txt), 'bytes; check errors:', bad)
```
